```python
import torch

def _softmax(x, axis=-1):
    return torch.softmax(x, dim=axis)
def _gelu(x):
    return torch.nn.functional.gelu(x, approximate="tanh")
def _silu(x):
    return torch.nn.functional.silu(x)
def _sigmoid(x):
    return torch.sigmoid(x)
def _layernorm(x, axis=-1, eps=1e-5):
    m = x.mean(dim=axis, keepdim=True)
    v = x.var(dim=axis, keepdim=True, unbiased=False)
    return (x - m) / torch.sqrt(v + eps)
def _scatter_add(tgt, idx, src, axis=0):
    return tgt.clone().index_add_(axis, idx, src)
def _segment_sum(src, seg, n):
    out = torch.zeros((n,) + src.shape[1:], dtype=src.dtype)
    return out.index_add_(0, seg, src)
def _pad(x, pw):
    flat = tuple(v for pair in reversed(pw) for v in pair)
    return torch.nn.functional.pad(x, flat)

kernel_name = 'concat_heads__gqa_block_cached__gqa_block_cached__near_ridge'

def setup_inputs():

    _w = (lambda a: (lambda t: t.to(torch.bfloat16) if t.is_floating_point() else t)(torch.as_tensor(a)))
    def _A_setup():
        B, Sq, D = 8, 128, 448
        Hq, Hkv, Sk, Dh = 16, 8, 2048, 256
        assert Hq % Hkv == 0, (Hq, Hkv)
        return {
            "x": _w((lambda *s: torch.randn(*s, dtype=torch.bfloat16) * 0.8)(B, Sq, D)),
            "k_cache": _w((lambda *s: torch.randn(*s, dtype=torch.bfloat16) * 0.8)(B, Hkv, Sk, Dh)),
            "v_cache": _w((lambda *s: torch.randn(*s, dtype=torch.bfloat16) * 0.05)(B, Hkv, Sk, Dh)),
            "wq": _w((lambda *s: torch.randn(*s, dtype=torch.bfloat16) * 0.8)(D, Hq * Dh) * (D ** -0.5)),
            "wo": _w((lambda *s: torch.randn(*s, dtype=torch.bfloat16) * 0.05)(Hq * Dh, D) * ((Hq * Dh) ** -0.5)),
        }
    _A_in = _A_setup()

    def _B_setup():
        B, Sq, D = 8, 128, 448
        Hq, Hkv, Sk, Dh = 16, 8, 2048, 256
        assert Hq % Hkv == 0, (Hq, Hkv)
        return {
            "x": _w((lambda *s: torch.randn(*s, dtype=torch.bfloat16) * 0.8)(B, Sq, D)),
            "k_cache": _w((lambda *s: torch.randn(*s, dtype=torch.bfloat16) * 0.8)(B, Hkv, Sk, Dh)),
            "v_cache": _w((lambda *s: torch.randn(*s, dtype=torch.bfloat16) * 0.05)(B, Hkv, Sk, Dh)),
            "wq": _w((lambda *s: torch.randn(*s, dtype=torch.bfloat16) * 0.8)(D, Hq * Dh) * (D ** -0.5)),
            "wo": _w((lambda *s: torch.randn(*s, dtype=torch.bfloat16) * 0.05)(Hq * Dh, D) * ((Hq * Dh) ** -0.5)),
        }
    _B_in = _B_setup()

    return {
        "A_x": _A_in["x"],
        "A_k_cache": _A_in["k_cache"],
        "A_v_cache": _A_in["v_cache"],
        "A_wq": _A_in["wq"],
        "A_wo": _A_in["wo"],
        "B_x": _B_in["x"],
        "B_k_cache": _B_in["k_cache"],
        "B_v_cache": _B_in["v_cache"],
        "B_wq": _B_in["wq"],
        "B_wo": _B_in["wo"],
    }

def reference(A_x, A_k_cache, A_v_cache, A_wq, A_wo, B_x, B_k_cache, B_v_cache, B_wq, B_wo):
    def _A_ref(x, k_cache, v_cache, wq, wo):
        B, Sq, D = x.shape
        Hq, Dh = 16, 256
        Hkv = k_cache.shape[1]
        rep = Hq // Hkv
        q = (lambda x, *d: x.permute(*d))((x @ wq).reshape(B, Sq, Hq, Dh), 0, 2, 1, 3)
        k = (lambda x, n, axis: torch.repeat_interleave(x, n, dim=axis))(k_cache, rep, axis=1)
        v = (lambda x, n, axis: torch.repeat_interleave(x, n, dim=axis))(v_cache, rep, axis=1)
        scores = torch.einsum("bhqd,bhkd->bhqk", q, k) * (Dh ** -0.5)
        p = _softmax(scores, axis=-1)
        o = torch.einsum("bhqk,bhkd->bhqd", p, v)
        return (lambda x, *d: x.permute(*d))(o, 0, 2, 1, 3).reshape(B, Sq, Hq * Dh) @ wo

    def _B_ref(x, k_cache, v_cache, wq, wo):
        B, Sq, D = x.shape
        Hq, Dh = 16, 256
        Hkv = k_cache.shape[1]
        rep = Hq // Hkv
        q = (lambda x, *d: x.permute(*d))((x @ wq).reshape(B, Sq, Hq, Dh), 0, 2, 1, 3)
        k = (lambda x, n, axis: torch.repeat_interleave(x, n, dim=axis))(k_cache, rep, axis=1)
        v = (lambda x, n, axis: torch.repeat_interleave(x, n, dim=axis))(v_cache, rep, axis=1)
        scores = torch.einsum("bhqd,bhkd->bhqk", q, k) * (Dh ** -0.5)
        p = _softmax(scores, axis=-1)
        o = torch.einsum("bhqk,bhkd->bhqd", p, v)
        return (lambda x, *d: x.permute(*d))(o, 0, 2, 1, 3).reshape(B, Sq, Hq * Dh) @ wo

    a = _A_ref(A_x, A_k_cache, A_v_cache, A_wq, A_wo)
    b = _B_ref(B_x, B_k_cache, B_v_cache, B_wq, B_wo)
    return torch.concatenate([a, b], axis=-1)
```

```python
import sys, math, argparse, struct

NAME = "concat_heads__gqa_block_cached__gqa_block_cached__near_ridge"

def f32bits(x):
    return struct.unpack("<I", struct.pack("<f", x))[0]

class Cfg:
    LEAD = 8
    DEAD = 4
    NB = 16
    SAFE = 3
    DMASTEP = 2
    XMASK = 0
    dma_flags = ""
    no_mfma = False
    no_sm = False
    no_dma = False
    no_read = False
    stamp = False
    touch = 0

def V(lo, n=1): return [("v", lo + i) for i in range(n)]
def Areg(lo, n=1): return [("a", lo + i) for i in range(n)]
def vr(lo, n=1): return f"v{lo}" if n == 1 else f"v[{lo}:{lo+n-1}]"
def ar(lo, n=1): return f"a{lo}" if n == 1 else f"a[{lo}:{lo+n-1}]"

O0 = 128
S_ = [96, 112]
NEGM = 80
P_ = [64, 72]
QF = 0
FR = 64
XF = 192
vKB = 0
vVB = 8
vKD = 12
vVD = 16
vWD = 18
vXD = 22
vQA = 26
vXA = 30
vL = 34; vPS = 35; vINV = 36; vST = 37; vD = 38; vF = 39
vT = 40
vE = 48
sX, sWQ, sK, sV, sWO, sPT = 4, 8, 12, 16, 20, 24
sW4K, sKlin, sVlin, sKoff, sVoff, sMask, sCnt, sTmp, sW28K, sW128K, sW8K = 28, 29, 30, 31, 32, 33, 34, 35, 36, 37, 38
sRet = 40
sWave = 39

KRING = 98304
VRING = 32768
def kslot(m): return ((m + 3) % 4) * 16384
def vslot(m): return ((m + 1) % 4) * 16384
def qregion(s): return [0, 98304, 49152][s % 3]

class I:
    __slots__ = ("t", "k", "rd", "wr", "cost", "tag", "c")
    def __init__(s, t, k, rd=(), wr=(), cost=4, tag=None, c=()):
        s.t, s.k, s.rd, s.wr, s.cost, s.tag, s.c = t, k, list(rd), list(wr), cost, tag, list(c)

def valu(t, rd=(), wr=()): return I(t, "valu", rd, wr)
def trans(t, rd=(), wr=()): return I(t, "trans", rd, wr, cost=8)
def salu(t, wr=()): return I(t, "salu", (), wr)

class Body:
    def __init__(s, name):
        s.name = name
        s.mf = []
        s.reads = []
        s.need = []
        s.dma = []
        s.valu = []
        s.after_reads = []
        s.tail = []
        s.head = []

def dma_group(srd, voffs, soff_setup, soff, m0val, tag, flags=""):
    g = list(soff_setup)
    g.append(salu(f"s_add_u32 m0, s{m0val[0]}, {m0val[1]}", wr=[("m0", 0)]))
    for k in range(4):
        off = f" offset:{k*1024}" if k else ""
        g.append(I(f"buffer_load_dwordx4 v{voffs[k]}, s[{srd}:{srd+3}], s{soff} offen{off}{flags} lds",
                   "dma", rd=[("v", voffs[k]), ("m0", 0)], tag=tag))
    return g

def g_k(m, cfg):
    return dma_group(sK, [vKD + k for k in range(4)],
                     [salu(f"s_xor_b32 s{sKoff}, s{sKlin}, s{sMask}"), salu(f"s_add_u32 s{sKlin}, s{sKlin}, 16384")],
                     sKoff, (sW4K, KRING + kslot(m)), ("K", m), cfg.dma_flags)
def g_v(m, cfg):
    return dma_group(sV, [vVD + (k & 1) for k in range(4)],
                     [salu(f"s_xor_b32 s{sVoff}, s{sVlin}, s{sMask}"), salu(f"s_add_u32 s{sVlin}, s{sVlin}, 16384")],
                     sVoff, (sW4K, VRING + vslot(m)), ("V", m), cfg.dma_flags)
def g_wo(j, half):
    m = 64 + j
    ring = (KRING + kslot(m)) if half == 0 else (VRING + vslot(m))
    so = sKoff if half == 0 else sVoff
    return dma_group(sWO, [vWD + k for k in range(4)],
                     [salu(f"s_add_u32 s{so}, s{sW28K}, {half*128*896 + 128*j}")],
                     so, (sW4K, ring), ("K" if half == 0 else "V", m))
def g_stage(s):
    rb = qregion(s)
    gs = []
    gs.append(dma_group(sX, [vXD + k for k in range(4)],
                        [salu(f"s_add_u32 s{sTmp}, s{sW28K}, {128*s}")], sTmp, (sW4K, rb + 32768), ("Q", s)))
    for kk in range(2):
        gs.append(dma_group(sWQ, [vWD + k for k in range(4)],
                            [salu(f"s_add_u32 s{sTmp}, s{sW128K}, {(64*s + 8*kk)*8192}")], sTmp,
                            (sW8K, rb + kk * 4096), ("Q", s)))
    return gs

def sm_instrs(n, fix=False):
    S = S_[n % 2]; P = P_[n % 2]
    out = []
    pend = []
    for k in range(8):
        t0 = vT + (2 * k) % 8; t1 = t0 + 1
        if fix:
            out.append(valu(f"v_add_f32 v{S+2*k}, v{NEGM}, v{S+2*k}", rd=V(S+2*k)+V(NEGM), wr=V(S+2*k)))
            out.append(valu(f"v_add_f32 v{S+2*k+1}, v{NEGM}, v{S+2*k+1}", rd=V(S+2*k+1)+V(NEGM), wr=V(S+2*k+1)))
        out.append(trans(f"v_exp_f32 v{t0}, v{S+2*k}", rd=V(S+2*k), wr=V(t0)))
        if pend: out.append(pend.pop(0))
        out.append(trans(f"v_exp_f32 v{t1}, v{S+2*k+1}", rd=V(S+2*k+1), wr=V(t1)))
        out += pend; pend = []
        if k == 0:
            pend.append(valu(f"v_add_f32 v{vPS}, v{t0}, v{t1}", rd=V(t0, 2), wr=V(vPS)))
        else:
            pend.append(valu(f"v_add_f32 v{vPS}, v{vPS}, v{t0}", rd=V(t0)+V(vPS), wr=V(vPS)))
            pend.append(valu(f"v_add_f32 v{vPS}, v{vPS}, v{t1}", rd=V(t1)+V(vPS), wr=V(vPS)))
        pend.append(valu(f"v_cvt_pk_bf16_f32 v{P+k}, v{t0}, v{t1}", rd=V(t0, 2), wr=V(P+k)))
    out += pend
    return out

def rowmax_instrs(S):
    o = []
    o.append(valu(f"v_max3_f32 v{vD}, v{S}, v{S+1}, v{S+2}", rd=V(S, 3), wr=V(vD)))
    for k in range(3, 15, 2):
        o.append(valu(f"v_max3_f32 v{vD}, v{vD}, v{S+k}, v{S+k+1}", rd=V(S+k, 2)+V(vD), wr=V(vD)))
    o.append(valu(f"v_max_f32 v{vD}, v{vD}, v{S+15}", rd=V(S+15)+V(vD), wr=V(vD)))
    o.append(valu(f"v_mov_b32 v{vF}, v{vD}", rd=V(vD), wr=V(vF)))
    o.append(I(f"v_permlane32_swap_b32 v{vD}, v{vF}", "perm", rd=V(vD)+V(vF), wr=V(vD)+V(vF)))
    o.append(valu(f"v_max_f32 v{vD}, v{vD}, v{vF}", rd=V(vD)+V(vF), wr=V(vD)))
    return o

def ob_reg(db):
    return [S_[0], S_[0] + 8, S_[1], S_[1] + 8, NEGM, NEGM + 8, P_[0], P_[1]][db]

def build_bodies(cfg):
    B = []
    for s in range(7):
        b = Body(f"qp{s}")
        order = [(kt, db) for kt in range(4) for db in range(8)] if s < 6 else [(kt, db) for db in range(8) for kt in range(4)]
        xdone = set()
        def xread(kt):
            b.reads.append((("X", s, kt), [("ds_read_b128", vXA + kt, 0, 0, 4)], XF + ((s % 2) * 4 + kt) * 4))
        if s == 6:
            for kt in range(4): xread(kt); xdone.add(kt)
        for (kt, db) in order:
            if kt not in xdone:
                xread(kt); xdone.add(kt)
            key = ("WQ", s, kt, db)
            b.reads.append((key, [("ds_read_b64_tr_b16", vQA + db % 4, (16*kt + 4*jj) * 512 + (db // 4) * 256, 2*jj, 2) for jj in range(2)], None))
            xf = XF + ((s % 2) * 4 + kt) * 4
            d = O0 + 16 * db
            first = (s == 0 and kt == 0)
            b.mf.append((d, key, ar(xf, 4), Areg(xf, 4), "0" if first else vr(d, 16), [] if first else V(d, 16), [("X", s, kt)]))
        b.need = [("Q", s)]
        if s < 6:
            delta = qregion(s + 1) - qregion(s)
            for r in list(range(vQA, vQA + 4)) + list(range(vXA, vXA + 4)):
                b.after_reads.append(valu(f"v_add_u32 v{r}, {delta & 0xffffffff}, v{r}", rd=V(r), wr=V(r)))
        if s <= 3: b.dma = g_stage(s + 3)
        elif s == 4: b.dma = [g_k(1, cfg), g_k(2, cfg), g_k(3, cfg)]
        elif s == 5: b.dma = [g_v(0, cfg), g_v(1, cfg), g_v(2, cfg)]
        else: b.dma = [g_v(3, cfg)]
        B.append(b)
    b = B[6]
    for db in range(8):
        ins = []
        d = O0 + 16 * db
        for k in range(8):
            t = vE + (k % 8)
            ins.append(valu(f"v_mul_f32 v{d+2*k}, s{sTmp+7}, v{d+2*k}", rd=V(d+2*k), wr=V(d+2*k)))
            ins.append(valu(f"v_mul_f32 v{d+2*k+1}, s{sTmp+7}, v{d+2*k+1}", rd=V(d+2*k+1), wr=V(d+2*k+1)))
            ins.append(valu(f"v_cvt_pk_bf16_f32 v{t}, v{d+2*k}, v{d+2*k+1}", rd=V(d+2*k, 2), wr=V(t)))
            ins.append(valu(f"v_accvgpr_write_b32 a{QF+8*db+k}, v{t}", rd=V(t), wr=Areg(QF+8*db+k)))
        g0 = 4 * db + 3 + 3
        g1 = min(g0 + 5, 31 + 2 * db)
        g1 = max(g1, g0)
        b.valu.append((ins, g0, g1))
    for n in range(-2, 64):
        b = Body(f"a{n}")
        qk = []; pv = []
        if n + 2 <= 63:
            m = n + 2
            S = S_[m % 2]
            for t in range(16):
                key = ("K", m, t)
                rd = (key, [("ds_read_b128", vKB + t % 8, kslot(m) + (t // 8) * 256, 0, 4)], None)
                if t == 0:
                    c = ("0", []) if m < 2 else (vr(NEGM, 16), V(NEGM, 16))
                else:
                    c = (vr(S, 16), V(S, 16))
                qk.append((rd, (S, key, ar(QF + 4*t, 4), Areg(QF + 4*t, 4), c[0], c[1], [])))
            b.need.append(("K", m))
        if n >= 0:
            P = P_[n % 2]
            for ks in range(2):
                for db in range(8):
                    key = ("V", n, ks, db)
                    rd = (key, [("ds_read_b64_tr_b16", vVB + db % 4, vslot(n) + (16*ks + 8*jj) * 512 + (db // 4) * 256, 2*jj, 2) for jj in range(2)], None)
                    d = O0 + 16 * db
                    first = (n == 0 and ks == 0)
                    pv.append((rd, (d, key, vr(P + 4*ks, 4), V(P + 4*ks, 4), "0" if first else vr(d, 16), [] if first else V(d, 16), [])))
            b.need.append(("V", n))
        seq = []
        if qk and pv:
            for a, c in zip(qk, pv): seq += [a, c]
        else:
            seq = qk or pv
        for rd, mf in seq:
            b.reads.append(rd); b.mf.append(mf)
        G = len(seq)
        if n == -1:
            S = S_[0]
            ins = rowmax_instrs(S)
            for k in range(16):
                ins.append(valu(f"v_sub_f32 v{NEGM+k}, 0, v{vD}", rd=V(vD), wr=V(NEGM+k)))
            ins += sm_instrs(0, fix=True)
            b.valu.append((ins, 3, G - 1))
        elif 0 <= n <= 62:
            if n == 0:
                b.valu.append(([valu(f"v_mov_b32 v{vL}, v{vPS}", rd=V(vPS), wr=V(vL))], 0, 0))
            else:
                b.valu.append(([valu(f"v_add_f32 v{vL}, v{vL}, v{vPS}", rd=V(vPS)+V(vL), wr=V(vL))], 0, 0))
            ins = sm_instrs(n + 1, fix=(n == 0))
            ins.append(valu(f"v_cmp_nge_f32 vcc, 0x46800000, v{vPS}", rd=V(vPS), wr=[("vcc", 0)]))
            b.valu.append((ins, 3 if n == 0 else 2, G - 2))
            b.tail.append(I(f"RARE {(n+1)%2} {1 if n + 2 <= 63 else 0}", "rare"))
        elif n == 63:
            ins = [valu(f"v_add_f32 v{vL}, v{vL}, v{vPS}", rd=V(vPS)+V(vL), wr=V(vL)),
                   valu(f"v_mov_b32 v{vF}, v{vL}", rd=V(vL), wr=V(vF)),
                   I(f"v_permlane32_swap_b32 v{vL}, v{vF}", "perm", rd=V(vL)+V(vF), wr=V(vL)+V(vF)),
                   valu(f"v_add_f32 v{vL}, v{vL}, v{vF}", rd=V(vL)+V(vF), wr=V(vL)),
                   trans(f"v_rcp_f32 v{vINV}, v{vL}", rd=V(vL), wr=V(vINV))]
            b.valu.append((ins, 0, 6))
            for db in range(8):
                d = O0 + 16 * db
                o = ob_reg(db)
                ins = [valu(f"v_cvt_pk_bf16_f32 v{o+k}, v{d+2*k}, v{d+2*k+1}", rd=V(d+2*k, 2), wr=V(o+k)) for k in range(8)]
                g0 = 8 + db + 3
                g1 = 15 if db < 2 else 16 + 4 * db - 2
                if db >= 2: g0 = max(g0, g1 - 4)
                b.valu.append((ins, g0, g1))
        if n + 2 <= 63:
            m = n + 6
            b.dma.append(g_k(m, cfg) if m <= 63 else g_wo(m - 64, 0))
        if n >= 0:
            m = n + 4
            b.dma.append(g_v(m, cfg) if m <= 63 else g_wo(m - 64, 1))
        B.append(b)
    def drain(j):
        acc = O0 + 32 * (j % 2)
        ins = []
        for q in range(4):
            st = vE + 4 * q
            for k in range(4):
                a = acc + 8 * q + 2 * k
                ins.append(valu(f"v_mul_f32 v{a}, v{vINV}, v{a}", rd=V(a)+V(vINV), wr=V(a)))
                ins.append(valu(f"v_mul_f32 v{a+1}, v{vINV}, v{a+1}", rd=V(a+1)+V(vINV), wr=V(a+1)))
                ins.append(valu(f"v_cvt_pk_bf16_f32 v{st+k}, v{a}, v{a+1}", rd=V(a, 2), wr=V(st+k)))
            if q == 0:
                ins.append(salu(f"s_mov_b32 s{sTmp}, {4096*j}"))
            off = f" offset:{q*1024}" if q else ""
            ins.append(I(f"buffer_store_dwordx4 v[{st}:{st+3}], v{vST}, s[{sPT}:{sPT+3}], s{sTmp} offen{off}", "store",
                         rd=V(st, 4)+V(vST), tag=("ST", j)))
        return ins
    for j in range(7):
        b = Body(f"op{j}")
        m = 64 + j
        acc = O0 + 32 * (j % 2)
        for db in range(8):
            for tp in range(2):
                for nbl in range(2):
                    key = ("WO", j, db, tp, nbl)
                    base = vXD + (db // 4) * 2 + nbl
                    slot = kslot(m) if db < 4 else vslot(m)
                    b.reads.append((key, [("ds_read_b64_tr_b16", base, slot + (32*(db % 4) + 16*tp + 8*jj) * 128, 2*jj, 2) for jj in range(2)], None))
                    d = acc + 16 * nbl
                    first = (db == 0 and tp == 0)
                    o = ob_reg(db) + 4 * tp
                    b.mf.append((d, key, vr(o, 4), V(o, 4), "0" if first else vr(d, 16), [] if first else V(d, 16), []))
        b.need = [("K", m), ("V", m)]
        if j >= 1:
            b.valu.append((drain(j - 1), 3, 28))
        if j + 4 <= 6:
            b.dma = [g_wo(j + 4, 0), g_wo(j + 4, 1)]
        if j == 6:
            b.tail += drain(6)
        B.append(b)
    return B

def schedule(B, cfg, pre_dma):
    starts = []; M = 0
    for b in B:
        starts.append(M); M += len(b.mf)
    fill = {g: [] for g in range(-1, M)}
    load = {g: 0 for g in range(-1, M)}
    def put(g, ins, front=False):
        g = max(-1, min(g, M - 1))
        fill[g].append(ins); load[g] += ins.cost
    bp = [starts[i] + len(B[i].mf) - cfg.LEAD - 1 for i in range(len(B))]
    fragreg = {}
    idx = 0
    consumer = {}
    for i, b in enumerate(B):
        for g, mf in enumerate(b.mf):
            fragreg[mf[1]] = FR + 4 * (idx % cfg.NB); idx += 1
            consumer[mf[1]] = starts[i] + g
            for k in mf[6]:
                consumer.setdefault(k, starts[i] + g)
    put(-1, I("BAR", "bar", tag=B[0].need, cost=8))
    for i, b in enumerate(B[:-1]):
        put(bp[i], I("BAR", "bar", tag=B[i + 1].need, cost=8))
    prev_user = {}
    for i, b in enumerate(B):
        w0 = bp[i - 1] if i > 0 else -cfg.LEAD - 1
        w1 = bp[i] - cfg.DEAD if i < len(B) - 1 else starts[i] + len(b.mf) - 6
        W = w1 - w0 + 1
        flat = []
        for key, parts, fixed in b.reads:
            reg = fixed if fixed is not None else fragreg[key]
            for (op, addr, off, sub, n) in parts:
                flat.append((key, I(f"{op} {ar(reg+sub, n)}, v{addr} offset:{off}", "ds", rd=V(addr), wr=Areg(reg+sub, n), tag=key), reg))
        R = len(flat)
        lastg = None
        for k, (key, ins, reg) in enumerate(flat):
            g = w0 + (k * W) // R
            pu = prev_user.get(reg)
            if pu is not None and pu[0] != key:
                g = max(g, consumer_last(pu[0], B, starts, consumer) + 1) if False else g
            if lastg is not None: g = max(g, lastg)
            lastg = g
            put(g, ins)
            prev_user[reg] = (key,)
        for ins in b.after_reads:
            put(lastg, ins)
    for i, b in enumerate(B):
        g = bp[i]
        ndma = sum(1 for grp in b.dma for x in grp if x.k == "dma")
        if not ndma: continue
        nxt = bp[i + 1] if i + 1 < len(B) else M - 1
        step = min(cfg.DMASTEP, max(1, (nxt - g - 2) // ndma))
        for grp in b.dma:
            for x in grp:
                if x.k == "dma":
                    g += step
                    put(min(g, nxt - 1), x)
                else:
                    put(min(g, nxt - 1), x)
    for i, b in enumerate(B):
        for ins, g0, g1 in b.valu:
            g0 += starts[i]; g1 += starts[i]
            g1 = min(g1, M - 1)
            gs = list(range(g0, g1 + 1))
            tot = sum(load[g] for g in gs) + sum(x.cost for x in ins)
            lo, hi = 0.0, float(tot)
            need = sum(x.cost for x in ins)
            for _ in range(40):
                mid = (lo + hi) / 2
                if sum(max(0.0, mid - load[g]) for g in gs) >= need: hi = mid
                else: lo = mid
            cap = [max(0.0, hi - load[g]) for g in gs]
            acc = 0.0; placed = 0.0; k = 0
            for gi, g in enumerate(gs):
                acc += cap[gi]
                while k < len(ins) and (placed + ins[k].cost / 2 <= acc + 1e-6 or gi == len(gs) - 1):
                    put(g, ins[k]); placed += ins[k].cost; k += 1
    for i, b in enumerate(B):
        for x in b.tail:
            put(starts[i] + len(b.mf) - 1, x)
    def order(lst):
        bars = [x for x in lst if x.k == "bar"]
        tails = [x for x in lst if x.k == "rare"]
        return lst
    out = []
    lg = []
    lg_done = 0
    vm = []
    vm_done = 0
    lastread = {}
    cur = []
    def emit_fill(g):
        nonlocal lg_done, vm_done
        for x in fill[g]:
            if x.k == "bar":
                need = -1
                for idx2, tg in enumerate(vm):
                    if tg in x.tag: need = idx2
                for tg in x.tag:
                    assert tg in vm or cfg.no_dma, (tg, g)
                n = len(vm) - 1 - need
                n = min(n, 63)
                cur.append(I(f"s_waitcnt vmcnt({n}) lgkmcnt(0)", "wait"))
                cur.append(I("s_barrier", "salu"))
                lg_done = len(lg)
            elif x.k == "ds":
                if cfg.no_read: continue
                lg.append((x.tag, g)); lastread[x.tag] = len(lg) - 1
                cur.append(x)
            elif x.k in ("dma", "store"):
                if x.k == "dma" and cfg.no_dma: continue
                vm.append(x.tag); cur.append(x)
            elif x.k in ("valu", "trans", "perm", "rare") and cfg.no_sm:
                continue
            else:
                cur.append(x)
    for grp in pre_dma:
        for x in grp:
            if x.k == "dma":
                if cfg.no_dma: continue
                vm.append(x.tag)
            cur.append(x)
    emit_fill(-1)
    out.append(("pre", cur))
    issued_mf = {}
    for i, b in enumerate(B):
        cur = []
        for gi, mf in enumerate(b.mf):
            g = starts[i] + gi
            d, key, bt, brs, ct, crs, extra = mf
            if not cfg.no_read:
                needi = max(lastread[k] for k in [key] + extra)
                if needi >= lg_done:
                    n_need = len(lg) - 1 - needi
                    n_safe = sum(1 for (_, gg) in lg[lg_done:] if gg > g - 1 - cfg.SAFE)
                    n = min(n_need, n_safe, 15)
                    cur.append(I(f"s_waitcnt lgkmcnt({n})", "wait"))
                    lg_done = len(lg) - n
            fr = fragreg[key]
            if not cfg.no_mfma:
                cur.append(I(f"v_mfma_f32_32x32x16_bf16 {vr(d,16)}, {ar(fr,4)}, {bt}, {ct}", "mfma",
                             rd=Areg(fr, 4) + brs, wr=V(d, 16), c=crs, cost=8))
            emit_fill(g)
        out.append((b.name, cur))
    return out, load

def hazard_pass(segs):
    hist = []
    pos = 0
    res = []
    lastw = {}
    lastc = {}
    lasts = {}
    pend_frag = {}
    nn = 0
    for name, lst in segs:
        o = []
        for x in lst:
            need = 0
            def req(p, d):
                nonlocal need
                need = max(need, d - (pos - p - 1))
            isv = x.k in ("valu", "trans", "perm")
            for r in x.rd + x.c:
                if r in lastw:
                    p, k, full = lastw[r]
                    if k == "mfma":
                        if x.k == "mfma":
                            if r in x.rd: req(p, 12)
                            elif tuple(x.c) != full: req(p, 10)
                        else: req(p, 12)
                    elif k in ("valu", "trans", "perm"):
                        if x.k == "mfma": req(p, 2)
                        if x.k == "perm": req(p, 2)
                        if k == "trans" and x.k in ("valu", "perm"): req(p, 1)
                    elif k == "salu" and r == ("m0", 0): req(p, 1)
            for r in x.wr:
                if r in lastw and lastw[r][1] == "mfma" and x.k != "mfma": req(lastw[r][0], 12)
                if r in lastw and lastw[r][1] == "mfma" and x.k == "mfma" and tuple(x.c) != lastw[r][2]: req(lastw[r][0], 12)
                if isv and r in lastc: req(lastc[r], 7)
                if r in lasts: req(lasts[r], 2)
            if x.k == "ds":
                for r in x.wr:
                    assert r not in pend_frag, ("fragment overwritten before use", name, x.t)
                    pend_frag[r] = 1
            if x.k == "mfma":
                for r in x.rd: pend_frag.pop(r, None)
            if x.k == "rare":
                pass
            while need > 0:
                k = min(need, 16)
                o.append(I(f"s_nop {k-1}", "nop")); pos += k; need -= k; nn += 1
            o.append(x)
            for r in x.wr: lastw[r] = (pos, x.k, tuple(x.wr))
            if x.k == "mfma":
                for r in x.c: lastc[r] = pos
            if x.k == "store":
                for r in x.rd: lasts[r] = pos
            pos += 1
        res.append((name, o))
    return res, nn

def setup_code(cfg):
    L = []
    A = L.append
    A("s_cmp_ge_u32 s2, 256")
    A("s_cbranch_scc1 L_exit")
    A("s_load_dwordx16 s[44:59], s[0:1], 0")
    A("s_load_dwordx4 s[60:63], s[0:1], 64")
    A("s_load_dwordx2 s[64:65], s[0:1], 96")
    if cfg.stamp:
        A("s_memtime s[80:81]")
    A("v_lshrrev_b32 v1, 6, v0")
    A("v_and_b32 v48, 63, v0")
    A(f"v_readfirstlane_b32 s{sWave}, v1")
    A("s_and_b32 s66, s2, 7")
    A("s_lshr_b32 s67, s2, 3")
    A("s_lshr_b32 s68, s66, 2")
    A("s_and_b32 s69, s67, 1")
    A("s_lshr_b32 s70, s67, 1")
    A("s_and_b32 s71, s70, 7")
    A("s_lshr_b32 s70, s70, 3")
    A("s_and_b32 s72, s66, 3")
    A("s_lshl_b32 s72, s72, 1")
    A("s_add_u32 s72, s72, s70")
    A("s_lshl_b32 s73, s72, 1")
    A("s_add_u32 s73, s73, s69")
    A(f"s_lshl_b32 s{sW4K}, s{sWave}, 12")
    A(f"s_lshl_b32 s{sW8K}, s{sWave}, 13")
    A(f"s_lshl_b32 s{sW128K}, s{sWave}, 17")
    A(f"s_mul_i32 s{sW28K}, s{sWave}, 28672")
    A(f"s_mov_b32 s{sKlin}, s{sW4K}")
    A(f"s_mov_b32 s{sVlin}, s{sW4K}")
    A(f"s_mul_i32 s{sMask}, s69, {cfg.XMASK * 16384}")
    A(f"s_mov_b32 s{sTmp+7}, {f32bits(math.log2(math.e) / 16.0):#x}")
    A("v_lshrrev_b32 v49, 5, v48")
    A("v_and_b32 v50, 31, v48")
    A("v_bfe_u32 v51, v48, 4, 1")
    A("v_bfe_u32 v52, v48, 2, 2")
    A("v_and_b32 v53, 3, v48")
    A("v_lshrrev_b32 v55, 3, v48")
    A("v_and_b32 v56, 7, v48")
    for k in range(4):
        A(f"v_add_u32 v57, {8*k}, v55")
        A("v_bfe_u32 v58, v57, 1, 3")
        A("v_xor_b32 v58, v58, v56")
        A("v_mul_u32_u24 v57, 896, v57")
        A(f"v_lshl_add_u32 v57, v58, 4, v57")
        A(f"v_add_u32 v{vXD+k}, {(-k*1024) & 0xffffffff}, v57")
    for k in range(4):
        A(f"v_add_u32 v57, {2*(k&1)}, v49")
        A("v_lshlrev_b32 v57, 2, v57")
        A("v_xor_b32 v57, v57, v50")
        A("v_lshlrev_b32 v57, 4, v57")
        if k < 2:
            A(f"v_lshl_add_u32 v{vVD+k}, v49, 9, v57")
        A("v_lshl_add_u32 v57, v49, 13, v57")
        A(f"v_add_u32 v{vWD+k}, {2*k*8192 - k*1024}, v57")
    A("s_waitcnt lgkmcnt(0)")
    A("s_cmp_eq_u32 s68, 0")
    A("s_cselect_b32 s44, s44, s54"); A("s_cselect_b32 s45, s45, s55")
    A("s_cselect_b32 s46, s46, s56"); A("s_cselect_b32 s47, s47, s57")
    A("s_cselect_b32 s48, s48, s58"); A("s_cselect_b32 s49, s49, s59")
    A("s_cselect_b32 s50, s50, s60"); A("s_cselect_b32 s51, s51, s61")
    A("s_cselect_b32 s52, s52, s62"); A("s_cselect_b32 s53, s53, s63")
    def srd(d, p, offreg, size):
        A(f"s_add_u32 s{d}, s{p}, s{offreg}")
        A(f"s_addc_u32 s{d+1}, s{p+1}, 0")
        A(f"s_and_b32 s{d+1}, s{d+1}, 0xffff")
        if isinstance(size, int): A(f"s_mov_b32 s{d+2}, {size}")
        else: A(f"s_mov_b32 s{d+2}, {size}")
        A(f"s_mov_b32 s{d+3}, 0x20000")
    A("s_mul_i32 s74, s71, 114688"); srd(sX, 44, 74, 114688)
    A("s_lshl_b32 s74, s73, 9"); A(f"s_sub_u32 s75, {448*8192}, s74"); srd(sWQ, 50, 74, "s75")
    A("s_lshl_b32 s74, s71, 3"); A("s_add_u32 s74, s74, s72"); A("s_lshl_b32 s74, s74, 20")
    srd(sK, 46, 74, 1 << 20); srd(sV, 48, 74, 1 << 20)
    return L

def setup_code2(cfg):
    L = []
    A = L.append
    def srd(d, p, offreg, size):
        A(f"s_add_u32 s{d}, s{p}, s{offreg}")
        A(f"s_addc_u32 s{d+1}, s{p+1}, 0")
        A(f"s_and_b32 s{d+1}, s{d+1}, 0xffff")
        A(f"s_mov_b32 s{d+2}, {size}")
        A(f"s_mov_b32 s{d+3}, 0x20000")
    A("s_mul_i32 s74, s73, 229376"); srd(sWO, 52, 74, 229376)
    A("s_lshl_b32 s74, s68, 3"); A("s_add_u32 s74, s74, s71"); A("s_lshl_b32 s74, s74, 4"); A("s_add_u32 s74, s74, s73")
    A("s_mul_i32 s74, s74, 114688"); srd(sPT, 64, 74, 114688)
    A("v_and_b32 v54, 1, v53"); A("v_lshlrev_b32 v54, 1, v54"); A("v_lshrrev_b32 v57, 1, v53"); A("v_or_b32 v54, v54, v57")
    A("v_lshl_add_u32 v57, v49, 3, v52"); A("v_lshlrev_b32 v57, 9, v57")
    A("v_lshl_add_u32 v57, v51, 5, v57"); A("v_lshl_add_u32 v57, v54, 3, v57")
    for j in range(4):
        A(f"v_xor_b32 v58, {j}, v52"); A(f"v_lshl_add_u32 v{vQA+j}, v58, 6, v57")
    A("v_lshlrev_b32 v57, 7, v50"); A(f"v_add_u32 v57, s{sW4K}, v57"); A("v_add_u32 v57, 32768, v57")
    A("v_bfe_u32 v59, v50, 1, 3")
    for kt in range(4):
        A(f"v_add_u32 v58, {2*kt}, v49"); A("v_xor_b32 v58, v58, v59"); A(f"v_lshl_add_u32 v{vXA+kt}, v58, 4, v57")
    A("v_lshl_add_u32 v57, v49, 2, v52"); A("v_lshlrev_b32 v57, 9, v57")
    A("v_lshl_add_u32 v57, v51, 5, v57"); A("v_lshl_add_u32 v57, v53, 3, v57"); A(f"v_add_u32 v57, {VRING}, v57")
    for j in range(4):
        A(f"v_xor_b32 v58, {j}, v52"); A(f"v_lshl_add_u32 v{vVB+j}, v58, 6, v57")
    A("v_lshlrev_b32 v57, 9, v50"); A(f"v_add_u32 v57, {KRING}, v57"); A("v_and_b32 v59, 15, v50")
    for j in range(8):
        A(f"v_add_u32 v58, {2*j}, v49"); A("v_xor_b32 v58, v58, v59"); A(f"v_lshl_add_u32 v{vKB+j}, v58, 4, v57")
    A(f"v_lshlrev_b32 v57, 4, v48"); A(f"v_add_u32 v{vST}, s{sW28K}, v57")
    for k in range(4):
        A(f"v_add_u32 v57, {8*k}, v55")
        A("v_bfe_u32 v58, v57, 1, 1"); A("v_lshlrev_b32 v58, 2, v58")
        A("v_xor_b32 v58, v58, v56")
        A("v_mul_u32_u24 v57, 896, v57")
        A(f"v_lshl_add_u32 v57, v58, 4, v57")
        A(f"v_add_u32 v57, {(-k*1024) & 0xffffffff}, v57")
        A(f"v_accvgpr_write_b32 a{224+k}, v57")
    A("v_lshl_add_u32 v57, v49, 2, v52"); A("v_lshlrev_b32 v57, 7, v57")
    A("v_lshl_add_u32 v57, v51, 5, v57"); A("v_lshl_add_u32 v57, v54, 3, v57")
    A("v_lshrrev_b32 v59, 1, v52")
    for half in range(2):
        for nbl in range(2):
            A(f"v_xor_b32 v58, {nbl}, v59"); A(f"v_lshl_add_u32 v58, v58, 6, v57")
            A(f"v_add_u32 v58, {KRING if half == 0 else VRING}, v58")
            A(f"v_accvgpr_write_b32 a{228+2*half+nbl}, v58")
    return L

def kd_code():
    L = []
    A = L.append
    A(f"s_and_b32 s74, s{sWave}, 1"); A("s_lshl_b32 s74, s74, 3")
    for k in range(4):
        A(f"v_add_u32 v57, {2*k}, v49"); A("v_add_u32 v57, s74, v57"); A("v_xor_b32 v57, v57, v50")
        A("v_lshlrev_b32 v57, 4, v57"); A(f"v_lshl_add_u32 v{vKD+k}, v49, 9, v57")
    return L

def rare_code(par, has_next):
    S = S_[par]; S2 = S_[1 - par]
    ins = [I("s_nop 15", "nop"), I("s_nop 3", "nop")]
    ins += rowmax_instrs(S)
    ins.append(valu(f"v_max_f32 v{vD}, 0, v{vD}", rd=V(vD), wr=V(vD)))
    ins.append(valu(f"v_sub_f32 v{vF}, 0, v{vD}", rd=V(vD), wr=V(vF)))
    ins.append(trans(f"v_exp_f32 v{vF}, v{vF}", rd=V(vF), wr=V(vF)))
    for k in range(16):
        ins.append(valu(f"v_sub_f32 v{NEGM+k}, v{NEGM+k}, v{vD}", rd=V(NEGM+k)+V(vD), wr=V(NEGM+k)))
        ins.append(valu(f"v_sub_f32 v{S+k}, v{S+k}, v{vD}", rd=V(S+k)+V(vD), wr=V(S+k)))
        if has_next:
            ins.append(valu(f"v_sub_f32 v{S2+k}, v{S2+k}, v{vD}", rd=V(S2+k)+V(vD), wr=V(S2+k)))
    ins.append(valu(f"v_mul_f32 v{vL}, v{vL}, v{vF}", rd=V(vL)+V(vF), wr=V(vL)))
    for k in range(128):
        ins.append(valu(f"v_mul_f32 v{O0+k}, v{O0+k}, v{vF}", rd=V(O0+k)+V(vF), wr=V(O0+k)))
    ins += sm_instrs(par)
    ins.append(I("s_nop 1", "nop"))
    ins.append(I(f"s_setpc_b64 s[{sRet}:{sRet+1}]", "salu"))
    segs, _ = hazard_pass([("rare", ins)])
    return [x.t for x in segs[0][1]]

def reduce_kernel():
    L = []
    A = L.append
    A(".p2align 8")
    A("reduce_kernel:")
    A("s_cmp_ge_u32 s2, 448")
    A("s_cbranch_scc1 L_rexit")
    A("s_load_dwordx2 s[4:5], s[0:1], 96")
    A("s_load_dwordx2 s[6:7], s[0:1], 80")
    A("s_mul_hi_u32 s16, s2, 0x924924a")
    A("s_mul_i32 s17, s16, 28")
    A("s_sub_u32 s17, s2, s17")
    A("s_mul_hi_u32 s18, s17, 0x24924925")
    A("s_mul_i32 s19, s18, 7")
    A("s_sub_u32 s19, s17, s19")
    A("v_lshlrev_b32 v1, 4, v0")
    A("s_lshl_b32 s20, s17, 12")
    A("v_add_u32 v1, s20, v1")
    A("s_mul_i32 s21, s16, 1835008")
    A("s_waitcnt lgkmcnt(0)")
    A("s_add_u32 s8, s4, s21"); A("s_addc_u32 s9, s5, 0"); A("s_and_b32 s9, s9, 0xffff")
    A("s_mov_b32 s10, 1835008"); A("s_mov_b32 s11, 0x20000")
    A("s_mov_b32 s12, s6"); A("s_and_b32 s13, s7, 0xffff"); A("s_mov_b32 s14, 1835008"); A("s_mov_b32 s15, 0x20000")
    A("s_mov_b32 s22, 0")
    for h in range(16):
        A(f"buffer_load_dwordx4 v[{16+4*h}:{19+4*h}], v1, s[8:11], s22 offen")
        if h < 15: A("s_add_u32 s22, s22, 114688")
    A("v_and_b32 v2, 31, v0")
    A("s_and_b32 s23, s16, 7"); A("s_lshl_b32 s23, s23, 7"); A("s_lshl_b32 s24, s18, 5"); A("s_add_u32 s23, s23, s24")
    A("v_add_u32 v2, s23, v2")
    A("v_mul_u32_u24 v2, 1792, v2")
    A("v_lshrrev_b32 v3, 5, v0")
    A("v_lshl_add_u32 v2, v3, 4, v2")
    A("s_lshr_b32 s23, s16, 3"); A("s_mul_i32 s23, s23, 896"); A("s_lshl_b32 s24, s19, 7"); A("s_add_u32 s23, s23, s24")
    for h in range(16):
        A(f"s_waitcnt vmcnt({15-h})")
        for k in range(4):
            src = 16 + 4*h + k
            if h == 0:
                A(f"v_lshlrev_b32 v{4+2*k}, 16, v{src}")
                A(f"v_and_b32 v{5+2*k}, 0xffff0000, v{src}")
            else:
                A(f"v_lshlrev_b32 v12, 16, v{src}")
                A(f"v_and_b32 v13, 0xffff0000, v{src}")
                A(f"v_add_f32 v{4+2*k}, v{4+2*k}, v12")
                A(f"v_add_f32 v{5+2*k}, v{5+2*k}, v13")
    for k in range(4):
        A(f"v_cvt_pk_bf16_f32 v{12+k}, v{4+2*k}, v{5+2*k}")
    A("buffer_store_dwordx4 v[12:15], v2, s[12:15], s23 offen")
    A("L_rexit:")
    A("s_endpgm")
    return L

def generate(cfg):
    B = build_bodies(cfg)
    for b in B:
        if b.name == "a-2":
            ins = []
            for k in range(4):
                ins.append(valu(f"v_accvgpr_read_b32 v{vWD+k}, a{224+k}", wr=V(vWD+k)))
                ins.append(valu(f"v_accvgpr_read_b32 v{vXD+k}, a{228+k}", wr=V(vXD+k)))
            for x in ins: x.k = "addr"
            b.valu.append((ins, 12, 15))
    raw = lambda lines: [I(t, "raw") for t in lines]
    pre = g_stage(0) + [raw(kd_code())] + g_stage(1) + [g_k(0, cfg)] + g_stage(2) + [raw(setup_code2(cfg))]
    segs, load = schedule(B, cfg, pre)
    segs, nn = hazard_pass(segs)
    txt = {name: [x.t for x in lst] for name, lst in segs}
    names = [n for n, _ in segs]
    lo = None
    for n in range(0, 8):
        if all(txt[f"a{k}"] == txt[f"a{k+4}"] for k in range(n, n + 8)):
            lo = n; break
    assert lo is not None
    hi = lo
    while hi + 4 <= 63 and all(txt[f"a{hi+k}"] == txt[f"a{lo+k}"] for k in range(4)): hi += 4
    last = lo
    while last + 4 <= 63 and txt[f"a{last+4}"] == txt[f"a{last}"]: last += 1
    last += 3
    nit = (last - lo + 1) // 4
    lo = last + 1 - 4 * nit
    sys.stderr.write(f"loop bodies {lo}..{last} ({nit} iterations), nops inserted {nn}\n")
    L = []
    A = L.append
    A(f"; @launch kernel=attn_kernel grid=(256,1,1) block=(256,1,1) lds=163840")
    A(f"; @launch kernel=reduce_kernel grid=(448,1,1) block=(256,1,1) lds=0")
    A('.amdgcn_target "amdgcn-amd-amdhsa--gfx950"')
    A(".text")
    A(".p2align 8")
    A("attn_kernel:")
    L += setup_code(cfg)
    tramps = []
    def emit_seg(name):
        A(f"; ---- {name}")
        for t in txt[name]:
            if t.startswith("RARE"):
                _, par, nx = t.split()
                lab = f"L_t_{name.replace('-','m')}"
                A(f"s_cbranch_vccnz {lab}")
                A(f"{lab}_back:")
                tramps.append((lab, par, nx))
            else:
                A(t)
    def stamp(i):
        if cfg.stamp:
            A(f"s_memtime s[{82+2*i}:{83+2*i}]")
    for name in names:
        if name.startswith("a"):
            n = int(name[1:])
            if lo <= n <= last:
                if n == lo:
                    A(f"s_mov_b32 s{sCnt}, {nit}")
                    A(".p2align 3")
                    A("L_loop:")
                if n < lo + 4:
                    if n == lo + 3:
                        A(f"s_sub_u32 s{sCnt}, s{sCnt}, 1")
                    emit_seg(name)
                    if n == lo + 3:
                        A(f"s_cmp_lg_u32 s{sCnt}, 0")
                        A("s_cbranch_scc1 L_loop")
                continue
        if name in ("qp0", "a-2", "op0"): stamp(["qp0", "a-2", "op0"].index(name))
        emit_seg(name)
    if cfg.stamp:
        A("s_waitcnt vmcnt(0)")
        A("s_memtime s[88:89]")
        A("s_memrealtime s[90:91]")
        A("s_getreg_b32 s92, hwreg(HW_REG_XCC_ID)")
        A("s_getreg_b32 s93, hwreg(HW_REG_HW_ID)")
        A("s_waitcnt lgkmcnt(0)")
        A("s_add_u32 s76, s64, 0x4000000"); A("s_addc_u32 s77, s65, 0"); A("s_and_b32 s77, s77, 0xffff")
        A("s_mov_b32 s78, 0x100000"); A("s_mov_b32 s79, 0x20000")
        A(f"s_lshl_b32 s74, s2, 2"); A(f"s_add_u32 s74, s74, s{sWave}"); A("s_lshl_b32 s74, s74, 6")
        A("v_mov_b32 v40, 0")
        for i, r in enumerate([80, 82, 84, 86, 88, 90, 92, 93]):
            A(f"v_mov_b32 v41, s{r}")
            A(f"buffer_store_dword v41, v40, s[76:79], s74 offen offset:{4*i}")
    A("L_exit:")
    A("s_endpgm")
    for lab, par, nx in tramps:
        A(f"{lab}:")
        A(f"s_call_b64 s[{sRet}:{sRet+1}], L_rare_{par}_{nx}")
        A(f"s_branch {lab}_back")
    for par, nx in sorted({(p, n) for _, p, n in tramps}):
        A(f"L_rare_{par}_{nx}:")
        L += rare_code(int(par), int(nx))
    L += reduce_kernel()
    A('.section .rodata,"a"')
    for kn, nv, acc in (("attn_kernel", 512, 256), ("reduce_kernel", 80, 80)):
        A(".p2align 6")
        A(f".amdhsa_kernel {kn}")
        A(f"  .amdhsa_next_free_vgpr {nv}")
        A("  .amdhsa_next_free_sgpr 102")
        A(f"  .amdhsa_accum_offset {acc}")
        A("  .amdhsa_group_segment_fixed_size 0")
        A("  .amdhsa_kernarg_size 104")
        A("  .amdhsa_user_sgpr_count 2")
        A("  .amdhsa_user_sgpr_kernarg_segment_ptr 1")
        A("  .amdhsa_system_sgpr_workgroup_id_x 1")
        A(".end_amdhsa_kernel")
    return "\n".join(L) + "\n"

if __name__ == "__main__":
    ap = argparse.ArgumentParser()
    ap.add_argument("-o", default=f"cdna_kernels/{NAME}.s")
    ap.add_argument("opts", nargs="*")
    a = ap.parse_args()
    cfg = Cfg()
    for o in a.opts:
        k, v = o.split("=", 1)
        old = getattr(cfg, k)
        if isinstance(old, bool): v = v not in ("0", "false", "False")
        elif isinstance(old, int): v = int(v)
        elif k == "dma_flags": v = " " + v.replace("+", " ") if v else ""
        setattr(cfg, k, v)
    open(a.o, "w").write(generate(cfg))
```

```python
import sys, math, argparse, struct

NAME = "concat_heads__gqa_block_cached__gqa_block_cached__near_ridge"

def f32bits(x):
    return struct.unpack("<I", struct.pack("<f", x))[0]

class Cfg:
    LEAD = 8
    DEAD = 4
    NB = 16
    SAFE = 3
    DMASTEP = 2
    XMASK = 0
    dma_flags = ""
    no_mfma = False
    no_sm = False
    no_dma = False
    no_read = False
    stamp = False
    touch = 0
    w_flags = ""
    st_flags = ""
    rd_flags = ""

def V(lo, n=1): return [("v", lo + i) for i in range(n)]
def Areg(lo, n=1): return [("a", lo + i) for i in range(n)]
def vr(lo, n=1): return f"v{lo}" if n == 1 else f"v[{lo}:{lo+n-1}]"
def ar(lo, n=1): return f"a{lo}" if n == 1 else f"a[{lo}:{lo+n-1}]"

O0 = 128
S_ = [96, 112]
NEGM = 80
P_ = [64, 72]
QF = 0
FR = 64
XF = 192
vKB = 0
vVB = 8
vKD = 12
vVD = 16
vWD = 18
vXD = 22
vQA = 26
vXA = 30
vL = 34; vPS = 35; vINV = 36; vST = 37; vD = 38; vF = 39
vT = 40
vE = 48
sX, sWQ, sK, sV, sWO, sPT = 4, 8, 12, 16, 20, 24
sW4K, sKlin, sVlin, sKoff, sVoff, sMask, sCnt, sTmp, sW28K, sW128K, sW8K = 28, 29, 30, 31, 32, 33, 34, 35, 36, 37, 38
sRet = 40
sWave = 39

KRING = 98304
VRING = 32768
def kslot(m): return ((m + 3) % 4) * 16384
def vslot(m): return ((m + 1) % 4) * 16384
def qregion(s): return [0, 98304, 49152][s % 3]

class I:
    __slots__ = ("t", "k", "rd", "wr", "cost", "tag", "c")
    def __init__(s, t, k, rd=(), wr=(), cost=4, tag=None, c=()):
        s.t, s.k, s.rd, s.wr, s.cost, s.tag, s.c = t, k, list(rd), list(wr), cost, tag, list(c)

def valu(t, rd=(), wr=()): return I(t, "valu", rd, wr)
def trans(t, rd=(), wr=()): return I(t, "trans", rd, wr, cost=8)
def salu(t, wr=()): return I(t, "salu", (), wr)

class Body:
    def __init__(s, name):
        s.name = name
        s.mf = []
        s.reads = []
        s.need = []
        s.dma = []
        s.valu = []
        s.after_reads = []
        s.tail = []
        s.head = []

def dma_group(srd, voffs, soff_setup, soff, m0val, tag, flags=""):
    g = list(soff_setup)
    g.append(salu(f"s_add_u32 m0, s{m0val[0]}, {m0val[1]}", wr=[("m0", 0)]))
    for k in range(4):
        off = f" offset:{k*1024}" if k else ""
        g.append(I(f"buffer_load_dwordx4 v{voffs[k]}, s[{srd}:{srd+3}], s{soff} offen{off}{flags} lds",
                   "dma", rd=[("v", voffs[k]), ("m0", 0)], tag=tag))
    return g

def g_k(m, cfg):
    return dma_group(sK, [vKD + k for k in range(4)],
                     [salu(f"s_xor_b32 s{sKoff}, s{sKlin}, s{sMask}"), salu(f"s_add_u32 s{sKlin}, s{sKlin}, 16384")],
                     sKoff, (sW4K, KRING + kslot(m)), ("K", m), cfg.dma_flags)
def g_v(m, cfg):
    return dma_group(sV, [vVD + (k & 1) for k in range(4)],
                     [salu(f"s_xor_b32 s{sVoff}, s{sVlin}, s{sMask}"), salu(f"s_add_u32 s{sVlin}, s{sVlin}, 16384")],
                     sVoff, (sW4K, VRING + vslot(m)), ("V", m), cfg.dma_flags)
def g_wo(j, half, cfg):
    m = 64 + j
    ring = (KRING + kslot(m)) if half == 0 else (VRING + vslot(m))
    so = sKoff if half == 0 else sVoff
    return dma_group(sWO, [vWD + k for k in range(4)],
                     [salu(f"s_add_u32 s{so}, s{sW28K}, {half*128*896 + 128*j}")],
                     so, (sW4K, ring), ("K" if half == 0 else "V", m), cfg.w_flags)
def g_stage(s, cfg):
    rb = qregion(s)
    gs = []
    gs.append(dma_group(sX, [vXD + k for k in range(4)],
                        [salu(f"s_add_u32 s{sTmp}, s{sW28K}, {128*s}")], sTmp, (sW4K, rb + 32768), ("Q", s), cfg.w_flags))
    for kk in range(2):
        gs.append(dma_group(sWQ, [vWD + k for k in range(4)],
                            [salu(f"s_add_u32 s{sTmp}, s{sW128K}, {(64*s + 8*kk)*8192}")], sTmp,
                            (sW8K, rb + kk * 4096), ("Q", s), cfg.w_flags))
    return gs

def sm_instrs(n, fix=False):
    S = S_[n % 2]; P = P_[n % 2]
    out = []
    pend = []
    for k in range(8):
        t0 = vT + (2 * k) % 8; t1 = t0 + 1
        if fix:
            out.append(valu(f"v_add_f32 v{S+2*k}, v{NEGM}, v{S+2*k}", rd=V(S+2*k)+V(NEGM), wr=V(S+2*k)))
            out.append(valu(f"v_add_f32 v{S+2*k+1}, v{NEGM}, v{S+2*k+1}", rd=V(S+2*k+1)+V(NEGM), wr=V(S+2*k+1)))
        out.append(trans(f"v_exp_f32 v{t0}, v{S+2*k}", rd=V(S+2*k), wr=V(t0)))
        if pend: out.append(pend.pop(0))
        out.append(trans(f"v_exp_f32 v{t1}, v{S+2*k+1}", rd=V(S+2*k+1), wr=V(t1)))
        out += pend; pend = []
        if k == 0:
            pend.append(valu(f"v_add_f32 v{vPS}, v{t0}, v{t1}", rd=V(t0, 2), wr=V(vPS)))
        else:
            pend.append(valu(f"v_add_f32 v{vPS}, v{vPS}, v{t0}", rd=V(t0)+V(vPS), wr=V(vPS)))
            pend.append(valu(f"v_add_f32 v{vPS}, v{vPS}, v{t1}", rd=V(t1)+V(vPS), wr=V(vPS)))
        pend.append(valu(f"v_cvt_pk_bf16_f32 v{P+k}, v{t0}, v{t1}", rd=V(t0, 2), wr=V(P+k)))
    out += pend
    return out

def rowmax_instrs(S):
    o = []
    o.append(valu(f"v_max3_f32 v{vD}, v{S}, v{S+1}, v{S+2}", rd=V(S, 3), wr=V(vD)))
    for k in range(3, 15, 2):
        o.append(valu(f"v_max3_f32 v{vD}, v{vD}, v{S+k}, v{S+k+1}", rd=V(S+k, 2)+V(vD), wr=V(vD)))
    o.append(valu(f"v_max_f32 v{vD}, v{vD}, v{S+15}", rd=V(S+15)+V(vD), wr=V(vD)))
    o.append(valu(f"v_mov_b32 v{vF}, v{vD}", rd=V(vD), wr=V(vF)))
    o.append(I(f"v_permlane32_swap_b32 v{vD}, v{vF}", "perm", rd=V(vD)+V(vF), wr=V(vD)+V(vF)))
    o.append(valu(f"v_max_f32 v{vD}, v{vD}, v{vF}", rd=V(vD)+V(vF), wr=V(vD)))
    return o

def ob_reg(db):
    return [S_[0], S_[0] + 8, S_[1], S_[1] + 8, NEGM, NEGM + 8, P_[0], P_[1]][db]

def build_bodies(cfg):
    B = []
    for s in range(7):
        b = Body(f"qp{s}")
        order = [(kt, db) for kt in range(4) for db in range(8)] if s < 6 else [(kt, db) for db in range(8) for kt in range(4)]
        xdone = set()
        def xread(kt):
            b.reads.append((("X", s, kt), [("ds_read_b128", vXA + kt, 0, 0, 4)], XF + ((s % 2) * 4 + kt) * 4))
        if s == 6:
            for kt in range(4): xread(kt); xdone.add(kt)
        for (kt, db) in order:
            if kt not in xdone:
                xread(kt); xdone.add(kt)
            key = ("WQ", s, kt, db)
            b.reads.append((key, [("ds_read_b64_tr_b16", vQA + db % 4, (16*kt + 4*jj) * 512 + (db // 4) * 256, 2*jj, 2) for jj in range(2)], None))
            xf = XF + ((s % 2) * 4 + kt) * 4
            d = O0 + 16 * db
            first = (s == 0 and kt == 0)
            b.mf.append((d, key, ar(xf, 4), Areg(xf, 4), "0" if first else vr(d, 16), [] if first else V(d, 16), [("X", s, kt)]))
        b.need = [("Q", s)]
        if s < 6:
            delta = qregion(s + 1) - qregion(s)
            for r in list(range(vQA, vQA + 4)) + list(range(vXA, vXA + 4)):
                b.after_reads.append(valu(f"v_add_u32 v{r}, {delta & 0xffffffff}, v{r}", rd=V(r), wr=V(r)))
        if s <= 3: b.dma = g_stage(s + 3, cfg)
        elif s == 4: b.dma = [g_k(1, cfg), g_k(2, cfg), g_k(3, cfg)]
        elif s == 5: b.dma = [g_v(0, cfg), g_v(1, cfg), g_v(2, cfg)]
        else: b.dma = [g_v(3, cfg)]
        B.append(b)
    b = B[6]
    for db in range(8):
        ins = []
        d = O0 + 16 * db
        for k in range(8):
            t = vE + (k % 8)
            ins.append(valu(f"v_mul_f32 v{d+2*k}, s{sTmp+7}, v{d+2*k}", rd=V(d+2*k), wr=V(d+2*k)))
            ins.append(valu(f"v_mul_f32 v{d+2*k+1}, s{sTmp+7}, v{d+2*k+1}", rd=V(d+2*k+1), wr=V(d+2*k+1)))
            ins.append(valu(f"v_cvt_pk_bf16_f32 v{t}, v{d+2*k}, v{d+2*k+1}", rd=V(d+2*k, 2), wr=V(t)))
            ins.append(valu(f"v_accvgpr_write_b32 a{QF+8*db+k}, v{t}", rd=V(t), wr=Areg(QF+8*db+k)))
        g0 = 4 * db + 3 + 3
        g1 = min(g0 + 5, 31 + 2 * db)
        g1 = max(g1, g0)
        b.valu.append((ins, g0, g1))
    for n in range(-2, 64):
        b = Body(f"a{n}")
        qk = []; pv = []
        if n + 2 <= 63:
            m = n + 2
            S = S_[m % 2]
            for t in range(16):
                key = ("K", m, t)
                rd = (key, [("ds_read_b128", vKB + t % 8, kslot(m) + (t // 8) * 256, 0, 4)], None)
                if t == 0:
                    c = ("0", []) if m < 2 else (vr(NEGM, 16), V(NEGM, 16))
                else:
                    c = (vr(S, 16), V(S, 16))
                qk.append((rd, (S, key, ar(QF + 4*t, 4), Areg(QF + 4*t, 4), c[0], c[1], [])))
            b.need.append(("K", m))
        if n >= 0:
            P = P_[n % 2]
            for ks in range(2):
                for db in range(8):
                    key = ("V", n, ks, db)
                    rd = (key, [("ds_read_b64_tr_b16", vVB + db % 4, vslot(n) + (16*ks + 8*jj) * 512 + (db // 4) * 256, 2*jj, 2) for jj in range(2)], None)
                    d = O0 + 16 * db
                    first = (n == 0 and ks == 0)
                    pv.append((rd, (d, key, vr(P + 4*ks, 4), V(P + 4*ks, 4), "0" if first else vr(d, 16), [] if first else V(d, 16), [])))
            b.need.append(("V", n))
        seq = []
        if qk and pv:
            for a, c in zip(qk, pv): seq += [a, c]
        else:
            seq = qk or pv
        for rd, mf in seq:
            b.reads.append(rd); b.mf.append(mf)
        G = len(seq)
        if n == -1:
            S = S_[0]
            ins = rowmax_instrs(S)
            for k in range(16):
                ins.append(valu(f"v_sub_f32 v{NEGM+k}, 0, v{vD}", rd=V(vD), wr=V(NEGM+k)))
            ins += sm_instrs(0, fix=True)
            b.valu.append((ins, 3, G - 1))
        elif 0 <= n <= 62:
            if n == 0:
                b.valu.append(([valu(f"v_mov_b32 v{vL}, v{vPS}", rd=V(vPS), wr=V(vL))], 0, 0))
            else:
                b.valu.append(([valu(f"v_add_f32 v{vL}, v{vL}, v{vPS}", rd=V(vPS)+V(vL), wr=V(vL))], 0, 0))
            ins = sm_instrs(n + 1, fix=(n == 0))
            ins.append(valu(f"v_cmp_nge_f32 vcc, 0x46800000, v{vPS}", rd=V(vPS), wr=[("vcc", 0)]))
            b.valu.append((ins, 3 if n == 0 else 2, G - 2))
            b.tail.append(I(f"RARE {(n+1)%2} {1 if n + 2 <= 63 else 0}", "rare"))
        elif n == 63:
            ins = [valu(f"v_add_f32 v{vL}, v{vL}, v{vPS}", rd=V(vPS)+V(vL), wr=V(vL)),
                   valu(f"v_mov_b32 v{vF}, v{vL}", rd=V(vL), wr=V(vF)),
                   I(f"v_permlane32_swap_b32 v{vL}, v{vF}", "perm", rd=V(vL)+V(vF), wr=V(vL)+V(vF)),
                   valu(f"v_add_f32 v{vL}, v{vL}, v{vF}", rd=V(vL)+V(vF), wr=V(vL)),
                   trans(f"v_rcp_f32 v{vINV}, v{vL}", rd=V(vL), wr=V(vINV))]
            b.valu.append((ins, 0, 6))
            for db in range(8):
                d = O0 + 16 * db
                o = ob_reg(db)
                ins = [valu(f"v_cvt_pk_bf16_f32 v{o+k}, v{d+2*k}, v{d+2*k+1}", rd=V(d+2*k, 2), wr=V(o+k)) for k in range(8)]
                g0 = 8 + db + 3
                g1 = 15 if db < 2 else 16 + 4 * db - 2
                if db >= 2: g0 = max(g0, g1 - 4)
                b.valu.append((ins, g0, g1))
        if n + 2 <= 63:
            m = n + 6
            b.dma.append(g_k(m, cfg) if m <= 63 else g_wo(m - 64, 0, cfg))
        if n >= 0:
            m = n + 4
            b.dma.append(g_v(m, cfg) if m <= 63 else g_wo(m - 64, 1, cfg))
        B.append(b)
    def drain(j):
        acc = O0 + 32 * (j % 2)
        ins = []
        for q in range(4):
            st = vE + 4 * q
            for k in range(4):
                a = acc + 8 * q + 2 * k
                ins.append(valu(f"v_mul_f32 v{a}, v{vINV}, v{a}", rd=V(a)+V(vINV), wr=V(a)))
                ins.append(valu(f"v_mul_f32 v{a+1}, v{vINV}, v{a+1}", rd=V(a+1)+V(vINV), wr=V(a+1)))
                ins.append(valu(f"v_cvt_pk_bf16_f32 v{st+k}, v{a}, v{a+1}", rd=V(a, 2), wr=V(st+k)))
            if q == 0:
                ins.append(salu(f"s_mov_b32 s{sTmp}, {4096*j}"))
            off = f" offset:{q*1024}" if q else ""
            ins.append(I(f"buffer_store_dwordx4 v[{st}:{st+3}], v{vST}, s[{sPT}:{sPT+3}], s{sTmp} offen{off}{cfg.st_flags}", "store",
                         rd=V(st, 4)+V(vST), tag=("ST", j)))
        return ins
    for j in range(7):
        b = Body(f"op{j}")
        m = 64 + j
        acc = O0 + 32 * (j % 2)
        for db in range(8):
            for tp in range(2):
                for nbl in range(2):
                    key = ("WO", j, db, tp, nbl)
                    base = vXD + (db // 4) * 2 + nbl
                    slot = kslot(m) if db < 4 else vslot(m)
                    b.reads.append((key, [("ds_read_b64_tr_b16", base, slot + (32*(db % 4) + 16*tp + 8*jj) * 128, 2*jj, 2) for jj in range(2)], None))
                    d = acc + 16 * nbl
                    first = (db == 0 and tp == 0)
                    o = ob_reg(db) + 4 * tp
                    b.mf.append((d, key, vr(o, 4), V(o, 4), "0" if first else vr(d, 16), [] if first else V(d, 16), []))
        b.need = [("K", m), ("V", m)]
        if j >= 1:
            b.valu.append((drain(j - 1), 3, 28))
        if j + 4 <= 6:
            b.dma = [g_wo(j + 4, 0, cfg), g_wo(j + 4, 1, cfg)]
        if j == 6:
            b.tail += drain(6)
        B.append(b)
    return B

def schedule(B, cfg, pre_dma):
    starts = []; M = 0
    for b in B:
        starts.append(M); M += len(b.mf)
    fill = {g: [] for g in range(-1, M)}
    load = {g: 0 for g in range(-1, M)}
    def put(g, ins, front=False):
        g = max(-1, min(g, M - 1))
        fill[g].append(ins); load[g] += ins.cost
    bp = [starts[i] + len(B[i].mf) - cfg.LEAD - 1 for i in range(len(B))]
    fragreg = {}
    idx = 0
    consumer = {}
    for i, b in enumerate(B):
        for g, mf in enumerate(b.mf):
            fragreg[mf[1]] = FR + 4 * (idx % cfg.NB); idx += 1
            consumer[mf[1]] = starts[i] + g
            for k in mf[6]:
                consumer.setdefault(k, starts[i] + g)
    put(-1, I("BAR", "bar", tag=B[0].need, cost=8))
    for i, b in enumerate(B[:-1]):
        put(bp[i], I("BAR", "bar", tag=B[i + 1].need, cost=8))
    prev_user = {}
    for i, b in enumerate(B):
        w0 = bp[i - 1] if i > 0 else -cfg.LEAD - 1
        w1 = bp[i] - cfg.DEAD if i < len(B) - 1 else starts[i] + len(b.mf) - 6
        W = w1 - w0 + 1
        flat = []
        for key, parts, fixed in b.reads:
            reg = fixed if fixed is not None else fragreg[key]
            for (op, addr, off, sub, n) in parts:
                flat.append((key, I(f"{op} {ar(reg+sub, n)}, v{addr} offset:{off}", "ds", rd=V(addr), wr=Areg(reg+sub, n), tag=key), reg))
        R = len(flat)
        lastg = None
        for k, (key, ins, reg) in enumerate(flat):
            g = w0 + (k * W) // R
            pu = prev_user.get(reg)
            if pu is not None and pu[0] != key:
                g = max(g, consumer_last(pu[0], B, starts, consumer) + 1) if False else g
            if lastg is not None: g = max(g, lastg)
            lastg = g
            put(g, ins)
            prev_user[reg] = (key,)
        for ins in b.after_reads:
            put(lastg, ins)
    for i, b in enumerate(B):
        g = bp[i]
        ndma = sum(1 for grp in b.dma for x in grp if x.k == "dma")
        if not ndma: continue
        nxt = bp[i + 1] if i + 1 < len(B) else M - 1
        step = min(cfg.DMASTEP, max(1, (nxt - g - 2) // ndma))
        for grp in b.dma:
            for x in grp:
                if x.k == "dma":
                    g += step
                    put(min(g, nxt - 1), x)
                else:
                    put(min(g, nxt - 1), x)
    for i, b in enumerate(B):
        for ins, g0, g1 in b.valu:
            g0 += starts[i]; g1 += starts[i]
            g1 = min(g1, M - 1)
            gs = list(range(g0, g1 + 1))
            tot = sum(load[g] for g in gs) + sum(x.cost for x in ins)
            lo, hi = 0.0, float(tot)
            need = sum(x.cost for x in ins)
            for _ in range(40):
                mid = (lo + hi) / 2
                if sum(max(0.0, mid - load[g]) for g in gs) >= need: hi = mid
                else: lo = mid
            cap = [max(0.0, hi - load[g]) for g in gs]
            acc = 0.0; placed = 0.0; k = 0
            for gi, g in enumerate(gs):
                acc += cap[gi]
                while k < len(ins) and (placed + ins[k].cost / 2 <= acc + 1e-6 or gi == len(gs) - 1):
                    put(g, ins[k]); placed += ins[k].cost; k += 1
    for i, b in enumerate(B):
        for x in b.tail:
            put(starts[i] + len(b.mf) - 1, x)
    def order(lst):
        bars = [x for x in lst if x.k == "bar"]
        tails = [x for x in lst if x.k == "rare"]
        return lst
    out = []
    lg = []
    lg_done = 0
    vm = []
    vm_done = 0
    lastread = {}
    cur = []
    def emit_fill(g):
        nonlocal lg_done, vm_done
        for x in fill[g]:
            if x.k == "bar":
                need = -1
                for idx2, tg in enumerate(vm):
                    if tg in x.tag: need = idx2
                for tg in x.tag:
                    assert tg in vm or cfg.no_dma, (tg, g)
                n = len(vm) - 1 - need
                n = min(n, 63)
                cur.append(I(f"s_waitcnt vmcnt({n}) lgkmcnt(0)", "wait"))
                cur.append(I("s_barrier", "salu"))
                lg_done = len(lg)
            elif x.k == "ds":
                if cfg.no_read: continue
                lg.append((x.tag, g)); lastread[x.tag] = len(lg) - 1
                cur.append(x)
            elif x.k in ("dma", "store"):
                if x.k == "dma" and cfg.no_dma: continue
                vm.append(x.tag); cur.append(x)
            elif x.k in ("valu", "trans", "perm", "rare") and cfg.no_sm:
                continue
            else:
                cur.append(x)
    for grp in pre_dma:
        for x in grp:
            if x.k == "dma":
                if cfg.no_dma: continue
                vm.append(x.tag)
            cur.append(x)
    emit_fill(-1)
    out.append(("pre", cur))
    issued_mf = {}
    for i, b in enumerate(B):
        cur = []
        for gi, mf in enumerate(b.mf):
            g = starts[i] + gi
            d, key, bt, brs, ct, crs, extra = mf
            if not cfg.no_read:
                needi = max(lastread[k] for k in [key] + extra)
                if needi >= lg_done:
                    n_need = len(lg) - 1 - needi
                    n_safe = sum(1 for (_, gg) in lg[lg_done:] if gg > g - 1 - cfg.SAFE)
                    n = min(n_need, n_safe, 15)
                    cur.append(I(f"s_waitcnt lgkmcnt({n})", "wait"))
                    lg_done = len(lg) - n
            fr = fragreg[key]
            if not cfg.no_mfma:
                cur.append(I(f"v_mfma_f32_32x32x16_bf16 {vr(d,16)}, {ar(fr,4)}, {bt}, {ct}", "mfma",
                             rd=Areg(fr, 4) + brs, wr=V(d, 16), c=crs, cost=8))
            emit_fill(g)
        out.append((b.name, cur))
    return out, load

def hazard_pass(segs):
    hist = []
    pos = 0
    res = []
    lastw = {}
    lastc = {}
    lasts = {}
    pend_frag = {}
    nn = 0
    for name, lst in segs:
        o = []
        for x in lst:
            need = 0
            def req(p, d):
                nonlocal need
                need = max(need, d - (pos - p - 1))
            isv = x.k in ("valu", "trans", "perm")
            for r in x.rd + x.c:
                if r in lastw:
                    p, k, full = lastw[r]
                    if k == "mfma":
                        if x.k == "mfma":
                            if r in x.rd: req(p, 12)
                            elif tuple(x.c) != full: req(p, 10)
                        else: req(p, 12)
                    elif k in ("valu", "trans", "perm"):
                        if x.k == "mfma": req(p, 2)
                        if x.k == "perm": req(p, 2)
                        if k == "trans" and x.k in ("valu", "perm"): req(p, 1)
                    elif k == "salu" and r == ("m0", 0): req(p, 1)
            for r in x.wr:
                if r in lastw and lastw[r][1] == "mfma" and x.k != "mfma": req(lastw[r][0], 12)
                if r in lastw and lastw[r][1] == "mfma" and x.k == "mfma" and tuple(x.c) != lastw[r][2]: req(lastw[r][0], 12)
                if isv and r in lastc: req(lastc[r], 7)
                if r in lasts: req(lasts[r], 2)
            if x.k == "ds":
                for r in x.wr:
                    assert r not in pend_frag, ("fragment overwritten before use", name, x.t)
                    pend_frag[r] = 1
            if x.k == "mfma":
                for r in x.rd: pend_frag.pop(r, None)
            if x.k == "rare":
                pass
            while need > 0:
                k = min(need, 16)
                o.append(I(f"s_nop {k-1}", "nop")); pos += k; need -= k; nn += 1
            o.append(x)
            for r in x.wr: lastw[r] = (pos, x.k, tuple(x.wr))
            if x.k == "mfma":
                for r in x.c: lastc[r] = pos
            if x.k == "store":
                for r in x.rd: lasts[r] = pos
            pos += 1
        res.append((name, o))
    return res, nn

def setup_code(cfg):
    L = []
    A = L.append
    A("s_cmp_ge_u32 s2, 256")
    A("s_cbranch_scc1 L_exit")
    A("s_load_dwordx16 s[44:59], s[0:1], 0")
    A("s_load_dwordx4 s[60:63], s[0:1], 64")
    A("s_load_dwordx2 s[64:65], s[0:1], 96")
    if cfg.stamp:
        A("s_memtime s[80:81]")
        A("s_memrealtime s[94:95]")
    A("v_lshrrev_b32 v1, 6, v0")
    A("v_and_b32 v48, 63, v0")
    A(f"v_readfirstlane_b32 s{sWave}, v1")
    A("s_and_b32 s66, s2, 7")
    A("s_lshr_b32 s67, s2, 3")
    A("s_lshr_b32 s68, s66, 2")
    A("s_and_b32 s69, s67, 1")
    A("s_lshr_b32 s70, s67, 1")
    A("s_and_b32 s71, s70, 7")
    A("s_lshr_b32 s70, s70, 3")
    A("s_and_b32 s72, s66, 3")
    A("s_lshl_b32 s72, s72, 1")
    A("s_add_u32 s72, s72, s70")
    A("s_lshl_b32 s73, s72, 1")
    A("s_add_u32 s73, s73, s69")
    A(f"s_lshl_b32 s{sW4K}, s{sWave}, 12")
    A(f"s_lshl_b32 s{sW8K}, s{sWave}, 13")
    A(f"s_lshl_b32 s{sW128K}, s{sWave}, 17")
    A(f"s_mul_i32 s{sW28K}, s{sWave}, 28672")
    A(f"s_mov_b32 s{sKlin}, s{sW4K}")
    A(f"s_mov_b32 s{sVlin}, s{sW4K}")
    A(f"s_mul_i32 s{sMask}, s69, {cfg.XMASK * 16384}")
    A(f"s_mov_b32 s{sTmp+7}, {f32bits(math.log2(math.e) / 16.0):#x}")
    A("v_lshrrev_b32 v49, 5, v48")
    A("v_and_b32 v50, 31, v48")
    A("v_bfe_u32 v51, v48, 4, 1")
    A("v_bfe_u32 v52, v48, 2, 2")
    A("v_and_b32 v53, 3, v48")
    A("v_lshrrev_b32 v55, 3, v48")
    A("v_and_b32 v56, 7, v48")
    for k in range(4):
        A(f"v_add_u32 v57, {8*k}, v55")
        A("v_bfe_u32 v58, v57, 1, 3")
        A("v_xor_b32 v58, v58, v56")
        A("v_mul_u32_u24 v57, 896, v57")
        A(f"v_lshl_add_u32 v57, v58, 4, v57")
        A(f"v_add_u32 v{vXD+k}, {(-k*1024) & 0xffffffff}, v57")
    for k in range(4):
        A(f"v_add_u32 v57, {2*(k&1)}, v49")
        A("v_lshlrev_b32 v57, 2, v57")
        A("v_xor_b32 v57, v57, v50")
        A("v_lshlrev_b32 v57, 4, v57")
        if k < 2:
            A(f"v_lshl_add_u32 v{vVD+k}, v49, 9, v57")
        A("v_lshl_add_u32 v57, v49, 13, v57")
        A(f"v_add_u32 v{vWD+k}, {2*k*8192 - k*1024}, v57")
    A("s_waitcnt lgkmcnt(0)")
    A("s_cmp_eq_u32 s68, 0")
    A("s_cselect_b32 s44, s44, s54"); A("s_cselect_b32 s45, s45, s55")
    A("s_cselect_b32 s46, s46, s56"); A("s_cselect_b32 s47, s47, s57")
    A("s_cselect_b32 s48, s48, s58"); A("s_cselect_b32 s49, s49, s59")
    A("s_cselect_b32 s50, s50, s60"); A("s_cselect_b32 s51, s51, s61")
    A("s_cselect_b32 s52, s52, s62"); A("s_cselect_b32 s53, s53, s63")
    def srd(d, p, offreg, size):
        A(f"s_add_u32 s{d}, s{p}, s{offreg}")
        A(f"s_addc_u32 s{d+1}, s{p+1}, 0")
        A(f"s_and_b32 s{d+1}, s{d+1}, 0xffff")
        if isinstance(size, int): A(f"s_mov_b32 s{d+2}, {size}")
        else: A(f"s_mov_b32 s{d+2}, {size}")
        A(f"s_mov_b32 s{d+3}, 0x20000")
    A("s_mul_i32 s74, s71, 114688"); srd(sX, 44, 74, 114688)
    A("s_lshl_b32 s74, s73, 9"); A(f"s_sub_u32 s75, {448*8192}, s74"); srd(sWQ, 50, 74, "s75")
    A("s_lshl_b32 s74, s71, 3"); A("s_add_u32 s74, s74, s72"); A("s_lshl_b32 s74, s74, 20")
    srd(sK, 46, 74, 1 << 20); srd(sV, 48, 74, 1 << 20)
    return L

def setup_code2(cfg):
    L = []
    A = L.append
    def srd(d, p, offreg, size):
        A(f"s_add_u32 s{d}, s{p}, s{offreg}")
        A(f"s_addc_u32 s{d+1}, s{p+1}, 0")
        A(f"s_and_b32 s{d+1}, s{d+1}, 0xffff")
        A(f"s_mov_b32 s{d+2}, {size}")
        A(f"s_mov_b32 s{d+3}, 0x20000")
    A("s_mul_i32 s74, s73, 229376"); srd(sWO, 52, 74, 229376)
    A("s_lshl_b32 s74, s68, 3"); A("s_add_u32 s74, s74, s71"); A("s_lshl_b32 s74, s74, 4"); A("s_add_u32 s74, s74, s73")
    A("s_mul_i32 s74, s74, 114688"); srd(sPT, 64, 74, 114688)
    A("v_and_b32 v54, 1, v53"); A("v_lshlrev_b32 v54, 1, v54"); A("v_lshrrev_b32 v57, 1, v53"); A("v_or_b32 v54, v54, v57")
    A("v_lshl_add_u32 v57, v49, 3, v52"); A("v_lshlrev_b32 v57, 9, v57")
    A("v_lshl_add_u32 v57, v51, 5, v57"); A("v_lshl_add_u32 v57, v54, 3, v57")
    for j in range(4):
        A(f"v_xor_b32 v58, {j}, v52"); A(f"v_lshl_add_u32 v{vQA+j}, v58, 6, v57")
    A("v_lshlrev_b32 v57, 7, v50"); A(f"v_add_u32 v57, s{sW4K}, v57"); A("v_add_u32 v57, 32768, v57")
    A("v_bfe_u32 v59, v50, 1, 3")
    for kt in range(4):
        A(f"v_add_u32 v58, {2*kt}, v49"); A("v_xor_b32 v58, v58, v59"); A(f"v_lshl_add_u32 v{vXA+kt}, v58, 4, v57")
    A("v_lshl_add_u32 v57, v49, 2, v52"); A("v_lshlrev_b32 v57, 9, v57")
    A("v_lshl_add_u32 v57, v51, 5, v57"); A("v_lshl_add_u32 v57, v53, 3, v57"); A(f"v_add_u32 v57, {VRING}, v57")
    for j in range(4):
        A(f"v_xor_b32 v58, {j}, v52"); A(f"v_lshl_add_u32 v{vVB+j}, v58, 6, v57")
    A("v_lshlrev_b32 v57, 9, v50"); A(f"v_add_u32 v57, {KRING}, v57"); A("v_and_b32 v59, 15, v50")
    for j in range(8):
        A(f"v_add_u32 v58, {2*j}, v49"); A("v_xor_b32 v58, v58, v59"); A(f"v_lshl_add_u32 v{vKB+j}, v58, 4, v57")
    A(f"v_lshlrev_b32 v57, 4, v48"); A(f"v_add_u32 v{vST}, s{sW28K}, v57")
    for k in range(4):
        A(f"v_add_u32 v57, {8*k}, v55")
        A("v_bfe_u32 v58, v57, 1, 1"); A("v_lshlrev_b32 v58, 2, v58")
        A("v_xor_b32 v58, v58, v56")
        A("v_mul_u32_u24 v57, 896, v57")
        A(f"v_lshl_add_u32 v57, v58, 4, v57")
        A(f"v_add_u32 v57, {(-k*1024) & 0xffffffff}, v57")
        A(f"v_accvgpr_write_b32 a{224+k}, v57")
    A("v_lshl_add_u32 v57, v49, 2, v52"); A("v_lshlrev_b32 v57, 7, v57")
    A("v_lshl_add_u32 v57, v51, 5, v57"); A("v_lshl_add_u32 v57, v54, 3, v57")
    A("v_lshrrev_b32 v59, 1, v52")
    for half in range(2):
        for nbl in range(2):
            A(f"v_xor_b32 v58, {nbl}, v59"); A(f"v_lshl_add_u32 v58, v58, 6, v57")
            A(f"v_add_u32 v58, {KRING if half == 0 else VRING}, v58")
            A(f"v_accvgpr_write_b32 a{228+2*half+nbl}, v58")
    return L

def kd_code():
    L = []
    A = L.append
    A(f"s_and_b32 s74, s{sWave}, 1"); A("s_lshl_b32 s74, s74, 3")
    for k in range(4):
        A(f"v_add_u32 v57, {2*k}, v49"); A("v_add_u32 v57, s74, v57"); A("v_xor_b32 v57, v57, v50")
        A("v_lshlrev_b32 v57, 4, v57"); A(f"v_lshl_add_u32 v{vKD+k}, v49, 9, v57")
    return L

def rare_code(par, has_next):
    S = S_[par]; S2 = S_[1 - par]
    ins = [I("s_nop 15", "nop"), I("s_nop 3", "nop")]
    ins += rowmax_instrs(S)
    ins.append(valu(f"v_max_f32 v{vD}, 0, v{vD}", rd=V(vD), wr=V(vD)))
    ins.append(valu(f"v_sub_f32 v{vF}, 0, v{vD}", rd=V(vD), wr=V(vF)))
    ins.append(trans(f"v_exp_f32 v{vF}, v{vF}", rd=V(vF), wr=V(vF)))
    for k in range(16):
        ins.append(valu(f"v_sub_f32 v{NEGM+k}, v{NEGM+k}, v{vD}", rd=V(NEGM+k)+V(vD), wr=V(NEGM+k)))
        ins.append(valu(f"v_sub_f32 v{S+k}, v{S+k}, v{vD}", rd=V(S+k)+V(vD), wr=V(S+k)))
        if has_next:
            ins.append(valu(f"v_sub_f32 v{S2+k}, v{S2+k}, v{vD}", rd=V(S2+k)+V(vD), wr=V(S2+k)))
    ins.append(valu(f"v_mul_f32 v{vL}, v{vL}, v{vF}", rd=V(vL)+V(vF), wr=V(vL)))
    for k in range(128):
        ins.append(valu(f"v_mul_f32 v{O0+k}, v{O0+k}, v{vF}", rd=V(O0+k)+V(vF), wr=V(O0+k)))
    ins += sm_instrs(par)
    ins.append(I("s_nop 1", "nop"))
    ins.append(I(f"s_setpc_b64 s[{sRet}:{sRet+1}]", "salu"))
    segs, _ = hazard_pass([("rare", ins)])
    return [x.t for x in segs[0][1]]

def reduce_kernel(cfg):
    L = []
    A = L.append
    A(".p2align 8")
    A("reduce_kernel:")
    A("s_cmp_ge_u32 s2, 448")
    A("s_cbranch_scc1 L_rexit")
    A("s_load_dwordx2 s[4:5], s[0:1], 96")
    A("s_load_dwordx2 s[6:7], s[0:1], 80")
    A("s_mul_hi_u32 s16, s2, 0x924924a")
    A("s_mul_i32 s17, s16, 28")
    A("s_sub_u32 s17, s2, s17")
    A("s_mul_hi_u32 s18, s17, 0x24924925")
    A("s_mul_i32 s19, s18, 7")
    A("s_sub_u32 s19, s17, s19")
    A("v_lshlrev_b32 v1, 4, v0")
    A("s_lshl_b32 s20, s17, 12")
    A("v_add_u32 v1, s20, v1")
    A("s_mul_i32 s21, s16, 1835008")
    A("s_waitcnt lgkmcnt(0)")
    A("s_add_u32 s8, s4, s21"); A("s_addc_u32 s9, s5, 0"); A("s_and_b32 s9, s9, 0xffff")
    A("s_mov_b32 s10, 1835008"); A("s_mov_b32 s11, 0x20000")
    A("s_mov_b32 s12, s6"); A("s_and_b32 s13, s7, 0xffff"); A("s_mov_b32 s14, 1835008"); A("s_mov_b32 s15, 0x20000")
    A("s_mov_b32 s22, 0")
    for h in range(16):
        A(f"buffer_load_dwordx4 v[{16+4*h}:{19+4*h}], v1, s[8:11], s22 offen{cfg.rd_flags}")
        if h < 15: A("s_add_u32 s22, s22, 114688")
    A("v_and_b32 v2, 31, v0")
    A("s_and_b32 s23, s16, 7"); A("s_lshl_b32 s23, s23, 7"); A("s_lshl_b32 s24, s18, 5"); A("s_add_u32 s23, s23, s24")
    A("v_add_u32 v2, s23, v2")
    A("v_mul_u32_u24 v2, 1792, v2")
    A("v_lshrrev_b32 v3, 5, v0")
    A("v_lshl_add_u32 v2, v3, 4, v2")
    A("s_lshr_b32 s23, s16, 3"); A("s_mul_i32 s23, s23, 896"); A("s_lshl_b32 s24, s19, 7"); A("s_add_u32 s23, s23, s24")
    for h in range(16):
        A(f"s_waitcnt vmcnt({15-h})")
        for k in range(4):
            src = 16 + 4*h + k
            if h == 0:
                A(f"v_lshlrev_b32 v{4+2*k}, 16, v{src}")
                A(f"v_and_b32 v{5+2*k}, 0xffff0000, v{src}")
            else:
                A(f"v_lshlrev_b32 v12, 16, v{src}")
                A(f"v_and_b32 v13, 0xffff0000, v{src}")
                A(f"v_add_f32 v{4+2*k}, v{4+2*k}, v12")
                A(f"v_add_f32 v{5+2*k}, v{5+2*k}, v13")
    for k in range(4):
        A(f"v_cvt_pk_bf16_f32 v{12+k}, v{4+2*k}, v{5+2*k}")
    A("buffer_store_dwordx4 v[12:15], v2, s[12:15], s23 offen")
    A("L_rexit:")
    A("s_endpgm")
    return L

def generate(cfg):
    B = build_bodies(cfg)
    for b in B:
        if b.name == "a-2":
            ins = []
            for k in range(4):
                ins.append(valu(f"v_accvgpr_read_b32 v{vWD+k}, a{224+k}", wr=V(vWD+k)))
                ins.append(valu(f"v_accvgpr_read_b32 v{vXD+k}, a{228+k}", wr=V(vXD+k)))
            for x in ins: x.k = "addr"
            b.valu.append((ins, 12, 15))
    raw = lambda lines: [I(t, "raw") for t in lines]
    pre = g_stage(0, cfg) + [raw(kd_code())] + g_stage(1, cfg) + [g_k(0, cfg)] + g_stage(2, cfg) + [raw(setup_code2(cfg))]
    segs, load = schedule(B, cfg, pre)
    segs, nn = hazard_pass(segs)
    txt = {name: [x.t for x in lst] for name, lst in segs}
    names = [n for n, _ in segs]
    lo = None
    for n in range(0, 8):
        if all(txt[f"a{k}"] == txt[f"a{k+4}"] for k in range(n, n + 8)):
            lo = n; break
    assert lo is not None
    hi = lo
    while hi + 4 <= 63 and all(txt[f"a{hi+k}"] == txt[f"a{lo+k}"] for k in range(4)): hi += 4
    last = lo
    while last + 4 <= 63 and txt[f"a{last+4}"] == txt[f"a{last}"]: last += 1
    last += 3
    nit = (last - lo + 1) // 4
    lo = last + 1 - 4 * nit
    sys.stderr.write(f"loop bodies {lo}..{last} ({nit} iterations), nops inserted {nn}\n")
    L = []
    A = L.append
    A(f"; @launch kernel=attn_kernel grid=(256,1,1) block=(256,1,1) lds=163840")
    A(f"; @launch kernel=reduce_kernel grid=(448,1,1) block=(256,1,1) lds=0")
    A('.amdgcn_target "amdgcn-amd-amdhsa--gfx950"')
    A(".text")
    A(".p2align 8")
    A("attn_kernel:")
    L += setup_code(cfg)
    tramps = []
    def emit_seg(name):
        A(f"; ---- {name}")
        for t in txt[name]:
            if t.startswith("RARE"):
                _, par, nx = t.split()
                lab = f"L_t_{name.replace('-','m')}"
                A(f"s_cbranch_vccnz {lab}")
                A(f"{lab}_back:")
                tramps.append((lab, par, nx))
            else:
                A(t)
    def stamp(i):
        if cfg.stamp:
            A(f"s_memtime s[{82+2*i}:{83+2*i}]")
    for name in names:
        if name.startswith("a"):
            n = int(name[1:])
            if lo <= n <= last:
                if n == lo:
                    A(f"s_mov_b32 s{sCnt}, {nit}")
                    A(".p2align 3")
                    A("L_loop:")
                if n < lo + 4:
                    if n == lo + 3:
                        A(f"s_sub_u32 s{sCnt}, s{sCnt}, 1")
                    emit_seg(name)
                    if n == lo + 3:
                        A(f"s_cmp_lg_u32 s{sCnt}, 0")
                        A("s_cbranch_scc1 L_loop")
                continue
        if name in ("qp0", "a-2", "op0"): stamp(["qp0", "a-2", "op0"].index(name))
        emit_seg(name)
    if cfg.stamp:
        A("s_waitcnt vmcnt(0)")
        A("s_memtime s[88:89]")
        A("s_memrealtime s[90:91]")
        A("s_getreg_b32 s92, hwreg(HW_REG_XCC_ID)")
        A("s_getreg_b32 s93, hwreg(HW_REG_HW_ID)")
        A("s_waitcnt lgkmcnt(0)")
        A("s_add_u32 s76, s64, 0x4000000"); A("s_addc_u32 s77, s65, 0"); A("s_and_b32 s77, s77, 0xffff")
        A("s_mov_b32 s78, 0x100000"); A("s_mov_b32 s79, 0x20000")
        A(f"s_lshl_b32 s74, s2, 2"); A(f"s_add_u32 s74, s74, s{sWave}"); A("s_lshl_b32 s74, s74, 6")
        A("v_mov_b32 v40, 0")
        for i, r in enumerate([80, 82, 84, 86, 88, 90, 92, 93, 94]):
            A(f"v_mov_b32 v41, s{r}")
            A(f"buffer_store_dword v41, v40, s[76:79], s74 offen offset:{4*i}")
    A("L_exit:")
    A("s_endpgm")
    for lab, par, nx in tramps:
        A(f"{lab}:")
        A(f"s_call_b64 s[{sRet}:{sRet+1}], L_rare_{par}_{nx}")
        A(f"s_branch {lab}_back")
    for par, nx in sorted({(p, n) for _, p, n in tramps}):
        A(f"L_rare_{par}_{nx}:")
        L += rare_code(int(par), int(nx))
    L += reduce_kernel(cfg)
    A('.section .rodata,"a"')
    for kn, nv, acc in (("attn_kernel", 512, 256), ("reduce_kernel", 80, 80)):
        A(".p2align 6")
        A(f".amdhsa_kernel {kn}")
        A(f"  .amdhsa_next_free_vgpr {nv}")
        A("  .amdhsa_next_free_sgpr 102")
        A(f"  .amdhsa_accum_offset {acc}")
        A("  .amdhsa_group_segment_fixed_size 0")
        A("  .amdhsa_kernarg_size 104")
        A("  .amdhsa_user_sgpr_count 2")
        A("  .amdhsa_user_sgpr_kernarg_segment_ptr 1")
        A("  .amdhsa_system_sgpr_workgroup_id_x 1")
        A(".end_amdhsa_kernel")
    return "\n".join(L) + "\n"

if __name__ == "__main__":
    ap = argparse.ArgumentParser()
    ap.add_argument("-o", default=f"cdna_kernels/{NAME}.s")
    ap.add_argument("opts", nargs="*")
    a = ap.parse_args()
    cfg = Cfg()
    for o in a.opts:
        k, v = o.split("=", 1)
        old = getattr(cfg, k)
        if isinstance(old, bool): v = v not in ("0", "false", "False")
        elif isinstance(old, int): v = int(v)
        elif k.endswith("_flags"): v = " " + v.replace("+", " ") if v else ""
        setattr(cfg, k, v)
    open(a.o, "w").write(generate(cfg))
```

```python
import sys, math, argparse, struct

NAME = "concat_heads__gqa_block_cached__gqa_block_cached__near_ridge"

def f32bits(x):
    return struct.unpack("<I", struct.pack("<f", x))[0]

class Cfg:
    LEAD = 8
    DEAD = 4
    NB = 16
    SAFE = 3
    DMASTEP = 2
    XMASK = 0
    dma_flags = ""
    no_mfma = False
    no_sm = False
    no_dma = False
    no_read = False
    stamp = False
    touch = 0
    strip = ""
    w_flags = ""
    st_flags = ""
    rd_flags = ""

def V(lo, n=1): return [("v", lo + i) for i in range(n)]
def Areg(lo, n=1): return [("a", lo + i) for i in range(n)]
def vr(lo, n=1): return f"v{lo}" if n == 1 else f"v[{lo}:{lo+n-1}]"
def ar(lo, n=1): return f"a{lo}" if n == 1 else f"a[{lo}:{lo+n-1}]"

O0 = 128
S_ = [96, 112]
NEGM = 80
P_ = [64, 72]
QF = 0
FR = 64
XF = 192
vKB = 0
vVB = 8
vKD = 12
vVD = 16
vWD = 18
vXD = 22
vQA = 26
vXA = 30
vL = 34; vPS = 35; vINV = 36; vST = 37; vD = 38; vF = 39
vT = 40
vE = 48
sX, sWQ, sK, sV, sWO, sPT = 4, 8, 12, 16, 20, 24
sW4K, sKlin, sVlin, sKoff, sVoff, sMask, sCnt, sTmp, sW28K, sW128K, sW8K = 28, 29, 30, 31, 32, 33, 34, 35, 36, 37, 38
sRet = 40
sWave = 39

KRING = 98304
VRING = 32768
def kslot(m): return ((m + 3) % 4) * 16384
def vslot(m): return ((m + 1) % 4) * 16384
def qregion(s): return [0, 98304, 49152][s % 3]

class I:
    __slots__ = ("t", "k", "rd", "wr", "cost", "tag", "c")
    def __init__(s, t, k, rd=(), wr=(), cost=4, tag=None, c=()):
        s.t, s.k, s.rd, s.wr, s.cost, s.tag, s.c = t, k, list(rd), list(wr), cost, tag, list(c)

def valu(t, rd=(), wr=()): return I(t, "valu", rd, wr)
def trans(t, rd=(), wr=()): return I(t, "trans", rd, wr, cost=8)
def salu(t, wr=()): return I(t, "salu", (), wr)

class Body:
    def __init__(s, name):
        s.name = name
        s.mf = []
        s.reads = []
        s.need = []
        s.dma = []
        s.valu = []
        s.after_reads = []
        s.tail = []
        s.head = []

def dma_group(srd, voffs, soff_setup, soff, m0val, tag, flags=""):
    g = list(soff_setup)
    g.append(salu(f"s_add_u32 m0, s{m0val[0]}, {m0val[1]}", wr=[("m0", 0)]))
    for k in range(4):
        off = f" offset:{k*1024}" if k else ""
        g.append(I(f"buffer_load_dwordx4 v{voffs[k]}, s[{srd}:{srd+3}], s{soff} offen{off}{flags} lds",
                   "dma", rd=[("v", voffs[k]), ("m0", 0)], tag=tag))
    return g

def g_k(m, cfg):
    return dma_group(sK, [vKD + k for k in range(4)],
                     [salu(f"s_xor_b32 s{sKoff}, s{sKlin}, s{sMask}"), salu(f"s_add_u32 s{sKlin}, s{sKlin}, 16384")],
                     sKoff, (sW4K, KRING + kslot(m)), ("K", m), cfg.dma_flags)
def g_v(m, cfg):
    return dma_group(sV, [vVD + (k & 1) for k in range(4)],
                     [salu(f"s_xor_b32 s{sVoff}, s{sVlin}, s{sMask}"), salu(f"s_add_u32 s{sVlin}, s{sVlin}, 16384")],
                     sVoff, (sW4K, VRING + vslot(m)), ("V", m), cfg.dma_flags)
def g_wo(j, half, cfg):
    m = 64 + j
    ring = (KRING + kslot(m)) if half == 0 else (VRING + vslot(m))
    so = sKoff if half == 0 else sVoff
    return dma_group(sWO, [vWD + k for k in range(4)],
                     [salu(f"s_add_u32 s{so}, s{sW28K}, {half*128*896 + 128*j}")],
                     so, (sW4K, ring), ("K" if half == 0 else "V", m), cfg.w_flags)
def g_stage(s, cfg):
    rb = qregion(s)
    gs = []
    gs.append(dma_group(sX, [vXD + k for k in range(4)],
                        [salu(f"s_add_u32 s{sTmp}, s{sW28K}, {128*s}")], sTmp, (sW4K, rb + 32768), ("Q", s), cfg.w_flags))
    for kk in range(2):
        gs.append(dma_group(sWQ, [vWD + k for k in range(4)],
                            [salu(f"s_add_u32 s{sTmp}, s{sW128K}, {(64*s + 8*kk)*8192}")], sTmp,
                            (sW8K, rb + kk * 4096), ("Q", s), cfg.w_flags))
    return gs

def sm_instrs(n, fix=False):
    S = S_[n % 2]; P = P_[n % 2]
    out = []
    pend = []
    for k in range(8):
        t0 = vT + (2 * k) % 8; t1 = t0 + 1
        if fix:
            out.append(valu(f"v_add_f32 v{S+2*k}, v{NEGM}, v{S+2*k}", rd=V(S+2*k)+V(NEGM), wr=V(S+2*k)))
            out.append(valu(f"v_add_f32 v{S+2*k+1}, v{NEGM}, v{S+2*k+1}", rd=V(S+2*k+1)+V(NEGM), wr=V(S+2*k+1)))
        out.append(trans(f"v_exp_f32 v{t0}, v{S+2*k}", rd=V(S+2*k), wr=V(t0)))
        if pend: out.append(pend.pop(0))
        out.append(trans(f"v_exp_f32 v{t1}, v{S+2*k+1}", rd=V(S+2*k+1), wr=V(t1)))
        out += pend; pend = []
        if k == 0:
            pend.append(valu(f"v_add_f32 v{vPS}, v{t0}, v{t1}", rd=V(t0, 2), wr=V(vPS)))
        else:
            pend.append(valu(f"v_add_f32 v{vPS}, v{vPS}, v{t0}", rd=V(t0)+V(vPS), wr=V(vPS)))
            pend.append(valu(f"v_add_f32 v{vPS}, v{vPS}, v{t1}", rd=V(t1)+V(vPS), wr=V(vPS)))
        pend.append(valu(f"v_cvt_pk_bf16_f32 v{P+k}, v{t0}, v{t1}", rd=V(t0, 2), wr=V(P+k)))
    out += pend
    return out

def rowmax_instrs(S):
    o = []
    o.append(valu(f"v_max3_f32 v{vD}, v{S}, v{S+1}, v{S+2}", rd=V(S, 3), wr=V(vD)))
    for k in range(3, 15, 2):
        o.append(valu(f"v_max3_f32 v{vD}, v{vD}, v{S+k}, v{S+k+1}", rd=V(S+k, 2)+V(vD), wr=V(vD)))
    o.append(valu(f"v_max_f32 v{vD}, v{vD}, v{S+15}", rd=V(S+15)+V(vD), wr=V(vD)))
    o.append(valu(f"v_mov_b32 v{vF}, v{vD}", rd=V(vD), wr=V(vF)))
    o.append(I(f"v_permlane32_swap_b32 v{vD}, v{vF}", "perm", rd=V(vD)+V(vF), wr=V(vD)+V(vF)))
    o.append(valu(f"v_max_f32 v{vD}, v{vD}, v{vF}", rd=V(vD)+V(vF), wr=V(vD)))
    return o

def ob_reg(db):
    return [S_[0], S_[0] + 8, S_[1], S_[1] + 8, NEGM, NEGM + 8, P_[0], P_[1]][db]

def build_bodies(cfg):
    B = []
    for s in range(7):
        b = Body(f"qp{s}")
        order = [(kt, db) for kt in range(4) for db in range(8)] if s < 6 else [(kt, db) for db in range(8) for kt in range(4)]
        xdone = set()
        def xread(kt):
            b.reads.append((("X", s, kt), [("ds_read_b128", vXA + kt, 0, 0, 4)], XF + ((s % 2) * 4 + kt) * 4))
        if s == 6:
            for kt in range(4): xread(kt); xdone.add(kt)
        for (kt, db) in order:
            if kt not in xdone:
                xread(kt); xdone.add(kt)
            key = ("WQ", s, kt, db)
            b.reads.append((key, [("ds_read_b64_tr_b16", vQA + db % 4, (16*kt + 4*jj) * 512 + (db // 4) * 256, 2*jj, 2) for jj in range(2)], None))
            xf = XF + ((s % 2) * 4 + kt) * 4
            d = O0 + 16 * db
            first = (s == 0 and kt == 0)
            b.mf.append((d, key, ar(xf, 4), Areg(xf, 4), "0" if first else vr(d, 16), [] if first else V(d, 16), [("X", s, kt)]))
        b.need = [("Q", s)]
        if s < 6:
            delta = qregion(s + 1) - qregion(s)
            for r in list(range(vQA, vQA + 4)) + list(range(vXA, vXA + 4)):
                b.after_reads.append(valu(f"v_add_u32 v{r}, {delta & 0xffffffff}, v{r}", rd=V(r), wr=V(r)))
        if s <= 3: b.dma = g_stage(s + 3, cfg)
        elif s == 4: b.dma = [g_k(1, cfg), g_k(2, cfg), g_k(3, cfg)]
        elif s == 5: b.dma = [g_v(0, cfg), g_v(1, cfg), g_v(2, cfg)]
        else: b.dma = [g_v(3, cfg)]
        B.append(b)
    b = B[6]
    for db in range(8):
        ins = []
        d = O0 + 16 * db
        for k in range(8):
            t = vE + (k % 8)
            ins.append(valu(f"v_mul_f32 v{d+2*k}, s{sTmp+7}, v{d+2*k}", rd=V(d+2*k), wr=V(d+2*k)))
            ins.append(valu(f"v_mul_f32 v{d+2*k+1}, s{sTmp+7}, v{d+2*k+1}", rd=V(d+2*k+1), wr=V(d+2*k+1)))
            ins.append(valu(f"v_cvt_pk_bf16_f32 v{t}, v{d+2*k}, v{d+2*k+1}", rd=V(d+2*k, 2), wr=V(t)))
            ins.append(valu(f"v_accvgpr_write_b32 a{QF+8*db+k}, v{t}", rd=V(t), wr=Areg(QF+8*db+k)))
        g0 = 4 * db + 3 + 3
        g1 = min(g0 + 5, 31 + 2 * db)
        g1 = max(g1, g0)
        b.valu.append((ins, g0, g1))
    for n in range(-2, 64):
        b = Body(f"a{n}")
        qk = []; pv = []
        if n + 2 <= 63:
            m = n + 2
            S = S_[m % 2]
            for t in range(16):
                key = ("K", m, t)
                rd = (key, [("ds_read_b128", vKB + t % 8, kslot(m) + (t // 8) * 256, 0, 4)], None)
                if t == 0:
                    c = ("0", []) if m < 2 else (vr(NEGM, 16), V(NEGM, 16))
                else:
                    c = (vr(S, 16), V(S, 16))
                qk.append((rd, (S, key, ar(QF + 4*t, 4), Areg(QF + 4*t, 4), c[0], c[1], [])))
            b.need.append(("K", m))
        if n >= 0:
            P = P_[n % 2]
            for ks in range(2):
                for db in range(8):
                    key = ("V", n, ks, db)
                    rd = (key, [("ds_read_b64_tr_b16", vVB + db % 4, vslot(n) + (16*ks + 8*jj) * 512 + (db // 4) * 256, 2*jj, 2) for jj in range(2)], None)
                    d = O0 + 16 * db
                    first = (n == 0 and ks == 0)
                    pv.append((rd, (d, key, vr(P + 4*ks, 4), V(P + 4*ks, 4), "0" if first else vr(d, 16), [] if first else V(d, 16), [])))
            b.need.append(("V", n))
        seq = []
        if qk and pv:
            for a, c in zip(qk, pv): seq += [a, c]
        else:
            seq = qk or pv
        for rd, mf in seq:
            b.reads.append(rd); b.mf.append(mf)
        G = len(seq)
        if n == -1:
            S = S_[0]
            ins = rowmax_instrs(S)
            for k in range(16):
                ins.append(valu(f"v_sub_f32 v{NEGM+k}, 0, v{vD}", rd=V(vD), wr=V(NEGM+k)))
            ins += sm_instrs(0, fix=True)
            b.valu.append((ins, 3, G - 1))
        elif 0 <= n <= 62:
            if n == 0:
                b.valu.append(([valu(f"v_mov_b32 v{vL}, v{vPS}", rd=V(vPS), wr=V(vL))], 0, 0))
            else:
                b.valu.append(([valu(f"v_add_f32 v{vL}, v{vL}, v{vPS}", rd=V(vPS)+V(vL), wr=V(vL))], 0, 0))
            ins = sm_instrs(n + 1, fix=(n == 0))
            ins.append(valu(f"v_cmp_nge_f32 vcc, 0x46800000, v{vPS}", rd=V(vPS), wr=[("vcc", 0)]))
            b.valu.append((ins, 3 if n == 0 else 2, G - 2))
            b.tail.append(I(f"RARE {(n+1)%2} {1 if n + 2 <= 63 else 0}", "rare"))
        elif n == 63:
            ins = [valu(f"v_add_f32 v{vL}, v{vL}, v{vPS}", rd=V(vPS)+V(vL), wr=V(vL)),
                   valu(f"v_mov_b32 v{vF}, v{vL}", rd=V(vL), wr=V(vF)),
                   I(f"v_permlane32_swap_b32 v{vL}, v{vF}", "perm", rd=V(vL)+V(vF), wr=V(vL)+V(vF)),
                   valu(f"v_add_f32 v{vL}, v{vL}, v{vF}", rd=V(vL)+V(vF), wr=V(vL)),
                   trans(f"v_rcp_f32 v{vINV}, v{vL}", rd=V(vL), wr=V(vINV))]
            b.valu.append((ins, 0, 6))
            for db in range(8):
                d = O0 + 16 * db
                o = ob_reg(db)
                ins = [valu(f"v_cvt_pk_bf16_f32 v{o+k}, v{d+2*k}, v{d+2*k+1}", rd=V(d+2*k, 2), wr=V(o+k)) for k in range(8)]
                g0 = 8 + db + 3
                g1 = 15 if db < 2 else 16 + 4 * db - 2
                if db >= 2: g0 = max(g0, g1 - 4)
                b.valu.append((ins, g0, g1))
        if n + 2 <= 63:
            m = n + 6
            b.dma.append(g_k(m, cfg) if m <= 63 else g_wo(m - 64, 0, cfg))
        if n >= 0:
            m = n + 4
            b.dma.append(g_v(m, cfg) if m <= 63 else g_wo(m - 64, 1, cfg))
        B.append(b)
    def drain(j):
        acc = O0 + 32 * (j % 2)
        ins = []
        for q in range(4):
            st = vE + 4 * q
            for k in range(4):
                a = acc + 8 * q + 2 * k
                ins.append(valu(f"v_mul_f32 v{a}, v{vINV}, v{a}", rd=V(a)+V(vINV), wr=V(a)))
                ins.append(valu(f"v_mul_f32 v{a+1}, v{vINV}, v{a+1}", rd=V(a+1)+V(vINV), wr=V(a+1)))
                ins.append(valu(f"v_cvt_pk_bf16_f32 v{st+k}, v{a}, v{a+1}", rd=V(a, 2), wr=V(st+k)))
            if q == 0:
                ins.append(salu(f"s_mov_b32 s{sTmp}, {4096*j}"))
            off = f" offset:{q*1024}" if q else ""
            ins.append(I(f"buffer_store_dwordx4 v[{st}:{st+3}], v{vST}, s[{sPT}:{sPT+3}], s{sTmp} offen{off}{cfg.st_flags}", "store",
                         rd=V(st, 4)+V(vST), tag=("ST", j)))
        return ins
    for j in range(7):
        b = Body(f"op{j}")
        m = 64 + j
        acc = O0 + 32 * (j % 2)
        for db in range(8):
            for tp in range(2):
                for nbl in range(2):
                    key = ("WO", j, db, tp, nbl)
                    base = vXD + (db // 4) * 2 + nbl
                    slot = kslot(m) if db < 4 else vslot(m)
                    b.reads.append((key, [("ds_read_b64_tr_b16", base, slot + (32*(db % 4) + 16*tp + 8*jj) * 128, 2*jj, 2) for jj in range(2)], None))
                    d = acc + 16 * nbl
                    first = (db == 0 and tp == 0)
                    o = ob_reg(db) + 4 * tp
                    b.mf.append((d, key, vr(o, 4), V(o, 4), "0" if first else vr(d, 16), [] if first else V(d, 16), []))
        b.need = [("K", m), ("V", m)]
        if j >= 1:
            b.valu.append((drain(j - 1), 3, 28))
        if j + 4 <= 6:
            b.dma = [g_wo(j + 4, 0, cfg), g_wo(j + 4, 1, cfg)]
        if j == 6:
            b.tail += drain(6)
        B.append(b)
    return B

def schedule(B, cfg, pre_dma):
    starts = []; M = 0
    for b in B:
        starts.append(M); M += len(b.mf)
    fill = {g: [] for g in range(-1, M)}
    load = {g: 0 for g in range(-1, M)}
    def put(g, ins, front=False):
        g = max(-1, min(g, M - 1))
        fill[g].append(ins); load[g] += ins.cost
    bp = [starts[i] + len(B[i].mf) - cfg.LEAD - 1 for i in range(len(B))]
    fragreg = {}
    idx = 0
    consumer = {}
    for i, b in enumerate(B):
        for g, mf in enumerate(b.mf):
            fragreg[mf[1]] = FR + 4 * (idx % cfg.NB); idx += 1
            consumer[mf[1]] = starts[i] + g
            for k in mf[6]:
                consumer.setdefault(k, starts[i] + g)
    put(-1, I("BAR", "bar", tag=B[0].need, cost=8))
    for i, b in enumerate(B[:-1]):
        put(bp[i], I("BAR", "bar", tag=B[i + 1].need, cost=8))
    prev_user = {}
    for i, b in enumerate(B):
        w0 = bp[i - 1] if i > 0 else -cfg.LEAD - 1
        w1 = bp[i] - cfg.DEAD if i < len(B) - 1 else starts[i] + len(b.mf) - 6
        W = w1 - w0 + 1
        flat = []
        for key, parts, fixed in b.reads:
            reg = fixed if fixed is not None else fragreg[key]
            for (op, addr, off, sub, n) in parts:
                flat.append((key, I(f"{op} {ar(reg+sub, n)}, v{addr} offset:{off}", "ds", rd=V(addr), wr=Areg(reg+sub, n), tag=key), reg))
        R = len(flat)
        lastg = None
        for k, (key, ins, reg) in enumerate(flat):
            g = w0 + (k * W) // R
            pu = prev_user.get(reg)
            if pu is not None and pu[0] != key:
                g = max(g, consumer_last(pu[0], B, starts, consumer) + 1) if False else g
            if lastg is not None: g = max(g, lastg)
            lastg = g
            put(g, ins)
            prev_user[reg] = (key,)
        for ins in b.after_reads:
            put(lastg, ins)
    for i, b in enumerate(B):
        g = bp[i]
        ndma = sum(1 for grp in b.dma for x in grp if x.k == "dma")
        if not ndma: continue
        nxt = bp[i + 1] if i + 1 < len(B) else M - 1
        step = min(cfg.DMASTEP, max(1, (nxt - g - 2) // ndma))
        for grp in b.dma:
            for x in grp:
                if x.k == "dma":
                    g += step
                    put(min(g, nxt - 1), x)
                else:
                    put(min(g, nxt - 1), x)
    for i, b in enumerate(B):
        for ins, g0, g1 in b.valu:
            g0 += starts[i]; g1 += starts[i]
            g1 = min(g1, M - 1)
            gs = list(range(g0, g1 + 1))
            tot = sum(load[g] for g in gs) + sum(x.cost for x in ins)
            lo, hi = 0.0, float(tot)
            need = sum(x.cost for x in ins)
            for _ in range(40):
                mid = (lo + hi) / 2
                if sum(max(0.0, mid - load[g]) for g in gs) >= need: hi = mid
                else: lo = mid
            cap = [max(0.0, hi - load[g]) for g in gs]
            acc = 0.0; placed = 0.0; k = 0
            for gi, g in enumerate(gs):
                acc += cap[gi]
                while k < len(ins) and (placed + ins[k].cost / 2 <= acc + 1e-6 or gi == len(gs) - 1):
                    put(g, ins[k]); placed += ins[k].cost; k += 1
    for i, b in enumerate(B):
        for x in b.tail:
            put(starts[i] + len(b.mf) - 1, x)
    def order(lst):
        bars = [x for x in lst if x.k == "bar"]
        tails = [x for x in lst if x.k == "rare"]
        return lst
    out = []
    lg = []
    lg_done = 0
    vm = []
    vm_done = 0
    lastread = {}
    cur = []
    def emit_fill(g):
        nonlocal lg_done, vm_done
        for x in fill[g]:
            if x.k == "bar":
                need = -1
                for idx2, tg in enumerate(vm):
                    if tg in x.tag: need = idx2
                for tg in x.tag:
                    assert tg in vm or cfg.no_dma, (tg, g)
                n = len(vm) - 1 - need
                n = min(n, 63)
                cur.append(I(f"s_waitcnt vmcnt({n}) lgkmcnt(0)", "wait"))
                cur.append(I("s_barrier", "salu"))
                lg_done = len(lg)
            elif x.k == "ds":
                if cfg.no_read: continue
                lg.append((x.tag, g)); lastread[x.tag] = len(lg) - 1
                cur.append(x)
            elif x.k in ("dma", "store"):
                if x.k == "dma" and cfg.no_dma: continue
                vm.append(x.tag); cur.append(x)
            elif x.k in ("valu", "trans", "perm", "rare") and cfg.no_sm:
                continue
            else:
                cur.append(x)
    for grp in pre_dma:
        for x in grp:
            if x.k == "dma":
                if cfg.no_dma: continue
                vm.append(x.tag)
            cur.append(x)
    emit_fill(-1)
    out.append(("pre", cur))
    issued_mf = {}
    for i, b in enumerate(B):
        cur = []
        for gi, mf in enumerate(b.mf):
            g = starts[i] + gi
            d, key, bt, brs, ct, crs, extra = mf
            if not cfg.no_read:
                needi = max(lastread[k] for k in [key] + extra)
                if needi >= lg_done:
                    n_need = len(lg) - 1 - needi
                    n_safe = sum(1 for (_, gg) in lg[lg_done:] if gg > g - 1 - cfg.SAFE)
                    n = min(n_need, n_safe, 15)
                    cur.append(I(f"s_waitcnt lgkmcnt({n})", "wait"))
                    lg_done = len(lg) - n
            fr = fragreg[key]
            if not cfg.no_mfma:
                cur.append(I(f"v_mfma_f32_32x32x16_bf16 {vr(d,16)}, {ar(fr,4)}, {bt}, {ct}", "mfma",
                             rd=Areg(fr, 4) + brs, wr=V(d, 16), c=crs, cost=8))
            emit_fill(g)
        out.append((b.name, cur))
    return out, load

def hazard_pass(segs):
    hist = []
    pos = 0
    res = []
    lastw = {}
    lastc = {}
    lasts = {}
    pend_frag = {}
    nn = 0
    for name, lst in segs:
        o = []
        for x in lst:
            need = 0
            def req(p, d):
                nonlocal need
                need = max(need, d - (pos - p - 1))
            isv = x.k in ("valu", "trans", "perm")
            for r in x.rd + x.c:
                if r in lastw:
                    p, k, full = lastw[r]
                    if k == "mfma":
                        if x.k == "mfma":
                            if r in x.rd: req(p, 12)
                            elif tuple(x.c) != full: req(p, 10)
                        else: req(p, 12)
                    elif k in ("valu", "trans", "perm"):
                        if x.k == "mfma": req(p, 2)
                        if x.k == "perm": req(p, 2)
                        if k == "trans" and x.k in ("valu", "perm"): req(p, 1)
                    elif k == "salu" and r == ("m0", 0): req(p, 1)
            for r in x.wr:
                if r in lastw and lastw[r][1] == "mfma" and x.k != "mfma": req(lastw[r][0], 12)
                if r in lastw and lastw[r][1] == "mfma" and x.k == "mfma" and tuple(x.c) != lastw[r][2]: req(lastw[r][0], 12)
                if isv and r in lastc: req(lastc[r], 7)
                if r in lasts: req(lasts[r], 2)
            if x.k == "ds":
                for r in x.wr:
                    assert r not in pend_frag, ("fragment overwritten before use", name, x.t)
                    pend_frag[r] = 1
            if x.k == "mfma":
                for r in x.rd: pend_frag.pop(r, None)
            if x.k == "rare":
                pass
            while need > 0:
                k = min(need, 16)
                o.append(I(f"s_nop {k-1}", "nop")); pos += k; need -= k; nn += 1
            o.append(x)
            for r in x.wr: lastw[r] = (pos, x.k, tuple(x.wr))
            if x.k == "mfma":
                for r in x.c: lastc[r] = pos
            if x.k == "store":
                for r in x.rd: lasts[r] = pos
            pos += 1
        res.append((name, o))
    return res, nn

def setup_code(cfg):
    L = []
    A = L.append
    A("s_cmp_ge_u32 s2, 256")
    A("s_cbranch_scc1 L_exit")
    A("s_load_dwordx16 s[44:59], s[0:1], 0")
    A("s_load_dwordx4 s[60:63], s[0:1], 64")
    A("s_load_dwordx2 s[64:65], s[0:1], 96")
    if cfg.stamp:
        A("s_memtime s[80:81]")
        A("s_memrealtime s[94:95]")
    A("v_lshrrev_b32 v1, 6, v0")
    A("v_and_b32 v48, 63, v0")
    A(f"v_readfirstlane_b32 s{sWave}, v1")
    A("s_and_b32 s66, s2, 7")
    A("s_lshr_b32 s67, s2, 3")
    A("s_lshr_b32 s68, s66, 2")
    A("s_and_b32 s69, s67, 1")
    A("s_lshr_b32 s70, s67, 1")
    A("s_and_b32 s71, s70, 7")
    A("s_lshr_b32 s70, s70, 3")
    A("s_and_b32 s72, s66, 3")
    A("s_lshl_b32 s72, s72, 1")
    A("s_add_u32 s72, s72, s70")
    A("s_lshl_b32 s73, s72, 1")
    A("s_add_u32 s73, s73, s69")
    A(f"s_lshl_b32 s{sW4K}, s{sWave}, 12")
    A(f"s_lshl_b32 s{sW8K}, s{sWave}, 13")
    A(f"s_lshl_b32 s{sW128K}, s{sWave}, 17")
    A(f"s_mul_i32 s{sW28K}, s{sWave}, 28672")
    A(f"s_mov_b32 s{sKlin}, s{sW4K}")
    A(f"s_mov_b32 s{sVlin}, s{sW4K}")
    A(f"s_mul_i32 s{sMask}, s69, {cfg.XMASK * 16384}")
    A(f"s_mov_b32 s{sTmp+7}, {f32bits(math.log2(math.e) / 16.0):#x}")
    A("v_lshrrev_b32 v49, 5, v48")
    A("v_and_b32 v50, 31, v48")
    A("v_bfe_u32 v51, v48, 4, 1")
    A("v_bfe_u32 v52, v48, 2, 2")
    A("v_and_b32 v53, 3, v48")
    A("v_lshrrev_b32 v55, 3, v48")
    A("v_and_b32 v56, 7, v48")
    for k in range(4):
        A(f"v_add_u32 v57, {8*k}, v55")
        A("v_bfe_u32 v58, v57, 1, 3")
        A("v_xor_b32 v58, v58, v56")
        A("v_mul_u32_u24 v57, 896, v57")
        A(f"v_lshl_add_u32 v57, v58, 4, v57")
        A(f"v_add_u32 v{vXD+k}, {(-k*1024) & 0xffffffff}, v57")
    for k in range(4):
        A(f"v_add_u32 v57, {2*(k&1)}, v49")
        A("v_lshlrev_b32 v57, 2, v57")
        A("v_xor_b32 v57, v57, v50")
        A("v_lshlrev_b32 v57, 4, v57")
        if k < 2:
            A(f"v_lshl_add_u32 v{vVD+k}, v49, 9, v57")
        A("v_lshl_add_u32 v57, v49, 13, v57")
        A(f"v_add_u32 v{vWD+k}, {2*k*8192 - k*1024}, v57")
    A("s_waitcnt lgkmcnt(0)")
    A("s_cmp_eq_u32 s68, 0")
    A("s_cselect_b32 s44, s44, s54"); A("s_cselect_b32 s45, s45, s55")
    A("s_cselect_b32 s46, s46, s56"); A("s_cselect_b32 s47, s47, s57")
    A("s_cselect_b32 s48, s48, s58"); A("s_cselect_b32 s49, s49, s59")
    A("s_cselect_b32 s50, s50, s60"); A("s_cselect_b32 s51, s51, s61")
    A("s_cselect_b32 s52, s52, s62"); A("s_cselect_b32 s53, s53, s63")
    def srd(d, p, offreg, size):
        A(f"s_add_u32 s{d}, s{p}, s{offreg}")
        A(f"s_addc_u32 s{d+1}, s{p+1}, 0")
        A(f"s_and_b32 s{d+1}, s{d+1}, 0xffff")
        if isinstance(size, int): A(f"s_mov_b32 s{d+2}, {size}")
        else: A(f"s_mov_b32 s{d+2}, {size}")
        A(f"s_mov_b32 s{d+3}, 0x20000")
    A("s_mul_i32 s74, s71, 114688"); srd(sX, 44, 74, 114688)
    A("s_lshl_b32 s74, s73, 9"); A(f"s_sub_u32 s75, {448*8192}, s74"); srd(sWQ, 50, 74, "s75")
    A("s_lshl_b32 s74, s71, 3"); A("s_add_u32 s74, s74, s72"); A("s_lshl_b32 s74, s74, 20")
    srd(sK, 46, 74, 1 << 20); srd(sV, 48, 74, 1 << 20)
    return L

def setup_code2(cfg):
    L = []
    A = L.append
    def srd(d, p, offreg, size):
        A(f"s_add_u32 s{d}, s{p}, s{offreg}")
        A(f"s_addc_u32 s{d+1}, s{p+1}, 0")
        A(f"s_and_b32 s{d+1}, s{d+1}, 0xffff")
        A(f"s_mov_b32 s{d+2}, {size}")
        A(f"s_mov_b32 s{d+3}, 0x20000")
    A("s_mul_i32 s74, s73, 229376"); srd(sWO, 52, 74, 229376)
    A("s_lshl_b32 s74, s68, 3"); A("s_add_u32 s74, s74, s71"); A("s_lshl_b32 s74, s74, 4"); A("s_add_u32 s74, s74, s73")
    A("s_mul_i32 s74, s74, 114688"); srd(sPT, 64, 74, 114688)
    A("v_and_b32 v54, 1, v53"); A("v_lshlrev_b32 v54, 1, v54"); A("v_lshrrev_b32 v57, 1, v53"); A("v_or_b32 v54, v54, v57")
    A("v_lshl_add_u32 v57, v49, 3, v52"); A("v_lshlrev_b32 v57, 9, v57")
    A("v_lshl_add_u32 v57, v51, 5, v57"); A("v_lshl_add_u32 v57, v54, 3, v57")
    for j in range(4):
        A(f"v_xor_b32 v58, {j}, v52"); A(f"v_lshl_add_u32 v{vQA+j}, v58, 6, v57")
    A("v_lshlrev_b32 v57, 7, v50"); A(f"v_add_u32 v57, s{sW4K}, v57"); A("v_add_u32 v57, 32768, v57")
    A("v_bfe_u32 v59, v50, 1, 3")
    for kt in range(4):
        A(f"v_add_u32 v58, {2*kt}, v49"); A("v_xor_b32 v58, v58, v59"); A(f"v_lshl_add_u32 v{vXA+kt}, v58, 4, v57")
    A("v_lshl_add_u32 v57, v49, 2, v52"); A("v_lshlrev_b32 v57, 9, v57")
    A("v_lshl_add_u32 v57, v51, 5, v57"); A("v_lshl_add_u32 v57, v53, 3, v57"); A(f"v_add_u32 v57, {VRING}, v57")
    for j in range(4):
        A(f"v_xor_b32 v58, {j}, v52"); A(f"v_lshl_add_u32 v{vVB+j}, v58, 6, v57")
    A("v_lshlrev_b32 v57, 9, v50"); A(f"v_add_u32 v57, {KRING}, v57"); A("v_and_b32 v59, 15, v50")
    for j in range(8):
        A(f"v_add_u32 v58, {2*j}, v49"); A("v_xor_b32 v58, v58, v59"); A(f"v_lshl_add_u32 v{vKB+j}, v58, 4, v57")
    A(f"v_lshlrev_b32 v57, 4, v48"); A(f"v_add_u32 v{vST}, s{sW28K}, v57")
    for k in range(4):
        A(f"v_add_u32 v57, {8*k}, v55")
        A("v_bfe_u32 v58, v57, 1, 1"); A("v_lshlrev_b32 v58, 2, v58")
        A("v_xor_b32 v58, v58, v56")
        A("v_mul_u32_u24 v57, 896, v57")
        A(f"v_lshl_add_u32 v57, v58, 4, v57")
        A(f"v_add_u32 v57, {(-k*1024) & 0xffffffff}, v57")
        A(f"v_accvgpr_write_b32 a{224+k}, v57")
    A("v_lshl_add_u32 v57, v49, 2, v52"); A("v_lshlrev_b32 v57, 7, v57")
    A("v_lshl_add_u32 v57, v51, 5, v57"); A("v_lshl_add_u32 v57, v54, 3, v57")
    A("v_lshrrev_b32 v59, 1, v52")
    for half in range(2):
        for nbl in range(2):
            A(f"v_xor_b32 v58, {nbl}, v59"); A(f"v_lshl_add_u32 v58, v58, 6, v57")
            A(f"v_add_u32 v58, {KRING if half == 0 else VRING}, v58")
            A(f"v_accvgpr_write_b32 a{228+2*half+nbl}, v58")
    return L

def kd_code():
    L = []
    A = L.append
    A(f"s_and_b32 s74, s{sWave}, 1"); A("s_lshl_b32 s74, s74, 3")
    for k in range(4):
        A(f"v_add_u32 v57, {2*k}, v49"); A("v_add_u32 v57, s74, v57"); A("v_xor_b32 v57, v57, v50")
        A("v_lshlrev_b32 v57, 4, v57"); A(f"v_lshl_add_u32 v{vKD+k}, v49, 9, v57")
    return L

def rare_code(par, has_next):
    S = S_[par]; S2 = S_[1 - par]
    ins = [I("s_nop 15", "nop"), I("s_nop 3", "nop")]
    ins += rowmax_instrs(S)
    ins.append(valu(f"v_max_f32 v{vD}, 0, v{vD}", rd=V(vD), wr=V(vD)))
    ins.append(valu(f"v_sub_f32 v{vF}, 0, v{vD}", rd=V(vD), wr=V(vF)))
    ins.append(trans(f"v_exp_f32 v{vF}, v{vF}", rd=V(vF), wr=V(vF)))
    for k in range(16):
        ins.append(valu(f"v_sub_f32 v{NEGM+k}, v{NEGM+k}, v{vD}", rd=V(NEGM+k)+V(vD), wr=V(NEGM+k)))
        ins.append(valu(f"v_sub_f32 v{S+k}, v{S+k}, v{vD}", rd=V(S+k)+V(vD), wr=V(S+k)))
        if has_next:
            ins.append(valu(f"v_sub_f32 v{S2+k}, v{S2+k}, v{vD}", rd=V(S2+k)+V(vD), wr=V(S2+k)))
    ins.append(valu(f"v_mul_f32 v{vL}, v{vL}, v{vF}", rd=V(vL)+V(vF), wr=V(vL)))
    for k in range(128):
        ins.append(valu(f"v_mul_f32 v{O0+k}, v{O0+k}, v{vF}", rd=V(O0+k)+V(vF), wr=V(O0+k)))
    ins += sm_instrs(par)
    ins.append(I("s_nop 1", "nop"))
    ins.append(I(f"s_setpc_b64 s[{sRet}:{sRet+1}]", "salu"))
    segs, _ = hazard_pass([("rare", ins)])
    return [x.t for x in segs[0][1]]

def reduce_kernel(cfg):
    L = []
    A = L.append
    A(".p2align 8")
    A("reduce_kernel:")
    A("s_cmp_ge_u32 s2, 448")
    A("s_cbranch_scc1 L_rexit")
    A("s_load_dwordx2 s[4:5], s[0:1], 96")
    A("s_load_dwordx2 s[6:7], s[0:1], 80")
    A("s_mul_hi_u32 s16, s2, 0x924924a")
    A("s_mul_i32 s17, s16, 28")
    A("s_sub_u32 s17, s2, s17")
    A("s_mul_hi_u32 s18, s17, 0x24924925")
    A("s_mul_i32 s19, s18, 7")
    A("s_sub_u32 s19, s17, s19")
    A("v_lshlrev_b32 v1, 4, v0")
    A("s_lshl_b32 s20, s17, 12")
    A("v_add_u32 v1, s20, v1")
    A("s_mul_i32 s21, s16, 1835008")
    A("s_waitcnt lgkmcnt(0)")
    A("s_add_u32 s8, s4, s21"); A("s_addc_u32 s9, s5, 0"); A("s_and_b32 s9, s9, 0xffff")
    A("s_mov_b32 s10, 1835008"); A("s_mov_b32 s11, 0x20000")
    A("s_mov_b32 s12, s6"); A("s_and_b32 s13, s7, 0xffff"); A("s_mov_b32 s14, 1835008"); A("s_mov_b32 s15, 0x20000")
    A("s_mov_b32 s22, 0")
    for h in range(16):
        A(f"buffer_load_dwordx4 v[{16+4*h}:{19+4*h}], v1, s[8:11], s22 offen{cfg.rd_flags}")
        if h < 15: A("s_add_u32 s22, s22, 114688")
    A("v_and_b32 v2, 31, v0")
    A("s_and_b32 s23, s16, 7"); A("s_lshl_b32 s23, s23, 7"); A("s_lshl_b32 s24, s18, 5"); A("s_add_u32 s23, s23, s24")
    A("v_add_u32 v2, s23, v2")
    A("v_mul_u32_u24 v2, 1792, v2")
    A("v_lshrrev_b32 v3, 5, v0")
    A("v_lshl_add_u32 v2, v3, 4, v2")
    A("s_lshr_b32 s23, s16, 3"); A("s_mul_i32 s23, s23, 896"); A("s_lshl_b32 s24, s19, 7"); A("s_add_u32 s23, s23, s24")
    for h in range(16):
        A(f"s_waitcnt vmcnt({15-h})")
        for k in range(4):
            src = 16 + 4*h + k
            if h == 0:
                A(f"v_lshlrev_b32 v{4+2*k}, 16, v{src}")
                A(f"v_and_b32 v{5+2*k}, 0xffff0000, v{src}")
            else:
                A(f"v_lshlrev_b32 v12, 16, v{src}")
                A(f"v_and_b32 v13, 0xffff0000, v{src}")
                A(f"v_add_f32 v{4+2*k}, v{4+2*k}, v12")
                A(f"v_add_f32 v{5+2*k}, v{5+2*k}, v13")
    for k in range(4):
        A(f"v_cvt_pk_bf16_f32 v{12+k}, v{4+2*k}, v{5+2*k}")
    A("buffer_store_dwordx4 v[12:15], v2, s[12:15], s23 offen")
    A("L_rexit:")
    A("s_endpgm")
    return L

def generate(cfg):
    B = build_bodies(cfg)
    for b in B:
        if b.name == "a-2":
            ins = []
            for k in range(4):
                ins.append(valu(f"v_accvgpr_read_b32 v{vWD+k}, a{224+k}", wr=V(vWD+k)))
                ins.append(valu(f"v_accvgpr_read_b32 v{vXD+k}, a{228+k}", wr=V(vXD+k)))
            for x in ins: x.k = "addr"
            b.valu.append((ins, 12, 15))
    raw = lambda lines: [I(t, "raw") for t in lines]
    pre = g_stage(0, cfg) + [raw(kd_code())] + g_stage(1, cfg) + [g_k(0, cfg)] + g_stage(2, cfg) + [raw(setup_code2(cfg))]
    segs, load = schedule(B, cfg, pre)
    segs, nn = hazard_pass(segs)
    txt = {name: [x.t for x in lst] for name, lst in segs}
    names = [n for n, _ in segs]
    lo = None
    for n in range(0, 8):
        if all(txt[f"a{k}"] == txt[f"a{k+4}"] for k in range(n, n + 8)):
            lo = n; break
    assert lo is not None
    hi = lo
    while hi + 4 <= 63 and all(txt[f"a{hi+k}"] == txt[f"a{lo+k}"] for k in range(4)): hi += 4
    last = lo
    while last + 4 <= 63 and txt[f"a{last+4}"] == txt[f"a{last}"]: last += 1
    last += 3
    nit = (last - lo + 1) // 4
    lo = last + 1 - 4 * nit
    sys.stderr.write(f"loop bodies {lo}..{last} ({nit} iterations), nops inserted {nn}\n")
    L = []
    A = L.append
    A(f"; @launch kernel=attn_kernel grid=(256,1,1) block=(256,1,1) lds=163840")
    A(f"; @launch kernel=reduce_kernel grid=(448,1,1) block=(256,1,1) lds=0")
    A('.amdgcn_target "amdgcn-amd-amdhsa--gfx950"')
    A(".text")
    A(".p2align 8")
    A("attn_kernel:")
    L += setup_code(cfg)
    tramps = []
    def emit_seg(name):
        A(f"; ---- {name}")
        for t in txt[name]:
            if t.startswith("RARE"):
                _, par, nx = t.split()
                lab = f"L_t_{name.replace('-','m')}"
                A(f"s_cbranch_vccnz {lab}")
                A(f"{lab}_back:")
                tramps.append((lab, par, nx))
            else:
                A(t)
    def stamp(i):
        if cfg.stamp:
            A(f"s_memtime s[{82+2*i}:{83+2*i}]")
    for name in names:
        if name.startswith("a"):
            n = int(name[1:])
            if lo <= n <= last:
                if n == lo:
                    A(f"s_mov_b32 s{sCnt}, {nit}")
                    A(".p2align 3")
                    A("L_loop:")
                if n < lo + 4:
                    def keep(t):
                        if "d" in cfg.strip and t.startswith("buffer_load"): return False
                        if "r" in cfg.strip and t.startswith("ds_read"): return False
                        if "s" in cfg.strip and t.split()[0] in ("v_exp_f32", "v_add_f32", "v_cvt_pk_bf16_f32"): return False
                        if "m" in cfg.strip and t.startswith("v_mfma"): return False
                        return True
                    txt[name] = [t for t in txt[name] if keep(t)]
                    if n == lo + 3:
                        A(f"s_sub_u32 s{sCnt}, s{sCnt}, 1")
                    emit_seg(name)
                    if n == lo + 3:
                        A(f"s_cmp_lg_u32 s{sCnt}, 0")
                        A("s_cbranch_scc1 L_loop")
                continue
        if name in ("qp0", "a-2", "op0"): stamp(["qp0", "a-2", "op0"].index(name))
        emit_seg(name)
    if cfg.stamp:
        A("s_waitcnt vmcnt(0)")
        A("s_memtime s[88:89]")
        A("s_memrealtime s[90:91]")
        A("s_getreg_b32 s92, hwreg(HW_REG_XCC_ID)")
        A("s_getreg_b32 s93, hwreg(HW_REG_HW_ID)")
        A("s_waitcnt lgkmcnt(0)")
        A("s_add_u32 s76, s64, 0x4000000"); A("s_addc_u32 s77, s65, 0"); A("s_and_b32 s77, s77, 0xffff")
        A("s_mov_b32 s78, 0x100000"); A("s_mov_b32 s79, 0x20000")
        A(f"s_lshl_b32 s74, s2, 2"); A(f"s_add_u32 s74, s74, s{sWave}"); A("s_lshl_b32 s74, s74, 6")
        A("v_mov_b32 v40, 0")
        for i, r in enumerate([80, 82, 84, 86, 88, 90, 92, 93, 94]):
            A(f"v_mov_b32 v41, s{r}")
            A(f"buffer_store_dword v41, v40, s[76:79], s74 offen offset:{4*i}")
    A("L_exit:")
    A("s_endpgm")
    for lab, par, nx in tramps:
        A(f"{lab}:")
        A(f"s_call_b64 s[{sRet}:{sRet+1}], L_rare_{par}_{nx}")
        A(f"s_branch {lab}_back")
    for par, nx in sorted({(p, n) for _, p, n in tramps}):
        A(f"L_rare_{par}_{nx}:")
        L += rare_code(int(par), int(nx))
    L += reduce_kernel(cfg)
    A('.section .rodata,"a"')
    for kn, nv, acc in (("attn_kernel", 512, 256), ("reduce_kernel", 80, 80)):
        A(".p2align 6")
        A(f".amdhsa_kernel {kn}")
        A(f"  .amdhsa_next_free_vgpr {nv}")
        A("  .amdhsa_next_free_sgpr 102")
        A(f"  .amdhsa_accum_offset {acc}")
        A("  .amdhsa_group_segment_fixed_size 0")
        A("  .amdhsa_kernarg_size 104")
        A("  .amdhsa_user_sgpr_count 2")
        A("  .amdhsa_user_sgpr_kernarg_segment_ptr 1")
        A("  .amdhsa_system_sgpr_workgroup_id_x 1")
        A(".end_amdhsa_kernel")
    return "\n".join(L) + "\n"

if __name__ == "__main__":
    ap = argparse.ArgumentParser()
    ap.add_argument("-o", default=f"cdna_kernels/{NAME}.s")
    ap.add_argument("opts", nargs="*")
    a = ap.parse_args()
    cfg = Cfg()
    for o in a.opts:
        k, v = o.split("=", 1)
        old = getattr(cfg, k)
        if isinstance(old, bool): v = v not in ("0", "false", "False")
        elif isinstance(old, int): v = int(v)
        elif k.endswith("_flags"): v = " " + v.replace("+", " ") if v else ""
        setattr(cfg, k, v)
    open(a.o, "w").write(generate(cfg))
```

```python
import sys, math, argparse, struct

NAME = "concat_heads__gqa_block_cached__gqa_block_cached__near_ridge"
def f32bits(x): return struct.unpack("<I", struct.pack("<f", x))[0]

class Cfg:
    LEAD = 16
    DEAD = 8
    NB = 16
    SAFE = 6
    DMASPAN = 40
    H = 3.0
    TTPEN = 3.0
    dma_flags = " nt"
    w_flags = " nt"
    st_flags = ""
    rd_flags = ""
    stamp = False
    strip = ""
    touch = "wxoc"
    tpos = 1
    t_flags = " nt"
    hstamp = 0
    npre = 3
    wsoff = 0

def V(lo, n=1): return [("v", lo + i) for i in range(n)]
def Areg(lo, n=1): return [("a", lo + i) for i in range(n)]
def vr(lo, n=1): return f"v{lo}" if n == 1 else f"v[{lo}:{lo+n-1}]"
def ar(lo, n=1): return f"a{lo}" if n == 1 else f"a[{lo}:{lo+n-1}]"

O0 = 128
def oreg(db16, qb): return O0 + (db16 * 2 + qb) * 4
S_ = [96, 112]
def sreg(par, kb, qb): return S_[par] + (kb * 2 + qb) * 4
NEGM = 88
P_ = [72, 80]
QF = 0
FR = 64
XF = 192
PARK = 224
vKB = 0; vVB = 4; vKD = 12; vVD = 16; vWD = 20; vXD = 24; vQA = 28; vXA = 36
vL = 38; vPS = 40; vINV = 42; vST = 44; vD = 45; vF = 46; vQW = 47
vT = 48
vE = 56
vQR = 64
STG = 192
sX, sWQ, sK, sV, sWO, sPT = 4, 8, 12, 16, 20, 24
sW4K, sKoff, sVoff, sCnt, sTmp, sW28K, sW64K, sWave, sScale = 28, 29, 30, 31, 32, 33, 34, 35, 36
sRet = 40

KRING = 98304
VRING = 32768
def kslot(m): return ((m + 3) % 4) * 16384
def vslot(m): return ((m + 1) % 4) * 16384
def qregion(s): return [0, 98304, 49152][s % 3]
QSTAGE = VRING + vslot(2)
MF = "v_mfma_f32_16x16x32_bf16"

class I:
    __slots__ = ("t", "k", "rd", "wr", "tag", "c", "ideal", "early", "dead", "pre", "post")
    def __init__(s, t, k, rd=(), wr=(), tag=None, c=()):
        s.t, s.k, s.rd, s.wr, s.tag, s.c = t, k, list(rd), list(wr), tag, list(c)
        s.ideal = s.early = s.dead = None
        s.pre = []; s.post = []
def valu(t, rd=(), wr=()): return I(t, "valu", rd, wr)
def trans(t, rd=(), wr=()): return I(t, "trans", rd, wr)
def perm(t, rd=(), wr=()): return I(t, "perm", rd, wr)
def salu(t, wr=()): return I(t, "salu", (), wr)
def slots(x): return 2 if x.k in ("trans", "dma", "store") else 1

class Body:
    def __init__(s, name):
        s.name = name
        s.mf = []; s.reads = []; s.need = []; s.dma = []; s.valu = []; s.after_reads = []; s.tail = []

def dma_group(srd, voffs, pre, post, soff, m0val, tag, flags=""):
    g = []
    for k in range(4):
        off = f" offset:{k*1024}" if k else ""
        g.append(I(f"buffer_load_dwordx4 v{voffs[k]}, s[{srd}:{srd+3}], s{soff} offen{off}{flags} lds",
                   "dma", rd=[("v", voffs[k]), ("m0", 0)], tag=tag))
    g[0].pre = [salu(f"s_add_u32 m0, s{m0val[0]}, {m0val[1]}", wr=[("m0", 0)])] + list(pre)
    return g
def g_k(m, cfg):
    return dma_group(sK, [vKD + k for k in range(4)], [salu(f"s_add_u32 s{sKoff}, s{sKoff}, 16384")], [],
                     sKoff, (sW4K, KRING + kslot(m)), ("K", m), cfg.dma_flags)
def g_v(m, cfg):
    return dma_group(sV, [vVD + k for k in range(4)], [salu(f"s_add_u32 s{sVoff}, s{sVoff}, 16384")], [],
                     sVoff, (sW4K, VRING + vslot(m)), ("V", m), cfg.dma_flags)
def g_wo(j, half, cfg):
    m = 64 + j
    ring = (KRING + kslot(m)) if half == 0 else (VRING + vslot(m))
    so = sKoff if half == 0 else sVoff
    return dma_group(sWO, [vWD + k for k in range(4)], [salu(f"s_add_u32 s{so}, s{sW28K}, {half*128*896 + 128*j}")], [],
                     so, (sW4K, ring), ("K" if half == 0 else "V", m), cfg.w_flags)
def g_stage(s, cfg):
    rb = qregion(s)
    gs = [dma_group(sX, [vXD + k for k in range(4)], [salu(f"s_add_u32 s{sTmp}, s{sW28K}, {128*s}")], [],
                    sTmp, (sW4K, rb + 32768), ("Q", s), cfg.w_flags)]
    for kk in range(2):
        gs.append(dma_group(sWQ, [vWD + k for k in range(4)], [salu(f"s_add_u32 s{sTmp}, s{sW64K}, {(64*s + 32*kk)*8192}")], [],
                            sTmp, (sW4K, rb + kk * 16384), ("Q", s), cfg.w_flags))
    return gs

def sm_instrs(n, fix=False):
    par = n % 2
    out = []; pend = []
    k = 0
    for qb in range(2):
        for kb in range(2):
            for hp in range(2):
                s0 = sreg(par, kb, qb) + 2 * hp
                t0 = vT + (2 * k) % 8; t1 = t0 + 1
                ps = vPS + qb
                if fix:
                    out.append(valu(f"v_add_f32 v{s0}, v{NEGM+4*qb}, v{s0}", rd=V(s0)+V(NEGM+4*qb), wr=V(s0)))
                    out.append(valu(f"v_add_f32 v{s0+1}, v{NEGM+4*qb}, v{s0+1}", rd=V(s0+1)+V(NEGM+4*qb), wr=V(s0+1)))
                out.append(trans(f"v_exp_f32 v{t0}, v{s0}", rd=V(s0), wr=V(t0)))
                if pend: out.append(pend.pop(0))
                out.append(trans(f"v_exp_f32 v{t1}, v{s0+1}", rd=V(s0+1), wr=V(t1)))
                out += pend; pend = []
                if kb == 0 and hp == 0:
                    pend.append(valu(f"v_add_f32 v{ps}, v{t0}, v{t1}", rd=V(t0, 2), wr=V(ps)))
                else:
                    pend.append(valu(f"v_add_f32 v{ps}, v{ps}, v{t0}", rd=V(t0)+V(ps), wr=V(ps)))
                    pend.append(valu(f"v_add_f32 v{ps}, v{ps}, v{t1}", rd=V(t1)+V(ps), wr=V(ps)))
                p = P_[par] + 4 * qb + 2 * kb + hp
                pend.append(valu(f"v_cvt_pk_bf16_f32 v{p}, v{t0}, v{t1}", rd=V(t0, 2), wr=V(p)))
                k += 1
    out += pend
    return out

def xlane(op, r, tmp):
    o = []
    for sw in ("v_permlane32_swap_b32", "v_permlane16_swap_b32"):
        o.append(valu(f"v_mov_b32 v{tmp}, v{r}", rd=V(r), wr=V(tmp)))
        o.append(perm(f"{sw} v{r}, v{tmp}", rd=V(r)+V(tmp), wr=V(r)+V(tmp)))
        o.append(valu(f"{op} v{r}, v{r}, v{tmp}", rd=V(r)+V(tmp), wr=V(r)))
    return o

def rowmax_instrs(par, qb, d, tmp):
    a = sreg(par, 0, qb); b = sreg(par, 1, qb)
    o = [valu(f"v_max3_f32 v{d}, v{a}, v{a+1}, v{a+2}", rd=V(a, 3), wr=V(d)),
         valu(f"v_max3_f32 v{d}, v{d}, v{a+3}, v{b}", rd=V(a+3)+V(b)+V(d), wr=V(d)),
         valu(f"v_max3_f32 v{d}, v{d}, v{b+1}, v{b+2}", rd=V(b+1, 2)+V(d), wr=V(d)),
         valu(f"v_max_f32 v{d}, v{d}, v{b+3}", rd=V(b+3)+V(d), wr=V(d))]
    return o + xlane("v_max_f32", d, tmp)

def zipl(a, b):
    o = []
    for i in range(max(len(a), len(b))):
        if i < len(a): o.append(a[i])
        if i < len(b): o.append(b[i])
    return o

def ob_reg(t, qb):
    base = [S_[0], S_[0] + 8, S_[1], S_[1] + 8, NEGM, 64, P_[0], P_[1]][t]
    return base + 4 * qb

def build_bodies(cfg):
    B = []
    for s in range(7):
        b = Body(f"qp{s}")
        order = [(kt, be) for kt in range(2) for be in range(16)] if s < 6 else [(kt, be) for be in range(16) for kt in range(2)]
        xdone = set()
        def xf(kt, qb): return XF + ((s % 2) * 4 + kt * 2 + qb) * 4
        xpend = []
        def xread(kt):
            for qb in range(2):
                xpend.append((("X", s, kt, qb), [("ds_read_b128", vXA + kt, qb * 2048, 0, 4)], xf(kt, qb)))
        if s == 6:
            xread(0); xread(1); xdone = {0, 1}
            b.reads += xpend; xpend = []
        for idx, (kt, be) in enumerate(order):
            if kt not in xdone:
                xread(kt); xdone.add(kt)
                b.reads += xpend; xpend = []
            key = ("WQ", s, kt, be)
            b.reads.append((key, [("ds_read_b64_tr_b16", vQA + be % 8, (32*kt + 4*jj) * 512 + (be // 8) * 256, 2*jj, 2) for jj in range(2)], None))
            for qb in range(2):
                d = oreg(be, qb)
                first = (s == 0 and kt == 0)
                b.mf.append((d, key, ar(xf(kt, qb), 4), Areg(xf(kt, qb), 4), "0" if first else vr(d, 4), [] if first else V(d, 4), [("X", s, kt, qb)]))
        b.need = [("Q", s)]
        if s < 6:
            delta = qregion(s + 1) - qregion(s)
            for r in list(range(vQA, vQA + 8)) + list(range(vXA, vXA + 2)):
                b.after_reads.append(valu(f"v_add_u32 v{r}, {delta & 0xffffffff}, v{r}", rd=V(r), wr=V(r)))
        if s <= 3: b.dma = g_stage(s + 3, cfg)
        elif s == 4: b.dma = [g_k(1, cfg), g_k(2, cfg), g_k(3, cfg)]
        elif s == 5: b.dma = [g_v(0, cfg), g_v(1, cfg)]
        else: b.dma = []
        B.append(b)
    b = B[6]
    for t in range(8):
        ins = []
        for qb in range(2):
            e = vE + 4 * qb
            for the in range(2):
                d = oreg(2 * t + the, qb)
                for k in range(4):
                    ins.append(valu(f"v_mul_f32 v{d+k}, s{sScale}, v{d+k}", rd=V(d+k), wr=V(d+k)))
                for hp in range(2):
                    ins.append(valu(f"v_cvt_pk_bf16_f32 v{e+2*the+hp}, v{d+2*hp}, v{d+2*hp+1}", rd=V(d+2*hp, 2), wr=V(e+2*the+hp)))
            ins.append(I(f"ds_write2_b64 v{vQW}, v[{e}:{e+1}], v[{e+2}:{e+3}] offset0:{qb*128} offset1:{qb*128+64}", "dsv",
                         rd=V(e, 4)+V(vQW), tag=("QW", t, qb)))
            q = QF + (t * 2 + qb) * 4
            ins.append(I(f"ds_read_b128 {ar(q, 4)}, v{vQR} offset:{qb*1024}", "dsv", rd=V(vQR), wr=Areg(q, 4), tag=("QF", t, qb)))
        g0 = 8 * t + 7 + 4
        g1 = max(g0, min(g0 + 11, 64 + 2 * t - 6))
        b.valu.append((ins, g0, g1))
    for n in range(-2, 64):
        b = Body(f"a{n}")
        qk = []; pv = []
        if n + 2 <= 63:
            m = n + 2
            order = [(kb, t) for kb in range(2) for t in range(8)] if m > 0 else [(kb, t) for t in range(8) for kb in range(2)]
            for kb, t in order:
                key = ("K", m, kb, t)
                rd = (key, [("ds_read_b128", vKB + t % 4, kslot(m) + kb * 8192 + (t // 4) * 256, 0, 4)], None)
                mfs = []
                for qb in range(2):
                    S = sreg(m % 2, kb, qb)
                    if t == 0: c = ("0", []) if m < 2 else (vr(NEGM + 4*qb, 4), V(NEGM + 4*qb, 4))
                    else: c = (vr(S, 4), V(S, 4))
                    q = QF + (t * 2 + qb) * 4
                    mfs.append((S, key, ar(q, 4), Areg(q, 4), c[0], c[1], [("QF", t, qb)] if m == 0 else []))
                qk.append((rd, mfs))
            b.need.append(("K", m))
        if n >= 0:
            for db in range(16):
                key = ("V", n, db)
                rd = (key, [("ds_read_b64_tr_b16", vVB + db % 8, vslot(n) + jj * 8192 + (db // 8) * 256, 2*jj, 2) for jj in range(2)], None)
                mfs = []
                for qb in range(2):
                    d = oreg(db, qb); P = P_[n % 2] + 4 * qb
                    mfs.append((d, key, vr(P, 4), V(P, 4), "0" if n == 0 else vr(d, 4), [] if n == 0 else V(d, 4), []))
                pv.append((rd, mfs))
            b.need.append(("V", n))
        for rd, mfs in zipl(qk, pv):
            b.reads.append(rd); b.mf += mfs
        G = len(b.mf)
        if n == -1:
            ins = zipl(rowmax_instrs(0, 0, vD, vF), rowmax_instrs(0, 1, vINV, vINV + 1))
            for qb, d in ((0, vD), (1, vINV)):
                for k in range(4):
                    ins.append(valu(f"v_sub_f32 v{NEGM+4*qb+k}, 0, v{d}", rd=V(d), wr=V(NEGM+4*qb+k)))
            ins += sm_instrs(0, fix=True)
            b.valu.append((ins, 3, G - 1))
        elif 0 <= n <= 62:
            ins = []
            for qb in range(2):
                if n == 0: ins.append(valu(f"v_mov_b32 v{vL+qb}, v{vPS+qb}", rd=V(vPS+qb), wr=V(vL+qb)))
                else: ins.append(valu(f"v_add_f32 v{vL+qb}, v{vL+qb}, v{vPS+qb}", rd=V(vPS+qb)+V(vL+qb), wr=V(vL+qb)))
            ins += sm_instrs(n + 1, fix=(n == 0))
            ins.append(valu(f"v_max_f32 v{vD}, v{vPS}, v{vPS+1}", rd=V(vPS, 2), wr=V(vD)))
            ins.append(valu(f"v_cmp_nge_f32 vcc, 0x46800000, v{vD}", rd=V(vD), wr=[("vcc", 0)]))
            b.valu.append((ins, 3 if n == 0 else 0, G - 2))
            b.tail.append(I(f"RARE {(n+1)%2} {1 if n + 2 <= 63 else 0}", "rare"))
        elif n == 63:
            ins = []
            for qb in range(2):
                ins.append(valu(f"v_add_f32 v{vL+qb}, v{vL+qb}, v{vPS+qb}", rd=V(vPS+qb)+V(vL+qb), wr=V(vL+qb)))
            ins += zipl(xlane("v_add_f32", vL, vD), xlane("v_add_f32", vL + 1, vF))
            for qb in range(2):
                ins.append(trans(f"v_rcp_f32 v{vINV+qb}, v{vL+qb}", rd=V(vL+qb), wr=V(vINV+qb)))
            b.valu.append((ins, 40, 63))
            for t in range(8):
                ins = []
                for qb in range(2):
                    o = ob_reg(t, qb)
                    for the in range(2):
                        d = oreg(2 * t + the, qb)
                        for hp in range(2):
                            ins.append(valu(f"v_cvt_pk_bf16_f32 v{o+2*the+hp}, v{d+2*hp}, v{d+2*hp+1}", rd=V(d+2*hp, 2), wr=V(o+2*the+hp)))
                g0 = 4 * t + 3 + 4
                b.valu.append((ins, g0, g0 + 5))
        if n + 2 <= 63:
            m = n + 6
            b.dma.append(g_k(m, cfg) if m <= 63 else g_wo(m - 64, 0, cfg))
        if n == -1:
            b.dma = [g_v(2, cfg), g_v(3, cfg)] + b.dma
        if n == 57 and "o" in cfg.touch:
            x = I(f"buffer_load_dword a252, v{vXD}, s[{sWO}:{sWO+3}], s{sTmp} offen{cfg.t_flags}", "dma", rd=V(vXD), tag=("T", 1))
            x.pre = [salu(f"s_mov_b32 s{sTmp}, s77")]
            b.dma = [[x]] + b.dma
        if n >= 0:
            m = n + 4
            b.dma.append(g_v(m, cfg) if m <= 63 else g_wo(m - 64, 1, cfg))
        B.append(b)
    def accreg(j, nb, qb): return O0 + 32 * (j % 2) + (nb * 2 + qb) * 4
    def drain(j):
        ins = []
        for q in range(4):
            qb, t2 = q // 2, q % 2
            st = STG + 4 * q
            for the in range(2):
                a = accreg(j, 2 * t2 + the, qb)
                for k in range(4):
                    ins.append(valu(f"v_mul_f32 v{a+k}, v{vINV+qb}, v{a+k}", rd=V(a+k)+V(vINV+qb), wr=V(a+k)))
                for hp in range(2):
                    ins.append(valu(f"v_cvt_pk_bf16_f32 v{st+2*the+hp}, v{a+2*hp}, v{a+2*hp+1}", rd=V(a+2*hp, 2), wr=V(st+2*the+hp)))
            off = f" offset:{q*1024}" if q else ""
            x = I(f"buffer_store_dwordx4 v[{st}:{st+3}], v{vST}, s[{sPT}:{sPT+3}], s{sTmp} offen{off}{cfg.st_flags}", "store",
                  rd=V(st, 4)+V(vST), tag=("ST", j))
            if q == 0: x.pre = [salu(f"s_mov_b32 s{sTmp}, {4096*j}")]
            ins.append(x)
        return ins
    for j in range(7):
        b = Body(f"op{j}")
        m = 64 + j
        for t in range(8):
            for nb in range(4):
                key = ("WO", j, t, nb)
                base = vQA + (t // 4) * 4 + nb
                slot = kslot(m) if t < 4 else vslot(m)
                b.reads.append((key, [("ds_read_b64_tr_b16", base, slot + (32*(t % 4) + 16*jj) * 128, 2*jj, 2) for jj in range(2)], None))
                for qb in range(2):
                    d = accreg(j, nb, qb); o = ob_reg(t, qb)
                    b.mf.append((d, key, vr(o, 4), V(o, 4), "0" if t == 0 else vr(d, 4), [] if t == 0 else V(d, 4), []))
        b.need = [("K", m), ("V", m)]
        if j >= 1: b.valu.append((drain(j - 1), 3, 61))
        if j + 4 <= 6: b.dma = [g_wo(j + 4, 0, cfg), g_wo(j + 4, 1, cfg)]
        if j == 6: b.tail += drain(6)
        B.append(b)
    return B

def schedule(B, cfg, pre_dma):
    starts = []; M = 0
    for b in B:
        starts.append(M); M += len(b.mf)
    front = {g: [] for g in range(-1, M)}
    fill = {g: [] for g in range(-1, M)}
    bp = [starts[i] + len(B[i].mf) - cfg.LEAD - 1 for i in range(len(B))]
    fragreg = {}; first_use = {}; last_use = {}
    idx = 0
    for i, b in enumerate(B):
        for g, mf in enumerate(b.mf):
            if mf[1] not in fragreg:
                fragreg[mf[1]] = FR + 4 * (idx % cfg.NB); idx += 1
            for k in [mf[1]] + mf[6]:
                first_use.setdefault(k, starts[i] + g); last_use[k] = starts[i] + g
    front[-1].append(I("BAR", "bar", tag=B[0].need))
    for i, b in enumerate(B[:-1]):
        front[bp[i]].append(I("BAR", "bar", tag=B[i + 1].need))
    R = []; Mq = []; Vq = []
    holder = {}
    for i, b in enumerate(B):
        w0 = bp[i - 1] if i > 0 else -cfg.LEAD - 1
        w1 = bp[i] - cfg.DEAD if i < len(B) - 1 else starts[i] + len(b.mf) - 12
        flat = []
        for key, parts, fixed in b.reads:
            reg = fixed if fixed is not None else fragreg[key]
            for (op, addr, off, sub, n) in parts:
                x = I(f"{op} {ar(reg+sub, n)}, v{addr} offset:{off}", "d" if n == 4 else "t", rd=V(addr), wr=Areg(reg+sub, n), tag=key)
                x.early = w0
                h = holder.get(reg)
                if h is not None and h != key: x.early = max(x.early, last_use[h])
                x.dead = min(w1, first_use[key] - 7)
                flat.append(x)
            holder[reg] = key
        n = len(flat)
        for k, x in enumerate(flat):
            x.ideal = w0 + k * (w1 - 2 - w0) / n
        flat[-1].post = b.after_reads
        R += flat
        nd = sum(len(grp) for grp in b.dma)
        if nd:
            nxt = bp[i + 1] if i + 1 < len(B) else M - 1
            span = min(cfg.DMASPAN, nxt - bp[i] - 4)
            k = 0
            for grp in b.dma:
                for x in grp:
                    x.early = bp[i] + 1; x.ideal = bp[i] + 1 + cfg.H + k * span / nd; x.dead = nxt - 1 - (nd - 1 - k)
                    Mq.append(x); k += 1
        for ins, g0, g1 in b.valu:
            g0 += starts[i]; g1 = min(g1 + starts[i], M - 1)
            tot = sum(slots(x) for x in ins); acc = 0
            for x in ins:
                x.early = g0; x.ideal = g0 + acc * max(0, (g1 - 1 - g0)) / tot; x.dead = g1
                acc += slots(x)
            Vq.append(ins)
    allv = []
    for li, ins in enumerate(Vq):
        for k, x in enumerate(ins): allv.append((x.ideal, li, k, x))
    allv.sort(key=lambda z: (z[0], z[1], z[2]))
    Vs = [z[3] for z in allv]
    for q in (R, Mq, Vs):
        for k in range(len(q) - 2, -1, -1): q[k].dead = min(q[k].dead, q[k + 1].dead)
    ri = mi = vi = 0
    while ri < len(R) and R[ri].ideal < 0:
        fill[-1].append(R[ri]); ri += 1
    last_dma = -10
    over = 0
    extra_v = []
    for g in range(M):
        def u(x):
            if x is None or x.early > g: return None
            v = g - x.ideal + cfg.H
            return v if v > 0 else None
        def at(q, i): return q[i] if i < len(q) else None
        vq = extra_v + Vs[vi:vi + 2]
        R0, R1, M0 = at(R, ri), at(R, ri + 1), at(Mq, mi)
        V0, V1 = at(vq, 0), at(vq, 1)
        if extra_v and R0 is not None and any(r in y.wr for y in extra_v for r in R0.rd): R0 = R1 = None
        if R0 is not None and R0.post: R1 = None
        if R1 is not None and extra_v and any(r in y.wr for y in extra_v for r in R1.rd): R1 = None
        ur0, ur1, um, uv0, uv1 = u(R0), u(R1), u(M0), u(V0), u(V1)
        plain = lambda x: x.k in ("valu", "perm")
        opts = [(0.0, [])]
        if um is not None: opts.append((2 * um, [M0]))
        if uv0 is not None:
            if slots(V0) == 2: opts.append((2 * uv0, [V0]))
            else:
                opts.append((uv0, [V0]))
                if uv1 is not None and plain(V1): opts.append((uv0 + uv1, [V0, V1]))
                if ur0 is not None and plain(V0): opts.append((ur0 + uv0, [R0, V0]))
        if ur0 is not None:
            opts.append((ur0, [R0]))
            if ur1 is not None:
                opts.append((ur0 + ur1 - (cfg.TTPEN if R0.k == "t" else 0), [R0, R1]))
        sc, ch = max(opts, key=lambda z: z[0])
        ch = list(ch)
        def take(x):
            nonlocal ri, mi, vi, last_dma
            if x.k in ("d", "t"):
                ri += 1
                for y in x.post:
                    y.early = g + 1; y.ideal = g - 2; y.dead = g + cfg.DEAD - 1
                extra_v.extend(x.post)
            elif x.k == "dma": mi += 1
            elif extra_v and x is extra_v[0]: extra_v.pop(0)
            else: vi += 1
            if x.pre:
                if last_dma < g - 1 and not any(y.k == "bar" for y in front[g]) and g > 0: front[g - 1] += x.pre
                elif last_dma < g: front[g] += x.pre
                else: fill[g] += x.pre
            if x.k in ("dma", "store"): last_dma = g
            fill[g].append(x)
        for x in ch: take(x)
        while True:
            cand = None
            if extra_v and extra_v[0].dead <= g and extra_v[0].early <= g: cand = extra_v[0]
            elif ri < len(R) and R[ri].dead <= g and not extra_v: cand = R[ri]
            elif mi < len(Mq) and Mq[mi].dead <= g: cand = Mq[mi]
            elif vi < len(Vs) and Vs[vi].dead <= g: cand = Vs[vi]
            if cand is None: break
            assert cand.early <= g, (cand.t, cand.early, cand.dead, g)
            take(cand); over += slots(cand)
    assert ri == len(R) and mi == len(Mq) and vi == len(Vs), (ri, len(R), mi, len(Mq), vi, len(Vs))
    for i, b in enumerate(B):
        for x in b.tail:
            fill[starts[i] + len(b.mf) - 1] += x.pre + [x]
    sys.stderr.write(f"forced slots {over}\n")
    out = []
    lg = []; lg_done = 0; vm = []; lastread = {}
    cur = []
    def emit(lst, g):
        nonlocal lg_done
        for x in lst:
            if x.k == "bar":
                need = max(i2 for i2, tg in enumerate(vm) if tg in x.tag)
                for tg in x.tag: assert tg in vm, (tg, g)
                n = min(len(vm) - 1 - need, 63)
                cur.append(I(f"s_waitcnt vmcnt({n}) lgkmcnt(0)", "wait"))
                cur.append(I("s_barrier", "salu"))
                lg_done = len(lg)
            elif x.k in ("d", "t", "dsv"):
                lg.append((x.tag, g)); lastread[x.tag] = len(lg) - 1; cur.append(x)
            elif x.k in ("dma", "store"):
                vm.append(x.tag); cur.append(x)
            else: cur.append(x)
    nparts = {}
    for x in R: nparts[x.tag] = nparts.get(x.tag, 0) + 1
    def lwait(mf, g, strict):
        nonlocal lg_done
        keys = [mf[1]] + mf[6]
        for k in keys:
            if sum(1 for tg, _ in lg[-40:] if tg == k) < nparts.get(k, 1) and (k not in lastread or lastread[k] >= max(0, len(lg) - 40)):
                assert not strict, ("operand not read", k, g)
                return
        needi = max(lastread[k] for k in keys)
        if needi >= lg_done:
            n_need = len(lg) - 1 - needi
            n_safe = sum(1 for (_, gg) in lg[lg_done:] if gg > g - cfg.SAFE)
            n = min(n_need, n_safe, 15)
            cur.append(I(f"s_waitcnt lgkmcnt({n})", "wait"))
            lg_done = len(lg) - n
    for grp in pre_dma:
        for x in grp:
            emit(x.pre, -1); emit([x], -1)
    emit(front[-1], -1); emit(fill[-1], -1)
    out.append(("pre", cur))
    allmf = [mf for b in B for mf in b.mf]
    for i, b in enumerate(B):
        cur = []
        for gi, mf in enumerate(b.mf):
            g = starts[i] + gi
            d, key, bt, brs, ct, crs, extra = mf
            lwait(mf, g, True)
            fr = fragreg[key]
            cur.append(I(f"{MF} {vr(d,4)}, {ar(fr,4)}, {bt}, {ct}", "mfma", rd=Areg(fr, 4) + brs, wr=V(d, 4), c=crs))
            emit(front[g], g)
            if g + 1 < M: lwait(allmf[g + 1], g, False)
            emit(fill[g], g)
        out.append((b.name, cur))
    return out

def hazard_pass(segs):
    pos = 0; res = []; lastw = {}; lastc = {}; lasts = {}; pend = {}; nn = 0
    for name, lst in segs:
        o = []
        for x in lst:
            need = 0
            def req(p, d):
                nonlocal need
                need = max(need, d - (pos - p - 1))
            isv = x.k in ("valu", "trans", "perm")
            for r in x.rd + x.c:
                if r in lastw:
                    p, k, full = lastw[r]
                    if k == "mfma":
                        if x.k == "mfma":
                            if r in x.rd: req(p, 8)
                            elif tuple(x.c) != full: req(p, 6)
                        else: req(p, 8)
                    elif k in ("valu", "trans", "perm"):
                        if x.k in ("mfma", "perm"): req(p, 2)
                        if k == "trans" and x.k != "trans": req(p, 1)
                    elif k == "salu" and r == ("m0", 0): req(p, 1)
            for r in x.wr:
                if r in lastw and lastw[r][1] == "mfma" and (x.k != "mfma" or tuple(x.c) != lastw[r][2]): req(lastw[r][0], 8)
                if isv and r in lastc: req(lastc[r], 3)
                if r in lasts: req(lasts[r], 2)
            if x.k in ("d", "t"):
                for r in x.wr:
                    assert r not in pend, ("fragment overwritten before use", name, x.t)
                    pend[r] = 1
            if x.k == "mfma":
                for r in x.rd: pend.pop(r, None)
            while need > 0:
                k = min(need, 16)
                o.append(I(f"s_nop {k-1}", "nop")); pos += k; need -= k; nn += 1
            o.append(x)
            for r in x.wr: lastw[r] = (pos, x.k, tuple(x.wr))
            if x.k == "mfma":
                for r in x.c: lastc[r] = pos
            if x.k == "store":
                for r in x.rd: lasts[r] = pos
            pos += 1
        res.append((name, o))
    return res, nn

def srd(A, d, p, offreg, size):
    A(f"s_add_u32 s{d}, s{p}, s{offreg}")
    A(f"s_addc_u32 s{d+1}, s{p+1}, 0")
    A(f"s_and_b32 s{d+1}, s{d+1}, 0xffff")
    A(f"s_mov_b32 s{d+2}, {size}")
    A(f"s_mov_b32 s{d+3}, 0x20000")

def setup_code(cfg):
    L = []; A = L.append
    A("s_load_dwordx16 s[44:59], s[0:1], 0")
    A("s_load_dwordx4 s[60:63], s[0:1], 64")
    A("s_load_dwordx2 s[64:65], s[0:1], 96")
    A("s_cmp_ge_u32 s2, 256")
    A("s_cbranch_scc1 L_exit")
    if cfg.stamp:
        A("s_memtime s[80:81]"); A("s_memrealtime s[94:95]")
    A("v_lshrrev_b32 v1, 6, v0")
    A("v_and_b32 v64, 63, v0")
    A(f"v_readfirstlane_b32 s{sWave}, v1")
    A("s_and_b32 s66, s2, 7"); A("s_lshr_b32 s67, s2, 3")
    A("s_lshr_b32 s68, s66, 2")
    A("s_and_b32 s69, s67, 1")
    A("s_lshr_b32 s70, s67, 1")
    A("s_and_b32 s71, s70, 7")
    A("s_lshr_b32 s70, s70, 3")
    A("s_and_b32 s72, s66, 3"); A("s_lshl_b32 s72, s72, 1"); A("s_add_u32 s72, s72, s70")
    A("s_lshl_b32 s73, s72, 1"); A("s_add_u32 s73, s73, s69")
    A(f"s_lshl_b32 s{sW4K}, s{sWave}, 12")
    A(f"s_lshl_b32 s{sW64K}, s{sWave}, 16")
    A(f"s_mul_i32 s{sW28K}, s{sWave}, 28672")
    A(f"s_sub_u32 s{sKoff}, s{sW4K}, 16384")
    A(f"s_sub_u32 s{sVoff}, s{sW4K}, 16384")
    A(f"s_mov_b32 s{sScale}, {f32bits(math.log2(math.e) / 16.0):#x}")
    A(f"s_and_b32 s76, s{sWave}, 1"); A("s_lshl_b32 s76, s76, 3")
    A("v_lshrrev_b32 v65, 5, v64"); A("v_and_b32 v66, 31, v64")
    A("v_lshrrev_b32 v71, 3, v64"); A("v_and_b32 v72, 7, v64")
    A("v_mul_u32_u24 v73, 896, v71")
    A("v_lshrrev_b32 v74, 1, v71")
    A("v_xor_b32 v74, v74, v72")
    A("v_lshl_add_u32 v75, v74, 4, v73")
    A("v_xor_b32 v74, 4, v74")
    A("v_lshl_add_u32 v76, v74, 4, v73")
    for k in range(4):
        A(f"v_add_u32 v{vXD+k}, {k*(8*896-1024)}, v{75 + (k & 1)}")
    A("v_lshlrev_b32 v73, 1, v65"); A("v_xor_b32 v73, v73, v66"); A("v_xor_b32 v73, s76, v73")
    A("v_lshlrev_b32 v74, 13, v65")
    A("v_lshl_add_u32 v75, v73, 4, v74")
    A("v_xor_b32 v73, 4, v73")
    A("v_lshl_add_u32 v76, v73, 4, v74")
    for k in range(4):
        A(f"v_add_u32 v{vWD+k}, {k*(16384-1024)}, v{75 + (k & 1)}")
    A("s_waitcnt lgkmcnt(0)")
    if cfg.hstamp: A("s_memtime s[82:83]")
    A("s_cmp_eq_u32 s68, 0")
    for a, b in ((44, 54), (50, 60), (46, 56), (48, 58), (52, 62)):
        A(f"s_cselect_b32 s{a}, s{a}, s{b}"); A(f"s_cselect_b32 s{a+1}, s{a+1}, s{b+1}")
    A("s_mul_i32 s74, s71, 114688"); srd(A, sX, 44, 74, 114688)
    A("s_lshl_b32 s74, s73, 9"); A(f"s_sub_u32 s75, {448*8192}, s74"); srd(A, sWQ, 50, 74, "s75")
    return L

def touch_code(cfg):
    L = []
    A = lambda t: L.append(I(t, "raw"))
    T = lambda t: L.append(I(t, "dma", tag=("T", 0)))
    if "w" in cfg.touch:
        A("v_lshrrev_b32 v73, 2, v64"); A("v_min_u32 v73, 13, v73"); A("v_lshlrev_b32 v73, 13, v73")
        A("v_and_b32 v74, 3, v64"); A("v_lshl_add_u32 v73, v74, 7, v73")
        A(f"s_lshl_b32 s74, s71, 2"); A(f"s_add_u32 s74, s74, s{sWave}"); A(f"s_mul_i32 s74, s74, {14*8192}")
        T(f"buffer_load_dword a255, v73, s[{sWQ}:{sWQ+3}], s74 offen{cfg.t_flags}")
    if "x" in cfg.touch:
        A("v_min_u32 v73, 55, v64"); A("v_lshlrev_b32 v73, 7, v73")
        A("s_and_b32 s74, s73, 3"); A("s_lshl_b32 s74, s74, 2"); A(f"s_add_u32 s74, s74, s{sWave}"); A(f"s_mul_i32 s74, s74, {56*128}")
        T(f"buffer_load_dword a254, v73, s[{sX}:{sX+3}], s74 offen{cfg.t_flags}")
    if "c" in cfg.touch:
        A("s_getpc_b64 s[96:97]")
        A("s_and_b32 s97, s97, 0xffff"); A("s_mov_b32 s98, CODE_BYTES"); A("s_mov_b32 s99, 0x20000")
        A("v_lshlrev_b32 v73, 7, v64")
        A(f"s_and_b32 s74, s67, 1"); A("s_lshl_b32 s74, s74, 2"); A(f"s_add_u32 s74, s74, s{sWave}"); A("s_lshl_b32 s74, s74, 13")
        T(f"buffer_load_dword a253, v73, s[96:99], s74 offen")
    return L

def kd_code(cfg):
    L = []; A = L.append
    if cfg.hstamp == 2:
        A("s_memtime s[84:85]"); A(f"s_waitcnt vmcnt({cfg.npre})"); A("s_memtime s[86:87]")
    A("s_lshl_b32 s74, s71, 3"); A("s_add_u32 s74, s74, s72"); A("s_lshl_b32 s74, s74, 20")
    srd(A, sK, 46, 74, 1 << 20); srd(A, sV, 48, 74, 1 << 20)
    A("v_xor_b32 v73, v65, v66"); A("v_xor_b32 v73, s76, v73"); A("v_lshlrev_b32 v74, 9, v65")
    for k in range(4):
        A(f"v_xor_b32 v75, {2*k}, v73"); A(f"v_lshl_add_u32 v{vKD+k}, v75, 4, v74")
    return L

def setup_code2(cfg):
    L = []; A = L.append
    if cfg.hstamp == 1: A("s_memtime s[84:85]")
    A("s_mul_i32 s74, s73, 229376"); srd(A, sWO, 52, 74, 229376)
    A("s_lshl_b32 s74, s68, 3"); A("s_add_u32 s74, s74, s71"); A("s_lshl_b32 s74, s74, 4"); A("s_add_u32 s74, s74, s73")
    A("s_mul_i32 s74, s74, 114688"); A(f"s_add_u32 s74, s74, {cfg.wsoff}"); srd(A, sPT, 64, 74, 114688)
    A("v_lshrrev_b32 v67, 4, v64"); A("v_bfe_u32 v68, v64, 2, 2"); A("v_and_b32 v69, 3, v64"); A("v_and_b32 v70, 15, v64")
    A("v_lshlrev_b32 v73, 1, v65"); A("v_xor_b32 v73, v73, v66"); A("v_lshlrev_b32 v74, 9, v65")
    for k in range(4):
        A(f"v_xor_b32 v75, {4*k}, v73"); A(f"v_lshl_add_u32 v{vVD+k}, v75, 4, v74")
    A("v_bfe_u32 v76, v64, 2, 3")
    A("v_lshl_add_u32 v73, v67, 3, v68"); A("v_lshlrev_b32 v73, 9, v73"); A("v_lshl_add_u32 v73, v69, 3, v73")
    for j in range(8):
        A(f"v_xor_b32 v75, {j}, v76"); A(f"v_lshl_add_u32 v{vQA+j}, v75, 5, v73")
    A("v_lshlrev_b32 v73, 7, v70"); A(f"v_add_u32 v73, s{sW4K}, v73"); A("v_add_u32 v73, 32768, v73")
    A("v_lshrrev_b32 v74, 1, v70"); A("v_xor_b32 v74, v74, v67")
    for kt in range(2):
        A(f"v_xor_b32 v75, {4*kt}, v74"); A(f"v_lshl_add_u32 v{vXA+kt}, v75, 4, v73")
    A("v_lshrrev_b32 v73, 2, v64"); A("v_lshlrev_b32 v73, 9, v73"); A("v_lshl_add_u32 v73, v69, 3, v73"); A(f"v_add_u32 v73, {VRING}, v73")
    for j in range(8):
        A(f"v_xor_b32 v75, {j}, v76"); A(f"v_lshl_add_u32 v{vVB+j}, v75, 5, v73")
    A("v_lshlrev_b32 v73, 9, v70"); A(f"v_add_u32 v73, {KRING}, v73"); A("v_xor_b32 v74, v67, v70")
    for j in range(4):
        A(f"v_xor_b32 v75, {4*j}, v74"); A(f"v_lshl_add_u32 v{vKB+j}, v75, 4, v73")
    A(f"v_lshlrev_b32 v73, 4, v64"); A(f"v_add_u32 v{vST}, s{sW28K}, v73")
    A("v_mul_u32_u24 v74, 896, v71"); A("v_lshlrev_b32 v75, 1, v67"); A("v_xor_b32 v75, v75, v72"); A("v_lshl_add_u32 v74, v75, 4, v74")
    for k in range(4):
        A(f"v_add_u32 v75, {k*(8*896-1024)}, v74"); A(f"v_accvgpr_write_b32 a{PARK+k}, v75")
    A("v_lshrrev_b32 v74, 2, v64"); A("v_lshlrev_b32 v74, 7, v74"); A("v_lshl_add_u32 v74, v69, 3, v74"); A("v_and_b32 v77, 3, v71")
    for nb in range(4):
        A(f"v_xor_b32 v75, {nb}, v77"); A(f"v_lshl_add_u32 v75, v75, 5, v74")
        A(f"v_add_u32 v78, {KRING}, v75"); A(f"v_accvgpr_write_b32 a{PARK+4+nb}, v78")
        A(f"v_add_u32 v78, {VRING}, v75"); A(f"v_accvgpr_write_b32 a{PARK+8+nb}, v78")
    A("v_min_u32 v74, 55, v64"); A("v_lshlrev_b32 v74, 7, v74"); A(f"v_accvgpr_write_b32 a{PARK+12}, v74")
    A(f"s_lshl_b32 s77, s71, 2"); A(f"s_add_u32 s77, s77, s{sWave}"); A(f"s_mul_i32 s77, s77, {56*128}")
    A("v_lshl_add_u32 v74, v65, 4, v70"); A("v_lshlrev_b32 v74, 4, v74"); A("v_and_b32 v75, 1, v67"); A("v_lshl_add_u32 v74, v75, 3, v74")
    A(f"s_add_u32 s74, s{sW4K}, {QSTAGE}")
    A(f"v_add_u32 v{vQW}, s74, v74")
    A(f"v_add_u32 v{vQR}, s74, v73")
    return L

def rare_code(par, has_next):
    ins = [I("s_nop 9", "nop")]
    for qb in range(2):
        ins += rowmax_instrs(par, qb, vD, vF)
        ins.append(valu(f"v_max_f32 v{vD}, 0, v{vD}", rd=V(vD), wr=V(vD)))
        ins.append(valu(f"v_sub_f32 v{vF}, 0, v{vD}", rd=V(vD), wr=V(vF)))
        ins.append(trans(f"v_exp_f32 v{vF}, v{vF}", rd=V(vF), wr=V(vF)))
        regs = [NEGM + 4*qb + k for k in range(4)] + [sreg(par, kb, qb) + k for kb in range(2) for k in range(4)]
        if has_next: regs += [sreg(1 - par, kb, qb) + k for kb in range(2) for k in range(4)]
        for r in regs: ins.append(valu(f"v_sub_f32 v{r}, v{r}, v{vD}", rd=V(r)+V(vD), wr=V(r)))
        for r in [vL + qb] + [oreg(db, qb) + k for db in range(16) for k in range(4)]:
            ins.append(valu(f"v_mul_f32 v{r}, v{r}, v{vF}", rd=V(r)+V(vF), wr=V(r)))
    ins += sm_instrs(par)
    ins.append(I("s_nop 1", "nop"))
    ins.append(I(f"s_setpc_b64 s[{sRet}:{sRet+1}]", "salu"))
    segs, _ = hazard_pass([("rare", ins)])
    return [x.t for x in segs[0][1]]

def reduce_kernel(cfg):
    L = []; A = L.append
    A(".p2align 8")
    A("reduce_kernel:")
    A("s_cmp_ge_u32 s2, 448")
    A("s_cbranch_scc1 L_rexit")
    A("s_load_dwordx2 s[4:5], s[0:1], 96")
    A("s_load_dwordx2 s[6:7], s[0:1], 80")
    A("s_mul_hi_u32 s16, s2, 0x924924a")
    A("s_mul_i32 s17, s16, 28"); A("s_sub_u32 s17, s2, s17")
    A("s_mul_hi_u32 s18, s17, 0x24924925")
    A("s_mul_i32 s19, s18, 7"); A("s_sub_u32 s19, s17, s19")
    A("v_lshlrev_b32 v1, 4, v0")
    A("s_lshl_b32 s20, s17, 12")
    A("v_add_u32 v1, s20, v1")
    A("s_mul_i32 s21, s16, 1835008"); A(f"s_add_u32 s21, s21, {cfg.wsoff}")
    A("s_waitcnt lgkmcnt(0)")
    A("s_add_u32 s8, s4, s21"); A("s_addc_u32 s9, s5, 0"); A("s_and_b32 s9, s9, 0xffff")
    A("s_mov_b32 s10, 1835008"); A("s_mov_b32 s11, 0x20000")
    A("s_mov_b32 s12, s6"); A("s_and_b32 s13, s7, 0xffff"); A("s_mov_b32 s14, 1835008"); A("s_mov_b32 s15, 0x20000")
    A("s_mov_b32 s22, 0")
    for h in range(16):
        A(f"buffer_load_dwordx4 v[{16+4*h}:{19+4*h}], v1, s[8:11], s22 offen{cfg.rd_flags}")
        if h < 15: A("s_add_u32 s22, s22, 114688")
    A("v_and_b32 v2, 15, v0")
    A("v_lshrrev_b32 v3, 7, v0"); A("v_lshl_add_u32 v2, v3, 4, v2")
    A("s_and_b32 s23, s16, 7"); A("s_lshl_b32 s23, s23, 7"); A("s_lshl_b32 s24, s18, 5"); A("s_add_u32 s23, s23, s24")
    A("v_add_u32 v2, s23, v2")
    A("v_mul_u32_u24 v2, 1792, v2")
    A("v_bfe_u32 v3, v0, 4, 3")
    A("v_lshl_add_u32 v2, v3, 4, v2")
    A("s_lshr_b32 s23, s16, 3"); A("s_mul_i32 s23, s23, 896"); A("s_lshl_b32 s24, s19, 7"); A("s_add_u32 s23, s23, s24")
    for h in range(16):
        A(f"s_waitcnt vmcnt({15-h})")
        for k in range(4):
            src = 16 + 4*h + k
            if h == 0:
                A(f"v_lshlrev_b32 v{4+2*k}, 16, v{src}"); A(f"v_and_b32 v{5+2*k}, 0xffff0000, v{src}")
            else:
                A(f"v_lshlrev_b32 v12, 16, v{src}"); A(f"v_and_b32 v13, 0xffff0000, v{src}")
                A(f"v_add_f32 v{4+2*k}, v{4+2*k}, v12"); A(f"v_add_f32 v{5+2*k}, v{5+2*k}, v13")
    for k in range(4):
        A(f"v_cvt_pk_bf16_f32 v{12+k}, v{4+2*k}, v{5+2*k}")
    A("s_nop 1")
    A("v_permlane32_swap_b32 v12, v14"); A("v_permlane32_swap_b32 v13, v15")
    A("s_nop 1")
    A("v_permlane16_swap_b32 v12, v14"); A("v_permlane16_swap_b32 v13, v15")
    A("buffer_store_dwordx4 v[12:15], v2, s[12:15], s23 offen")
    A("L_rexit:")
    A("s_endpgm")
    return L

def generate(cfg):
    B = build_bodies(cfg)
    for b in B:
        if b.name == "a1":
            ins = []
            for k in range(4): ins.append(valu(f"v_accvgpr_read_b32 v{vWD+k}, a{PARK+k}", wr=V(vWD+k)))
            for k in range(8): ins.append(valu(f"v_accvgpr_read_b32 v{vQA+k}, a{PARK+4+k}", wr=V(vQA+k)))
            ins.append(valu(f"v_accvgpr_read_b32 v{vXD}, a{PARK+12}", wr=V(vXD)))
            b.valu.append((ins, 0, 60))
    raw = lambda lines: [I(t, "raw") for t in lines]
    tc = [touch_code(cfg)]
    pre = (tc if cfg.tpos == 0 else []) + g_stage(0, cfg) + (tc if cfg.tpos == 1 else []) + [raw(kd_code(cfg))] + g_stage(1, cfg) + [g_k(0, cfg)] + g_stage(2, cfg) + [raw(setup_code2(cfg))]
    segs = schedule(B, cfg, pre)
    segs, nn = hazard_pass(segs)
    txt = {name: [x.t for x in lst] for name, lst in segs}
    names = [n for n, _ in segs]
    lo = None
    for n in range(0, 30):
        if all(txt[f"a{k}"] == txt[f"a{k+4}"] for k in range(n, n + 8)):
            lo = n; break
    assert lo is not None, "no periodic steady state"
    last = lo
    while last + 4 <= 63 and txt[f"a{last+4}"] == txt[f"a{last}"]: last += 1
    last += 3
    nit = (last - lo + 1) // 4
    lo = last + 1 - 4 * nit
    sys.stderr.write(f"loop bodies {lo}..{last} ({nit} iterations), nops inserted {nn}\n")
    L = []; A = L.append
    A("; @launch kernel=attn_kernel grid=(256,1,1) block=(256,1,1) lds=163840")
    A("; @launch kernel=reduce_kernel grid=(448,1,1) block=(256,1,1) lds=0")
    A('.amdgcn_target "amdgcn-amd-amdhsa--gfx950"')
    A(".text"); A(".p2align 8"); A("attn_kernel:")
    L += setup_code(cfg)
    tramps = []
    def emit_seg(name):
        A(f"; ---- {name}")
        for t in txt[name]:
            if t.startswith("RARE"):
                _, par, nx = t.split()
                lab = f"L_t_{name.replace('-','m')}"
                A(f"s_cbranch_vccnz {lab}"); A(f"{lab}_back:")
                tramps.append((lab, par, nx))
            else: A(t)
    for name in names:
        if name.startswith("a"):
            n = int(name[1:])
            if lo <= n <= last:
                if n == lo:
                    A(f"s_mov_b32 s{sCnt}, {nit}"); A(".p2align 3"); A("L_loop:")
                if n < lo + 4:
                    def keep(t):
                        if "d" in cfg.strip and t.startswith("buffer_load"): return False
                        if "r" in cfg.strip and t.startswith("ds_read"): return False
                        if "s" in cfg.strip and t.split()[0] in ("v_exp_f32", "v_add_f32", "v_cvt_pk_bf16_f32"): return False
                        return True
                    txt[name] = [t for t in txt[name] if keep(t)]
                    if n == lo + 3:
                        txt[name].insert(1, f"s_sub_u32 s{sCnt}, s{sCnt}, 1")
                    emit_seg(name)
                    if n == lo + 3:
                        A(f"s_cmp_lg_u32 s{sCnt}, 0"); A("s_cbranch_scc1 L_loop")
                continue
        if cfg.hstamp == 1 and name == "qp0": A("s_memtime s[86:87]")
        if cfg.stamp and not cfg.hstamp and name in ("qp0", "a-2", "op0"):
            i = ["qp0", "a-2", "op0"].index(name)
            A(f"s_memtime s[{82+2*i}:{83+2*i}]")
        emit_seg(name)
    if cfg.stamp:
        A("s_waitcnt vmcnt(0)")
        A("s_memtime s[88:89]"); A("s_memrealtime s[90:91]")
        A("s_getreg_b32 s92, hwreg(HW_REG_XCC_ID)"); A("s_getreg_b32 s93, hwreg(HW_REG_HW_ID)")
        A("s_waitcnt lgkmcnt(0)")
        A("s_add_u32 s76, s64, 0x4000000"); A("s_addc_u32 s77, s65, 0"); A("s_and_b32 s77, s77, 0xffff")
        A("s_mov_b32 s78, 0x100000"); A("s_mov_b32 s79, 0x20000")
        A("s_lshl_b32 s74, s2, 2"); A(f"s_add_u32 s74, s74, s{sWave}"); A("s_lshl_b32 s74, s74, 6")
        A("v_mov_b32 v40, 0")
        for i, r in enumerate([80, 82, 84, 86, 88, 90, 92, 93, 94]):
            A(f"v_mov_b32 v41, s{r}")
            A(f"buffer_store_dword v41, v40, s[76:79], s74 offen offset:{4*i}")
    A("L_exit:"); A("s_endpgm")
    A(".set CODE_BYTES, L_exit - attn_kernel - 1024")
    for lab, par, nx in tramps:
        A(f"{lab}:"); A(f"s_call_b64 s[{sRet}:{sRet+1}], L_rare_{par}_{nx}"); A(f"s_branch {lab}_back")
    for par, nx in sorted({(p, n) for _, p, n in tramps}):
        A(f"L_rare_{par}_{nx}:")
        L += rare_code(int(par), int(nx))
    L += reduce_kernel(cfg)
    A('.section .rodata,"a"')
    for kn, nv, acc in (("attn_kernel", 512, 256), ("reduce_kernel", 80, 80)):
        A(".p2align 6"); A(f".amdhsa_kernel {kn}")
        A(f"  .amdhsa_next_free_vgpr {nv}"); A("  .amdhsa_next_free_sgpr 102"); A(f"  .amdhsa_accum_offset {acc}")
        A("  .amdhsa_group_segment_fixed_size 0"); A("  .amdhsa_kernarg_size 104"); A("  .amdhsa_user_sgpr_count 2")
        A("  .amdhsa_user_sgpr_kernarg_segment_ptr 1"); A("  .amdhsa_system_sgpr_workgroup_id_x 1")
        A(".end_amdhsa_kernel")
    return "\n".join(L) + "\n"

if __name__ == "__main__":
    ap = argparse.ArgumentParser()
    ap.add_argument("-o", default=f"cdna_kernels/{NAME}.s")
    ap.add_argument("opts", nargs="*")
    a = ap.parse_args()
    cfg = Cfg()
    for o in a.opts:
        k, v = o.split("=", 1)
        old = getattr(cfg, k)
        if isinstance(old, bool): v = v not in ("0", "false", "False")
        elif isinstance(old, int): v = int(v)
        elif isinstance(old, float): v = float(v)
        elif k.endswith("_flags"): v = " " + v.replace("+", " ") if v else ""
        setattr(cfg, k, v)
    open(a.o, "w").write(generate(cfg))
```

```python
import sys, math, argparse, struct

NAME = "concat_heads__gqa_block_cached__gqa_block_cached__near_ridge"
def f32bits(x): return struct.unpack("<I", struct.pack("<f", x))[0]

class Cfg:
    LEAD = 16
    DEAD = 8
    NB = 16
    SAFE = 6
    DMASPAN = 40
    H = 3.0
    TTPEN = 3.0
    dma_flags = " nt"
    w_flags = " nt"
    v_flags = "same"
    o_flags = ""
    otouch = 57
    st_flags = ""
    rd_flags = ""
    stamp = False
    strip = ""
    touch = "co"
    tpos = 1
    t_flags = " nt"
    hstamp = 0
    npre = 3
    psync = 1
    nospin = 0
    lstamp = 0
    fuse = 1
    ptime = 4000
    force_abandon = 0
    pace = 0
    sync0 = "qp4"
    sync1 = "a2"
    early = 1
    wsoff = 0

def V(lo, n=1): return [("v", lo + i) for i in range(n)]
def Areg(lo, n=1): return [("a", lo + i) for i in range(n)]
def vr(lo, n=1): return f"v{lo}" if n == 1 else f"v[{lo}:{lo+n-1}]"
def ar(lo, n=1): return f"a{lo}" if n == 1 else f"a[{lo}:{lo+n-1}]"

O0 = 128
def oreg(db16, qb): return O0 + (db16 * 2 + qb) * 4
S_ = [96, 112]
def sreg(par, kb, qb): return S_[par] + (kb * 2 + qb) * 4
NEGM = 88
P_ = [72, 80]
QF = 0
FR = 64
XF = 192
PARK = 224
vKB = 0; vVB = 4; vKD = 12; vVD = 16; vWD = 20; vXD = 24; vQA = 28; vXA = 36
vL = 38; vPS = 40; vINV = 42; vST = 44; vD = 45; vF = 46; vQW = 47
vT = 48
vE = 56
vQR = 64
STG = 192
sX, sWQ, sK, sV, sWO, sPT = 4, 8, 12, 16, 20, 24
sW4K, sKoff, sVoff, sCnt, sTmp, sW28K, sW64K, sWave, sScale = 28, 29, 30, 31, 32, 33, 34, 35, 36
sRet = 40
sSign, sOld, sDif = 37, 38, 75
sSy = 78

KRING = 98304
VRING = 32768
def kslot(m): return ((m + 3) % 4) * 16384
def vslot(m): return ((m + 1) % 4) * 16384
def qregion(s): return [0, 98304, 49152][s % 3]
QSTAGE = VRING + vslot(2)
MF = "v_mfma_f32_16x16x32_bf16"

class I:
    __slots__ = ("t", "k", "rd", "wr", "tag", "c", "ideal", "early", "dead", "pre", "post")
    def __init__(s, t, k, rd=(), wr=(), tag=None, c=()):
        s.t, s.k, s.rd, s.wr, s.tag, s.c = t, k, list(rd), list(wr), tag, list(c)
        s.ideal = s.early = s.dead = None
        s.pre = []; s.post = []
def valu(t, rd=(), wr=()): return I(t, "valu", rd, wr)
def trans(t, rd=(), wr=()): return I(t, "trans", rd, wr)
def perm(t, rd=(), wr=()): return I(t, "perm", rd, wr)
def salu(t, wr=()): return I(t, "salu", (), wr)
def slots(x): return 2 if x.k in ("trans", "dma", "store") else 1

class Body:
    def __init__(s, name):
        s.name = name
        s.mf = []; s.reads = []; s.need = []; s.dma = []; s.valu = []; s.after_reads = []; s.tail = []

def dma_group(srd, voffs, pre, post, soff, m0val, tag, flags=""):
    g = []
    for k in range(4):
        off = f" offset:{k*1024}" if k else ""
        g.append(I(f"buffer_load_dwordx4 v{voffs[k]}, s[{srd}:{srd+3}], s{soff} offen{off}{flags} lds",
                   "dma", rd=[("v", voffs[k]), ("m0", 0)], tag=tag))
    g[0].pre = [salu(f"s_add_u32 m0, s{m0val[0]}, {m0val[1]}", wr=[("m0", 0)])] + list(pre)
    return g
def g_k(m, cfg):
    return dma_group(sK, [vKD + k for k in range(4)], [salu(f"s_add_u32 s{sKoff}, s{sKoff}, 16384")], [],
                     sKoff, (sW4K, KRING + kslot(m)), ("K", m), cfg.dma_flags)
def g_v(m, cfg):
    return dma_group(sV, [vVD + k for k in range(4)], [salu(f"s_add_u32 s{sVoff}, s{sVoff}, 16384")], [],
                     sVoff, (sW4K, VRING + vslot(m)), ("V", m), cfg.dma_flags if cfg.v_flags == "same" else cfg.v_flags)
def g_wo(j, half, cfg):
    m = 64 + j
    ring = (KRING + kslot(m)) if half == 0 else (VRING + vslot(m))
    so = sKoff if half == 0 else sVoff
    return dma_group(sWO, [vWD + k for k in range(4)], [salu(f"s_add_u32 s{so}, s{sW28K}, {half*128*896 + 128*j}")], [],
                     so, (sW4K, ring), ("K" if half == 0 else "V", m), cfg.o_flags)
def g_stage(s, cfg):
    rb = qregion(s)
    gs = [dma_group(sX, [vXD + k for k in range(4)], [salu(f"s_add_u32 s{sTmp}, s{sW28K}, {128*s}")], [],
                    sTmp, (sW4K, rb + 32768), ("Q", s), cfg.w_flags)]
    for kk in range(2):
        gs.append(dma_group(sWQ, [vWD + k for k in range(4)], [salu(f"s_add_u32 s{sTmp}, s{sW64K}, {(64*s + 32*kk)*8192}")], [],
                            sTmp, (sW4K, rb + kk * 16384), ("Q", s), cfg.w_flags))
    return gs

def sm_instrs(n, fix=False):
    par = n % 2
    out = []; pend = []
    k = 0
    for qb in range(2):
        for kb in range(2):
            for hp in range(2):
                s0 = sreg(par, kb, qb) + 2 * hp
                t0 = vT + (2 * k) % 8; t1 = t0 + 1
                ps = vPS + qb
                if fix:
                    out.append(valu(f"v_add_f32 v{s0}, v{NEGM+4*qb}, v{s0}", rd=V(s0)+V(NEGM+4*qb), wr=V(s0)))
                    out.append(valu(f"v_add_f32 v{s0+1}, v{NEGM+4*qb}, v{s0+1}", rd=V(s0+1)+V(NEGM+4*qb), wr=V(s0+1)))
                out.append(trans(f"v_exp_f32 v{t0}, v{s0}", rd=V(s0), wr=V(t0)))
                if pend: out.append(pend.pop(0))
                out.append(trans(f"v_exp_f32 v{t1}, v{s0+1}", rd=V(s0+1), wr=V(t1)))
                out += pend; pend = []
                if kb == 0 and hp == 0:
                    pend.append(valu(f"v_add_f32 v{ps}, v{t0}, v{t1}", rd=V(t0, 2), wr=V(ps)))
                else:
                    pend.append(valu(f"v_add_f32 v{ps}, v{ps}, v{t0}", rd=V(t0)+V(ps), wr=V(ps)))
                    pend.append(valu(f"v_add_f32 v{ps}, v{ps}, v{t1}", rd=V(t1)+V(ps), wr=V(ps)))
                p = P_[par] + 4 * qb + 2 * kb + hp
                pend.append(valu(f"v_cvt_pk_bf16_f32 v{p}, v{t0}, v{t1}", rd=V(t0, 2), wr=V(p)))
                k += 1
    out += pend
    return out

def xlane(op, r, tmp):
    o = []
    for sw in ("v_permlane32_swap_b32", "v_permlane16_swap_b32"):
        o.append(valu(f"v_mov_b32 v{tmp}, v{r}", rd=V(r), wr=V(tmp)))
        o.append(perm(f"{sw} v{r}, v{tmp}", rd=V(r)+V(tmp), wr=V(r)+V(tmp)))
        o.append(valu(f"{op} v{r}, v{r}, v{tmp}", rd=V(r)+V(tmp), wr=V(r)))
    return o

def rowmax_instrs(par, qb, d, tmp):
    a = sreg(par, 0, qb); b = sreg(par, 1, qb)
    o = [valu(f"v_max3_f32 v{d}, v{a}, v{a+1}, v{a+2}", rd=V(a, 3), wr=V(d)),
         valu(f"v_max3_f32 v{d}, v{d}, v{a+3}, v{b}", rd=V(a+3)+V(b)+V(d), wr=V(d)),
         valu(f"v_max3_f32 v{d}, v{d}, v{b+1}, v{b+2}", rd=V(b+1, 2)+V(d), wr=V(d)),
         valu(f"v_max_f32 v{d}, v{d}, v{b+3}", rd=V(b+3)+V(d), wr=V(d))]
    return o + xlane("v_max_f32", d, tmp)

def zipl(a, b):
    o = []
    for i in range(max(len(a), len(b))):
        if i < len(a): o.append(a[i])
        if i < len(b): o.append(b[i])
    return o

def ob_reg(t, qb):
    base = [S_[0], S_[0] + 8, S_[1], S_[1] + 8, NEGM, 64, P_[0], P_[1]][t]
    return base + 4 * qb

def build_bodies(cfg):
    B = []
    for s in range(7):
        b = Body(f"qp{s}")
        order = [(kt, be) for kt in range(2) for be in range(16)] if s < 6 else [(kt, be) for be in range(16) for kt in range(2)]
        xdone = set()
        def xf(kt, qb): return XF + ((s % 2) * 4 + kt * 2 + qb) * 4
        xpend = []
        def xread(kt):
            for qb in range(2):
                xpend.append((("X", s, kt, qb), [("ds_read_b128", vXA + kt, qb * 2048, 0, 4)], xf(kt, qb)))
        if s == 6:
            xread(0); xread(1); xdone = {0, 1}
            b.reads += xpend; xpend = []
        for idx, (kt, be) in enumerate(order):
            if kt not in xdone:
                xread(kt); xdone.add(kt)
                b.reads += xpend; xpend = []
            key = ("WQ", s, kt, be)
            b.reads.append((key, [("ds_read_b64_tr_b16", vQA + be % 8, (32*kt + 4*jj) * 512 + (be // 8) * 256, 2*jj, 2) for jj in range(2)], None))
            for qb in range(2):
                d = oreg(be, qb)
                first = (s == 0 and kt == 0)
                b.mf.append((d, key, ar(xf(kt, qb), 4), Areg(xf(kt, qb), 4), "0" if first else vr(d, 4), [] if first else V(d, 4), [("X", s, kt, qb)]))
        b.need = [("Q", s)]
        if s < 6:
            delta = qregion(s + 1) - qregion(s)
            for r in list(range(vQA, vQA + 8)) + list(range(vXA, vXA + 2)):
                b.after_reads.append(valu(f"v_add_u32 v{r}, {delta & 0xffffffff}, v{r}", rd=V(r), wr=V(r)))
        if s <= 3: b.dma = g_stage(s + 3, cfg)
        elif s == 4: b.dma = [g_k(1, cfg), g_k(2, cfg), g_k(3, cfg)]
        elif s == 5: b.dma = [g_v(0, cfg), g_v(1, cfg)]
        else: b.dma = []
        B.append(b)
    b = B[6]
    for t in range(8):
        ins = []
        for qb in range(2):
            e = vE + 4 * qb
            for the in range(2):
                d = oreg(2 * t + the, qb)
                for k in range(4):
                    ins.append(valu(f"v_mul_f32 v{d+k}, s{sScale}, v{d+k}", rd=V(d+k), wr=V(d+k)))
                for hp in range(2):
                    ins.append(valu(f"v_cvt_pk_bf16_f32 v{e+2*the+hp}, v{d+2*hp}, v{d+2*hp+1}", rd=V(d+2*hp, 2), wr=V(e+2*the+hp)))
            ins.append(I(f"ds_write2_b64 v{vQW}, v[{e}:{e+1}], v[{e+2}:{e+3}] offset0:{qb*128} offset1:{qb*128+64}", "dsv",
                         rd=V(e, 4)+V(vQW), tag=("QW", t, qb)))
            q = QF + (t * 2 + qb) * 4
            ins.append(I(f"ds_read_b128 {ar(q, 4)}, v{vQR} offset:{qb*1024}", "dsv", rd=V(vQR), wr=Areg(q, 4), tag=("QF", t, qb)))
        g0 = 8 * t + 7 + 4
        g1 = max(g0, min(g0 + 11, 64 + 2 * t - 6))
        b.valu.append((ins, g0, g1))
    for n in range(-2, 64):
        b = Body(f"a{n}")
        qk = []; pv = []
        if n + 2 <= 63:
            m = n + 2
            order = [(kb, t) for kb in range(2) for t in range(8)] if m > 0 else [(kb, t) for t in range(8) for kb in range(2)]
            for kb, t in order:
                key = ("K", m, kb, t)
                rd = (key, [("ds_read_b128", vKB + t % 4, kslot(m) + kb * 8192 + (t // 4) * 256, 0, 4)], None)
                mfs = []
                for qb in range(2):
                    S = sreg(m % 2, kb, qb)
                    if t == 0: c = ("0", []) if m < 2 else (vr(NEGM + 4*qb, 4), V(NEGM + 4*qb, 4))
                    else: c = (vr(S, 4), V(S, 4))
                    q = QF + (t * 2 + qb) * 4
                    mfs.append((S, key, ar(q, 4), Areg(q, 4), c[0], c[1], [("QF", t, qb)] if m == 0 else []))
                qk.append((rd, mfs))
            b.need.append(("K", m))
        if n >= 0:
            for db in range(16):
                key = ("V", n, db)
                rd = (key, [("ds_read_b64_tr_b16", vVB + db % 8, vslot(n) + jj * 8192 + (db // 8) * 256, 2*jj, 2) for jj in range(2)], None)
                mfs = []
                for qb in range(2):
                    d = oreg(db, qb); P = P_[n % 2] + 4 * qb
                    mfs.append((d, key, vr(P, 4), V(P, 4), "0" if n == 0 else vr(d, 4), [] if n == 0 else V(d, 4), []))
                pv.append((rd, mfs))
            b.need.append(("V", n))
        for rd, mfs in zipl(qk, pv):
            b.reads.append(rd); b.mf += mfs
        G = len(b.mf)
        if n == -1:
            ins = zipl(rowmax_instrs(0, 0, vD, vF), rowmax_instrs(0, 1, vINV, vINV + 1))
            for qb, d in ((0, vD), (1, vINV)):
                for k in range(4):
                    ins.append(valu(f"v_sub_f32 v{NEGM+4*qb+k}, 0, v{d}", rd=V(d), wr=V(NEGM+4*qb+k)))
            ins += sm_instrs(0, fix=True)
            b.valu.append((ins, 3, G - 1))
        elif 0 <= n <= 62:
            ins = []
            for qb in range(2):
                if n == 0: ins.append(valu(f"v_mov_b32 v{vL+qb}, v{vPS+qb}", rd=V(vPS+qb), wr=V(vL+qb)))
                else: ins.append(valu(f"v_add_f32 v{vL+qb}, v{vL+qb}, v{vPS+qb}", rd=V(vPS+qb)+V(vL+qb), wr=V(vL+qb)))
            ins += sm_instrs(n + 1, fix=(n == 0))
            ins.append(valu(f"v_max_f32 v{vD}, v{vPS}, v{vPS+1}", rd=V(vPS, 2), wr=V(vD)))
            ins.append(valu(f"v_cmp_nge_f32 vcc, 0x46800000, v{vD}", rd=V(vD), wr=[("vcc", 0)]))
            b.valu.append((ins, 3 if n == 0 else 0, G - 2))
            b.tail.append(I(f"RARE {(n+1)%2} {1 if n + 2 <= 63 else 0}", "rare"))
        elif n == 63:
            ins = []
            for qb in range(2):
                ins.append(valu(f"v_add_f32 v{vL+qb}, v{vL+qb}, v{vPS+qb}", rd=V(vPS+qb)+V(vL+qb), wr=V(vL+qb)))
            ins += zipl(xlane("v_add_f32", vL, vD), xlane("v_add_f32", vL + 1, vF))
            for qb in range(2):
                ins.append(trans(f"v_rcp_f32 v{vINV+qb}, v{vL+qb}", rd=V(vL+qb), wr=V(vINV+qb)))
            b.valu.append((ins, 40, 63))
            for t in range(8):
                ins = []
                for qb in range(2):
                    o = ob_reg(t, qb)
                    for the in range(2):
                        d = oreg(2 * t + the, qb)
                        for hp in range(2):
                            ins.append(valu(f"v_cvt_pk_bf16_f32 v{o+2*the+hp}, v{d+2*hp}, v{d+2*hp+1}", rd=V(d+2*hp, 2), wr=V(o+2*the+hp)))
                g0 = 4 * t + 3 + 4
                b.valu.append((ins, g0, g0 + 5))
        if n + 2 <= 63:
            m = n + 6
            b.dma.append(g_k(m, cfg) if m <= 63 else g_wo(m - 64, 0, cfg))
        if n == -1:
            b.dma = [g_v(2, cfg), g_v(3, cfg)] + b.dma
        if n == cfg.otouch and "o" in cfg.touch:
            x = I(f"buffer_load_dword a252, v{vXD}, s[{sWO}:{sWO+3}], s{sTmp} offen{cfg.o_flags}", "dma", rd=V(vXD), tag=("T", 1))
            x.pre = [salu(f"s_mov_b32 s{sTmp}, s77")]
            b.dma = [[x]] + b.dma
        if n >= 0:
            m = n + 4
            b.dma.append(g_v(m, cfg) if m <= 63 else g_wo(m - 64, 1, cfg))
        B.append(b)
    def accreg(j, nb, qb): return O0 + 32 * (j % 2) + (nb * 2 + qb) * 4
    def drain(j):
        ins = []
        for q in range(4):
            qb, t2 = q // 2, q % 2
            st = STG + 4 * q
            for the in range(2):
                a = accreg(j, 2 * t2 + the, qb)
                for k in range(4):
                    ins.append(valu(f"v_mul_f32 v{a+k}, v{vINV+qb}, v{a+k}", rd=V(a+k)+V(vINV+qb), wr=V(a+k)))
                for hp in range(2):
                    ins.append(valu(f"v_cvt_pk_bf16_f32 v{st+2*the+hp}, v{a+2*hp}, v{a+2*hp+1}", rd=V(a+2*hp, 2), wr=V(st+2*the+hp)))
            off = f" offset:{q*1024}" if q else ""
            x = I(f"buffer_store_dwordx4 v[{st}:{st+3}], v{vST}, s[{sPT}:{sPT+3}], s{sTmp} offen{off}{cfg.st_flags}", "store",
                  rd=V(st, 4)+V(vST), tag=("ST", j))
            if q == 0: x.pre = [salu(f"s_mov_b32 s{sTmp}, {4096*j}")]
            ins.append(x)
        return ins
    for j in range(7):
        b = Body(f"op{j}")
        m = 64 + j
        for t in range(8):
            for nb in range(4):
                key = ("WO", j, t, nb)
                base = vQA + (t // 4) * 4 + nb
                slot = kslot(m) if t < 4 else vslot(m)
                b.reads.append((key, [("ds_read_b64_tr_b16", base, slot + (32*(t % 4) + 16*jj) * 128, 2*jj, 2) for jj in range(2)], None))
                for qb in range(2):
                    d = accreg(j, nb, qb); o = ob_reg(t, qb)
                    b.mf.append((d, key, vr(o, 4), V(o, 4), "0" if t == 0 else vr(d, 4), [] if t == 0 else V(d, 4), []))
        b.need = [("K", m), ("V", m)]
        if j >= 1: b.valu.append((drain(j - 1), 3, 61))
        if j + 4 <= 6: b.dma = [g_wo(j + 4, 0, cfg), g_wo(j + 4, 1, cfg)]
        if j == 6: b.tail += drain(6)
        B.append(b)
    return B

def schedule(B, cfg, pre_dma, first):
    starts = []; M = 0
    for b in B:
        starts.append(M); M += len(b.mf)
    front = {g: [] for g in range(-1, M)}
    fill = {g: [] for g in range(-1, M)}
    bp = [starts[i] + len(B[i].mf) - cfg.LEAD - 1 for i in range(len(B))]
    fragreg = {}; first_use = {}; last_use = {}
    idx = 0
    for i, b in enumerate(B):
        for g, mf in enumerate(b.mf):
            if mf[1] not in fragreg:
                fragreg[mf[1]] = FR + 4 * (idx % cfg.NB); idx += 1
            for k in [mf[1]] + mf[6]:
                first_use.setdefault(k, starts[i] + g); last_use[k] = starts[i] + g
    front[-1].append(I("BAR", "bar", tag=B[0].need))
    for i, b in enumerate(B[:-1]):
        front[bp[i]].append(I("BAR", "bar", tag=B[i + 1].need))
    reserved = {}
    lazy = set()
    if cfg.psync:
        names = [b.name for b in B]
        i0, i1 = names.index(cfg.sync0), names.index(cfg.sync1)
        lag = 1 if cfg.psync == 1 else 2
        for i in range(i0, i1 + 1):
            r = sOld + (i % lag)
            if i >= i0 + lag and not cfg.nospin:
                front[bp[i] + 1] += [salu(f"s_mul_i32 s{sDif}, s{r}, s{sSign}"), I("SYNC", "sync")]
            if i <= i1 - lag:
                front[bp[i] + 2] += [salu(f"s_mov_b32 s{r}, s{sSign}"), salu(f"s_atomic_add s{r}, s[{sSy}:{sSy+1}], 0x0 glc")]
                if lag == 2:
                    lazy.add(bp[i + 1])
                    reserved[bp[i + 1] - 3] = [I(f"ds_read_b32 a251, v{vKB}", "dsv", rd=V(vKB), tag=("DUMMY", i))]
    R = []; Mq = []; Vq = []
    holder = {}
    nd = sum(len(grp) for grp in first); k = 0
    for grp in first:
        for x in grp:
            x.early = 0; x.ideal = 1 + cfg.H + k * 36 / nd; x.dead = bp[0] - 1 - (nd - 1 - k)
            Mq.append(x); k += 1
    for i, b in enumerate(B):
        w0 = bp[i - 1] if i > 0 else -cfg.LEAD - 1
        w1 = bp[i] - cfg.DEAD if i < len(B) - 1 else starts[i] + len(b.mf) - 12
        flat = []
        for key, parts, fixed in b.reads:
            reg = fixed if fixed is not None else fragreg[key]
            for (op, addr, off, sub, n) in parts:
                x = I(f"{op} {ar(reg+sub, n)}, v{addr} offset:{off}", "d" if n == 4 else "t", rd=V(addr), wr=Areg(reg+sub, n), tag=key)
                x.early = w0
                h = holder.get(reg)
                if h is not None and h != key: x.early = max(x.early, last_use[h])
                x.dead = min(w1, first_use[key] - 7)
                flat.append(x)
            holder[reg] = key
        n = len(flat)
        for k, x in enumerate(flat):
            x.ideal = w0 + k * (w1 - 2 - w0) / n
        flat[-1].post = b.after_reads
        R += flat
        nd = sum(len(grp) for grp in b.dma)
        if nd:
            nxt = bp[i + 1] if i + 1 < len(B) else M - 1
            span = min(cfg.DMASPAN, nxt - bp[i] - 4)
            k = 0
            for grp in b.dma:
                for x in grp:
                    x.early = bp[i] + 1; x.ideal = bp[i] + 1 + cfg.H + k * span / nd; x.dead = nxt - 1 - (nd - 1 - k)
                    Mq.append(x); k += 1
        for ins, g0, g1 in b.valu:
            g0 += starts[i]; g1 = min(g1 + starts[i], M - 1)
            tot = sum(slots(x) for x in ins); acc = 0
            for x in ins:
                x.early = g0; x.ideal = g0 + acc * max(0, (g1 - 1 - g0)) / tot; x.dead = g1
                acc += slots(x)
            Vq.append(ins)
    allv = []
    for li, ins in enumerate(Vq):
        for k, x in enumerate(ins): allv.append((x.ideal, li, k, x))
    allv.sort(key=lambda z: (z[0], z[1], z[2]))
    Vs = [z[3] for z in allv]
    for q in (R, Mq, Vs):
        for k in range(len(q) - 2, -1, -1): q[k].dead = min(q[k].dead, q[k + 1].dead)
    ri = mi = vi = 0
    while ri < len(R) and R[ri].ideal < 0:
        fill[-1].append(R[ri]); ri += 1
    last_dma = -10
    over = 0
    extra_v = []
    for g in range(M):
        def u(x):
            if x is None or x.early > g: return None
            v = g - x.ideal + cfg.H
            return v if v > 0 else None
        def at(q, i): return q[i] if i < len(q) else None
        vq = extra_v + Vs[vi:vi + 2]
        R0, R1, M0 = at(R, ri), at(R, ri + 1), at(Mq, mi)
        V0, V1 = at(vq, 0), at(vq, 1)
        if extra_v and R0 is not None and any(r in y.wr for y in extra_v for r in R0.rd): R0 = R1 = None
        if R0 is not None and R0.post: R1 = None
        if R1 is not None and extra_v and any(r in y.wr for y in extra_v for r in R1.rd): R1 = None
        ur0, ur1, um, uv0, uv1 = u(R0), u(R1), u(M0), u(V0), u(V1)
        plain = lambda x: x.k in ("valu", "perm")
        opts = [(0.0, [])]
        if um is not None: opts.append((2 * um, [M0]))
        if uv0 is not None:
            if slots(V0) == 2: opts.append((2 * uv0, [V0]))
            else:
                opts.append((uv0, [V0]))
                if uv1 is not None and plain(V1): opts.append((uv0 + uv1, [V0, V1]))
                if ur0 is not None and plain(V0): opts.append((ur0 + uv0, [R0, V0]))
        if ur0 is not None:
            opts.append((ur0, [R0]))
            if ur1 is not None:
                opts.append((ur0 + ur1 - (cfg.TTPEN if R0.k == "t" else 0), [R0, R1]))
        sc, ch = max(opts, key=lambda z: z[0])
        ch = list(ch)
        if g in reserved:
            ch = []; fill[g] += reserved[g]
        def take(x):
            nonlocal ri, mi, vi, last_dma
            if x.k in ("d", "t"):
                ri += 1
                for y in x.post:
                    y.early = g + 1; y.ideal = g - 2; y.dead = g + cfg.DEAD - 1
                extra_v.extend(x.post)
            elif x.k == "dma": mi += 1
            elif extra_v and x is extra_v[0]: extra_v.pop(0)
            else: vi += 1
            if x.pre:
                if last_dma < g - 1 and not any(y.k == "bar" for y in front[g]) and g > 0: front[g - 1] += x.pre
                elif last_dma < g: front[g] += x.pre
                else: fill[g] += x.pre
            if x.k in ("dma", "store"): last_dma = g
            fill[g].append(x)
        for x in ch: take(x)
        while True:
            cand = None
            if extra_v and extra_v[0].dead <= g and extra_v[0].early <= g: cand = extra_v[0]
            elif ri < len(R) and R[ri].dead <= g and not extra_v: cand = R[ri]
            elif mi < len(Mq) and Mq[mi].dead <= g: cand = Mq[mi]
            elif vi < len(Vs) and Vs[vi].dead <= g: cand = Vs[vi]
            if cand is None: break
            assert cand.early <= g, (cand.t, cand.early, cand.dead, g)
            take(cand); over += slots(cand)
    assert ri == len(R) and mi == len(Mq) and vi == len(Vs), (ri, len(R), mi, len(Mq), vi, len(Vs))
    for i, b in enumerate(B):
        for x in b.tail:
            fill[starts[i] + len(b.mf) - 1] += x.pre + [x]
    sys.stderr.write(f"forced slots {over}\n")
    out = []
    lg = []; lg_done = 0; vm = []; lastread = {}
    cur = []
    def emit(lst, g):
        nonlocal lg_done
        for x in lst:
            if x.k == "bar":
                need = max(i2 for i2, tg in enumerate(vm) if tg in x.tag)
                for tg in x.tag: assert tg in vm, (tg, g)
                n = min(len(vm) - 1 - need, 63)
                if g in lazy: assert lg[-1][0][0] == "DUMMY", (lg[-1], g)
                cur.append(I(f"s_waitcnt vmcnt({n}) lgkmcnt({1 if g in lazy else 0})", "wait"))
                cur.append(I("s_barrier", "salu"))
                lg_done = len(lg)
            elif x.k in ("d", "t", "dsv"):
                lg.append((x.tag, g)); lastread[x.tag] = len(lg) - 1; cur.append(x)
            elif x.k in ("dma", "store"):
                vm.append(x.tag); cur.append(x)
            else: cur.append(x)
    nparts = {}
    for x in R: nparts[x.tag] = nparts.get(x.tag, 0) + 1
    def lwait(mf, g, strict):
        nonlocal lg_done
        keys = [mf[1]] + mf[6]
        for k in keys:
            if sum(1 for tg, _ in lg[-40:] if tg == k) < nparts.get(k, 1) and (k not in lastread or lastread[k] >= max(0, len(lg) - 40)):
                assert not strict, ("operand not read", k, g)
                return
        needi = max(lastread[k] for k in keys)
        if needi >= lg_done:
            n_need = len(lg) - 1 - needi
            n_safe = sum(1 for (_, gg) in lg[lg_done:] if gg > g - cfg.SAFE)
            n = min(n_need, max(n_safe, 2), 15)
            cur.append(I(f"s_waitcnt lgkmcnt({n})", "wait"))
            lg_done = len(lg) - n
    for grp in pre_dma:
        for x in grp:
            emit(x.pre, -1); emit([x], -1)
    emit(front[-1], -1); emit(fill[-1], -1)
    out.append(("pre", cur))
    allmf = [mf for b in B for mf in b.mf]
    for i, b in enumerate(B):
        cur = []
        for gi, mf in enumerate(b.mf):
            g = starts[i] + gi
            d, key, bt, brs, ct, crs, extra = mf
            lwait(mf, g, True)
            fr = fragreg[key]
            cur.append(I(f"{MF} {vr(d,4)}, {ar(fr,4)}, {bt}, {ct}", "mfma", rd=Areg(fr, 4) + brs, wr=V(d, 4), c=crs))
            emit(front[g], g)
            if g + 1 < M: lwait(allmf[g + 1], g, False)
            emit(fill[g], g)
        out.append((b.name, cur))
    return out

def hazard_pass(segs):
    pos = 0; res = []; lastw = {}; lastc = {}; lasts = {}; pend = {}; nn = 0
    for name, lst in segs:
        o = []
        for x in lst:
            need = 0
            def req(p, d):
                nonlocal need
                need = max(need, d - (pos - p - 1))
            isv = x.k in ("valu", "trans", "perm")
            for r in x.rd + x.c:
                if r in lastw:
                    p, k, full = lastw[r]
                    if k == "mfma":
                        if x.k == "mfma":
                            if r in x.rd: req(p, 8)
                            elif tuple(x.c) != full: req(p, 6)
                        else: req(p, 8)
                    elif k in ("valu", "trans", "perm"):
                        if x.k in ("mfma", "perm"): req(p, 2)
                        if k == "trans" and x.k != "trans": req(p, 1)
                    elif k == "salu" and r == ("m0", 0): req(p, 1)
            for r in x.wr:
                if r in lastw and lastw[r][1] == "mfma" and (x.k != "mfma" or tuple(x.c) != lastw[r][2]): req(lastw[r][0], 8)
                if isv and r in lastc: req(lastc[r], 3)
                if r in lasts: req(lasts[r], 2)
            if x.k in ("d", "t"):
                for r in x.wr:
                    assert r not in pend, ("fragment overwritten before use", name, x.t)
                    pend[r] = 1
            if x.k == "mfma":
                for r in x.rd: pend.pop(r, None)
            while need > 0:
                k = min(need, 16)
                o.append(I(f"s_nop {k-1}", "nop")); pos += k; need -= k; nn += 1
            o.append(x)
            for r in x.wr: lastw[r] = (pos, x.k, tuple(x.wr))
            if x.k == "mfma":
                for r in x.c: lastc[r] = pos
            if x.k == "store":
                for r in x.rd: lasts[r] = pos
            pos += 1
        res.append((name, o))
    return res, nn

def srd(A, d, p, offreg, size):
    A(f"s_add_u32 s{d}, s{p}, s{offreg}")
    A(f"s_addc_u32 s{d+1}, s{p+1}, 0")
    A(f"s_and_b32 s{d+1}, s{d+1}, 0xffff")
    A(f"s_mov_b32 s{d+2}, {size}")
    A(f"s_mov_b32 s{d+3}, 0x20000")

def setup_code(cfg):
    L = []; A = L.append
    A("s_load_dwordx16 s[44:59], s[0:1], 0")
    A("s_load_dwordx4 s[60:63], s[0:1], 64")
    A("s_load_dwordx2 s[64:65], s[0:1], 96")
    A("s_cmp_ge_u32 s2, 256")
    A("s_cbranch_scc1 L_exit")
    if cfg.stamp:
        A("s_memtime s[80:81]"); A("s_memrealtime s[94:95]")
    A("v_lshrrev_b32 v1, 6, v0")
    A("v_and_b32 v64, 63, v0")
    A(f"v_readfirstlane_b32 s{sWave}, v1")
    A("s_and_b32 s66, s2, 7"); A("s_lshr_b32 s67, s2, 3")
    A("s_lshr_b32 s68, s66, 2")
    A("s_and_b32 s69, s67, 1")
    A("s_lshr_b32 s70, s67, 1")
    A("s_and_b32 s71, s70, 7")
    A("s_lshr_b32 s70, s70, 3")
    A("s_and_b32 s72, s66, 3"); A("s_lshl_b32 s72, s72, 1"); A("s_add_u32 s72, s72, s70")
    A("s_lshl_b32 s73, s72, 1"); A("s_add_u32 s73, s73, s69")
    A(f"s_lshl_b32 s{sW4K}, s{sWave}, 12")
    A(f"s_lshl_b32 s{sW64K}, s{sWave}, 16")
    A(f"s_mul_i32 s{sW28K}, s{sWave}, 28672")
    A(f"s_sub_u32 s{sKoff}, s{sW4K}, 16384")
    A(f"s_sub_u32 s{sVoff}, s{sW4K}, 16384")
    A(f"s_mov_b32 s{sScale}, {f32bits(math.log2(math.e) / 16.0):#x}")
    A(f"s_and_b32 s76, s{sWave}, 1"); A("s_lshl_b32 s76, s76, 3")
    A("v_lshrrev_b32 v65, 5, v64"); A("v_and_b32 v66, 31, v64")
    A("v_lshrrev_b32 v71, 3, v64"); A("v_and_b32 v72, 7, v64")
    A("v_mul_u32_u24 v73, 896, v71")
    A("v_lshrrev_b32 v74, 1, v71")
    A("v_xor_b32 v74, v74, v72")
    A("v_lshl_add_u32 v75, v74, 4, v73")
    A("v_xor_b32 v74, 4, v74")
    A("v_lshl_add_u32 v76, v74, 4, v73")
    for k in range(4):
        A(f"v_add_u32 v{vXD+k}, {k*(8*896-1024)}, v{75 + (k & 1)}")
    A("v_lshlrev_b32 v73, 1, v65"); A("v_xor_b32 v73, v73, v66"); A("v_xor_b32 v73, s76, v73")
    A("v_lshlrev_b32 v74, 13, v65")
    A("v_lshl_add_u32 v75, v73, 4, v74")
    A("v_xor_b32 v73, 4, v73")
    A("v_lshl_add_u32 v76, v73, 4, v74")
    for k in range(4):
        A(f"v_add_u32 v{vWD+k}, {k*(16384-1024)}, v{75 + (k & 1)}")
    A("s_waitcnt lgkmcnt(0)")
    if cfg.hstamp: A("s_memtime s[82:83]")
    A("s_cmp_eq_u32 s68, 0")
    for a, b in ((44, 54), (50, 60), (46, 56), (48, 58), (52, 62)):
        A(f"s_cselect_b32 s{a}, s{a}, s{b}"); A(f"s_cselect_b32 s{a+1}, s{a+1}, s{b+1}")
    A("s_mul_i32 s74, s71, 114688"); srd(A, sX, 44, 74, 114688)
    A("s_lshl_b32 s74, s73, 9"); A(f"s_sub_u32 s75, {448*8192}, s74"); srd(A, sWQ, 50, 74, "s75")
    return L

def touch_code(cfg):
    L = []
    A = lambda t: L.append(I(t, "raw"))
    T = lambda t: L.append(I(t, "dma", tag=("T", 0)))
    if "w" in cfg.touch:
        A("v_lshrrev_b32 v73, 2, v64"); A("v_min_u32 v73, 13, v73"); A("v_lshlrev_b32 v73, 13, v73")
        A("v_and_b32 v74, 3, v64"); A("v_lshl_add_u32 v73, v74, 7, v73")
        A(f"s_lshl_b32 s74, s71, 2"); A(f"s_add_u32 s74, s74, s{sWave}"); A(f"s_mul_i32 s74, s74, {14*8192}")
        T(f"buffer_load_dword a255, v73, s[{sWQ}:{sWQ+3}], s74 offen{cfg.t_flags}")
    if "x" in cfg.touch:
        A("v_min_u32 v73, 55, v64"); A("v_lshlrev_b32 v73, 7, v73")
        A("s_and_b32 s74, s73, 3"); A("s_lshl_b32 s74, s74, 2"); A(f"s_add_u32 s74, s74, s{sWave}"); A(f"s_mul_i32 s74, s74, {56*128}")
        T(f"buffer_load_dword a254, v73, s[{sX}:{sX+3}], s74 offen{cfg.t_flags}")
    if "c" in cfg.touch:
        A("s_getpc_b64 s[96:97]")
        A("s_and_b32 s97, s97, 0xffff"); A("s_mov_b32 s98, CODE_BYTES"); A("s_mov_b32 s99, 0x20000")
        A("v_lshlrev_b32 v73, 7, v64")
        A(f"s_and_b32 s74, s67, 1"); A("s_lshl_b32 s74, s74, 2"); A(f"s_add_u32 s74, s74, s{sWave}"); A("s_lshl_b32 s74, s74, 13")
        T(f"buffer_load_dword a253, v73, s[96:99], s74 offen")
    return L

def kd_code(cfg):
    L = []; A = L.append
    if cfg.hstamp == 2:
        A("s_memtime s[84:85]"); A(f"s_waitcnt vmcnt({cfg.npre})"); A("s_memtime s[86:87]")
    A("s_lshl_b32 s74, s71, 3"); A("s_add_u32 s74, s74, s72"); A("s_lshl_b32 s74, s74, 20")
    srd(A, sK, 46, 74, 1 << 20); srd(A, sV, 48, 74, 1 << 20)
    A("v_xor_b32 v73, v65, v66"); A("v_xor_b32 v73, s76, v73"); A("v_lshlrev_b32 v74, 9, v65")
    for k in range(4):
        A(f"v_xor_b32 v75, {2*k}, v73"); A(f"v_lshl_add_u32 v{vKD+k}, v75, 4, v74")
    return L

def setup_code2(cfg):
    L = []; A = L.append
    if cfg.hstamp == 1: A("s_memtime s[84:85]")
    A("s_mul_i32 s74, s73, 229376"); srd(A, sWO, 52, 74, 229376)
    A("s_lshl_b32 s74, s68, 3"); A("s_add_u32 s74, s74, s71"); A("s_lshl_b32 s74, s74, 4"); A("s_add_u32 s74, s74, s73")
    A("s_mul_i32 s74, s74, 114688"); A(f"s_add_u32 s74, s74, {cfg.wsoff}"); srd(A, sPT, 64, 74, 114688)
    if cfg.psync:
        A("s_lshl_b32 s74, s66, 4"); A("s_lshr_b32 s75, s67, 1"); A("s_add_u32 s74, s74, s75"); A("s_lshl_b32 s74, s74, 2")
        A(f"s_add_u32 s74, s74, s{sWave}"); A("s_lshl_b32 s74, s74, 7"); A("s_add_u32 s74, s74, 0x2000000")
        A(f"s_add_u32 s{sSy}, s64, s74"); A(f"s_addc_u32 s{sSy+1}, s65, 0")
        A(f"s_lshl_b32 s{sSign}, s69, 1"); A(f"s_sub_u32 s{sSign}, 1, s{sSign}")
        A(f"s_sub_u32 s{sOld}, 0, s69")
        A(f"s_atomic_and s{sOld}, s[{sSy}:{sSy+1}], 0x0")
    A("s_mov_b32 s3, 0")
    if cfg.fuse:
        A("s_load_dwordx4 s[56:59], s[0:1], 80")
        A("s_memrealtime s[60:61]")
        A("s_lshl_b32 s70, s68, 3"); A("s_add_u32 s70, s70, s71")
    A("v_lshrrev_b32 v67, 4, v64"); A("v_bfe_u32 v68, v64, 2, 2"); A("v_and_b32 v69, 3, v64"); A("v_and_b32 v70, 15, v64")
    A("v_lshlrev_b32 v73, 1, v65"); A("v_xor_b32 v73, v73, v66"); A("v_lshlrev_b32 v74, 9, v65")
    for k in range(4):
        A(f"v_xor_b32 v75, {4*k}, v73"); A(f"v_lshl_add_u32 v{vVD+k}, v75, 4, v74")
    A("v_bfe_u32 v76, v64, 2, 3")
    A("v_lshl_add_u32 v73, v67, 3, v68"); A("v_lshlrev_b32 v73, 9, v73"); A("v_lshl_add_u32 v73, v69, 3, v73")
    for j in range(8):
        A(f"v_xor_b32 v75, {j}, v76"); A(f"v_lshl_add_u32 v{vQA+j}, v75, 5, v73")
    A("v_lshlrev_b32 v73, 7, v70"); A(f"v_add_u32 v73, s{sW4K}, v73"); A("v_add_u32 v73, 32768, v73")
    A("v_lshrrev_b32 v74, 1, v70"); A("v_xor_b32 v74, v74, v67")
    for kt in range(2):
        A(f"v_xor_b32 v75, {4*kt}, v74"); A(f"v_lshl_add_u32 v{vXA+kt}, v75, 4, v73")
    A("v_lshrrev_b32 v73, 2, v64"); A("v_lshlrev_b32 v73, 9, v73"); A("v_lshl_add_u32 v73, v69, 3, v73"); A(f"v_add_u32 v73, {VRING}, v73")
    for j in range(8):
        A(f"v_xor_b32 v75, {j}, v76"); A(f"v_lshl_add_u32 v{vVB+j}, v75, 5, v73")
    A("v_lshlrev_b32 v73, 9, v70"); A(f"v_add_u32 v73, {KRING}, v73"); A("v_xor_b32 v74, v67, v70")
    for j in range(4):
        A(f"v_xor_b32 v75, {4*j}, v74"); A(f"v_lshl_add_u32 v{vKB+j}, v75, 4, v73")
    A(f"v_lshlrev_b32 v73, 4, v64"); A(f"v_add_u32 v{vST}, s{sW28K}, v73")
    A("v_mul_u32_u24 v74, 896, v71"); A("v_lshlrev_b32 v75, 1, v67"); A("v_xor_b32 v75, v75, v72"); A("v_lshl_add_u32 v74, v75, 4, v74")
    for k in range(4):
        A(f"v_add_u32 v75, {k*(8*896-1024)}, v74"); A(f"v_accvgpr_write_b32 a{PARK+k}, v75")
    A("v_lshrrev_b32 v74, 2, v64"); A("v_lshlrev_b32 v74, 7, v74"); A("v_lshl_add_u32 v74, v69, 3, v74"); A("v_and_b32 v77, 3, v71")
    for nb in range(4):
        A(f"v_xor_b32 v75, {nb}, v77"); A(f"v_lshl_add_u32 v75, v75, 5, v74")
        A(f"v_add_u32 v78, {KRING}, v75"); A(f"v_accvgpr_write_b32 a{PARK+4+nb}, v78")
        A(f"v_add_u32 v78, {VRING}, v75"); A(f"v_accvgpr_write_b32 a{PARK+8+nb}, v78")
    A("v_min_u32 v74, 55, v64"); A("v_lshlrev_b32 v74, 7, v74"); A(f"v_accvgpr_write_b32 a{PARK+12}, v74")
    A(f"s_lshl_b32 s77, s71, 2"); A(f"s_add_u32 s77, s77, s{sWave}"); A(f"s_mul_i32 s77, s77, {56*128}")
    A("v_lshl_add_u32 v74, v65, 4, v70"); A("v_lshlrev_b32 v74, 4, v74"); A("v_and_b32 v75, 1, v67"); A("v_lshl_add_u32 v74, v75, 3, v74")
    A(f"s_add_u32 s74, s{sW4K}, {QSTAGE}")
    A(f"v_add_u32 v{vQW}, s74, v74")
    A(f"v_add_u32 v{vQR}, s74, v73")
    return L

def tail_code(cfg):
    L = []; A = L.append
    A("s_memrealtime s[62:63]")
    A("s_mul_i32 s74, s70, 1835008"); A(f"s_add_u32 s74, s74, {cfg.wsoff}"); srd(A, 4, 64, 74, 1835008)
    A("s_mov_b32 s74, 0"); srd(A, 8, 56, 74, 1835008); srd(A, 16, 58, 74, 256)
    A("s_mov_b32 s74, 0x2400000"); srd(A, 12, 64, 74, 8192)
    A("v_mbcnt_lo_u32_b32 v0, -1, 0"); A("v_mbcnt_hi_u32_b32 v0, -1, v0")
    A("v_lshlrev_b32 v1, 4, v0")
    A("v_and_b32 v6, 15, v0"); A("v_lshlrev_b32 v5, 3, v6")
    A("v_mul_u32_u24 v8, 1792, v6"); A("v_lshrrev_b32 v6, 4, v0"); A("v_lshl_add_u32 v8, v6, 4, v8")
    A("s_lshl_b32 s22, s70, 2")
    A(f"s_add_u32 s20, s22, s{sWave}"); A("s_lshl_b32 s20, s20, 4"); A("s_add_u32 s20, s20, s73"); A("s_lshl_b32 s20, s20, 3")
    A("s_lshr_b32 s21, s73, 2"); A("s_add_u32 s21, s21, s22"); A("s_lshl_b32 s21, s21, 7")
    A(f"s_add_u32 s60, s60, {2000 if not cfg.force_abandon else 0x7fffffff}"); A("s_addc_u32 s61, s61, 0")
    A("s_mov_b32 s54, s60"); A("s_add_u32 s55, s61, 1")
    A("s_mov_b32 s52, 0x3f80"); A("s_mov_b32 s53, 0x3f800000")
    A("v_mov_b32 v4, 1")
    A("s_waitcnt vmcnt(0) lgkmcnt(0)")
    if cfg.stamp: A("s_memrealtime s[96:97]")
    A("v_mov_b32 v2, s62"); A("v_mov_b32 v3, s63")
    A("s_mov_b64 exec, 1")
    A("buffer_store_dwordx2 v[2:3], off, s[12:15], s20 sc1")
    A("s_barrier")
    A(f"s_cmp_lg_u32 s{sWave}, 3")
    A("s_cbranch_scc1 L_noarr")
    A("buffer_atomic_add v4, off, s[16:19], s22 sc0 sc1")
    A("L_noarr:")
    A("s_mov_b64 exec, -1")
    A(f"s_mov_b32 s23, {cfg.ptime}")
    A("L_poll:")
    A("buffer_load_dwordx2 v[6:7], v5, s[12:15], s21 offen sc1")
    A("s_waitcnt vmcnt(0)")
    A("v_cmp_le_u64 vcc, s[60:61], v[6:7]")
    A("v_cmp_ge_u64 s[74:75], s[54:55], v[6:7]")
    A("s_and_b64 vcc, vcc, s[74:75]")
    A("s_cmp_eq_u64 vcc, exec")
    A("s_cbranch_scc1 L_go")
    A("s_sub_u32 s23, s23, 1")
    A("s_cmp_lg_u32 s23, 0")
    A("s_cbranch_scc1 L_poll")
    A("s_add_u32 s74, s73, 8"); A("s_lshl_b32 s74, 1, s74")
    A("v_mov_b32 v9, s74")
    A("s_mov_b64 exec, 1")
    A("buffer_atomic_or v9, off, s[16:19], s22 sc0 sc1")
    A("s_waitcnt vmcnt(0)")
    A("s_mov_b64 exec, -1")
    A("v_readfirstlane_b32 s74, v9")
    A("s_and_b32 s74, s74, 0xff")
    A("s_cmp_lg_u32 s74, 16")
    A("s_cbranch_scc1 L_fin")
    A("L_go:")
    if cfg.stamp: A("s_memrealtime s[24:25]")
    A("s_mov_b32 s50, s73"); A(f"s_mov_b32 s51, s{sWave}")
    A(f"s_call_b64 s[{sRet}:{sRet+1}], L_red")
    A("L_fin:")
    A(f"s_cmp_lg_u32 s{sWave}, 3")
    A("s_cbranch_scc1 L_done")
    A("s_waitcnt vmcnt(0)")
    A("v_readfirstlane_b32 s48, v4")
    A("s_and_b32 s74, s48, 0xff")
    A("s_cmp_lg_u32 s74, 15")
    A("s_cbranch_scc1 L_done")
    A("s_bfe_u32 s48, s48, 0x100008")
    A("L_redo:")
    A("s_cmp_eq_u32 s48, 0")
    A("s_cbranch_scc1 L_done")
    A("s_ff1_i32_b32 s50, s48")
    A("s_bitset0_b32 s48, s50")
    A("s_mov_b32 s51, 0")
    A("L_redo1:")
    A(f"s_call_b64 s[{sRet}:{sRet+1}], L_red")
    A("s_add_u32 s51, s51, 1")
    A("s_cmp_lt_u32 s51, 4")
    A("s_cbranch_scc1 L_redo1")
    A("s_branch L_redo")
    A("L_done:")
    return L

def red_code(cfg):
    L = []; A = L.append
    A("L_red:")
    A("s_lshr_b32 s74, s50, 2"); A("s_mul_i32 s44, s74, 28672")
    A("s_and_b32 s75, s50, 3"); A("s_lshl_b32 s75, s75, 10"); A("s_add_u32 s44, s44, s75")
    A("s_lshl_b32 s75, s51, 12"); A("s_add_u32 s44, s44, s75")
    A("s_cmp_eq_u32 s51, 3")
    A("s_cselect_b32 s46, 0x40000000, 16384"); A("s_cselect_b32 s47, 0x40000000, 512")
    A("v_add_u32 v10, s46, v1"); A("v_add_u32 v11, s47, v8")
    for st, (base, vo) in enumerate(((128, 1), (64, 10))):
        A("s_mov_b32 s45, s44")
        for h in range(16):
            A(f"buffer_load_dwordx4 v[{base+4*h}:{base+4*h+3}], v{vo}, s[4:7], s45 offen sc1")
            if h < 15: A("s_add_u32 s45, s45, 114688")
    A("s_lshl_b32 s45, s71, 3"); A("s_lshr_b32 s75, s50, 1"); A("s_add_u32 s45, s45, s75"); A(f"s_mul_i32 s45, s45, {16*1792}")
    A("s_mul_i32 s75, s68, 896"); A("s_add_u32 s45, s45, s75")
    A("s_lshl_b32 s75, s51, 7"); A("s_add_u32 s45, s45, s75")
    A("s_and_b32 s75, s50, 1"); A("s_lshl_b32 s75, s75, 6"); A("s_add_u32 s45, s45, s75")
    for st, (base, vo, acc) in enumerate(((128, 8, 16), (64, 11, 32))):
        for k in range(8): A(f"v_mov_b32 v{acc+k}, 0")
        for h in range(16):
            A(f"s_waitcnt vmcnt({(31 - h) if st == 0 else (16 - h)})")
            for k in range(4):
                A(f"v_dot2c_f32_bf16 v{acc+2*k}, s52, v{base+4*h+k}")
                A(f"v_dot2c_f32_bf16 v{acc+2*k+1}, s53, v{base+4*h+k}")
        A("s_nop 2")
        for k in range(4): A(f"v_cvt_pk_bf16_f32 v{acc+8+k}, v{acc+2*k}, v{acc+2*k+1}")
        A("s_nop 1")
        A(f"v_permlane32_swap_b32 v{acc+8}, v{acc+10}"); A(f"v_permlane32_swap_b32 v{acc+9}, v{acc+11}")
        A("s_nop 1")
        A(f"v_permlane16_swap_b32 v{acc+8}, v{acc+10}"); A(f"v_permlane16_swap_b32 v{acc+9}, v{acc+11}")
        A(f"buffer_store_dwordx4 v[{acc+8}:{acc+11}], v{vo}, s[8:11], s45 offen")
    A(f"s_setpc_b64 s[{sRet}:{sRet+1}]")
    return L

def rare_code(par, has_next):
    ins = [I("s_nop 9", "nop")]
    for qb in range(2):
        ins += rowmax_instrs(par, qb, vD, vF)
        ins.append(valu(f"v_max_f32 v{vD}, 0, v{vD}", rd=V(vD), wr=V(vD)))
        ins.append(valu(f"v_sub_f32 v{vF}, 0, v{vD}", rd=V(vD), wr=V(vF)))
        ins.append(trans(f"v_exp_f32 v{vF}, v{vF}", rd=V(vF), wr=V(vF)))
        regs = [NEGM + 4*qb + k for k in range(4)] + [sreg(par, kb, qb) + k for kb in range(2) for k in range(4)]
        if has_next: regs += [sreg(1 - par, kb, qb) + k for kb in range(2) for k in range(4)]
        for r in regs: ins.append(valu(f"v_sub_f32 v{r}, v{r}, v{vD}", rd=V(r)+V(vD), wr=V(r)))
        for r in [vL + qb] + [oreg(db, qb) + k for db in range(16) for k in range(4)]:
            ins.append(valu(f"v_mul_f32 v{r}, v{r}, v{vF}", rd=V(r)+V(vF), wr=V(r)))
    ins += sm_instrs(par)
    ins.append(I("s_nop 1", "nop"))
    ins.append(I(f"s_setpc_b64 s[{sRet}:{sRet+1}]", "salu"))
    segs, _ = hazard_pass([("rare", ins)])
    return [x.t for x in segs[0][1]]

def reduce_kernel(cfg):
    L = []; A = L.append
    A(".p2align 8")
    A("reduce_kernel:")
    A("s_cmp_ge_u32 s2, 448")
    A("s_cbranch_scc1 L_rexit")
    A("s_load_dwordx2 s[4:5], s[0:1], 96")
    A("s_load_dwordx2 s[6:7], s[0:1], 80")
    A("s_mul_hi_u32 s16, s2, 0x924924a")
    A("s_mul_i32 s17, s16, 28"); A("s_sub_u32 s17, s2, s17")
    A("s_mul_hi_u32 s18, s17, 0x24924925")
    A("s_mul_i32 s19, s18, 7"); A("s_sub_u32 s19, s17, s19")
    A("v_lshlrev_b32 v1, 4, v0")
    A("s_lshl_b32 s20, s17, 12")
    A("v_add_u32 v1, s20, v1")
    A("s_mul_i32 s21, s16, 1835008"); A(f"s_add_u32 s21, s21, {cfg.wsoff}")
    A("s_waitcnt lgkmcnt(0)")
    A("s_add_u32 s8, s4, s21"); A("s_addc_u32 s9, s5, 0"); A("s_and_b32 s9, s9, 0xffff")
    A("s_mov_b32 s10, 1835008"); A("s_mov_b32 s11, 0x20000")
    A("s_mov_b32 s12, s6"); A("s_and_b32 s13, s7, 0xffff"); A("s_mov_b32 s14, 1835008"); A("s_mov_b32 s15, 0x20000")
    A("s_mov_b32 s22, 0")
    for h in range(16):
        A(f"buffer_load_dwordx4 v[{16+4*h}:{19+4*h}], v1, s[8:11], s22 offen{cfg.rd_flags}")
        if h < 15: A("s_add_u32 s22, s22, 114688")
    A("v_and_b32 v2, 15, v0")
    A("v_lshrrev_b32 v3, 7, v0"); A("v_lshl_add_u32 v2, v3, 4, v2")
    A("s_and_b32 s23, s16, 7"); A("s_lshl_b32 s23, s23, 7"); A("s_lshl_b32 s24, s18, 5"); A("s_add_u32 s23, s23, s24")
    A("v_add_u32 v2, s23, v2")
    A("v_mul_u32_u24 v2, 1792, v2")
    A("v_bfe_u32 v3, v0, 4, 3")
    A("v_lshl_add_u32 v2, v3, 4, v2")
    A("s_lshr_b32 s23, s16, 3"); A("s_mul_i32 s23, s23, 896"); A("s_lshl_b32 s24, s19, 7"); A("s_add_u32 s23, s23, s24")
    for h in range(16):
        A(f"s_waitcnt vmcnt({15-h})")
        for k in range(4):
            src = 16 + 4*h + k
            if h == 0:
                A(f"v_lshlrev_b32 v{4+2*k}, 16, v{src}"); A(f"v_and_b32 v{5+2*k}, 0xffff0000, v{src}")
            else:
                A(f"v_lshlrev_b32 v12, 16, v{src}"); A(f"v_and_b32 v13, 0xffff0000, v{src}")
                A(f"v_add_f32 v{4+2*k}, v{4+2*k}, v12"); A(f"v_add_f32 v{5+2*k}, v{5+2*k}, v13")
    for k in range(4):
        A(f"v_cvt_pk_bf16_f32 v{12+k}, v{4+2*k}, v{5+2*k}")
    A("s_nop 1")
    A("v_permlane32_swap_b32 v12, v14"); A("v_permlane32_swap_b32 v13, v15")
    A("s_nop 1")
    A("v_permlane16_swap_b32 v12, v14"); A("v_permlane16_swap_b32 v13, v15")
    A("buffer_store_dwordx4 v[12:15], v2, s[12:15], s23 offen")
    A("L_rexit:")
    A("s_endpgm")
    return L

def generate(cfg):
    if cfg.fuse and "sc1" not in cfg.st_flags: cfg.st_flags += " sc1"
    B = build_bodies(cfg)
    for b in B:
        if b.name == "a1":
            ins = []
            for k in range(4): ins.append(valu(f"v_accvgpr_read_b32 v{vWD+k}, a{PARK+k}", wr=V(vWD+k)))
            for k in range(8): ins.append(valu(f"v_accvgpr_read_b32 v{vQA+k}, a{PARK+4+k}", wr=V(vQA+k)))
            ins.append(valu(f"v_accvgpr_read_b32 v{vXD}, a{PARK+12}", wr=V(vXD)))
            b.valu.append((ins, 0, 60))
    raw = lambda lines: [I(t, "raw") for t in lines]
    tc = [touch_code(cfg)]
    init = []
    if cfg.early:
        if cfg.tpos == 1:
            pre = g_stage(0, cfg) + tc + [raw(kd_code(cfg))] + [raw(setup_code2(cfg))] + init + g_stage(1, cfg)
        else:
            pre = g_stage(0, cfg) + g_stage(1, cfg) + tc + [raw(kd_code(cfg))] + [raw(setup_code2(cfg))] + init
        first = g_stage(2, cfg)
        B[3].dma = B[3].dma + [g_k(0, cfg)]
    else:
        pre = (tc if cfg.tpos == 0 else []) + g_stage(0, cfg) + (tc if cfg.tpos == 1 else []) + [raw(kd_code(cfg))] + g_stage(1, cfg) + [g_k(0, cfg)] + g_stage(2, cfg) + [raw(setup_code2(cfg))] + init
        first = []
    segs = schedule(B, cfg, pre, first)
    segs, nn = hazard_pass(segs)
    txt = {name: [x.t for x in lst] for name, lst in segs}
    names = [n for n, _ in segs]
    lo = None
    for n in range(0, 30):
        if all(txt[f"a{k}"] == txt[f"a{k+4}"] for k in range(n, n + 8)):
            lo = n; break
    assert lo is not None, "no periodic steady state"
    last = lo
    while last + 4 <= 63 and txt[f"a{last+4}"] == txt[f"a{last}"]: last += 1
    last += 3
    nit = (last - lo + 1) // 4
    lo = last + 1 - 4 * nit
    sys.stderr.write(f"loop bodies {lo}..{last} ({nit} iterations), nops inserted {nn}\n")
    L = []; A = L.append
    KN = "attn_kernel"
    if cfg.fuse == 2:
        KN = NAME + "_kernel"
        A("; @launch grid=(256,1,1) block=(256,1,1) lds=163840")
    else:
        A("; @launch kernel=attn_kernel grid=(256,1,1) block=(256,1,1) lds=163840")
    if not cfg.fuse: A("; @launch kernel=reduce_kernel grid=(448,1,1) block=(256,1,1) lds=0")
    A('.amdgcn_target "amdgcn-amd-amdhsa--gfx950"')
    A(".text"); A(f".globl {KN}"); A(".p2align 8"); A(f".type {KN},@function"); A(f"{KN}:")
    L += setup_code(cfg)
    tramps = []; syncs = []
    def emit_seg(name):
        A(f"; ---- {name}")
        for t in txt[name]:
            if t.startswith("RARE"):
                _, par, nx = t.split()
                lab = f"L_t_{name.replace('-','m')}"
                A(f"s_cbranch_vccnz {lab}"); A(f"{lab}_back:")
                tramps.append((lab, par, nx))
            elif t == "SYNC":
                lab = f"L_s_{name.replace('-','m')}"
                A(f"s_cmp_gt_i32 s{sDif}, 0"); A(f"s_cbranch_scc1 {lab}"); A(f"{lab}_back:")
                syncs.append(lab)
            else: A(t)
    for name in names:
        if name.startswith("a"):
            n = int(name[1:])
            if lo <= n <= last:
                if n == lo:
                    if cfg.lstamp:
                        A("v_mbcnt_lo_u32_b32 v66, -1, 0"); A("v_mbcnt_hi_u32_b32 v66, -1, v66"); A("v_mov_b32 v67, 0")
                        A("s_memrealtime s[98:99]"); A("s_waitcnt lgkmcnt(0)")
                    A(f"s_mov_b32 s{sCnt}, {nit}"); A(".p2align 3"); A("L_loop:")
                    if cfg.lstamp:
                        A("v_mov_b32 v68, s98"); A(f"v_cmp_eq_u32 vcc, s{sCnt}, v66"); A("s_memrealtime s[98:99]"); A("s_nop 0")
                        A("v_cndmask_b32 v67, v67, v68, vcc"); A("v_accvgpr_write_b32 a250, v67")
                if n < lo + 4:
                    def keep(t):
                        if "d" in cfg.strip and t.startswith("buffer_load"): return False
                        if "r" in cfg.strip and t.startswith("ds_read"): return False
                        if "s" in cfg.strip and t.split()[0] in ("v_exp_f32", "v_add_f32", "v_cvt_pk_bf16_f32"): return False
                        return True
                    txt[name] = [t for t in txt[name] if keep(t)]
                    if cfg.pace:
                        nt = []
                        for t in txt[name]:
                            nt.append(t)
                            if t == "s_barrier": nt += ["s_nop 15"] * cfg.pace
                        txt[name] = nt
                    if n == lo + 3:
                        txt[name].insert(1, f"s_sub_u32 s{sCnt}, s{sCnt}, 1")
                    emit_seg(name)
                    if n == lo + 3:
                        A(f"s_cmp_lg_u32 s{sCnt}, 0"); A("s_cbranch_scc1 L_loop")
                continue
        if cfg.hstamp == 1 and name == "qp0": A("s_memtime s[86:87]")
        if cfg.stamp and not cfg.hstamp and name in ("qp0", "a-2", "op0"):
            i = ["qp0", "a-2", "op0"].index(name)
            A(f"s_memtime s[{82+2*i}:{83+2*i}]")
            if name == "a-2": A("s_memrealtime s[100:101]")
            if name == "op0": A("s_memrealtime s[42:43]")
        emit_seg(name)
    if cfg.fuse:
        if cfg.stamp: A("s_memrealtime s[98:99]")
        L += tail_code(cfg)
    if cfg.stamp:
        A("s_waitcnt vmcnt(0)")
        A("s_memtime s[88:89]"); A("s_memrealtime s[90:91]")
        A("s_getreg_b32 s92, hwreg(HW_REG_XCC_ID)"); A("s_getreg_b32 s93, hwreg(HW_REG_HW_ID)")
        A("s_waitcnt lgkmcnt(0)")
        A("s_add_u32 s76, s64, 0x4000000"); A("s_addc_u32 s77, s65, 0"); A("s_and_b32 s77, s77, 0xffff")
        A("s_mov_b32 s78, 0x100000"); A("s_mov_b32 s79, 0x20000")
        A("s_lshl_b32 s74, s2, 2"); A(f"s_add_u32 s74, s74, s{sWave}"); A("s_lshl_b32 s74, s74, 6")
        A("v_mov_b32 v40, 0")
        if cfg.lstamp:
            A("v_mbcnt_lo_u32_b32 v66, -1, 0"); A("v_mbcnt_hi_u32_b32 v66, -1, v66"); A("v_lshlrev_b32 v66, 2, v66")
            A("s_lshl_b32 s75, s74, 2"); A("s_add_u32 s75, s75, 0x10000")
            A("buffer_store_dword a250, v66, s[76:79], s75 offen")
        for i, r in enumerate([80, 82, 84, 86, 88, 90, 92, 93, 94, 100, 42, 3, 98, 96, 24, 23]):
            A(f"v_mov_b32 v41, s{r}")
            A(f"buffer_store_dword v41, v40, s[76:79], s74 offen offset:{4*i}")
    A("L_exit:"); A("s_endpgm")
    if cfg.fuse: L += red_code(cfg)
    A("L_code_end:")
    A(f".set CODE_BYTES, L_code_end - {KN} - 1024")
    for lab, par, nx in tramps:
        A(f"{lab}:"); A(f"s_call_b64 s[{sRet}:{sRet+1}], L_rare_{par}_{nx}"); A(f"s_branch {lab}_back")
    for lab in syncs:
        A(f"{lab}:"); A(f"s_call_b64 s[{sRet}:{sRet+1}], L_spin"); A(f"s_branch {lab}_back")
    if syncs:
        A("L_spin:")
        if cfg.stamp: A("s_add_u32 s3, s3, 0x10000")
        A("s_mov_b32 s74, 32")
        A("L_spin1:")
        if cfg.stamp: A("s_add_u32 s3, s3, 1")
        A(f"s_load_dword s{sDif}, s[{sSy}:{sSy+1}], 0x0 glc")
        A("s_waitcnt lgkmcnt(0)")
        A(f"s_mul_i32 s{sDif}, s{sDif}, s{sSign}")
        A(f"s_cmp_le_i32 s{sDif}, 0")
        A("s_cbranch_scc1 L_spin2")
        A("s_sub_u32 s74, s74, 1")
        A("s_cmp_lg_u32 s74, 0")
        A("s_cbranch_scc1 L_spin1")
        A(f"s_mov_b32 s{sSign}, 0")
        A("L_spin2:")
        A(f"s_mov_b32 s{sOld}, 0"); A(f"s_mov_b32 s{sOld+1}, 0")
        A(f"s_setpc_b64 s[{sRet}:{sRet+1}]")
    for par, nx in sorted({(p, n) for _, p, n in tramps}):
        A(f"L_rare_{par}_{nx}:")
        L += rare_code(int(par), int(nx))
    if not cfg.fuse: L += reduce_kernel(cfg)
    A('.section .rodata,"a"')
    for kn, nv, acc in ((KN, 512, 256), ("reduce_kernel", 80, 80))[:1 if cfg.fuse else 2]:
        A(".p2align 6"); A(f".amdhsa_kernel {kn}")
        A(f"  .amdhsa_next_free_vgpr {nv}"); A("  .amdhsa_next_free_sgpr 102"); A(f"  .amdhsa_accum_offset {acc}")
        A("  .amdhsa_group_segment_fixed_size 0"); A("  .amdhsa_kernarg_size 104"); A("  .amdhsa_user_sgpr_count 2")
        A("  .amdhsa_user_sgpr_kernarg_segment_ptr 1"); A("  .amdhsa_system_sgpr_workgroup_id_x 1")
        A(".end_amdhsa_kernel")
    return "\n".join(L) + "\n"

if __name__ == "__main__":
    ap = argparse.ArgumentParser()
    ap.add_argument("-o", default=f"cdna_kernels/{NAME}.s")
    ap.add_argument("opts", nargs="*")
    a = ap.parse_args()
    cfg = Cfg()
    for o in a.opts:
        k, v = o.split("=", 1)
        old = getattr(cfg, k)
        if isinstance(old, bool): v = v not in ("0", "false", "False")
        elif isinstance(old, int): v = int(v)
        elif isinstance(old, float): v = float(v)
        elif k.endswith("_flags"): v = " " + v.replace("+", " ") if v else ""
        setattr(cfg, k, v)
    open(a.o, "w").write(generate(cfg))
```

```python
import sys, math, argparse, struct

NAME = "concat_heads__gqa_block_cached__gqa_block_cached__near_ridge"
def f32bits(x): return struct.unpack("<I", struct.pack("<f", x))[0]

class Cfg:
    LEAD = 16
    DEAD = 8
    NB = 16
    SAFE = 6
    DMASPAN = 40
    H = 3.0
    TTPEN = 3.0
    dma_flags = " nt"
    w_flags = " nt"
    v_flags = "same"
    o_flags = ""
    otouch = "a59"
    st_flags = ""
    rd_flags = ""
    stamp = False
    strip = ""
    touch = "co"
    tpos = 1
    t_flags = " nt"
    hstamp = 0
    npre = 3
    psync = 1
    nospin = 0
    lstamp = 0
    QCW = 12
    rot = 0
    rotmask = 1
    PJ0 = 4
    LOFF = 0
    LSKIP = 0
    kvlate = 1
    FLA = 5
    wbl2 = 0
    WST = 28672
    SST = 114688
    spare = 0
    QSPAN = 40
    order = "D0,S,D1|D2|D3|D4|D5|D6,K0"
    spos = 1
    bstamp = 0
    fuse = 1
    ptime = 4000
    force_abandon = 0
    pace = 0
    sync0 = "qp4"
    sync1 = "a2"
    early = 1
    wsoff = 0

def V(lo, n=1): return [("v", lo + i) for i in range(n)]
def Areg(lo, n=1): return [("a", lo + i) for i in range(n)]
def vr(lo, n=1): return f"v{lo}" if n == 1 else f"v[{lo}:{lo+n-1}]"
def ar(lo, n=1): return f"a{lo}" if n == 1 else f"a[{lo}:{lo+n-1}]"

O0 = 128
def oreg(db16, qb): return O0 + (db16 * 2 + qb) * 4
S_ = [96, 112]
def sreg(par, kb, qb): return S_[par] + (kb * 2 + qb) * 4
NEGM = 88
P_ = [72, 80]
QF = 0
FR = 64
XF = 192
PARK = 224
vKB = 0; vVB = 4; vKD = 12; vVD = 16; vWD = 20; vXD = 24; vQA = 28; vXA = 36
vL = 38; vPS = 40; vINV = 42; vST = 44; vD = 45; vF = 46; vQW = 47
vT = 48
vE = 56
vQR = 64
STG = 192
sX, sWQ, sK, sV, sWO, sPT = 4, 8, 12, 16, 20, 24
sW4K, sKoff, sVoff, sCnt, sTmp, sW28K, sW64K, sWave, sScale = 28, 29, 30, 31, 32, 33, 34, 35, 36
sRet = 40
sTmp2 = 76
sSign, sOld, sDif = 37, 38, 75
sSy = 78

KRING = 98304
VRING = 32768
def kslot(m): return ((m + 3) % 4) * 16384
def vslot(m): return ((m + 1) % 4) * 16384
def qregion(s): return [0, 98304, 49152][s % 3]
QSTAGE = VRING + vslot(2)
MF = "v_mfma_f32_16x16x32_bf16"

class I:
    __slots__ = ("t", "k", "rd", "wr", "tag", "c", "ideal", "early", "dead", "pre", "post")
    def __init__(s, t, k, rd=(), wr=(), tag=None, c=()):
        s.t, s.k, s.rd, s.wr, s.tag, s.c = t, k, list(rd), list(wr), tag, list(c)
        s.ideal = s.early = s.dead = None
        s.pre = []; s.post = []
def valu(t, rd=(), wr=()): return I(t, "valu", rd, wr)
def trans(t, rd=(), wr=()): return I(t, "trans", rd, wr)
def perm(t, rd=(), wr=()): return I(t, "perm", rd, wr)
def salu(t, wr=()): return I(t, "salu", (), wr)
def slots(x): return 2 if x.k in ("trans", "dma", "store", "perm") else 1

class Body:
    def __init__(s, name):
        s.name = name
        s.mf = []; s.reads = []; s.need = []; s.dma = []; s.valu = []; s.after_reads = []; s.tail = []; s.fronts = []; s.post_bar = []

def dma_group(srd, voffs, pre, post, soff, m0val, tag, flags=""):
    g = []
    for k in range(4):
        off = f" offset:{k*1024}" if k else ""
        g.append(I(f"buffer_load_dwordx4 v{voffs[k]}, s[{srd}:{srd+3}], s{soff} offen{off}{flags} lds",
                   "dma", rd=[("v", voffs[k]), ("m0", 0)], tag=tag))
    g[0].pre = [salu(f"s_add_u32 m0, s{m0val[0]}, {m0val[1]}", wr=[("m0", 0)])] + list(pre)
    return g
def g_k(m, cfg):
    return dma_group(sK, [vKD + k for k in range(4)], [salu(f"s_add_u32 s{sKoff}, s{sKoff}, 16384")], [],
                     sKoff, (sW4K, KRING + kslot(m)), ("K", m), cfg.dma_flags)
def g_v(m, cfg):
    return dma_group(sV, [vVD + k for k in range(4)], [salu(f"s_add_u32 s{sVoff}, s{sVoff}, 16384")], [],
                     sVoff, (sW4K, VRING + vslot(m)), ("V", m), cfg.dma_flags if cfg.v_flags == "same" else cfg.v_flags)
def wo_place(j, half, cfg):
    if cfg.spare:
        if j == 4: return half * 16384, vXD, half * 16384
        m = 64 + (j if j < 4 else j - 5)
    else:
        m = 64 + j
    if half == 0: return KRING + kslot(m), vQA, kslot(m)
    return VRING + vslot(m), vQA + 4, vslot(m)
def g_wo(j, half, cfg):
    so = sTmp2
    return dma_group(sWO, [vWD + k for k in range(4)], [salu(f"s_add_u32 s{so}, s{sW28K}, {half*128*896 + 128*j}")], [],
                     so, (sW4K, wo_place(j, half, cfg)[0]), ("W", j, half), cfg.o_flags)
def g_stage(s, cfg):
    rb = qregion(s)
    if cfg.rot:
        gs = [dma_group(sX, [vXD + k for k in range(4)], [salu(f"s_add_u32 s{sTmp}, s{sW28K}, s90"), salu("s_lshl_b32 s91, s90, 12")], [],
                        sTmp, (sW4K, rb + 32768), ("Q", s), cfg.w_flags)]
        gs.append(dma_group(sWQ, [vWD + k for k in range(4)], [salu(f"s_add_u32 s{sTmp}, s{sW64K}, s91"), salu("s_add_u32 s90, s90, 128")], [],
                            sTmp, (sW4K, rb), ("Q", s), cfg.w_flags))
        gs.append(dma_group(sWQ, [vWD + k for k in range(4)], [salu(f"s_add_u32 s{sTmp}, s{sTmp}, {32*8192}"), salu("s_cmp_eq_u32 s90, 896"), salu("s_cselect_b32 s90, 0, s90")], [],
                            sTmp, (sW4K, rb + 16384), ("Q", s), cfg.w_flags))
        return gs
    gs = [dma_group(sX, [vXD + k for k in range(4)], [salu(f"s_add_u32 s{sTmp}, s{sW28K}, {128*s}")], [],
                    sTmp, (sW4K, rb + 32768), ("Q", s), cfg.w_flags)]
    for kk in range(2):
        gs.append(dma_group(sWQ, [vWD + k for k in range(4)], [salu(f"s_add_u32 s{sTmp}, s{sW64K}, {(64*s + 32*kk)*8192}")], [],
                            sTmp, (sW4K, rb + kk * 16384), ("Q", s), cfg.w_flags))
    return gs

def sm_instrs(n, fix=False):
    par = n % 2
    out = []; pend = []
    k = 0
    for qb in range(2):
        for kb in range(2):
            for hp in range(2):
                s0 = sreg(par, kb, qb) + 2 * hp
                t0 = vT + (2 * k) % 8; t1 = t0 + 1
                ps = vPS + qb
                if fix:
                    out.append(valu(f"v_add_f32 v{s0}, v{NEGM+4*qb}, v{s0}", rd=V(s0)+V(NEGM+4*qb), wr=V(s0)))
                    out.append(valu(f"v_add_f32 v{s0+1}, v{NEGM+4*qb}, v{s0+1}", rd=V(s0+1)+V(NEGM+4*qb), wr=V(s0+1)))
                out.append(trans(f"v_exp_f32 v{t0}, v{s0}", rd=V(s0), wr=V(t0)))
                if pend: out.append(pend.pop(0))
                out.append(trans(f"v_exp_f32 v{t1}, v{s0+1}", rd=V(s0+1), wr=V(t1)))
                out += pend; pend = []
                if kb == 0 and hp == 0:
                    pend.append(valu(f"v_add_f32 v{ps}, v{t0}, v{t1}", rd=V(t0, 2), wr=V(ps)))
                else:
                    pend.append(valu(f"v_add_f32 v{ps}, v{ps}, v{t0}", rd=V(t0)+V(ps), wr=V(ps)))
                    pend.append(valu(f"v_add_f32 v{ps}, v{ps}, v{t1}", rd=V(t1)+V(ps), wr=V(ps)))
                p = P_[par] + 4 * qb + 2 * kb + hp
                pend.append(valu(f"v_cvt_pk_bf16_f32 v{p}, v{t0}, v{t1}", rd=V(t0, 2), wr=V(p)))
                k += 1
    out += pend
    return out

def xlane(op, r, tmp):
    o = []
    for sw in ("v_permlane32_swap_b32", "v_permlane16_swap_b32"):
        o.append(valu(f"v_mov_b32 v{tmp}, v{r}", rd=V(r), wr=V(tmp)))
        o.append(perm(f"{sw} v{r}, v{tmp}", rd=V(r)+V(tmp), wr=V(r)+V(tmp)))
        o.append(valu(f"{op} v{r}, v{r}, v{tmp}", rd=V(r)+V(tmp), wr=V(r)))
    return o

def rowmax_instrs(par, qb, d, tmp):
    a = sreg(par, 0, qb); b = sreg(par, 1, qb)
    o = [valu(f"v_max3_f32 v{d}, v{a}, v{a+1}, v{a+2}", rd=V(a, 3), wr=V(d)),
         valu(f"v_max3_f32 v{d}, v{d}, v{a+3}, v{b}", rd=V(a+3)+V(b)+V(d), wr=V(d)),
         valu(f"v_max3_f32 v{d}, v{d}, v{b+1}, v{b+2}", rd=V(b+1, 2)+V(d), wr=V(d)),
         valu(f"v_max_f32 v{d}, v{d}, v{b+3}", rd=V(b+3)+V(d), wr=V(d))]
    return o + xlane("v_max_f32", d, tmp)

def zipl(a, b):
    o = []
    for i in range(max(len(a), len(b))):
        if i < len(a): o.append(a[i])
        if i < len(b): o.append(b[i])
    return o

def ob_reg(t, qb):
    base = [S_[0], S_[0] + 8, S_[1], S_[1] + 8, NEGM, 64, P_[0], P_[1]][t]
    return base + 4 * qb

def build_bodies(cfg):
    B = []
    for s in range(7):
        b = Body(f"qp{s}")
        order = [(kt, be) for kt in range(2) for be in range(16)] if s < 6 else [(kt, be) for be in range(16) for kt in range(2)]
        xdone = set()
        def xf(kt, qb): return XF + ((s % 2) * 4 + kt * 2 + qb) * 4
        xpend = []
        def xread(kt):
            for qb in range(2):
                xpend.append((("X", s, kt, qb), [("ds_read_b128", vXA + kt, qb * 2048, 0, 4)], xf(kt, qb)))
        if s == 6:
            xread(0); xread(1); xdone = {0, 1}
            b.reads += xpend; xpend = []
        for idx, (kt, be) in enumerate(order):
            if kt not in xdone:
                xread(kt); xdone.add(kt)
                b.reads += xpend; xpend = []
            key = ("WQ", s, kt, be)
            b.reads.append((key, [("ds_read_b64_tr_b16", vQA + be % 8, (32*kt + 4*jj) * 512 + (be // 8) * 256, 2*jj, 2) for jj in range(2)], None))
            for qb in range(2):
                d = oreg(be, qb)
                first = (s == 0 and kt == 0)
                b.mf.append((d, key, ar(xf(kt, qb), 4), Areg(xf(kt, qb), 4), "0" if first else vr(d, 4), [] if first else V(d, 4), [("X", s, kt, qb)]))
        b.need = [("Q", s)]
        if s < 6:
            delta = qregion(s + 1) - qregion(s)
            for r in list(range(vQA, vQA + 8)) + list(range(vXA, vXA + 2)):
                b.after_reads.append(valu(f"v_add_u32 v{r}, {delta & 0xffffffff}, v{r}", rd=V(r), wr=V(r)))
        if s <= 3: b.dma = g_stage(s + 3, cfg)
        elif cfg.kvlate == 1:
            if s == 4: b.dma = [g_k(1, cfg), g_k(2, cfg)]
            elif s == 5: b.dma = [g_v(0, cfg), g_k(3, cfg)]
            else: b.dma = [g_v(1, cfg)]
        elif s == 4: b.dma = [g_k(1, cfg), g_k(2, cfg), g_k(3, cfg)]
        elif s == 5: b.dma = [g_v(0, cfg), g_v(1, cfg), g_v(2, cfg)]
        else: b.dma = [g_v(3, cfg)]
        B.append(b)
    b = B[6]
    for t in range(8):
        per = []
        for qb in range(2):
            ins = []
            e = (vE if t % 2 == 0 else vT) + 4 * qb
            for the in range(2):
                d = oreg(2 * t + the, qb)
                for k in range(4):
                    ins.append(valu(f"v_mul_f32 v{d+k}, s{sScale}, v{d+k}", rd=V(d+k), wr=V(d+k)))
                for hp in range(2):
                    ins.append(valu(f"v_cvt_pk_bf16_f32 v{e+2*the+hp}, v{d+2*hp}, v{d+2*hp+1}", rd=V(d+2*hp, 2), wr=V(e+2*the+hp)))
            for sw in ("v_permlane32_swap_b32", "v_permlane16_swap_b32"):
                for hp in range(2):
                    ins.append(perm(f"{sw} v{e+hp}, v{e+2+hp}", rd=V(e+hp)+V(e+2+hp), wr=V(e+hp)+V(e+2+hp)))
            q = QF + (t * 2 + qb) * 4
            for k in range(4):
                ins.append(valu(f"v_accvgpr_write_b32 a{q+k}, v{e+k}", rd=V(e+k), wr=Areg(q+k)))
            per.append(ins)
        g0 = 8 * t + 7 + 4
        g1 = max(g0, min(g0 + cfg.QCW, 64 + 4 * t - 2))
        b.valu.append((zipl(per[0], per[1]), g0, g1))
    for n in range(-2, 64):
        b = Body(f"a{n}")
        qk = []; pv = []
        if n + 2 <= 63:
            m = n + 2
            order = [(kb, t) for kb in range(2) for t in range(8)] if m > 0 else [(kb, t) for t in range(8) for kb in range(2)]
            for kb, t in order:
                key = ("K", m, kb, t)
                rd = (key, [("ds_read_b128", vKB + t % 4, kslot(m) + kb * 8192 + (t // 4) * 256, 0, 4)], None)
                mfs = []
                for qb in range(2):
                    S = sreg(m % 2, kb, qb)
                    if t == 0: c = ("0", []) if m < 2 else (vr(NEGM + 4*qb, 4), V(NEGM + 4*qb, 4))
                    else: c = (vr(S, 4), V(S, 4))
                    q = QF + (t * 2 + qb) * 4
                    mfs.append((S, key, ar(q, 4), Areg(q, 4), c[0], c[1], []))
                qk.append((rd, mfs))
            b.need.append(("K", m))
        if n >= 0:
            for db in range(16):
                key = ("V", n, db)
                rd = (key, [("ds_read_b64_tr_b16", vVB + db % 8, vslot(n) + jj * 8192 + (db // 8) * 256, 2*jj, 2) for jj in range(2)], None)
                mfs = []
                for qb in range(2):
                    d = oreg(db, qb); P = P_[n % 2] + 4 * qb
                    mfs.append((d, key, vr(P, 4), V(P, 4), "0" if n == 0 else vr(d, 4), [] if n == 0 else V(d, 4), []))
                pv.append((rd, mfs))
            b.need.append(("V", n))
        for rd, mfs in zipl(qk, pv):
            b.reads.append(rd); b.mf += mfs
        G = len(b.mf)
        if n == -1:
            ins = zipl(rowmax_instrs(0, 0, vD, vF), rowmax_instrs(0, 1, vINV, vINV + 1))
            for qb, d in ((0, vD), (1, vINV)):
                for k in range(4):
                    ins.append(valu(f"v_sub_f32 v{NEGM+4*qb+k}, 0, v{d}", rd=V(d), wr=V(NEGM+4*qb+k)))
            ins += sm_instrs(0, fix=True)
            b.valu.append((ins, 3, G - 1))
        elif 0 <= n <= 62:
            ins = []
            for qb in range(2):
                if n == 0: ins.append(valu(f"v_mov_b32 v{vL+qb}, v{vPS+qb}", rd=V(vPS+qb), wr=V(vL+qb)))
                else: ins.append(valu(f"v_add_f32 v{vL+qb}, v{vL+qb}, v{vPS+qb}", rd=V(vPS+qb)+V(vL+qb), wr=V(vL+qb)))
            ins += sm_instrs(n + 1, fix=(n == 0))
            ins.append(valu(f"v_max_f32 v{vD}, v{vPS}, v{vPS+1}", rd=V(vPS, 2), wr=V(vD)))
            ins.append(valu(f"v_cmp_nge_f32 vcc, 0x46800000, v{vD}", rd=V(vD), wr=[("vcc", 0)]))
            b.valu.append((ins, 3 if n == 0 else 0, G - 2))
            b.tail.append(I(f"RARE {(n+1)%2} {1 if n + 2 <= 63 else 0}", "rare"))
        elif n == 63:
            ins = []
            for qb in range(2):
                ins.append(valu(f"v_add_f32 v{vL+qb}, v{vL+qb}, v{vPS+qb}", rd=V(vPS+qb)+V(vL+qb), wr=V(vL+qb)))
            ins += zipl(xlane("v_add_f32", vL, vD), xlane("v_add_f32", vL + 1, vF))
            for qb in range(2):
                ins.append(trans(f"v_rcp_f32 v{vINV+qb}, v{vL+qb}", rd=V(vL+qb), wr=V(vINV+qb)))
            b.valu.append((ins, 40, 63))
            for t in range(8):
                ins = []
                for qb in range(2):
                    o = ob_reg(t, qb)
                    for the in range(2):
                        d = oreg(2 * t + the, qb)
                        for hp in range(2):
                            ins.append(valu(f"v_cvt_pk_bf16_f32 v{o+2*the+hp}, v{d+2*hp}, v{d+2*hp+1}", rd=V(d+2*hp, 2), wr=V(o+2*the+hp)))
                g0 = 4 * t + 3 + 4
                b.valu.append((ins, g0, g0 + 5))
        if n + 2 <= 63:
            m = n + 6
            b.dma.append(g_k(m, cfg) if m <= 63 else g_wo(m - 64, 0, cfg))
        if cfg.kvlate == 1 and n < 0: b.dma.append(g_v(n + 4, cfg))
        if n >= 0:
            m = n + 4
            b.dma.append(g_v(m, cfg) if m <= 63 else g_wo(m - 64, 1, cfg))
        if cfg.spare and n in (62, 63): b.dma.append(g_wo(4, n - 62, cfg))
        B.append(b)
    def accreg(j, nb, qb): return O0 + 32 * (j % 2) + (nb * 2 + qb) * 4
    def drain(j, t2):
        ins = []
        for qb in range(2):
            q = qb * 2 + t2
            st = STG + 4 * q
            for the in range(2):
                a = accreg(j, 2 * t2 + the, qb)
                for k in range(4):
                    ins.append(valu(f"v_mul_f32 v{a+k}, v{vINV+qb}, v{a+k}", rd=V(a+k)+V(vINV+qb), wr=V(a+k)))
                for hp in range(2):
                    ins.append(valu(f"v_cvt_pk_bf16_f32 v{st+2*the+hp}, v{a+2*hp}, v{a+2*hp+1}", rd=V(a+2*hp, 2), wr=V(st+2*the+hp)))
            off = f" offset:{q*1024}" if q else ""
            x = I(f"buffer_store_dwordx4 v[{st}:{st+3}], v{vST}, s[{sPT}:{sPT+3}], s{sTmp} offen{off}{cfg.st_flags}", "store",
                  rd=V(st, 4)+V(vST), tag=("ST", j))
            if q == 0: x.pre = [salu(f"s_mov_b32 s{sTmp}, {4096*j}")]
            ins.append(x)
        return ins
    for j in range(7):
        b = Body(f"op{j}")
        for t2 in range(2):
            for t in range(8):
                for nb in (2 * t2, 2 * t2 + 1):
                    key = ("WO", j, t, nb)
                    _, base, slot = wo_place(j, t // 4, cfg)
                    base += nb
                    b.reads.append((key, [("ds_read_b64_tr_b16", base, slot + (32*(t % 4) + 16*jj) * 128, 2*jj, 2) for jj in range(2)], None))
                    for qb in range(2):
                        d = accreg(j, nb, qb); o = ob_reg(t, qb)
                        b.mf.append((d, key, vr(o, 4), V(o, 4), "0" if t == 0 else vr(d, 4), [] if t == 0 else V(d, 4), []))
        b.need = [("W", j, 0), ("W", j, 1)]
        if j >= 1: b.valu.append((drain(j - 1, 1), 3, 33))
        b.valu.append((drain(j, 0), 35, 65 if j < 6 else 62))
        nx = j + (5 if cfg.spare else 4)
        if nx <= 6: b.dma = [g_wo(nx, 0, cfg), g_wo(nx, 1, cfg)]
        if j == 6: b.tail += drain(6, 1)
        if cfg.fuse:
            if j == 0: b.fronts = tail_prep_salu(cfg)
            if j == 1: b.valu.append((tail_prep_valu(cfg), 36, 60))
            if j == cfg.FLA + 1: b.need = b.need + [("ST", 3)]
            if j == cfg.FLA: b.post_bar = [I("buffer_store_dwordx2 v[2:3], v12, s[12:15], 0 offen sc1", "store", rd=V(2, 2)+V(12), tag=("FL", 0))]
        B.append(b)
    return B

def schedule(B, cfg, pre_dma, first):
    starts = []; M = 0
    for b in B:
        starts.append(M); M += len(b.mf)
    front = {g: [] for g in range(-1, M)}
    fill = {g: [] for g in range(-1, M)}
    bp = [starts[i] + len(B[i].mf) - cfg.LEAD - 1 for i in range(len(B))]
    fragreg = {}; first_use = {}; last_use = {}
    idx = 0
    for i, b in enumerate(B):
        for g, mf in enumerate(b.mf):
            if mf[1] not in fragreg:
                fragreg[mf[1]] = FR + 4 * (idx % cfg.NB); idx += 1
            for k in [mf[1]] + mf[6]:
                first_use.setdefault(k, starts[i] + g); last_use[k] = starts[i] + g
    front[-1].append(I("BAR", "bar", tag=B[0].need))
    for i, b in enumerate(B[:-1]):
        front[bp[i]].append(I("BAR", "bar", tag=B[i + 1].need))
    reserved = {}
    lazy = set()
    for i, b in enumerate(B):
        for k, chunk in enumerate(b.fronts): front[bp[i] - len(b.fronts) + k] += chunk
        if b.post_bar: reserved[bp[i] + 1] = b.post_bar
    if cfg.psync:
        names = [b.name for b in B]
        i0, i1 = names.index(cfg.sync0), names.index(cfg.sync1)
        lag = 1 if cfg.psync == 1 else 2
        for i in range(i0, i1 + 1):
            r = sOld + (i % lag)
            if i >= i0 + lag and not cfg.nospin:
                front[bp[i] + 1] += [salu(f"s_mul_i32 s{sDif}, s{r}, s{sSign}"), I("SYNC", "sync")]
            if i <= i1 - lag:
                front[bp[i] + 2] += [salu(f"s_mov_b32 s{r}, s{sSign}"), salu(f"s_atomic_add s{r}, s[{sSy}:{sSy+1}], 0x0 glc")]
                if lag == 2:
                    lazy.add(bp[i + 1])
                    reserved[bp[i + 1] - 3] = [I(f"ds_read_b32 a251, v{vKB}", "dsv", rd=V(vKB), tag=("DUMMY", i))]
    R = []; Mq = []; Vq = []
    holder = {}
    nd = sum(len(grp) for grp in first); k = 0
    for grp in first:
        for x in grp:
            x.early = 0; x.ideal = 1 + cfg.H + k * min(36, cfg.QSPAN) / nd; x.dead = bp[0] - 1 - (nd - 1 - k)
            Mq.append(x); k += 1
    for i, b in enumerate(B):
        w0 = bp[i - 1] if i > 0 else -cfg.LEAD - 1
        w1 = bp[i] - cfg.DEAD if i < len(B) - 1 else starts[i] + len(b.mf) - 12
        flat = []
        for key, parts, fixed in b.reads:
            reg = fixed if fixed is not None else fragreg[key]
            for (op, addr, off, sub, n) in parts:
                x = I(f"{op} {ar(reg+sub, n)}, v{addr} offset:{off}", "d" if n == 4 else "t", rd=V(addr), wr=Areg(reg+sub, n), tag=key)
                x.early = w0
                h = holder.get(reg)
                if h is not None and h != key: x.early = max(x.early, last_use[h])
                x.dead = min(w1, first_use[key] - 7)
                flat.append(x)
            holder[reg] = key
        n = len(flat)
        for k, x in enumerate(flat):
            x.ideal = w0 + k * (w1 - 2 - w0) / n
        flat[-1].post = b.after_reads
        R += flat
        nd = sum(len(grp) for grp in b.dma)
        if nd:
            nxt = bp[i + 1] if i + 1 < len(B) else M - 1
            span = min(cfg.QSPAN if b.name.startswith('qp') else cfg.DMASPAN, nxt - bp[i] - 4)
            k = 0
            for grp in b.dma:
                for x in grp:
                    x.early = bp[i] + 1; x.ideal = bp[i] + 1 + cfg.H + k * span / nd; x.dead = nxt - 1 - (nd - 1 - k)
                    Mq.append(x); k += 1
        for ins, g0, g1 in b.valu:
            g0 += starts[i]; g1 = min(g1 + starts[i], M - 1)
            tot = sum(slots(x) for x in ins); acc = 0
            for x in ins:
                x.early = g0; x.ideal = g0 + acc * max(0, (g1 - 1 - g0)) / tot; x.dead = g1
                acc += slots(x)
            Vq.append(ins)
    allv = []
    for li, ins in enumerate(Vq):
        for k, x in enumerate(ins): allv.append((x.ideal, li, k, x))
    allv.sort(key=lambda z: (z[0], z[1], z[2]))
    Vs = [z[3] for z in allv]
    for q in (R, Mq, Vs):
        for k in range(len(q) - 2, -1, -1): q[k].dead = min(q[k].dead, q[k + 1].dead)
    ri = mi = vi = 0
    while ri < len(R) and R[ri].ideal < 0:
        fill[-1].append(R[ri]); ri += 1
    last_dma = -10
    over = 0
    extra_v = []
    for g in range(M):
        def u(x):
            if x is None or x.early > g: return None
            v = g - x.ideal + cfg.H
            return v if v > 0 else None
        def at(q, i): return q[i] if i < len(q) else None
        vq = extra_v + Vs[vi:vi + 2]
        R0, R1, M0 = at(R, ri), at(R, ri + 1), at(Mq, mi)
        V0, V1 = at(vq, 0), at(vq, 1)
        if extra_v and R0 is not None and any(r in y.wr for y in extra_v for r in R0.rd): R0 = R1 = None
        if R0 is not None and R0.post: R1 = None
        if R1 is not None and extra_v and any(r in y.wr for y in extra_v for r in R1.rd): R1 = None
        ur0, ur1, um, uv0, uv1 = u(R0), u(R1), u(M0), u(V0), u(V1)
        plain = lambda x: x.k == "valu"
        opts = [(0.0, [])]
        if um is not None: opts.append((2 * um, [M0]))
        if uv0 is not None:
            if slots(V0) == 2: opts.append((2 * uv0, [V0]))
            else:
                opts.append((uv0, [V0]))
                if uv1 is not None and plain(V1): opts.append((uv0 + uv1, [V0, V1]))
                if ur0 is not None and plain(V0): opts.append((ur0 + uv0, [R0, V0]))
        if ur0 is not None:
            opts.append((ur0, [R0]))
            if ur1 is not None:
                opts.append((ur0 + ur1 - (cfg.TTPEN if R0.k == "t" else 0), [R0, R1]))
        sc, ch = max(opts, key=lambda z: z[0])
        ch = list(ch)
        if g in reserved:
            ch = []; fill[g] += reserved[g]
        def take(x):
            nonlocal ri, mi, vi, last_dma
            if x.k in ("d", "t"):
                ri += 1
                for y in x.post:
                    y.early = g + 1; y.ideal = g - 2; y.dead = g + cfg.DEAD - 1
                extra_v.extend(x.post)
            elif x.k == "dma": mi += 1
            elif extra_v and x is extra_v[0]: extra_v.pop(0)
            else: vi += 1
            if x.pre:
                if last_dma < g - 1 and not any(y.k == "bar" for y in front[g]) and g > 0: front[g - 1] += x.pre
                elif last_dma < g: front[g] += x.pre
                else: fill[g] += x.pre
            if x.k in ("dma", "store"): last_dma = g
            fill[g].append(x)
        for x in ch: take(x)
        while True:
            cand = None
            if extra_v and extra_v[0].dead <= g and extra_v[0].early <= g: cand = extra_v[0]
            elif ri < len(R) and R[ri].dead <= g and not extra_v: cand = R[ri]
            elif mi < len(Mq) and Mq[mi].dead <= g: cand = Mq[mi]
            elif vi < len(Vs) and Vs[vi].dead <= g: cand = Vs[vi]
            if cand is None: break
            assert cand.early <= g, (cand.t, cand.early, cand.dead, g)
            take(cand); over += slots(cand)
    assert ri == len(R) and mi == len(Mq) and vi == len(Vs), (ri, len(R), mi, len(Mq), vi, len(Vs))
    for i, b in enumerate(B):
        for x in b.tail:
            fill[starts[i] + len(b.mf) - 1] += x.pre + [x]
    sys.stderr.write(f"forced slots {over}\n")
    out = []
    lg = []; lg_done = 0; vm = []; lastread = {}
    cur = []
    def emit(lst, g):
        nonlocal lg_done
        for x in lst:
            if x.k == "bar":
                need = max(i2 for i2, tg in enumerate(vm) if tg in x.tag)
                for tg in x.tag: assert tg in vm, (tg, g)
                n = min(len(vm) - 1 - need, 63)
                if g in lazy: assert lg[-1][0][0] == "DUMMY", (lg[-1], g)
                cur.append(I(f"s_waitcnt vmcnt({n}) lgkmcnt({1 if g in lazy else 0})", "wait"))
                cur.append(I("s_barrier", "salu"))
                lg_done = len(lg)
            elif x.k in ("d", "t", "dsv"):
                lg.append((x.tag, g)); lastread[x.tag] = len(lg) - 1; cur.append(x)
            elif x.k in ("dma", "store"):
                vm.append(x.tag); cur.append(x)
            else: cur.append(x)
    nparts = {}
    for x in R: nparts[x.tag] = nparts.get(x.tag, 0) + 1
    def lwait(mf, g, strict):
        nonlocal lg_done
        keys = [mf[1]] + mf[6]
        for k in keys:
            if sum(1 for tg, _ in lg[-40:] if tg == k) < nparts.get(k, 1) and (k not in lastread or lastread[k] >= max(0, len(lg) - 40)):
                assert not strict, ("operand not read", k, g)
                return
        needi = max(lastread[k] for k in keys)
        if needi >= lg_done:
            n_need = len(lg) - 1 - needi
            n_safe = sum(1 for (_, gg) in lg[lg_done:] if gg > g - cfg.SAFE)
            n = min(n_need, max(n_safe, 2), 15)
            cur.append(I(f"s_waitcnt lgkmcnt({n})", "wait"))
            lg_done = len(lg) - n
    for grp in pre_dma:
        for x in grp:
            emit(x.pre, -1); emit([x], -1)
    emit(front[-1], -1); emit(fill[-1], -1)
    out.append(("pre", cur))
    allmf = [mf for b in B for mf in b.mf]
    for i, b in enumerate(B):
        cur = []
        for gi, mf in enumerate(b.mf):
            g = starts[i] + gi
            d, key, bt, brs, ct, crs, extra = mf
            lwait(mf, g, True)
            fr = fragreg[key]
            cur.append(I(f"{MF} {vr(d,4)}, {ar(fr,4)}, {bt}, {ct}", "mfma", rd=Areg(fr, 4) + brs, wr=V(d, 4), c=crs))
            emit(front[g], g)
            if g + 1 < M: lwait(allmf[g + 1], g, False)
            emit(fill[g], g)
        out.append((b.name, cur))
    return out

def hazard_pass(segs):
    pos = 0; res = []; lastw = {}; lastc = {}; lasts = {}; pend = {}; nn = 0
    for name, lst in segs:
        o = []
        for x in lst:
            need = 0
            def req(p, d):
                nonlocal need
                need = max(need, d - (pos - p - 1))
            isv = x.k in ("valu", "trans", "perm")
            for r in x.rd + x.c:
                if r in lastw:
                    p, k, full = lastw[r]
                    if k == "mfma":
                        if x.k == "mfma":
                            if r in x.rd: req(p, 8)
                            elif tuple(x.c) != full: req(p, 6)
                        else: req(p, 8)
                    elif k in ("valu", "trans", "perm"):
                        if x.k in ("mfma", "perm"): req(p, 2)
                        if k == "trans" and x.k != "trans": req(p, 1)
                    elif k == "salu" and r == ("m0", 0): req(p, 1)
            for r in x.wr:
                if r in lastw and lastw[r][1] == "mfma" and (x.k != "mfma" or tuple(x.c) != lastw[r][2]): req(lastw[r][0], 8)
                if isv and r in lastc: req(lastc[r], 3)
                if r in lasts: req(lasts[r], 2)
            if x.k in ("d", "t"):
                for r in x.wr:
                    assert r not in pend, ("fragment overwritten before use", name, x.t)
                    pend[r] = 1
            if x.k == "mfma":
                for r in x.rd: pend.pop(r, None)
            while need > 0:
                k = min(need, 16)
                o.append(I(f"s_nop {k-1}", "nop")); pos += k; need -= k; nn += 1
            o.append(x)
            for r in x.wr: lastw[r] = (pos, x.k, tuple(x.wr))
            if x.k == "mfma":
                for r in x.c: lastc[r] = pos
            if x.k == "store":
                for r in x.rd: lasts[r] = pos
            pos += 1
        res.append((name, o))
    return res, nn

def srd(A, d, p, offreg, size):
    A(f"s_add_u32 s{d}, s{p}, s{offreg}")
    A(f"s_addc_u32 s{d+1}, s{p+1}, 0")
    A(f"s_and_b32 s{d+1}, s{d+1}, 0xffff")
    A(f"s_mov_b32 s{d+2}, {size}")
    A(f"s_mov_b32 s{d+3}, 0x20000")

def setup_code(cfg):
    L = []; A = L.append
    A("s_load_dwordx16 s[44:59], s[0:1], 0")
    A("s_load_dwordx4 s[60:63], s[0:1], 64")
    A("s_load_dwordx2 s[64:65], s[0:1], 96")
    A("s_cmp_ge_u32 s2, 256")
    A("s_cbranch_scc1 L_exit")
    if cfg.stamp:
        A("s_memtime s[80:81]"); A("s_memrealtime s[94:95]")
    A("v_lshrrev_b32 v1, 6, v0")
    A("v_and_b32 v64, 63, v0")
    A(f"v_readfirstlane_b32 s{sWave}, v1")
    A("s_and_b32 s66, s2, 7"); A("s_lshr_b32 s67, s2, 3")
    A("s_lshr_b32 s68, s66, 2")
    A("s_and_b32 s69, s67, 1")
    A("s_lshr_b32 s70, s67, 1")
    A("s_and_b32 s71, s70, 7")
    A("s_lshr_b32 s70, s70, 3")
    A("s_and_b32 s72, s66, 3"); A("s_lshl_b32 s72, s72, 1"); A("s_add_u32 s72, s72, s70")
    A("s_lshl_b32 s73, s72, 1"); A("s_add_u32 s73, s73, s69")
    if cfg.rot:
        A("s_add_u32 s90, s71, s73"); A(f"s_and_b32 s90, s90, {cfg.rotmask}"); A(f"s_mul_i32 s90, s90, {128*cfg.rot}")
    A(f"s_lshl_b32 s{sW4K}, s{sWave}, 12")
    A(f"s_lshl_b32 s{sW64K}, s{sWave}, 16")
    A(f"s_mul_i32 s{sW28K}, s{sWave}, 28672")
    A(f"s_sub_u32 s{sKoff}, s{sW4K}, 16384")
    A(f"s_sub_u32 s{sVoff}, s{sW4K}, 16384")
    A(f"s_mov_b32 s{sScale}, {f32bits(math.log2(math.e) / 16.0):#x}")
    A(f"s_and_b32 s76, s{sWave}, 1"); A("s_lshl_b32 s76, s76, 3")
    A("v_lshrrev_b32 v65, 5, v64"); A("v_and_b32 v66, 31, v64")
    A("v_lshrrev_b32 v71, 3, v64"); A("v_and_b32 v72, 7, v64")
    A("v_mul_u32_u24 v73, 896, v71")
    A("v_lshrrev_b32 v74, 1, v71")
    A("v_xor_b32 v74, v74, v72")
    A("v_lshl_add_u32 v75, v74, 4, v73")
    A("v_xor_b32 v74, 4, v74")
    A("v_lshl_add_u32 v76, v74, 4, v73")
    for k in range(4):
        A(f"v_add_u32 v{vXD+k}, {k*(8*896-1024)}, v{75 + (k & 1)}")
    A("v_lshlrev_b32 v73, 1, v65"); A("v_xor_b32 v73, v73, v66"); A("v_xor_b32 v73, s76, v73")
    A("v_lshlrev_b32 v74, 13, v65")
    A("v_lshl_add_u32 v75, v73, 4, v74")
    A("v_xor_b32 v73, 4, v73")
    A("v_lshl_add_u32 v76, v73, 4, v74")
    for k in range(4):
        A(f"v_add_u32 v{vWD+k}, {k*(16384-1024)}, v{75 + (k & 1)}")
    A("s_waitcnt lgkmcnt(0)")
    if cfg.hstamp: A("s_memtime s[82:83]")
    A("s_cmp_eq_u32 s68, 0")
    for a, b in ((44, 54), (50, 60), (46, 56), (48, 58), (52, 62)):
        A(f"s_cselect_b32 s{a}, s{a}, s{b}"); A(f"s_cselect_b32 s{a+1}, s{a+1}, s{b+1}")
    A("s_mul_i32 s74, s71, 114688"); srd(A, sX, 44, 74, 114688)
    A("s_lshl_b32 s74, s73, 9"); A(f"s_sub_u32 s75, {448*8192}, s74"); srd(A, sWQ, 50, 74, "s75")
    return L

def touch_code(cfg):
    L = []
    A = lambda t: L.append(I(t, "raw"))
    T = lambda t: L.append(I(t, "dma", tag=("T", 0)))
    if "w" in cfg.touch:
        A("v_lshrrev_b32 v73, 2, v64"); A("v_min_u32 v73, 13, v73"); A("v_lshlrev_b32 v73, 13, v73")
        A("v_and_b32 v74, 3, v64"); A("v_lshl_add_u32 v73, v74, 7, v73")
        A(f"s_lshl_b32 s74, s71, 2"); A(f"s_add_u32 s74, s74, s{sWave}"); A(f"s_mul_i32 s74, s74, {14*8192}")
        T(f"buffer_load_dword a255, v73, s[{sWQ}:{sWQ+3}], s74 offen{cfg.t_flags}")
    if "x" in cfg.touch:
        A("v_min_u32 v73, 55, v64"); A("v_lshlrev_b32 v73, 7, v73")
        A("s_and_b32 s74, s73, 3"); A("s_lshl_b32 s74, s74, 2"); A(f"s_add_u32 s74, s74, s{sWave}"); A(f"s_mul_i32 s74, s74, {56*128}")
        T(f"buffer_load_dword a254, v73, s[{sX}:{sX+3}], s74 offen{cfg.t_flags}")
    if "c" in cfg.touch:
        A("s_getpc_b64 s[96:97]")
        A("s_and_b32 s97, s97, 0xffff"); A("s_mov_b32 s98, CODE_BYTES"); A("s_mov_b32 s99, 0x20000")
        A("v_lshlrev_b32 v73, 7, v64")
        A(f"s_and_b32 s74, s67, 1"); A("s_lshl_b32 s74, s74, 2"); A(f"s_add_u32 s74, s74, s{sWave}"); A("s_lshl_b32 s74, s74, 13")
        T(f"buffer_load_dword a253, v73, s[96:99], s74 offen")
    return L

def stouch_setup():
    L = []; A = L.append
    A("v_lshlrev_b32 v73, 13, v65"); A("v_lshl_add_u32 v80, v66, 4, v73")
    A("v_mul_u32_u24 v73, 896, v71"); A("v_lshl_add_u32 v81, v72, 4, v73")
    A(f"s_lshl_b32 s74, s71, 2"); A(f"s_add_u32 s74, s74, s{sWave}"); A("s_lshl_b32 s90, s74, 14")
    A("s_and_b32 s74, s73, 3"); A("s_lshl_b32 s74, s74, 2"); A(f"s_add_u32 s74, s74, s{sWave}"); A(f"s_mul_i32 s91, s74, {8*896}")
    return L
def stouch(st, cfg):
    a = I(f"buffer_load_dwordx4 a[240:243], v80, s[{sWQ}:{sWQ+3}], s92 offen{cfg.t_flags}", "dma", tag=("T", 2))
    a.pre = [salu(f"s_add_u32 s92, s90, {st*64*8192}")]
    return [a, I(f"buffer_load_dwordx4 a[244:247], v81, s[{sX}:{sX+3}], s91 offen offset:{128*st}{cfg.t_flags}", "dma", tag=("T", 2))]

def kd_code(cfg):
    L = []; A = L.append
    if cfg.hstamp == 2:
        A("s_memtime s[84:85]"); A(f"s_waitcnt vmcnt({cfg.npre})"); A("s_memtime s[86:87]")
    A("s_lshl_b32 s74, s71, 3"); A("s_add_u32 s74, s74, s72"); A("s_lshl_b32 s74, s74, 20")
    srd(A, sK, 46, 74, 1 << 20); srd(A, sV, 48, 74, 1 << 20)
    A("v_xor_b32 v73, v65, v66"); A("v_xor_b32 v73, s76, v73"); A("v_lshlrev_b32 v74, 9, v65")
    for k in range(4):
        A(f"v_xor_b32 v75, {2*k}, v73"); A(f"v_lshl_add_u32 v{vKD+k}, v75, 4, v74")
    return L

def setup_code2(cfg):
    L = []; A = L.append
    if cfg.hstamp == 1: A("s_memtime s[84:85]")
    A("s_mul_i32 s74, s73, 229376"); srd(A, sWO, 52, 74, 229376)
    A("s_lshl_b32 s74, s68, 3"); A("s_add_u32 s74, s74, s71"); A("s_lshl_b32 s74, s74, 4"); A("s_add_u32 s74, s74, s73")
    A(f"s_mul_i32 s74, s74, {cfg.SST}"); A(f"s_add_u32 s74, s74, {cfg.wsoff}"); srd(A, sPT, 64, 74, cfg.SST)
    if cfg.psync:
        A("s_lshl_b32 s74, s66, 4"); A("s_lshr_b32 s75, s67, 1"); A("s_add_u32 s74, s74, s75"); A("s_lshl_b32 s74, s74, 2")
        A(f"s_add_u32 s74, s74, s{sWave}"); A("s_lshl_b32 s74, s74, 7"); A("s_add_u32 s74, s74, 0x2000000")
        A(f"s_add_u32 s{sSy}, s64, s74"); A(f"s_addc_u32 s{sSy+1}, s65, 0")
        A(f"s_lshl_b32 s{sSign}, s69, 1"); A(f"s_sub_u32 s{sSign}, 1, s{sSign}")
        A(f"s_sub_u32 s{sOld}, 0, s69")
        A(f"s_atomic_and s{sOld}, s[{sSy}:{sSy+1}], 0x0")
    A("s_mov_b32 s3, 0")
    if cfg.fuse:
        A("s_load_dwordx4 s[56:59], s[0:1], 80")
        A("s_memrealtime s[60:61]")
        A("s_lshl_b32 s70, s68, 3"); A("s_add_u32 s70, s70, s71")
    A("v_lshrrev_b32 v67, 4, v64"); A("v_bfe_u32 v68, v64, 2, 2"); A("v_and_b32 v69, 3, v64"); A("v_and_b32 v70, 15, v64")
    A("v_lshlrev_b32 v73, 1, v65"); A("v_xor_b32 v73, v73, v66"); A("v_lshlrev_b32 v74, 9, v65")
    for k in range(4):
        A(f"v_xor_b32 v75, {4*k}, v73"); A(f"v_lshl_add_u32 v{vVD+k}, v75, 4, v74")
    A("v_bfe_u32 v76, v64, 2, 3")
    A("v_lshl_add_u32 v73, v67, 3, v68"); A("v_lshlrev_b32 v73, 9, v73"); A("v_lshl_add_u32 v73, v69, 3, v73")
    for j in range(8):
        A(f"v_xor_b32 v75, {j}, v76"); A(f"v_lshl_add_u32 v{vQA+j}, v75, 5, v73")
    A("v_lshlrev_b32 v73, 7, v70"); A(f"v_add_u32 v73, s{sW4K}, v73"); A("v_add_u32 v73, 32768, v73")
    A("v_lshrrev_b32 v74, 1, v70"); A("v_xor_b32 v74, v74, v67")
    for kt in range(2):
        A(f"v_xor_b32 v75, {4*kt}, v74"); A(f"v_lshl_add_u32 v{vXA+kt}, v75, 4, v73")
    A("v_lshrrev_b32 v73, 2, v64"); A("v_lshlrev_b32 v73, 9, v73"); A("v_lshl_add_u32 v73, v69, 3, v73"); A(f"v_add_u32 v73, {VRING}, v73")
    for j in range(8):
        A(f"v_xor_b32 v75, {j}, v76"); A(f"v_lshl_add_u32 v{vVB+j}, v75, 5, v73")
    A("v_lshlrev_b32 v73, 9, v70"); A(f"v_add_u32 v73, {KRING}, v73"); A("v_xor_b32 v74, v67, v70")
    for j in range(4):
        A(f"v_xor_b32 v75, {4*j}, v74"); A(f"v_lshl_add_u32 v{vKB+j}, v75, 4, v73")
    A(f"v_lshlrev_b32 v73, 4, v64"); A(f"s_mul_i32 s74, s{sWave}, {cfg.WST}"); A(f"v_add_u32 v{vST}, s74, v73")
    A("v_mul_u32_u24 v74, 896, v71"); A("v_lshlrev_b32 v75, 1, v67"); A("v_xor_b32 v75, v75, v72"); A("v_lshl_add_u32 v74, v75, 4, v74")
    for k in range(4):
        A(f"v_add_u32 v75, {k*(8*896-1024)}, v74"); A(f"v_accvgpr_write_b32 a{PARK+k}, v75")
    A("v_lshrrev_b32 v74, 2, v64"); A("v_lshlrev_b32 v74, 7, v74"); A("v_lshl_add_u32 v74, v69, 3, v74"); A("v_and_b32 v77, 3, v71")
    for nb in range(4):
        A(f"v_xor_b32 v75, {nb}, v77"); A(f"v_lshl_add_u32 v75, v75, 5, v74")
        A(f"v_add_u32 v78, {KRING}, v75"); A(f"v_accvgpr_write_b32 a{PARK+4+nb}, v78")
        A(f"v_add_u32 v78, {VRING}, v75"); A(f"v_accvgpr_write_b32 a{PARK+8+nb}, v78")
        A(f"v_accvgpr_write_b32 a{PARK+12+nb}, v75")
    A("v_min_u32 v74, 55, v64"); A("v_lshlrev_b32 v74, 7, v74"); A(f"v_mov_b32 v{vQW}, v74")
    A(f"s_lshl_b32 s77, s71, 2"); A(f"s_add_u32 s77, s77, s{sWave}"); A(f"s_mul_i32 s77, s77, {56*128}")
    if "l" in cfg.touch:
        A(f"v_lshlrev_b32 v{vQW}, 4, v64"); A(f"v_add_u32 v{vQW}, {cfg.LOFF*1024}, v{vQW}"); A(f"s_sub_u32 s77, s77, {(cfg.LOFF+1+cfg.LSKIP)*1024}")
    return L

def tail_prep_salu(cfg):
    chunks = []
    def chunk():
        L = []; chunks.append(L)
        return lambda t: L.append(salu(t))
    A = chunk(); A("s_memrealtime s[62:63]")
    A(f"s_mul_i32 s74, s70, {16*cfg.SST}"); A(f"s_add_u32 s74, s74, {cfg.wsoff}")
    A = chunk(); srd(A, 4, 64, 74, 16*cfg.SST)
    A = chunk(); A("s_mov_b32 s74, 0"); srd(A, 8, 56, 74, 1835008)
    A = chunk(); srd(A, 16, 58, 74, 256)
    A = chunk(); A("s_mov_b32 s74, 0x2400000"); srd(A, 12, 64, 74, 65536)
    A = chunk()
    A("s_lshl_b32 s67, s70, 2")
    A(f"s_lshr_b32 s66, s{sWave}, 1"); A("s_lshl_b32 s66, s66, 4"); A("s_add_u32 s66, s66, s70"); A("s_lshl_b32 s66, s66, 11")
    A = chunk()
    A(f"s_add_u32 s60, s60, {2000 if not cfg.force_abandon else 0x7fffffff}"); A("s_addc_u32 s61, s61, 0")
    A("s_mov_b32 s54, s60"); A("s_add_u32 s55, s61, 1")
    A = chunk()
    A("s_mov_b32 s52, 0x3f80"); A("s_mov_b32 s53, 0x3f800000"); A("s_mov_b32 s49, 32768")
    A("s_lshl_b32 s72, s70, 4"); A("s_add_u32 s72, s72, s73"); A("s_lshl_b32 s72, s72, 7")
    A(f"s_lshl_b32 s69, s{sWave}, 28"); A("s_add_u32 s72, s72, s69")
    return chunks

def tail_prep_valu(cfg):
    L = []
    def A(t, w, r=()): L.append(valu(t, rd=[("v", x) for x in r], wr=V(w)))
    A("v_mbcnt_lo_u32_b32 v0, -1, 0", 0); A("v_mbcnt_hi_u32_b32 v0, -1, v0", 0, [0])
    A("v_lshlrev_b32 v1, 4, v0", 1, [0])
    A("v_and_b32 v6, 15, v0", 6, [0]); A("v_lshlrev_b32 v5, 7, v6", 5, [6])
    A("v_mul_u32_u24 v8, 1792, v6", 8, [6]); A("v_lshrrev_b32 v6, 4, v0", 6, [0]); A("v_lshl_add_u32 v8, v6, 4, v8", 8, [6, 8])
    A("v_lshlrev_b32 v12, 20, v0", 12, [0]); A("v_add_u32 v12, s72, v12", 12, [12])
    A("v_mov_b32 v4, 1", 4); A("v_mov_b32 v2, s62", 2); A("v_mov_b32 v3, s63", 3)
    return L

def tail_code(cfg):
    L = []; A = L.append
    A("buffer_load_dwordx2 v[6:7], v5, s[12:15], s66 offen sc1")
    A(f"s_mov_b32 s69, {cfg.ptime}")
    A("s_waitcnt vmcnt(1)")
    if cfg.stamp: A("s_memrealtime s[96:97]")
    A("s_barrier")
    A("buffer_store_dwordx2 v[2:3], v12, s[12:15], s49 offen sc1")
    A("s_waitcnt vmcnt(1)")
    A("s_branch L_chk")
    A("L_poll:")
    A("buffer_load_dwordx2 v[6:7], v5, s[12:15], s66 offen sc1")
    A("s_waitcnt vmcnt(0)")
    A("L_chk:")
    A("v_cmp_le_u64 vcc, s[60:61], v[6:7]")
    A("v_cmp_ge_u64 s[74:75], s[54:55], v[6:7]")
    A("s_and_b64 vcc, vcc, s[74:75]")
    A("s_cmp_eq_u64 vcc, exec")
    A("s_cbranch_scc1 L_go")
    A("s_sub_u32 s69, s69, 1")
    A("s_cmp_lg_u32 s69, 0")
    A("s_cbranch_scc1 L_poll")
    A("s_add_u32 s74, s73, 8"); A("s_lshl_b32 s74, 1, s74")
    A("v_mov_b32 v9, s74")
    A("s_mov_b64 exec, 1")
    A("buffer_atomic_or v9, off, s[16:19], s67 sc0 sc1")
    A("s_waitcnt vmcnt(0)")
    A("s_mov_b64 exec, -1")
    A("v_readfirstlane_b32 s74, v9")
    A("s_and_b32 s74, s74, 0xff")
    A("s_cmp_lg_u32 s74, 16")
    A("s_cbranch_scc1 L_fin")
    A("L_go:")
    if cfg.stamp: A("s_memrealtime s[24:25]"); A("s_mov_b32 s23, s69"); A("s_waitcnt lgkmcnt(0)")
    A("s_mov_b32 s50, s73"); A(f"s_mov_b32 s51, s{sWave}")
    A(f"s_call_b64 s[{sRet}:{sRet+1}], L_red")
    A("L_fin:")
    if cfg.stamp: A("s_waitcnt lgkmcnt(0)")
    A(f"s_cmp_lg_u32 s{sWave}, 1")
    A("s_cbranch_scc1 L_done")
    A("s_mov_b64 exec, 1")
    A("buffer_atomic_add v4, off, s[16:19], s67 sc0 sc1")
    A("s_waitcnt vmcnt(0)")
    A("s_mov_b64 exec, -1")
    A("v_readfirstlane_b32 s48, v4")
    A("s_and_b32 s74, s48, 0xff")
    A("s_cmp_lg_u32 s74, 15")
    A("s_cbranch_scc1 L_done")
    A("s_bfe_u32 s48, s48, 0x100008")
    A("L_redo:")
    A("s_cmp_eq_u32 s48, 0")
    A("s_cbranch_scc1 L_done")
    A("s_ff1_i32_b32 s50, s48")
    A("s_bitset0_b32 s48, s50")
    A("s_mov_b32 s51, 0")
    A("L_redo1:")
    A(f"s_call_b64 s[{sRet}:{sRet+1}], L_red")
    A("s_add_u32 s51, s51, 1")
    A("s_cmp_lt_u32 s51, 4")
    A("s_cbranch_scc1 L_redo1")
    A("s_branch L_redo")
    A("L_done:")
    return L

def red_code(cfg):
    L = []; A = L.append
    A("L_red:")
    A("s_lshr_b32 s74, s50, 2"); A(f"s_mul_i32 s44, s74, {cfg.WST}")
    A("s_and_b32 s75, s50, 3"); A("s_lshl_b32 s75, s75, 10"); A("s_add_u32 s44, s44, s75")
    A("s_lshl_b32 s75, s51, 13"); A("s_add_u32 s44, s44, s75")
    A("s_cmp_eq_u32 s51, 3")
    A("s_cselect_b32 s46, 0x40000000, 4096"); A("s_cselect_b32 s47, 0x40000000, 128")
    A("v_add_u32 v10, s46, v1"); A("v_add_u32 v11, s47, v8")
    for st, (base, vo) in enumerate(((128, 1), (64, 10))):
        A("s_mov_b32 s45, s44")
        for h in range(16):
            A(f"buffer_load_dwordx4 v[{base+4*h}:{base+4*h+3}], v{vo}, s[4:7], s45 offen sc1")
            if h < 15: A(f"s_add_u32 s45, s45, {cfg.SST}")
    A("s_lshl_b32 s45, s71, 3"); A("s_lshr_b32 s75, s50, 1"); A("s_add_u32 s45, s45, s75"); A(f"s_mul_i32 s45, s45, {16*1792}")
    A("s_mul_i32 s75, s68, 896"); A("s_add_u32 s45, s45, s75")
    A("s_lshl_b32 s75, s51, 8"); A("s_add_u32 s45, s45, s75")
    A("s_and_b32 s75, s50, 1"); A("s_lshl_b32 s75, s75, 6"); A("s_add_u32 s45, s45, s75")
    for st, (base, vo, acc) in enumerate(((128, 8, 16), (64, 11, 32))):
        for k in range(8): A(f"v_mov_b32 v{acc+k}, 0")
        for h in range(16):
            A(f"s_waitcnt vmcnt({(31 - h) if st == 0 else (16 - h)})")
            for k in range(4):
                A(f"v_dot2c_f32_bf16 v{acc+2*k}, s52, v{base+4*h+k}")
                A(f"v_dot2c_f32_bf16 v{acc+2*k+1}, s53, v{base+4*h+k}")
        A("s_nop 2")
        for k in range(4): A(f"v_cvt_pk_bf16_f32 v{acc+8+k}, v{acc+2*k}, v{acc+2*k+1}")
        A("s_nop 1")
        A(f"v_permlane32_swap_b32 v{acc+8}, v{acc+10}"); A(f"v_permlane32_swap_b32 v{acc+9}, v{acc+11}")
        A("s_nop 1")
        A(f"v_permlane16_swap_b32 v{acc+8}, v{acc+10}"); A(f"v_permlane16_swap_b32 v{acc+9}, v{acc+11}")
        A(f"buffer_store_dwordx4 v[{acc+8}:{acc+11}], v{vo}, s[8:11], s45 offen")
    A(f"s_setpc_b64 s[{sRet}:{sRet+1}]")
    return L

def rare_code(par, has_next):
    ins = [I("s_nop 9", "nop")]
    for qb in range(2):
        ins += rowmax_instrs(par, qb, vD, vF)
        ins.append(valu(f"v_max_f32 v{vD}, 0, v{vD}", rd=V(vD), wr=V(vD)))
        ins.append(valu(f"v_sub_f32 v{vF}, 0, v{vD}", rd=V(vD), wr=V(vF)))
        ins.append(trans(f"v_exp_f32 v{vF}, v{vF}", rd=V(vF), wr=V(vF)))
        regs = [NEGM + 4*qb + k for k in range(4)] + [sreg(par, kb, qb) + k for kb in range(2) for k in range(4)]
        if has_next: regs += [sreg(1 - par, kb, qb) + k for kb in range(2) for k in range(4)]
        for r in regs: ins.append(valu(f"v_sub_f32 v{r}, v{r}, v{vD}", rd=V(r)+V(vD), wr=V(r)))
        for r in [vL + qb] + [oreg(db, qb) + k for db in range(16) for k in range(4)]:
            ins.append(valu(f"v_mul_f32 v{r}, v{r}, v{vF}", rd=V(r)+V(vF), wr=V(r)))
    ins += sm_instrs(par)
    ins.append(I("s_nop 1", "nop"))
    ins.append(I(f"s_setpc_b64 s[{sRet}:{sRet+1}]", "salu"))
    segs, _ = hazard_pass([("rare", ins)])
    return [x.t for x in segs[0][1]]

def reduce_kernel(cfg):
    L = []; A = L.append
    A(".p2align 8")
    A("reduce_kernel:")
    A("s_cmp_ge_u32 s2, 448")
    A("s_cbranch_scc1 L_rexit")
    A("s_load_dwordx2 s[4:5], s[0:1], 96")
    A("s_load_dwordx2 s[6:7], s[0:1], 80")
    A("s_mul_hi_u32 s16, s2, 0x924924a")
    A("s_mul_i32 s17, s16, 28"); A("s_sub_u32 s17, s2, s17")
    A("s_mul_hi_u32 s18, s17, 0x24924925")
    A("s_mul_i32 s19, s18, 7"); A("s_sub_u32 s19, s17, s19")
    A("v_lshlrev_b32 v1, 4, v0")
    A("s_lshl_b32 s20, s17, 12")
    A("v_add_u32 v1, s20, v1")
    A("s_mul_i32 s21, s16, 1835008"); A(f"s_add_u32 s21, s21, {cfg.wsoff}")
    A("s_waitcnt lgkmcnt(0)")
    A("s_add_u32 s8, s4, s21"); A("s_addc_u32 s9, s5, 0"); A("s_and_b32 s9, s9, 0xffff")
    A("s_mov_b32 s10, 1835008"); A("s_mov_b32 s11, 0x20000")
    A("s_mov_b32 s12, s6"); A("s_and_b32 s13, s7, 0xffff"); A("s_mov_b32 s14, 1835008"); A("s_mov_b32 s15, 0x20000")
    A("s_mov_b32 s22, 0")
    for h in range(16):
        A(f"buffer_load_dwordx4 v[{16+4*h}:{19+4*h}], v1, s[8:11], s22 offen{cfg.rd_flags}")
        if h < 15: A("s_add_u32 s22, s22, 114688")
    A("v_and_b32 v2, 15, v0")
    A("v_lshrrev_b32 v3, 7, v0"); A("v_lshl_add_u32 v2, v3, 4, v2")
    A("s_and_b32 s23, s16, 7"); A("s_lshl_b32 s23, s23, 7"); A("s_lshl_b32 s24, s18, 5"); A("s_add_u32 s23, s23, s24")
    A("v_add_u32 v2, s23, v2")
    A("v_mul_u32_u24 v2, 1792, v2")
    A("v_bfe_u32 v3, v0, 4, 3")
    A("v_lshl_add_u32 v2, v3, 4, v2")
    A("s_lshr_b32 s23, s16, 3"); A("s_mul_i32 s23, s23, 896"); A("s_lshl_b32 s24, s19, 7"); A("s_add_u32 s23, s23, s24")
    for h in range(16):
        A(f"s_waitcnt vmcnt({15-h})")
        for k in range(4):
            src = 16 + 4*h + k
            if h == 0:
                A(f"v_lshlrev_b32 v{4+2*k}, 16, v{src}"); A(f"v_and_b32 v{5+2*k}, 0xffff0000, v{src}")
            else:
                A(f"v_lshlrev_b32 v12, 16, v{src}"); A(f"v_and_b32 v13, 0xffff0000, v{src}")
                A(f"v_add_f32 v{4+2*k}, v{4+2*k}, v12"); A(f"v_add_f32 v{5+2*k}, v{5+2*k}, v13")
    for k in range(4):
        A(f"v_cvt_pk_bf16_f32 v{12+k}, v{4+2*k}, v{5+2*k}")
    A("s_nop 1")
    A("v_permlane32_swap_b32 v12, v14"); A("v_permlane32_swap_b32 v13, v15")
    A("s_nop 1")
    A("v_permlane16_swap_b32 v12, v14"); A("v_permlane16_swap_b32 v13, v15")
    A("buffer_store_dwordx4 v[12:15], v2, s[12:15], s23 offen")
    A("L_rexit:")
    A("s_endpgm")
    return L

def generate(cfg):
    if cfg.fuse and "sc1" not in cfg.st_flags and not cfg.wbl2: cfg.st_flags += " sc1"
    B = build_bodies(cfg)
    for b in B:
        if b.name == "a1":
            ins = []
            for k in range(4): ins.append(valu(f"v_accvgpr_read_b32 v{vWD+k}, a{PARK+k}", wr=V(vWD+k)))
            for k in range(8): ins.append(valu(f"v_accvgpr_read_b32 v{vQA+k}, a{PARK+4+k}", wr=V(vQA+k)))
            for k in range(4): ins.append(valu(f"v_accvgpr_read_b32 v{vXD+k}, a{PARK+12+k}", wr=V(vXD+k)))
            b.valu.append((ins, 0, 60))
    for b in B:
        if b.name == cfg.otouch and "o" in cfg.touch:
            b.dma = b.dma + [[I(f"buffer_load_dword a252, v{vQW}, s[{sWO}:{sWO+3}], s77 offen{cfg.o_flags}", "dma", rd=V(vQW), tag=("T", 1))]]
    for b in B:
        if b.name == cfg.otouch and "p" in cfg.touch:
            b.dma = b.dma + [[I(f"buffer_load_dwordx4 a[{240+4*(j%2)}:{243+4*(j%2)}], v{vWD}, s[{sWO}:{sWO+3}], s77 offen offset:{128*j}{cfg.o_flags}", "dma", rd=V(vWD), tag=("T", 1))
                              for j in range(cfg.PJ0, 7)]]
    for b in B:
        if "l" in cfg.touch and b.name[0] == "a" and 2 <= int(b.name[1:]) <= 57 and int(b.name[1:]) % 4 == 0:
            x = I(f"buffer_load_dwordx4 a[240:243], v{vQW}, s[{sWO}:{sWO+3}], s77 offen{cfg.o_flags}", "dma", rd=V(vQW), tag=("T", 1))
            x.pre = [salu("s_add_u32 s77, s77, 1024")]
            b.dma = b.dma + [[x]]
    raw = lambda lines: [I(t, "raw") for t in lines]
    tc = [touch_code(cfg)]
    init = []
    def expand(spec):
        out = []
        for tok in spec.split(","):
            if not tok: continue
            if tok == "S": out += tc + [raw(kd_code(cfg))] + [raw(setup_code2(cfg))]
            elif tok == "T": out += [raw(stouch_setup())]
            elif tok[0] == "D": out += g_stage(int(tok[1]), cfg)
            elif tok[0] == "P": out += [stouch(int(tok[1]), cfg)]
            elif tok == "K0": out += [g_k(0, cfg)]
        return out
    parts = cfg.order.split("|")
    pre = expand(parts[0]); first = expand(parts[1])
    for k in range(4): B[k].dma = expand(parts[2 + k]) + [g for g in B[k].dma if g[0].tag[0] == "T"]
    segs = schedule(B, cfg, pre, first)
    segs, nn = hazard_pass(segs)
    txt = {name: [x.t for x in lst] for name, lst in segs}
    names = [n for n, _ in segs]
    lo = None
    for n in range(0, 30):
        if all(txt[f"a{k}"] == txt[f"a{k+4}"] for k in range(n, n + 8)):
            lo = n; break
    assert lo is not None, "no periodic steady state"
    last = lo
    while last + 4 <= 63 and txt[f"a{last+4}"] == txt[f"a{last}"]: last += 1
    last += 3
    nit = (last - lo + 1) // 4
    lo = last + 1 - 4 * nit
    sys.stderr.write(f"loop bodies {lo}..{last} ({nit} iterations), nops inserted {nn}\n")
    L = []; A = L.append
    KN = "attn_kernel"
    if cfg.fuse == 2:
        KN = NAME + "_kernel"
        A("; @launch grid=(256,1,1) block=(256,1,1) lds=163840")
    else:
        A("; @launch kernel=attn_kernel grid=(256,1,1) block=(256,1,1) lds=163840")
    if not cfg.fuse: A("; @launch kernel=reduce_kernel grid=(448,1,1) block=(256,1,1) lds=0")
    A('.amdgcn_target "amdgcn-amd-amdhsa--gfx950"')
    A(".text"); A(f".globl {KN}"); A(".p2align 8"); A(f".type {KN},@function"); A(f"{KN}:")
    L += setup_code(cfg)
    tramps = []; syncs = []; bs = [0]
    def emit_seg(name):
        A(f"; ---- {name}")
        for t in txt[name]:
            if t.startswith("RARE"):
                _, par, nx = t.split()
                lab = f"L_t_{name.replace('-','m')}"
                A(f"s_cbranch_vccnz {lab}"); A(f"{lab}_back:")
                tramps.append((lab, par, nx))
            elif t == "SYNC":
                lab = f"L_s_{name.replace('-','m')}"
                A(f"s_cmp_gt_i32 s{sDif}, 0"); A(f"s_cbranch_scc1 {lab}"); A(f"{lab}_back:")
                syncs.append(lab)
            else: A(t)
    for name in names:
        if name.startswith("a"):
            n = int(name[1:])
            if lo <= n <= last:
                if n == lo:
                    if cfg.lstamp:
                        A("v_mbcnt_lo_u32_b32 v66, -1, 0"); A("v_mbcnt_hi_u32_b32 v66, -1, v66"); A("v_mov_b32 v67, 0")
                        A("s_memrealtime s[98:99]"); A("s_waitcnt lgkmcnt(0)")
                    if "h" in cfg.strip:
                        A("s_and_b32 s74, s73, 1"); A("s_lshl_b32 s74, s74, 11"); A(f"s_add_u32 s{sKoff}, s{sKoff}, s74"); A(f"s_add_u32 s{sVoff}, s{sVoff}, s74")
                    A(f"s_mov_b32 s{sCnt}, {nit}"); A(".p2align 3"); A("L_loop:")
                    if cfg.lstamp:
                        A("v_mov_b32 v68, s98"); A(f"v_cmp_eq_u32 vcc, s{sCnt}, v66"); A("s_memrealtime s[98:99]"); A("s_nop 0")
                        A("v_cndmask_b32 v67, v67, v68, vcc"); A("v_accvgpr_write_b32 a250, v67")
                if n < lo + 4:
                    def keep(t):
                        if "d" in cfg.strip and t.startswith("buffer_load"): return False
                        if "h" in cfg.strip and t.startswith("buffer_load") and ("offset:2048" in t or "offset:3072" in t): return False
                        if "r" in cfg.strip and t.startswith("ds_read"): return False
                        if "s" in cfg.strip and t.split()[0] in ("v_exp_f32", "v_add_f32", "v_cvt_pk_bf16_f32"): return False
                        return True
                    txt[name] = [t for t in txt[name] if keep(t)]
                    if "h" in cfg.strip: txt[name] = [t.replace("vmcnt(16)", "vmcnt(8)") for t in txt[name]]
                    if cfg.pace:
                        nt = []
                        for t in txt[name]:
                            nt.append(t)
                            if t == "s_barrier": nt += ["s_nop 15"] * cfg.pace
                        txt[name] = nt
                    if n == lo + 3:
                        txt[name].insert(1, f"s_sub_u32 s{sCnt}, s{sCnt}, 1")
                    emit_seg(name)
                    if n == lo + 3:
                        A(f"s_cmp_lg_u32 s{sCnt}, 0"); A("s_cbranch_scc1 L_loop")
                continue
        if cfg.bstamp and name != "pre":
            head = name.startswith("qp") or (name.startswith("a") and int(name[1:]) < 30)
            if head == (cfg.bstamp == 1):
                r = 71 if head else 47
                if bs[0] > 0:
                    A(f"v_writelane_b32 v{r}, s98, {bs[0]-1}"); A(f"v_writelane_b32 v{r}, s26, {bs[0]-1+32}") if not head and False else None
                    A(f"v_accvgpr_write_b32 a250, v{r}")
                A("s_memtime s[98:99]")
                bs[0] += 1; bs.append(name)
        if cfg.hstamp == 1 and name == "qp0": A("s_memtime s[86:87]")
        if cfg.stamp and not cfg.hstamp and name in ("qp0", "a-2", "op0"):
            i = ["qp0", "a-2", "op0"].index(name)
            A(f"s_memtime s[{82+2*i}:{83+2*i}]")
            if name == "a-2": A("s_memrealtime s[100:101]")
            if name == "op0": A("s_memrealtime s[42:43]")
        emit_seg(name)
    if cfg.fuse:
        if cfg.stamp: A("s_memrealtime s[98:99]")
        L += tail_code(cfg)
    if cfg.stamp:
        A("s_waitcnt vmcnt(0)")
        A("s_memtime s[88:89]"); A("s_memrealtime s[90:91]")
        A("s_getreg_b32 s92, hwreg(HW_REG_XCC_ID)"); A("s_getreg_b32 s93, hwreg(HW_REG_HW_ID)")
        A("s_waitcnt lgkmcnt(0)")
        A("s_add_u32 s76, s64, 0x4000000"); A("s_addc_u32 s77, s65, 0"); A("s_and_b32 s77, s77, 0xffff")
        A("s_mov_b32 s78, 0x100000"); A("s_mov_b32 s79, 0x20000")
        A("s_lshl_b32 s74, s2, 2"); A(f"s_add_u32 s74, s74, s{sWave}"); A("s_lshl_b32 s74, s74, 6")
        A("v_mov_b32 v40, 0")
        if cfg.lstamp or cfg.bstamp:
            sys.stderr.write(" ".join(bs[1:]) + "\n")
            A("v_mbcnt_lo_u32_b32 v66, -1, 0"); A("v_mbcnt_hi_u32_b32 v66, -1, v66"); A("v_lshlrev_b32 v66, 2, v66")
            A("s_lshl_b32 s75, s74, 2"); A("s_add_u32 s75, s75, 0x10000")
            A("buffer_store_dword a250, v66, s[76:79], s75 offen")
        for i, r in enumerate([80, 82, 84, 86, 88, 90, 92, 93, 94, 100, 42, 3, 98, 96, 24, 23]):
            A(f"v_mov_b32 v41, s{r}")
            A(f"buffer_store_dword v41, v40, s[76:79], s74 offen offset:{4*i}")
    A("L_exit:"); A("s_endpgm")
    if cfg.fuse: L += red_code(cfg)
    A("L_code_end:")
    A(f".set CODE_BYTES, L_code_end - {KN} - 1024")
    for lab, par, nx in tramps:
        A(f"{lab}:"); A(f"s_call_b64 s[{sRet}:{sRet+1}], L_rare_{par}_{nx}"); A(f"s_branch {lab}_back")
    for lab in syncs:
        A(f"{lab}:"); A(f"s_call_b64 s[{sRet}:{sRet+1}], L_spin"); A(f"s_branch {lab}_back")
    if syncs:
        A("L_spin:")
        if cfg.stamp: A("s_add_u32 s3, s3, 0x10000")
        A("s_mov_b32 s74, 32")
        A("L_spin1:")
        if cfg.stamp: A("s_add_u32 s3, s3, 1")
        A(f"s_load_dword s{sDif}, s[{sSy}:{sSy+1}], 0x0 glc")
        A("s_waitcnt lgkmcnt(0)")
        A(f"s_mul_i32 s{sDif}, s{sDif}, s{sSign}")
        A(f"s_cmp_le_i32 s{sDif}, 0")
        A("s_cbranch_scc1 L_spin2")
        A("s_sub_u32 s74, s74, 1")
        A("s_cmp_lg_u32 s74, 0")
        A("s_cbranch_scc1 L_spin1")
        A(f"s_mov_b32 s{sSign}, 0")
        A("L_spin2:")
        A(f"s_mov_b32 s{sOld}, 0"); A(f"s_mov_b32 s{sOld+1}, 0")
        A(f"s_setpc_b64 s[{sRet}:{sRet+1}]")
    for par, nx in sorted({(p, n) for _, p, n in tramps}):
        A(f"L_rare_{par}_{nx}:")
        L += rare_code(int(par), int(nx))
    if not cfg.fuse: L += reduce_kernel(cfg)
    A('.section .rodata,"a"')
    for kn, nv, acc in ((KN, 512, 256), ("reduce_kernel", 80, 80))[:1 if cfg.fuse else 2]:
        A(".p2align 6"); A(f".amdhsa_kernel {kn}")
        A(f"  .amdhsa_next_free_vgpr {nv}"); A("  .amdhsa_next_free_sgpr 102"); A(f"  .amdhsa_accum_offset {acc}")
        A("  .amdhsa_group_segment_fixed_size 0"); A("  .amdhsa_kernarg_size 104"); A("  .amdhsa_user_sgpr_count 2")
        A("  .amdhsa_user_sgpr_kernarg_segment_ptr 1"); A("  .amdhsa_system_sgpr_workgroup_id_x 1")
        A(".end_amdhsa_kernel")
    return "\n".join(L) + "\n"

if __name__ == "__main__":
    ap = argparse.ArgumentParser()
    ap.add_argument("-o", default=f"cdna_kernels/{NAME}.s")
    ap.add_argument("opts", nargs="*")
    a = ap.parse_args()
    cfg = Cfg()
    for o in a.opts:
        k, v = o.split("=", 1)
        old = getattr(cfg, k)
        if isinstance(old, bool): v = v not in ("0", "false", "False")
        elif isinstance(old, int): v = int(v)
        elif isinstance(old, float): v = float(v)
        elif k.endswith("_flags"): v = " " + v.replace("+", " ") if v else ""
        setattr(cfg, k, v)
    open(a.o, "w").write(generate(cfg))
```

```python
import sys, math, argparse, struct

NAME = "concat_heads__gqa_block_cached__gqa_block_cached__near_ridge"
def f32bits(x): return struct.unpack("<I", struct.pack("<f", x))[0]

class Cfg:
    LEAD = 16
    DEAD = 8
    NB = 16
    SAFE = 6
    DMASPAN = 40
    H = 3.0
    TTPEN = 3.0
    dma_flags = " nt"
    w_flags = ""
    v_flags = "same"
    o_flags = ""
    otouch = "a59"
    st_flags = ""
    rd_flags = ""
    stamp = False
    strip = ""
    touch = "co"
    tpos = 1
    t_flags = ""
    hstamp = 0
    npre = 3
    psync = 1
    nospin = 0
    lstamp = 0
    QCW = 16
    VCAP = 4.0
    al8 = 0
    lalign = 6
    lshift = 0
    hop = 1
    parkb = "a-2"
    parkg0 = 24
    parkg1 = 34
    rot = 2
    rotmask = 3
    linear = 0
    PJ0 = 4
    LOFF = 0
    LSKIP = 0
    kvlate = 1
    FLA = 5
    wbl2 = 0
    WST = 28672
    SST = 114688
    spare = 0
    QSPAN = 40
    order = "D0,S,D1|D2|D3|D4|D5|D6,K0"
    spos = 1
    bstamp = 0
    fuse = 1
    ptime = 4000
    force_abandon = 0
    pace = 0
    sync0 = "qp4"
    sync1 = "a2"
    early = 1
    wsoff = 0

def V(lo, n=1): return [("v", lo + i) for i in range(n)]
def Areg(lo, n=1): return [("a", lo + i) for i in range(n)]
def vr(lo, n=1): return f"v{lo}" if n == 1 else f"v[{lo}:{lo+n-1}]"
def ar(lo, n=1): return f"a{lo}" if n == 1 else f"a[{lo}:{lo+n-1}]"

O0 = 128
def oreg(db16, qb): return O0 + (db16 * 2 + qb) * 4
S_ = [96, 112]
def sreg(par, kb, qb): return S_[par] + (kb * 2 + qb) * 4
NEGM = 88
P_ = [72, 80]
QF = 0
FR = 64
XF = 192
PARK = 224
vKB = 0; vVB = 4; vKD = 12; vVD = 16; vWD = 20; vXD = 24; vQA = 28; vXA = 36
vL = 38; vPS = 40; vINV = 42; vST = 44; vD = 45; vF = 46; vQW = 47
vT = 48
vE = 56
vQR = 64
STG = 192
sX, sWQ, sK, sV, sWO, sPT = 4, 8, 12, 16, 20, 24
sW4K, sKoff, sVoff, sCnt, sTmp, sW28K, sW64K, sWave, sScale = 28, 29, 30, 31, 32, 33, 34, 35, 36
sRet = 40
sTmp2 = 76
sSign, sOld, sDif = 37, 38, 75
sSy = 78

KRING = 98304
VRING = 32768
def kslot(m): return ((m + 3) % 4) * 16384
def vslot(m): return ((m + 1) % 4) * 16384
def qregion(s): return [0, 98304, 49152][s % 3]
QSTAGE = VRING + vslot(2)
MF = "v_mfma_f32_16x16x32_bf16"

class I:
    __slots__ = ("t", "k", "rd", "wr", "tag", "c", "ideal", "early", "dead", "pre", "post")
    def __init__(s, t, k, rd=(), wr=(), tag=None, c=()):
        s.t, s.k, s.rd, s.wr, s.tag, s.c = t, k, list(rd), list(wr), tag, list(c)
        s.ideal = s.early = s.dead = None
        s.pre = []; s.post = []
def valu(t, rd=(), wr=()): return I(t, "valu", rd, wr)
def trans(t, rd=(), wr=()): return I(t, "trans", rd, wr)
def perm(t, rd=(), wr=()): return I(t, "perm", rd, wr)
def salu(t, wr=()): return I(t, "salu", (), wr)
def slots(x): return 2 if x.k in ("trans", "dma", "store", "perm") else 1

class Body:
    def __init__(s, name):
        s.name = name
        s.mf = []; s.reads = []; s.need = []; s.dma = []; s.valu = []; s.after_reads = []; s.tail = []; s.fronts = []; s.post_bar = []

def dma_group(srd, voffs, pre, post, soff, m0val, tag, flags=""):
    g = []
    for k in range(4):
        off = f" offset:{k*1024}" if k else ""
        g.append(I(f"buffer_load_dwordx4 v{voffs[k]}, s[{srd}:{srd+3}], s{soff} offen{off}{flags} lds",
                   "dma", rd=[("v", voffs[k]), ("m0", 0)], tag=tag))
    g[0].pre = [salu(f"s_add_u32 m0, s{m0val[0]}, {m0val[1]}", wr=[("m0", 0)])] + list(pre)
    return g
def g_k(m, cfg):
    return dma_group(sK, [vKD + k for k in range(4)], [salu(f"s_add_u32 s{sKoff}, s{sKoff}, 16384")], [],
                     sKoff, (sW4K, KRING + kslot(m)), ("K", m), cfg.dma_flags)
def g_v(m, cfg):
    return dma_group(sV, [vVD + k for k in range(4)], [salu(f"s_add_u32 s{sVoff}, s{sVoff}, 16384")], [],
                     sVoff, (sW4K, VRING + vslot(m)), ("V", m), cfg.dma_flags if cfg.v_flags == "same" else cfg.v_flags)
def wo_place(j, half, cfg):
    if cfg.spare:
        if j == 4: return half * 16384, vXD, half * 16384
        m = 64 + (j if j < 4 else j - 5)
    else:
        m = 64 + j
    if half == 0: return KRING + kslot(m), vQA, kslot(m)
    return VRING + vslot(m), vQA + 4, vslot(m)
def g_wo(j, half, cfg):
    so = sTmp2
    return dma_group(sWO, [vWD + k for k in range(4)], [salu(f"s_add_u32 s{so}, s{sW28K}, {half*128*896 + 128*j}")], [],
                     so, (sW4K, wo_place(j, half, cfg)[0]), ("W", j, half), cfg.o_flags)
def g_stage(s, cfg):
    rb = qregion(s)
    if cfg.rot:
        gs = [dma_group(sX, [vXD + k for k in range(4)], [salu(f"s_add_u32 s{sTmp}, s{sW28K}, s90"), salu("s_lshl_b32 s91, s90, 12")], [],
                        sTmp, (sW4K, rb + 32768), ("Q", s), cfg.w_flags)]
        gs.append(dma_group(sWQ, [vWD + k for k in range(4)], [salu(f"s_add_u32 s{sTmp}, s{sW64K}, s91"), salu("s_add_u32 s90, s90, 128")], [],
                            sTmp, (sW4K, rb), ("Q", s), cfg.w_flags))
        gs.append(dma_group(sWQ, [vWD + k for k in range(4)], [salu(f"s_add_u32 s{sTmp}, s{sTmp}, {32*8192}"), salu("s_cmp_eq_u32 s90, 896"), salu("s_cselect_b32 s90, 0, s90")], [],
                            sTmp, (sW4K, rb + 16384), ("Q", s), cfg.w_flags))
        return gs
    gs = [dma_group(sX, [vXD + k for k in range(4)], [salu(f"s_add_u32 s{sTmp}, s{sW28K}, {128*s}")], [],
                    sTmp, (sW4K, rb + 32768), ("Q", s), cfg.w_flags)]
    for kk in range(2):
        gs.append(dma_group(sWQ, [vWD + k for k in range(4)], [salu(f"s_add_u32 s{sTmp}, s{sW64K}, {(64*s + 32*kk)*8192}")], [],
                            sTmp, (sW4K, rb + kk * 16384), ("Q", s), cfg.w_flags))
    return gs

def sm_instrs(n, fix=False):
    par = n % 2
    out = []; pend = []
    k = 0
    for qb in range(2):
        for kb in range(2):
            for hp in range(2):
                s0 = sreg(par, kb, qb) + 2 * hp
                t0 = vT + (2 * k) % 8; t1 = t0 + 1
                ps = vPS + qb
                if fix:
                    out.append(valu(f"v_add_f32 v{s0}, v{NEGM+4*qb}, v{s0}", rd=V(s0)+V(NEGM+4*qb), wr=V(s0)))
                    out.append(valu(f"v_add_f32 v{s0+1}, v{NEGM+4*qb}, v{s0+1}", rd=V(s0+1)+V(NEGM+4*qb), wr=V(s0+1)))
                out.append(trans(f"v_exp_f32 v{t0}, v{s0}", rd=V(s0), wr=V(t0)))
                if pend: out.append(pend.pop(0))
                out.append(trans(f"v_exp_f32 v{t1}, v{s0+1}", rd=V(s0+1), wr=V(t1)))
                out += pend; pend = []
                if kb == 0 and hp == 0:
                    pend.append(valu(f"v_add_f32 v{ps}, v{t0}, v{t1}", rd=V(t0, 2), wr=V(ps)))
                else:
                    pend.append(valu(f"v_add_f32 v{ps}, v{ps}, v{t0}", rd=V(t0)+V(ps), wr=V(ps)))
                    pend.append(valu(f"v_add_f32 v{ps}, v{ps}, v{t1}", rd=V(t1)+V(ps), wr=V(ps)))
                p = P_[par] + 4 * qb + 2 * kb + hp
                pend.append(valu(f"v_cvt_pk_bf16_f32 v{p}, v{t0}, v{t1}", rd=V(t0, 2), wr=V(p)))
                k += 1
    out += pend
    return out

def xlane(op, r, tmp):
    o = []
    for sw in ("v_permlane32_swap_b32", "v_permlane16_swap_b32"):
        o.append(valu(f"v_mov_b32 v{tmp}, v{r}", rd=V(r), wr=V(tmp)))
        o.append(perm(f"{sw} v{r}, v{tmp}", rd=V(r)+V(tmp), wr=V(r)+V(tmp)))
        o.append(valu(f"{op} v{r}, v{r}, v{tmp}", rd=V(r)+V(tmp), wr=V(r)))
    return o

def rowmax_instrs(par, qb, d, tmp):
    a = sreg(par, 0, qb); b = sreg(par, 1, qb)
    o = [valu(f"v_max3_f32 v{d}, v{a}, v{a+1}, v{a+2}", rd=V(a, 3), wr=V(d)),
         valu(f"v_max3_f32 v{d}, v{d}, v{a+3}, v{b}", rd=V(a+3)+V(b)+V(d), wr=V(d)),
         valu(f"v_max3_f32 v{d}, v{d}, v{b+1}, v{b+2}", rd=V(b+1, 2)+V(d), wr=V(d)),
         valu(f"v_max_f32 v{d}, v{d}, v{b+3}", rd=V(b+3)+V(d), wr=V(d))]
    return o + xlane("v_max_f32", d, tmp)

def zipl(a, b):
    o = []
    for i in range(max(len(a), len(b))):
        if i < len(a): o.append(a[i])
        if i < len(b): o.append(b[i])
    return o

def ob_reg(t, qb):
    base = [S_[0], S_[0] + 8, S_[1], S_[1] + 8, NEGM, 64, P_[0], P_[1]][t]
    return base + 4 * qb

def build_bodies(cfg):
    B = []
    for s in range(7):
        b = Body(f"qp{s}")
        order = [(kt, be) for kt in range(2) for be in range(16)] if s < 6 else [(kt, be) for be in range(16) for kt in range(2)]
        xdone = set()
        def xf(kt, qb): return XF + ((s % 2) * 4 + kt * 2 + qb) * 4
        xpend = []
        def xread(kt):
            for qb in range(2):
                xpend.append((("X", s, kt, qb), [("ds_read_b128", vXA + kt, qb * 2048, 0, 4)], xf(kt, qb)))
        if s == 6:
            xread(0); xread(1); xdone = {0, 1}
            b.reads += xpend; xpend = []
        for idx, (kt, be) in enumerate(order):
            if kt not in xdone:
                xread(kt); xdone.add(kt)
                b.reads += xpend; xpend = []
            key = ("WQ", s, kt, be)
            b.reads.append((key, [("ds_read_b64_tr_b16", vQA + be % 8, (32*kt + 4*jj) * 512 + (be // 8) * 256, 2*jj, 2) for jj in range(2)], None))
            for qb in range(2):
                d = oreg(be, qb)
                first = (s == 0 and kt == 0)
                b.mf.append((d, key, ar(xf(kt, qb), 4), Areg(xf(kt, qb), 4), "0" if first else vr(d, 4), [] if first else V(d, 4), [("X", s, kt, qb)]))
        b.need = [("Q", s)]
        if s < 6:
            delta = qregion(s + 1) - qregion(s)
            for r in list(range(vQA, vQA + 8)) + list(range(vXA, vXA + 2)):
                b.after_reads.append(valu(f"v_add_u32 v{r}, {delta & 0xffffffff}, v{r}", rd=V(r), wr=V(r)))
        if s <= 3: b.dma = g_stage(s + 3, cfg)
        elif cfg.kvlate == 1:
            if s == 4: b.dma = [g_k(1, cfg), g_k(2, cfg)]
            elif s == 5: b.dma = [g_v(0, cfg), g_k(3, cfg)]
            else: b.dma = [g_v(1, cfg)]
        elif s == 4: b.dma = [g_k(1, cfg), g_k(2, cfg), g_k(3, cfg)]
        elif s == 5: b.dma = [g_v(0, cfg), g_v(1, cfg), g_v(2, cfg)]
        else: b.dma = [g_v(3, cfg)]
        B.append(b)
    b = B[6]
    for t in range(8):
        per = []
        for qb in range(2):
            ins = []
            e = (vE if t % 2 == 0 else vT) + 4 * qb
            for the in range(2):
                d = oreg(2 * t + the, qb)
                for k in range(4):
                    ins.append(valu(f"v_mul_f32 v{d+k}, s{sScale}, v{d+k}", rd=V(d+k), wr=V(d+k)))
                for hp in range(2):
                    ins.append(valu(f"v_cvt_pk_bf16_f32 v{e+2*the+hp}, v{d+2*hp}, v{d+2*hp+1}", rd=V(d+2*hp, 2), wr=V(e+2*the+hp)))
            for sw in ("v_permlane32_swap_b32", "v_permlane16_swap_b32"):
                for hp in range(2):
                    ins.append(perm(f"{sw} v{e+hp}, v{e+2+hp}", rd=V(e+hp)+V(e+2+hp), wr=V(e+hp)+V(e+2+hp)))
            q = QF + (t * 2 + qb) * 4
            for k in range(4):
                ins.append(valu(f"v_accvgpr_write_b32 a{q+k}, v{e+k}", rd=V(e+k), wr=Areg(q+k)))
            per.append(ins)
        g0 = 8 * t + 7 + 4
        g1 = max(g0, min(g0 + cfg.QCW, 64 + 4 * t - 2))
        b.valu.append((zipl(per[0], per[1]), g0, g1))
    for n in range(-2, 64):
        b = Body(f"a{n}")
        qk = []; pv = []
        if n + 2 <= 63:
            m = n + 2
            order = [(kb, t) for kb in range(2) for t in range(8)] if m > 0 else [(kb, t) for t in range(8) for kb in range(2)]
            for kb, t in order:
                key = ("K", m, kb, t)
                rd = (key, [("ds_read_b128", vKB + t % 4, kslot(m) + kb * 8192 + (t // 4) * 256, 0, 4)], None)
                mfs = []
                for qb in range(2):
                    S = sreg(m % 2, kb, qb)
                    if t == 0: c = ("0", []) if m < 2 else (vr(NEGM + 4*qb, 4), V(NEGM + 4*qb, 4))
                    else: c = (vr(S, 4), V(S, 4))
                    q = QF + (t * 2 + qb) * 4
                    mfs.append((S, key, ar(q, 4), Areg(q, 4), c[0], c[1], []))
                qk.append((rd, mfs))
            b.need.append(("K", m))
        if n >= 0:
            for db in range(16):
                key = ("V", n, db)
                rd = (key, [("ds_read_b64_tr_b16", vVB + db % 8, vslot(n) + jj * 8192 + (db // 8) * 256, 2*jj, 2) for jj in range(2)], None)
                mfs = []
                for qb in range(2):
                    d = oreg(db, qb); P = P_[n % 2] + 4 * qb
                    mfs.append((d, key, vr(P, 4), V(P, 4), "0" if n == 0 else vr(d, 4), [] if n == 0 else V(d, 4), []))
                pv.append((rd, mfs))
            b.need.append(("V", n))
        for rd, mfs in zipl(qk, pv):
            b.reads.append(rd); b.mf += mfs
        G = len(b.mf)
        if n == -1:
            ins = zipl(rowmax_instrs(0, 0, vD, vF), rowmax_instrs(0, 1, vINV, vINV + 1))
            for qb, d in ((0, vD), (1, vINV)):
                for k in range(4):
                    ins.append(valu(f"v_sub_f32 v{NEGM+4*qb+k}, 0, v{d}", rd=V(d), wr=V(NEGM+4*qb+k)))
            ins += sm_instrs(0, fix=True)
            b.valu.append((ins, 3, G - 1))
        elif 0 <= n <= 62:
            ins = []
            for qb in range(2):
                if n == 0: ins.append(valu(f"v_mov_b32 v{vL+qb}, v{vPS+qb}", rd=V(vPS+qb), wr=V(vL+qb)))
                else: ins.append(valu(f"v_add_f32 v{vL+qb}, v{vL+qb}, v{vPS+qb}", rd=V(vPS+qb)+V(vL+qb), wr=V(vL+qb)))
            ins += sm_instrs(n + 1, fix=(n == 0))
            ins.append(valu(f"v_max_f32 v{vD}, v{vPS}, v{vPS+1}", rd=V(vPS, 2), wr=V(vD)))
            ins.append(valu(f"v_cmp_nge_f32 vcc, 0x46800000, v{vD}", rd=V(vD), wr=[("vcc", 0)]))
            b.valu.append((ins, 3 if n == 0 else 0, G - 2))
            b.tail.append(I(f"RARE {(n+1)%2} {1 if n + 2 <= 63 else 0}", "rare"))
        elif n == 63:
            ins = []
            for qb in range(2):
                ins.append(valu(f"v_add_f32 v{vL+qb}, v{vL+qb}, v{vPS+qb}", rd=V(vPS+qb)+V(vL+qb), wr=V(vL+qb)))
            ins += zipl(xlane("v_add_f32", vL, vD), xlane("v_add_f32", vL + 1, vF))
            for qb in range(2):
                ins.append(trans(f"v_rcp_f32 v{vINV+qb}, v{vL+qb}", rd=V(vL+qb), wr=V(vINV+qb)))
            b.valu.append((ins, 40, 63))
            for t in range(8):
                ins = []
                for qb in range(2):
                    o = ob_reg(t, qb)
                    for the in range(2):
                        d = oreg(2 * t + the, qb)
                        for hp in range(2):
                            ins.append(valu(f"v_cvt_pk_bf16_f32 v{o+2*the+hp}, v{d+2*hp}, v{d+2*hp+1}", rd=V(d+2*hp, 2), wr=V(o+2*the+hp)))
                g0 = 4 * t + 3 + 4
                b.valu.append((ins, g0, g0 + 5))
        if n + 2 <= 63:
            m = n + 6
            b.dma.append(g_k(m, cfg) if m <= 63 else g_wo(m - 64, 0, cfg))
        if cfg.kvlate == 1 and n < 0: b.dma.append(g_v(n + 4, cfg))
        if n >= 0:
            m = n + 4
            b.dma.append(g_v(m, cfg) if m <= 63 else g_wo(m - 64, 1, cfg))
        if cfg.spare and n in (62, 63): b.dma.append(g_wo(4, n - 62, cfg))
        B.append(b)
    def accreg(j, nb, qb): return O0 + 32 * (j % 2) + (nb * 2 + qb) * 4
    def drain(j, t2):
        ins = []
        for qb in range(2):
            q = qb * 2 + t2
            st = STG + 4 * q
            for the in range(2):
                a = accreg(j, 2 * t2 + the, qb)
                for k in range(4):
                    ins.append(valu(f"v_mul_f32 v{a+k}, v{vINV+qb}, v{a+k}", rd=V(a+k)+V(vINV+qb), wr=V(a+k)))
                for hp in range(2):
                    ins.append(valu(f"v_cvt_pk_bf16_f32 v{st+2*the+hp}, v{a+2*hp}, v{a+2*hp+1}", rd=V(a+2*hp, 2), wr=V(st+2*the+hp)))
            off = f" offset:{q*1024}" if q else ""
            x = I(f"buffer_store_dwordx4 v[{st}:{st+3}], v{vST}, s[{sPT}:{sPT+3}], s{sTmp} offen{off}{cfg.st_flags}", "store",
                  rd=V(st, 4)+V(vST), tag=("ST", j))
            if q == 0: x.pre = [salu(f"s_mov_b32 s{sTmp}, {4096*j}")]
            ins.append(x)
        return ins
    for j in range(7):
        b = Body(f"op{j}")
        for t2 in range(2):
            for t in range(8):
                for nb in (2 * t2, 2 * t2 + 1):
                    key = ("WO", j, t, nb)
                    _, base, slot = wo_place(j, t // 4, cfg)
                    base += nb
                    b.reads.append((key, [("ds_read_b64_tr_b16", base, slot + (32*(t % 4) + 16*jj) * 128, 2*jj, 2) for jj in range(2)], None))
                    for qb in range(2):
                        d = accreg(j, nb, qb); o = ob_reg(t, qb)
                        b.mf.append((d, key, vr(o, 4), V(o, 4), "0" if t == 0 else vr(d, 4), [] if t == 0 else V(d, 4), []))
        b.need = [("W", j, 0), ("W", j, 1)]
        if j >= 1: b.valu.append((drain(j - 1, 1), 3, 33))
        b.valu.append((drain(j, 0), 35, 65 if j < 6 else 62))
        nx = j + (5 if cfg.spare else 4)
        if nx <= 6: b.dma = [g_wo(nx, 0, cfg), g_wo(nx, 1, cfg)]
        if j == 6: b.tail += drain(6, 1)
        if cfg.fuse:
            if j == 0: b.fronts = tail_prep_salu(cfg)
            if j == 1: b.valu.append((tail_prep_valu(cfg), 36, 60))
            if j == cfg.FLA + 1: b.need = b.need + [("ST", 3)]
            if j == cfg.FLA: b.post_bar = [I("buffer_store_dwordx2 v[2:3], v12, s[12:15], 0 offen sc1", "store", rd=V(2, 2)+V(12), tag=("FL", 0))]
        B.append(b)
    return B

def schedule(B, cfg, pre_dma, first):
    starts = []; M = 0
    for b in B:
        starts.append(M); M += len(b.mf)
    front = {g: [] for g in range(-1, M)}
    fill = {g: [] for g in range(-1, M)}
    bp = [starts[i] + len(B[i].mf) - cfg.LEAD - 1 for i in range(len(B))]
    fragreg = {}; first_use = {}; last_use = {}
    idx = 0
    for i, b in enumerate(B):
        for g, mf in enumerate(b.mf):
            if mf[1] not in fragreg:
                fragreg[mf[1]] = FR + 4 * (idx % cfg.NB); idx += 1
            for k in [mf[1]] + mf[6]:
                first_use.setdefault(k, starts[i] + g); last_use[k] = starts[i] + g
    front[-1].append(I("BAR", "bar", tag=B[0].need))
    for i, b in enumerate(B[:-1]):
        front[bp[i]].append(I("BAR", "bar", tag=B[i + 1].need))
    reserved = {}
    lazy = set(); nodrain = set()
    if cfg.hop == 1: front[bp[0] - 1].append(I("HOP", "hop"))
    if cfg.hop == 2: front[-1].insert(0, I("HOP", "hop"))
    for i, b in enumerate(B):
        if b.fronts:
            flat = [x for chunk in b.fronts for x in chunk]
            g = starts[i] + 2; k = 0
            while k < len(flat):
                n = 2
                if k + n < len(flat) and flat[k + n].t.startswith("s_addc"): n += 1
                front[g] += flat[k:k + n]; k += n; g += 1
        if b.post_bar: reserved[bp[i] + 1] = b.post_bar
    if cfg.psync:
        names = [b.name for b in B]
        i0, i1 = names.index(cfg.sync0), names.index(cfg.sync1)
        lag = 1 if cfg.psync == 1 else 2
        for i in range(i0, i1 + 1):
            r = sOld + (i % lag)
            if i >= i0 + lag and not cfg.nospin:
                front[bp[i] + 1] += [salu(f"s_mul_i32 s{sDif}, s{r}, s{sSign}"), I("SYNC", "sync")]
            if i <= i1 - lag:
                front[bp[i] + 2] += [salu(f"s_mov_b32 s{r}, s{sSign}"), salu(f"s_atomic_add s{r}, s[{sSy}:{sSy+1}], 0x0 glc")]
                if lag == 2:
                    lazy.add(bp[i + 1])
                    reserved[bp[i + 1] - 3] = [I(f"ds_read_b32 a251, v{vKB}", "dsv", rd=V(vKB), tag=("DUMMY", i))]
    R = []; Mq = []; Vq = []
    holder = {}
    nd = sum(len(grp) for grp in first); k = 0
    for grp in first:
        for x in grp:
            x.early = 0; x.ideal = 1 + cfg.H + k * min(36, cfg.QSPAN) / nd; x.dead = bp[0] - 1 - (nd - 1 - k)
            Mq.append(x); k += 1
    for i, b in enumerate(B):
        w0 = bp[i - 1] if i > 0 else -cfg.LEAD - 1
        w1 = bp[i] - (cfg.DEAD if (b.dma or b.after_reads or not b.name.startswith("op")) else 1) if i < len(B) - 1 else starts[i] + len(b.mf) - 12
        if b.name.startswith("op") and not b.dma and i < len(B) - 1: nodrain.add(bp[i])
        flat = []
        for key, parts, fixed in b.reads:
            reg = fixed if fixed is not None else fragreg[key]
            for (op, addr, off, sub, n) in parts:
                x = I(f"{op} {ar(reg+sub, n)}, v{addr} offset:{off}", "d" if n == 4 else "t", rd=V(addr), wr=Areg(reg+sub, n), tag=key)
                x.early = w0
                h = holder.get(reg)
                if h is not None and h != key: x.early = max(x.early, last_use[h])
                x.dead = min(w1, first_use[key] - 7)
                flat.append(x)
            holder[reg] = key
        n = len(flat)
        for k, x in enumerate(flat):
            x.ideal = w0 + k * (w1 - 2 - w0) / n
        flat[-1].post = b.after_reads
        R += flat
        nd = sum(len(grp) for grp in b.dma)
        if nd:
            nxt = bp[i + 1] if i + 1 < len(B) else M - 1
            span = min(cfg.QSPAN if b.name.startswith('qp') else cfg.DMASPAN, nxt - bp[i] - 4)
            k = 0
            for grp in b.dma:
                for x in grp:
                    x.early = bp[i] + 1; x.ideal = bp[i] + 1 + cfg.H + k * span / nd; x.dead = nxt - 1 - (nd - 1 - k)
                    Mq.append(x); k += 1
        for ins, g0, g1 in b.valu:
            g0 += starts[i]; g1 = min(g1 + starts[i], M - 1)
            tot = sum(slots(x) for x in ins); acc = 0
            for x in ins:
                x.early = g0; x.ideal = g0 + acc * max(0, (g1 - 1 - g0)) / tot; x.dead = g1
                acc += slots(x)
            Vq.append(ins)
    allv = []
    for li, ins in enumerate(Vq):
        for k, x in enumerate(ins): allv.append((x.ideal, li, k, x))
    allv.sort(key=lambda z: (z[0], z[1], z[2]))
    Vs = [z[3] for z in allv]
    for q in (R, Mq, Vs):
        for k in range(len(q) - 2, -1, -1): q[k].dead = min(q[k].dead, q[k + 1].dead)
    ri = mi = vi = 0
    while ri < len(R) and R[ri].ideal < 0:
        fill[-1].append(R[ri]); ri += 1
    last_dma = -10
    over = 0
    extra_v = []
    for g in range(M):
        def u(x):
            if x is None or x.early > g: return None
            v = g - x.ideal + cfg.H
            return v if v > 0 else None
        def at(q, i): return q[i] if i < len(q) else None
        vq = extra_v + Vs[vi:vi + 2]
        R0, R1, M0 = at(R, ri), at(R, ri + 1), at(Mq, mi)
        V0, V1 = at(vq, 0), at(vq, 1)
        if extra_v and R0 is not None and any(r in y.wr for y in extra_v for r in R0.rd): R0 = R1 = None
        if R0 is not None and R0.post: R1 = None
        if R1 is not None and extra_v and any(r in y.wr for y in extra_v for r in R1.rd): R1 = None
        ur0, ur1, um, uv0, uv1 = u(R0), u(R1), u(M0), u(V0), u(V1)
        if uv0 is not None: uv0 = min(uv0, cfg.VCAP)
        if uv1 is not None: uv1 = min(uv1, cfg.VCAP)
        plain = lambda x: x.k == "valu"
        opts = [(0.0, [])]
        if um is not None: opts.append((2 * um, [M0]))
        if uv0 is not None:
            if slots(V0) == 2: opts.append((2 * uv0, [V0]))
            else:
                opts.append((uv0, [V0]))
                if uv1 is not None and plain(V1): opts.append((uv0 + uv1, [V0, V1]))
                if ur0 is not None and plain(V0): opts.append((ur0 + uv0, [R0, V0]))
        if ur0 is not None:
            opts.append((ur0, [R0]))
            if ur1 is not None:
                opts.append((ur0 + ur1 - (cfg.TTPEN if R0.k == "t" else 0), [R0, R1]))
        sc, ch = max(opts, key=lambda z: z[0])
        ch = list(ch)
        if g in reserved:
            ch = []; fill[g] += reserved[g]
        def take(x):
            nonlocal ri, mi, vi, last_dma
            if x.k in ("d", "t"):
                ri += 1
                for y in x.post:
                    y.early = g + 1; y.ideal = g - 2; y.dead = g + cfg.DEAD - 1
                extra_v.extend(x.post)
            elif x.k == "dma": mi += 1
            elif extra_v and x is extra_v[0]: extra_v.pop(0)
            else: vi += 1
            if x.pre:
                if last_dma < g - 1 and not any(y.k == "bar" for y in front[g]) and g > 0: front[g - 1] += x.pre
                elif last_dma < g: front[g] += x.pre
                else: fill[g] += x.pre
            if x.k in ("dma", "store"): last_dma = g
            fill[g].append(x)
        for x in ch: take(x)
        while True:
            cand = None
            if extra_v and extra_v[0].dead <= g and extra_v[0].early <= g: cand = extra_v[0]
            elif ri < len(R) and R[ri].dead <= g and not extra_v: cand = R[ri]
            elif mi < len(Mq) and Mq[mi].dead <= g: cand = Mq[mi]
            elif vi < len(Vs) and Vs[vi].dead <= g: cand = Vs[vi]
            if cand is None: break
            assert cand.early <= g, (cand.t, cand.early, cand.dead, g)
            take(cand); over += slots(cand)
    assert ri == len(R) and mi == len(Mq) and vi == len(Vs), (ri, len(R), mi, len(Mq), vi, len(Vs))
    for i, b in enumerate(B):
        for x in b.tail:
            fill[starts[i] + len(b.mf) - 1] += x.pre + [x]
    sys.stderr.write(f"forced slots {over}\n")
    out = []
    lg = []; lg_done = 0; vm = []; lastread = {}
    cur = []
    def emit(lst, g):
        nonlocal lg_done
        for x in lst:
            if x.k == "bar":
                need = max(i2 for i2, tg in enumerate(vm) if tg in x.tag)
                for tg in x.tag: assert tg in vm, (tg, g)
                n = min(len(vm) - 1 - need, 63)
                if g in lazy: assert lg[-1][0][0] == "DUMMY", (lg[-1], g)
                if g in nodrain:
                    cur.append(I(f"s_waitcnt vmcnt({n})", "wait"))
                else:
                    cur.append(I(f"s_waitcnt vmcnt({n}) lgkmcnt({1 if g in lazy else 0})", "wait"))
                    lg_done = len(lg)
                cur.append(I("s_barrier", "salu"))
            elif x.k in ("d", "t", "dsv"):
                lg.append((x.tag, g)); lastread[x.tag] = len(lg) - 1; cur.append(x)
            elif x.k in ("dma", "store"):
                vm.append(x.tag); cur.append(x)
            else: cur.append(x)
    nparts = {}
    for x in R: nparts[x.tag] = nparts.get(x.tag, 0) + 1
    def lwait(mf, g, strict):
        nonlocal lg_done
        keys = [mf[1]] + mf[6]
        for k in keys:
            if sum(1 for tg, _ in lg[-40:] if tg == k) < nparts.get(k, 1) and (k not in lastread or lastread[k] >= max(0, len(lg) - 40)):
                assert not strict, ("operand not read", k, g)
                return
        needi = max(lastread[k] for k in keys)
        if needi >= lg_done:
            n_need = len(lg) - 1 - needi
            n_safe = sum(1 for (_, gg) in lg[lg_done:] if gg > g - cfg.SAFE)
            n = min(n_need, max(n_safe, 2), 15)
            cur.append(I(f"s_waitcnt lgkmcnt({n})", "wait"))
            lg_done = len(lg) - n
    for grp in pre_dma:
        for x in grp:
            emit(x.pre, -1); emit([x], -1)
    emit(front[-1], -1); emit(fill[-1], -1)
    out.append(("pre", cur))
    allmf = [mf for b in B for mf in b.mf]
    for i, b in enumerate(B):
        cur = []
        for gi, mf in enumerate(b.mf):
            g = starts[i] + gi
            d, key, bt, brs, ct, crs, extra = mf
            lwait(mf, g, True)
            fr = fragreg[key]
            cur.append(I(f"{MF} {vr(d,4)}, {ar(fr,4)}, {bt}, {ct}", "mfma", rd=Areg(fr, 4) + brs, wr=V(d, 4), c=crs))
            emit(front[g], g)
            if g + 1 < M: lwait(allmf[g + 1], g, False)
            emit(fill[g], g)
        out.append((b.name, cur))
    return out

def hazard_pass(segs):
    pos = 0; res = []; lastw = {}; lastc = {}; lasts = {}; pend = {}; nn = 0
    for name, lst in segs:
        o = []
        for x in lst:
            need = 0
            def req(p, d):
                nonlocal need
                need = max(need, d - (pos - p - 1))
            isv = x.k in ("valu", "trans", "perm")
            for r in x.rd + x.c:
                if r in lastw:
                    p, k, full = lastw[r]
                    if k == "mfma":
                        if x.k == "mfma":
                            if r in x.rd: req(p, 8)
                            elif tuple(x.c) != full: req(p, 6)
                        else: req(p, 8)
                    elif k in ("valu", "trans", "perm"):
                        if x.k in ("mfma", "perm"): req(p, 2)
                        if k == "trans" and x.k != "trans": req(p, 1)
                    elif k == "salu" and r == ("m0", 0): req(p, 1)
            for r in x.wr:
                if r in lastw and lastw[r][1] == "mfma" and (x.k != "mfma" or tuple(x.c) != lastw[r][2]): req(lastw[r][0], 8)
                if isv and r in lastc: req(lastc[r], 3)
                if r in lasts: req(lasts[r], 2)
            if x.k in ("d", "t"):
                for r in x.wr:
                    assert r not in pend, ("fragment overwritten before use", name, x.t)
                    pend[r] = 1
            if x.k == "mfma":
                for r in x.rd: pend.pop(r, None)
            while need > 0:
                k = min(need, 16)
                o.append(I(f"s_nop {k-1}", "nop")); pos += k; need -= k; nn += 1
            o.append(x)
            for r in x.wr: lastw[r] = (pos, x.k, tuple(x.wr))
            if x.k == "mfma":
                for r in x.c: lastc[r] = pos
            if x.k == "store":
                for r in x.rd: lasts[r] = pos
            pos += 1
        res.append((name, o))
    return res, nn

def srd(A, d, p, offreg, size):
    A(f"s_add_u32 s{d}, s{p}, s{offreg}")
    A(f"s_addc_u32 s{d+1}, s{p+1}, 0")
    A(f"s_and_b32 s{d+1}, s{d+1}, 0xffff")
    A(f"s_mov_b32 s{d+2}, {size}")
    A(f"s_mov_b32 s{d+3}, 0x20000")

def setup_code(cfg):
    L = []; A = L.append
    A("s_load_dwordx16 s[44:59], s[0:1], 0")
    A("s_load_dwordx4 s[60:63], s[0:1], 64")
    A("s_load_dwordx2 s[64:65], s[0:1], 96")
    A("s_cmp_ge_u32 s2, 256")
    A("s_cbranch_scc1 L_exit")
    if cfg.stamp:
        A("s_memtime s[80:81]"); A("s_memrealtime s[94:95]")
    A("v_lshrrev_b32 v1, 6, v0")
    A("v_and_b32 v64, 63, v0")
    A(f"v_readfirstlane_b32 s{sWave}, v1")
    A("s_and_b32 s66, s2, 7"); A("s_lshr_b32 s67, s2, 3")
    A("s_lshr_b32 s68, s66, 2")
    A("s_and_b32 s69, s67, 1")
    A("s_lshr_b32 s70, s67, 1")
    A("s_and_b32 s71, s70, 7")
    A("s_lshr_b32 s70, s70, 3")
    A("s_and_b32 s72, s66, 3"); A("s_lshl_b32 s72, s72, 1"); A("s_add_u32 s72, s72, s70")
    A("s_lshl_b32 s73, s72, 1"); A("s_add_u32 s73, s73, s69")
    if cfg.rot:
        A("s_add_u32 s90, s71, s73"); A(f"s_and_b32 s90, s90, {cfg.rotmask}"); A(f"s_mul_i32 s90, s90, {128*cfg.rot}")
    A(f"s_lshl_b32 s{sW4K}, s{sWave}, 12")
    A(f"s_lshl_b32 s{sW64K}, s{sWave}, 16")
    A(f"s_mul_i32 s{sW28K}, s{sWave}, 28672")
    A(f"s_sub_u32 s{sKoff}, s{sW4K}, 16384")
    A(f"s_sub_u32 s{sVoff}, s{sW4K}, 16384")
    A(f"s_mov_b32 s{sScale}, {f32bits(math.log2(math.e) / 16.0):#x}")
    A(f"s_and_b32 s76, s{sWave}, 1"); A("s_lshl_b32 s76, s76, 3")
    A("v_lshrrev_b32 v65, 5, v64"); A("v_and_b32 v66, 31, v64")
    A("v_lshrrev_b32 v71, 3, v64"); A("v_and_b32 v72, 7, v64")
    A("v_mul_u32_u24 v73, 896, v71")
    A("v_lshrrev_b32 v74, 1, v71")
    A("v_xor_b32 v74, v74, v72")
    A("v_lshl_add_u32 v75, v74, 4, v73")
    A("v_xor_b32 v74, 4, v74")
    A("v_lshl_add_u32 v76, v74, 4, v73")
    for k in range(4):
        A(f"v_add_u32 v{vXD+k}, {k*(8*896-1024)}, v{75 + (k & 1)}")
    A("v_lshlrev_b32 v73, 1, v65"); A("v_xor_b32 v73, v73, v66"); A("v_xor_b32 v73, s76, v73")
    A("v_lshlrev_b32 v74, 13, v65")
    A("v_lshl_add_u32 v75, v73, 4, v74")
    A("v_xor_b32 v73, 4, v73")
    A("v_lshl_add_u32 v76, v73, 4, v74")
    for k in range(4):
        A(f"v_add_u32 v{vWD+k}, {k*(16384-1024)}, v{75 + (k & 1)}")
    A("s_waitcnt lgkmcnt(0)")
    if cfg.hstamp: A("s_memtime s[82:83]")
    A("s_cmp_eq_u32 s68, 0")
    for a, b in ((44, 54), (50, 60), (46, 56), (48, 58), (52, 62)):
        A(f"s_cselect_b32 s{a}, s{a}, s{b}"); A(f"s_cselect_b32 s{a+1}, s{a+1}, s{b+1}")
    A("s_mul_i32 s74, s71, 114688"); srd(A, sX, 44, 74, 114688)
    A("s_lshl_b32 s74, s73, 9"); A(f"s_sub_u32 s75, {448*8192}, s74"); srd(A, sWQ, 50, 74, "s75")
    return L

def touch_code(cfg):
    L = []
    A = lambda t: L.append(I(t, "raw"))
    T = lambda t: L.append(I(t, "dma", tag=("T", 0)))
    if "w" in cfg.touch:
        A("v_lshrrev_b32 v73, 2, v64"); A("v_min_u32 v73, 13, v73"); A("v_lshlrev_b32 v73, 13, v73")
        A("v_and_b32 v74, 3, v64"); A("v_lshl_add_u32 v73, v74, 7, v73")
        A(f"s_lshl_b32 s74, s71, 2"); A(f"s_add_u32 s74, s74, s{sWave}"); A(f"s_mul_i32 s74, s74, {14*8192}")
        T(f"buffer_load_dword a255, v73, s[{sWQ}:{sWQ+3}], s74 offen{cfg.t_flags}")
    if "x" in cfg.touch:
        A("v_min_u32 v73, 55, v64"); A("v_lshlrev_b32 v73, 7, v73")
        A("s_and_b32 s74, s73, 3"); A("s_lshl_b32 s74, s74, 2"); A(f"s_add_u32 s74, s74, s{sWave}"); A(f"s_mul_i32 s74, s74, {56*128}")
        T(f"buffer_load_dword a254, v73, s[{sX}:{sX+3}], s74 offen{cfg.t_flags}")
    if "c" in cfg.touch:
        A("s_getpc_b64 s[20:21]")
        A("s_and_b32 s21, s21, 0xffff"); A("s_mov_b32 s22, CODE_BYTES"); A("s_mov_b32 s23, 0x20000")
        A("v_lshlrev_b32 v73, 7, v64")
        A(f"s_and_b32 s74, s67, 1"); A("s_lshl_b32 s74, s74, 2"); A(f"s_add_u32 s74, s74, s{sWave}"); A("s_lshl_b32 s74, s74, 13")
        T(f"buffer_load_dword a253, v73, s[20:23], s74 offen")
    return L

def stouch_setup():
    L = []; A = L.append
    A("v_lshlrev_b32 v73, 13, v65"); A("v_lshl_add_u32 v80, v66, 4, v73")
    A("v_mul_u32_u24 v73, 896, v71"); A("v_lshl_add_u32 v81, v72, 4, v73")
    A(f"s_lshl_b32 s74, s71, 2"); A(f"s_add_u32 s74, s74, s{sWave}"); A("s_lshl_b32 s90, s74, 14")
    A("s_and_b32 s74, s73, 3"); A("s_lshl_b32 s74, s74, 2"); A(f"s_add_u32 s74, s74, s{sWave}"); A(f"s_mul_i32 s91, s74, {8*896}")
    return L
def stouch(st, cfg):
    a = I(f"buffer_load_dwordx4 a[240:243], v80, s[{sWQ}:{sWQ+3}], s92 offen{cfg.t_flags}", "dma", tag=("T", 2))
    a.pre = [salu(f"s_add_u32 s92, s90, {st*64*8192}")]
    return [a, I(f"buffer_load_dwordx4 a[244:247], v81, s[{sX}:{sX+3}], s91 offen offset:{128*st}{cfg.t_flags}", "dma", tag=("T", 2))]

def kd_code(cfg):
    L = []; A = L.append
    if cfg.hstamp == 2:
        A("s_memtime s[84:85]"); A(f"s_waitcnt vmcnt({cfg.npre})"); A("s_memtime s[86:87]")
    A("s_lshl_b32 s74, s71, 3"); A("s_add_u32 s74, s74, s72"); A("s_lshl_b32 s74, s74, 20")
    srd(A, sK, 46, 74, 1 << 20); srd(A, sV, 48, 74, 1 << 20)
    A("v_xor_b32 v73, v65, v66"); A("v_xor_b32 v73, s76, v73"); A("v_lshlrev_b32 v74, 9, v65")
    for k in range(4):
        A(f"v_xor_b32 v75, {2*k}, v73"); A(f"v_lshl_add_u32 v{vKD+k}, v75, 4, v74")
    return L

def setup_code2(cfg):
    L = []; A = L.append
    if cfg.hstamp == 1: A("s_memtime s[84:85]")
    A("s_mul_i32 s74, s73, 229376"); srd(A, sWO, 52, 74, 229376)
    A("s_lshl_b32 s74, s68, 3"); A("s_add_u32 s74, s74, s71"); A("s_lshl_b32 s74, s74, 4"); A("s_add_u32 s74, s74, s73")
    A(f"s_mul_i32 s74, s74, {cfg.SST}"); A(f"s_add_u32 s74, s74, {cfg.wsoff}"); srd(A, sPT, 64, 74, cfg.SST)
    if cfg.psync:
        A("s_lshl_b32 s74, s66, 4"); A("s_lshr_b32 s75, s67, 1"); A("s_add_u32 s74, s74, s75"); A("s_lshl_b32 s74, s74, 2")
        A(f"s_add_u32 s74, s74, s{sWave}"); A("s_lshl_b32 s74, s74, 7"); A("s_add_u32 s74, s74, 0x2000000")
        A(f"s_add_u32 s{sSy}, s64, s74"); A(f"s_addc_u32 s{sSy+1}, s65, 0")
        A(f"s_lshl_b32 s{sSign}, s69, 1"); A(f"s_sub_u32 s{sSign}, 1, s{sSign}")
        A(f"s_sub_u32 s{sOld}, 0, s69")
        A(f"s_atomic_and s{sOld}, s[{sSy}:{sSy+1}], 0x0")
    A("s_mov_b32 s3, 0")
    if cfg.fuse:
        A("s_load_dwordx4 s[56:59], s[0:1], 80")
        A("s_memrealtime s[60:61]")
        A("s_lshl_b32 s70, s68, 3"); A("s_add_u32 s70, s70, s71")
    A("v_lshrrev_b32 v67, 4, v64"); A("v_bfe_u32 v68, v64, 2, 2"); A("v_and_b32 v69, 3, v64"); A("v_and_b32 v70, 15, v64")
    A("v_lshlrev_b32 v73, 1, v65"); A("v_xor_b32 v73, v73, v66"); A("v_lshlrev_b32 v74, 9, v65")
    for k in range(4):
        A(f"v_xor_b32 v75, {4*k}, v73"); A(f"v_lshl_add_u32 v{vVD+k}, v75, 4, v74")
    A("v_bfe_u32 v76, v64, 2, 3")
    A("v_lshl_add_u32 v73, v67, 3, v68"); A("v_lshlrev_b32 v73, 9, v73"); A("v_lshl_add_u32 v73, v69, 3, v73")
    for j in range(8):
        A(f"v_xor_b32 v75, {j}, v76"); A(f"v_lshl_add_u32 v{vQA+j}, v75, 5, v73")
    A("v_lshlrev_b32 v73, 7, v70"); A(f"v_add_u32 v73, s{sW4K}, v73"); A("v_add_u32 v73, 32768, v73")
    A("v_lshrrev_b32 v74, 1, v70"); A("v_xor_b32 v74, v74, v67")
    for kt in range(2):
        A(f"v_xor_b32 v75, {4*kt}, v74"); A(f"v_lshl_add_u32 v{vXA+kt}, v75, 4, v73")
    A("v_lshrrev_b32 v73, 2, v64"); A("v_lshlrev_b32 v73, 9, v73"); A("v_lshl_add_u32 v73, v69, 3, v73"); A(f"v_add_u32 v73, {VRING}, v73")
    for j in range(8):
        A(f"v_xor_b32 v75, {j}, v76"); A(f"v_lshl_add_u32 v{vVB+j}, v75, 5, v73")
    A("v_lshlrev_b32 v73, 9, v70"); A(f"v_add_u32 v73, {KRING}, v73"); A("v_xor_b32 v74, v67, v70")
    for j in range(4):
        A(f"v_xor_b32 v75, {4*j}, v74"); A(f"v_lshl_add_u32 v{vKB+j}, v75, 4, v73")
    A(f"v_lshlrev_b32 v73, 4, v64"); A(f"s_mul_i32 s74, s{sWave}, {cfg.WST}"); A(f"v_add_u32 v{vST}, s74, v73")
    A("v_mul_u32_u24 v74, 896, v71"); A("v_lshlrev_b32 v75, 1, v67"); A("v_xor_b32 v75, v75, v72"); A("v_lshl_add_u32 v74, v75, 4, v74")
    for k in range(4):
        A(f"v_add_u32 v75, {k*(8*896-1024)}, v74"); A(f"v_accvgpr_write_b32 a{PARK+k}, v75")
    A("v_lshrrev_b32 v74, 2, v64"); A("v_lshlrev_b32 v74, 7, v74"); A("v_lshl_add_u32 v74, v69, 3, v74"); A("v_and_b32 v77, 3, v71")
    for nb in range(4):
        A(f"v_xor_b32 v75, {nb}, v77"); A(f"v_lshl_add_u32 v75, v75, 5, v74")
        A(f"v_add_u32 v78, {KRING}, v75"); A(f"v_accvgpr_write_b32 a{PARK+4+nb}, v78")
        A(f"v_add_u32 v78, {VRING}, v75"); A(f"v_accvgpr_write_b32 a{PARK+8+nb}, v78")
        A(f"v_accvgpr_write_b32 a{PARK+12+nb}, v75")
    A("v_min_u32 v74, 55, v64"); A("v_lshlrev_b32 v74, 7, v74"); A(f"v_mov_b32 v{vQW}, v74")
    A(f"s_lshl_b32 s77, s71, 2"); A(f"s_add_u32 s77, s77, s{sWave}"); A(f"s_mul_i32 s77, s77, {56*128}")
    if "l" in cfg.touch:
        A(f"v_lshlrev_b32 v{vQW}, 4, v64"); A(f"v_add_u32 v{vQW}, {cfg.LOFF*1024}, v{vQW}"); A(f"s_sub_u32 s77, s77, {(cfg.LOFF+1+cfg.LSKIP)*1024}")
    return L

def tail_prep_salu(cfg):
    chunks = []
    def chunk():
        L = []; chunks.append(L)
        return lambda t: L.append(salu(t))
    A = chunk(); A("s_memrealtime s[62:63]")
    A(f"s_mul_i32 s74, s70, {16*cfg.SST}"); A(f"s_add_u32 s74, s74, {cfg.wsoff}")
    A = chunk(); srd(A, 4, 64, 74, 16*cfg.SST)
    A = chunk(); A("s_mov_b32 s74, 0"); srd(A, 8, 56, 74, 1835008)
    A = chunk(); srd(A, 16, 58, 74, 256)
    A = chunk(); A("s_mov_b32 s74, 0x2400000"); srd(A, 12, 64, 74, 65536)
    A = chunk()
    A("s_lshl_b32 s67, s70, 2")
    A(f"s_lshr_b32 s66, s{sWave}, 1"); A("s_lshl_b32 s66, s66, 4"); A("s_add_u32 s66, s66, s70"); A("s_lshl_b32 s66, s66, 11")
    A = chunk()
    A(f"s_add_u32 s60, s60, {2000 if not cfg.force_abandon else 0x7fffffff}"); A("s_addc_u32 s61, s61, 0")
    A("s_mov_b32 s54, s60"); A("s_add_u32 s55, s61, 1")
    A = chunk()
    A("s_mov_b32 s52, 0x3f80"); A("s_mov_b32 s53, 0x3f800000"); A("s_mov_b32 s49, 32768")
    A("s_lshl_b32 s72, s70, 4"); A("s_add_u32 s72, s72, s73"); A("s_lshl_b32 s72, s72, 7")
    A(f"s_lshl_b32 s69, s{sWave}, 28"); A("s_add_u32 s72, s72, s69")
    return chunks

def tail_prep_valu(cfg):
    L = []
    def A(t, w, r=()): L.append(valu(t, rd=[("v", x) for x in r], wr=V(w)))
    A("v_mbcnt_lo_u32_b32 v0, -1, 0", 0); A("v_mbcnt_hi_u32_b32 v0, -1, v0", 0, [0])
    A("v_lshlrev_b32 v1, 4, v0", 1, [0])
    A("v_and_b32 v6, 15, v0", 6, [0]); A("v_lshlrev_b32 v5, 7, v6", 5, [6])
    A("v_mul_u32_u24 v8, 1792, v6", 8, [6]); A("v_lshrrev_b32 v6, 4, v0", 6, [0]); A("v_lshl_add_u32 v8, v6, 4, v8", 8, [6, 8])
    A("v_lshlrev_b32 v12, 20, v0", 12, [0]); A("v_add_u32 v12, s72, v12", 12, [12])
    A("v_mov_b32 v4, 1", 4); A("v_mov_b32 v2, s62", 2); A("v_mov_b32 v3, s63", 3)
    return L

def tail_code(cfg):
    L = []; A = L.append
    A("buffer_load_dwordx2 v[6:7], v5, s[12:15], s66 offen sc1")
    A(f"s_mov_b32 s69, {cfg.ptime}")
    A("s_waitcnt vmcnt(1)")
    if cfg.stamp: A("s_memrealtime s[96:97]")
    A("s_barrier")
    A("buffer_store_dwordx2 v[2:3], v12, s[12:15], s49 offen sc1")
    A("s_waitcnt vmcnt(1)")
    A("s_branch L_chk")
    A("L_poll:")
    A("buffer_load_dwordx2 v[6:7], v5, s[12:15], s66 offen sc1")
    A("s_waitcnt vmcnt(0)")
    A("L_chk:")
    A("v_cmp_le_u64 vcc, s[60:61], v[6:7]")
    A("v_cmp_ge_u64 s[74:75], s[54:55], v[6:7]")
    A("s_and_b64 vcc, vcc, s[74:75]")
    A("s_cmp_eq_u64 vcc, exec")
    A("s_cbranch_scc1 L_go")
    A("s_sub_u32 s69, s69, 1")
    A("s_cmp_lg_u32 s69, 0")
    A("s_cbranch_scc1 L_poll")
    A("s_add_u32 s74, s73, 8"); A("s_lshl_b32 s74, 1, s74")
    A("v_mov_b32 v9, s74")
    A("s_mov_b64 exec, 1")
    A("buffer_atomic_or v9, off, s[16:19], s67 sc0 sc1")
    A("s_waitcnt vmcnt(0)")
    A("s_mov_b64 exec, -1")
    A("v_readfirstlane_b32 s74, v9")
    A("s_and_b32 s74, s74, 0xff")
    A("s_cmp_lg_u32 s74, 16")
    A("s_cbranch_scc1 L_fin")
    A("L_go:")
    if cfg.stamp: A("s_memrealtime s[38:39]"); A("s_mov_b32 s37, s69"); A("s_waitcnt lgkmcnt(0)")
    A("s_mov_b32 s50, s73"); A(f"s_mov_b32 s51, s{sWave}")
    A(f"s_call_b64 s[{sRet}:{sRet+1}], L_red")
    A("L_fin:")
    if cfg.stamp: A("s_waitcnt lgkmcnt(0)")
    A(f"s_cmp_lg_u32 s{sWave}, 1")
    A("s_cbranch_scc1 L_done")
    A("s_mov_b64 exec, 1")
    A("buffer_atomic_add v4, off, s[16:19], s67 sc0 sc1")
    A("s_waitcnt vmcnt(0)")
    A("s_mov_b64 exec, -1")
    A("v_readfirstlane_b32 s48, v4")
    A("s_and_b32 s74, s48, 0xff")
    A("s_cmp_lg_u32 s74, 15")
    A("s_cbranch_scc1 L_done")
    A("s_bfe_u32 s48, s48, 0x100008")
    A("L_redo:")
    A("s_cmp_eq_u32 s48, 0")
    A("s_cbranch_scc1 L_done")
    A("s_ff1_i32_b32 s50, s48")
    A("s_bitset0_b32 s48, s50")
    A("s_mov_b32 s51, 0")
    A("L_redo1:")
    A(f"s_call_b64 s[{sRet}:{sRet+1}], L_red")
    A("s_add_u32 s51, s51, 1")
    A("s_cmp_lt_u32 s51, 4")
    A("s_cbranch_scc1 L_redo1")
    A("s_branch L_redo")
    A("L_done:")
    return L

def red_code(cfg):
    L = []; A = L.append
    A("L_red:")
    A("s_lshr_b32 s74, s50, 2"); A(f"s_mul_i32 s44, s74, {cfg.WST}")
    A("s_and_b32 s75, s50, 3"); A("s_lshl_b32 s75, s75, 10"); A("s_add_u32 s44, s44, s75")
    A("s_lshl_b32 s75, s51, 13"); A("s_add_u32 s44, s44, s75")
    A("s_cmp_eq_u32 s51, 3")
    A("s_cselect_b32 s46, 0x40000000, 4096"); A("s_cselect_b32 s47, 0x40000000, 128")
    A("v_add_u32 v10, s46, v1"); A("v_add_u32 v11, s47, v8")
    for st, (base, vo) in enumerate(((128, 1), (64, 10))):
        A("s_mov_b32 s45, s44")
        for h in range(16):
            A(f"buffer_load_dwordx4 v[{base+4*h}:{base+4*h+3}], v{vo}, s[4:7], s45 offen sc1")
            if h < 15: A(f"s_add_u32 s45, s45, {cfg.SST}")
    A("s_lshl_b32 s45, s71, 3"); A("s_lshr_b32 s75, s50, 1"); A("s_add_u32 s45, s45, s75"); A(f"s_mul_i32 s45, s45, {16*1792}")
    A("s_mul_i32 s75, s68, 896"); A("s_add_u32 s45, s45, s75")
    A("s_lshl_b32 s75, s51, 8"); A("s_add_u32 s45, s45, s75")
    A("s_and_b32 s75, s50, 1"); A("s_lshl_b32 s75, s75, 6"); A("s_add_u32 s45, s45, s75")
    for st, (base, vo, acc) in enumerate(((128, 8, 16), (64, 11, 32))):
        for k in range(8): A(f"v_mov_b32 v{acc+k}, 0")
        for h in range(16):
            A(f"s_waitcnt vmcnt({(31 - h) if st == 0 else (16 - h)})")
            for k in range(4):
                A(f"v_dot2c_f32_bf16 v{acc+2*k}, s52, v{base+4*h+k}")
                A(f"v_dot2c_f32_bf16 v{acc+2*k+1}, s53, v{base+4*h+k}")
        A("s_nop 2")
        for k in range(4): A(f"v_cvt_pk_bf16_f32 v{acc+8+k}, v{acc+2*k}, v{acc+2*k+1}")
        A("s_nop 1")
        A(f"v_permlane32_swap_b32 v{acc+8}, v{acc+10}"); A(f"v_permlane32_swap_b32 v{acc+9}, v{acc+11}")
        A("s_nop 1")
        A(f"v_permlane16_swap_b32 v{acc+8}, v{acc+10}"); A(f"v_permlane16_swap_b32 v{acc+9}, v{acc+11}")
        A(f"buffer_store_dwordx4 v[{acc+8}:{acc+11}], v{vo}, s[8:11], s45 offen")
    A(f"s_setpc_b64 s[{sRet}:{sRet+1}]")
    return L

def rare_code(par, has_next):
    ins = [I("s_nop 9", "nop")]
    for qb in range(2):
        ins += rowmax_instrs(par, qb, vD, vF)
        ins.append(valu(f"v_max_f32 v{vD}, 0, v{vD}", rd=V(vD), wr=V(vD)))
        ins.append(valu(f"v_sub_f32 v{vF}, 0, v{vD}", rd=V(vD), wr=V(vF)))
        ins.append(trans(f"v_exp_f32 v{vF}, v{vF}", rd=V(vF), wr=V(vF)))
        regs = [NEGM + 4*qb + k for k in range(4)] + [sreg(par, kb, qb) + k for kb in range(2) for k in range(4)]
        if has_next: regs += [sreg(1 - par, kb, qb) + k for kb in range(2) for k in range(4)]
        for r in regs: ins.append(valu(f"v_sub_f32 v{r}, v{r}, v{vD}", rd=V(r)+V(vD), wr=V(r)))
        for r in [vL + qb] + [oreg(db, qb) + k for db in range(16) for k in range(4)]:
            ins.append(valu(f"v_mul_f32 v{r}, v{r}, v{vF}", rd=V(r)+V(vF), wr=V(r)))
    ins += sm_instrs(par)
    ins.append(I("s_nop 1", "nop"))
    ins.append(I(f"s_setpc_b64 s[{sRet}:{sRet+1}]", "salu"))
    segs, _ = hazard_pass([("rare", ins)])
    return [x.t for x in segs[0][1]]

def reduce_kernel(cfg):
    L = []; A = L.append
    A(".p2align 8")
    A("reduce_kernel:")
    A("s_cmp_ge_u32 s2, 448")
    A("s_cbranch_scc1 L_rexit")
    A("s_load_dwordx2 s[4:5], s[0:1], 96")
    A("s_load_dwordx2 s[6:7], s[0:1], 80")
    A("s_mul_hi_u32 s16, s2, 0x924924a")
    A("s_mul_i32 s17, s16, 28"); A("s_sub_u32 s17, s2, s17")
    A("s_mul_hi_u32 s18, s17, 0x24924925")
    A("s_mul_i32 s19, s18, 7"); A("s_sub_u32 s19, s17, s19")
    A("v_lshlrev_b32 v1, 4, v0")
    A("s_lshl_b32 s20, s17, 12")
    A("v_add_u32 v1, s20, v1")
    A("s_mul_i32 s21, s16, 1835008"); A(f"s_add_u32 s21, s21, {cfg.wsoff}")
    A("s_waitcnt lgkmcnt(0)")
    A("s_add_u32 s8, s4, s21"); A("s_addc_u32 s9, s5, 0"); A("s_and_b32 s9, s9, 0xffff")
    A("s_mov_b32 s10, 1835008"); A("s_mov_b32 s11, 0x20000")
    A("s_mov_b32 s12, s6"); A("s_and_b32 s13, s7, 0xffff"); A("s_mov_b32 s14, 1835008"); A("s_mov_b32 s15, 0x20000")
    A("s_mov_b32 s22, 0")
    for h in range(16):
        A(f"buffer_load_dwordx4 v[{16+4*h}:{19+4*h}], v1, s[8:11], s22 offen{cfg.rd_flags}")
        if h < 15: A("s_add_u32 s22, s22, 114688")
    A("v_and_b32 v2, 15, v0")
    A("v_lshrrev_b32 v3, 7, v0"); A("v_lshl_add_u32 v2, v3, 4, v2")
    A("s_and_b32 s23, s16, 7"); A("s_lshl_b32 s23, s23, 7"); A("s_lshl_b32 s24, s18, 5"); A("s_add_u32 s23, s23, s24")
    A("v_add_u32 v2, s23, v2")
    A("v_mul_u32_u24 v2, 1792, v2")
    A("v_bfe_u32 v3, v0, 4, 3")
    A("v_lshl_add_u32 v2, v3, 4, v2")
    A("s_lshr_b32 s23, s16, 3"); A("s_mul_i32 s23, s23, 896"); A("s_lshl_b32 s24, s19, 7"); A("s_add_u32 s23, s23, s24")
    for h in range(16):
        A(f"s_waitcnt vmcnt({15-h})")
        for k in range(4):
            src = 16 + 4*h + k
            if h == 0:
                A(f"v_lshlrev_b32 v{4+2*k}, 16, v{src}"); A(f"v_and_b32 v{5+2*k}, 0xffff0000, v{src}")
            else:
                A(f"v_lshlrev_b32 v12, 16, v{src}"); A(f"v_and_b32 v13, 0xffff0000, v{src}")
                A(f"v_add_f32 v{4+2*k}, v{4+2*k}, v12"); A(f"v_add_f32 v{5+2*k}, v{5+2*k}, v13")
    for k in range(4):
        A(f"v_cvt_pk_bf16_f32 v{12+k}, v{4+2*k}, v{5+2*k}")
    A("s_nop 1")
    A("v_permlane32_swap_b32 v12, v14"); A("v_permlane32_swap_b32 v13, v15")
    A("s_nop 1")
    A("v_permlane16_swap_b32 v12, v14"); A("v_permlane16_swap_b32 v13, v15")
    A("buffer_store_dwordx4 v[12:15], v2, s[12:15], s23 offen")
    A("L_rexit:")
    A("s_endpgm")
    return L

FLEX = ("v_exp_f32", "v_add_f32", "v_max_f32", "v_mul_f32", "v_sub_f32", "v_mov_b32", "v_rcp_f32")
def isize(t):
    op = t.split()[0]
    if op.endswith(":") or op.startswith(";") or op.startswith("."): return 0
    if op.startswith(("v_mfma", "ds_", "buffer_", "v_cvt_pk", "v_accvgpr", "v_max3", "s_atomic", "s_load", "s_mem", "v_writelane")) or op.endswith("_e64"): return 8
    import re
    lits = [x for x in re.findall(r"(?<![\w\[:(])(-?0x[0-9a-f]+|-?\d+)(?![\w\]:)])", t[len(op):])]
    if op.startswith(("s_waitcnt", "s_nop", "s_barrier", "s_cbranch", "s_branch", "s_sleep", "s_call")): return 4
    for x in lits:
        v = int(x, 0)
        if not -16 <= v <= 64: return 8
    return 4
def align8(L, mode):
    out = []; off = 0; on = False
    for k, t in enumerate(L):
        if t == "L_loop:": on = True; off = 0
        if on and t.split()[0] in FLEX and isize(t) == 4:
            n4 = 0; flexnext = False
            for u in L[k + 1:]:
                sz = isize(u)
                if sz == 0: continue
                if u.split()[0] in FLEX and sz == 4: flexnext = True; break
                if sz == 8: break
                n4 += 1
            if not flexnext and (off + 4 + 4 * n4) % 8 != 0:
                t = t.replace(t.split()[0], t.split()[0] + "_e64", 1)
        out.append(t); off += isize(t)
        if t == "s_cbranch_scc1 L_loop": on = False
    return out

def insert_pads(L, KN):
    import subprocess, re, tempfile, os
    def addrs(lines):
        out = []; cand = []
        inloop = False
        for i, t in enumerate(lines):
            out.append(t)
            if t == "L_loop:": inloop = True
            if t == "s_cbranch_scc1 L_loop": inloop = False
            if (t.startswith("v_mfma") or t.startswith("v_dot2c")) and not inloop:
                out.append(f"LC_{i}:"); cand.append(i)
        txt = "\n".join(out) + "\n"
        for w in range(4):
            if f"L_pad{w}:" not in txt: txt = txt.replace("L_hopback:", f"L_pad{w}:\nL_hopback:")
        d = tempfile.mkdtemp()
        open(d + "/a.s", "w").write(txt)
        subprocess.run(["clang", "-x", "assembler", "-target", "amdgcn-amd-amdhsa", "-mcpu=gfx950", "-c", d + "/a.s", "-o", d + "/a.o"], check=True)
        o = subprocess.run(["llvm-objdump", "-t", d + "/a.o"], capture_output=True, text=True).stdout
        a = {}
        for m in re.finditer(r"^([0-9a-f]+) .* \.text\s+[0-9a-f]+ (?:\.\w+ )?(\w+)$", o, flags=re.M): a[m.group(2)] = int(m.group(1), 16)
        return {i: a[f"LC_{i}"] - a[KN] for i in cand}, a["L_hopback"] - a[KN]
    lines = list(L)
    pads = []
    page = None
    while True:
        ad, hb = addrs(lines)
        if page is None: page = hb // 4096 + 1
        c = [i for i in sorted(ad) if ad[i] >= page * 4096]
        if not c: break
        i = c[0]
        if ad[i] - page * 4096 > 256: page += 1; continue
        lines.insert(i + 1, f"PAD {len(pads)}")
        lines[i + 1] = "s_nop 0 ;PAD"
        pads.append(page); page += 1
    n = len(pads); k = 0
    res = []
    for t in lines:
        if t == "s_nop 0 ;PAD":
            res.append(f"L_pad{k}:")
            res.append(f"s_cbranch_execz {'L_pad%d' % (k + 4) if k + 4 < n else 'L_hopback'}")
            k += 1
        else: res.append(t)
    sys.stderr.write(f"pads: {n}\n")
    return res

def generate(cfg):
    if cfg.fuse and "sc1" not in cfg.st_flags and not cfg.wbl2: cfg.st_flags += " sc1"
    B = build_bodies(cfg)
    for b in B:
        if b.name == cfg.parkb:
            ins = []
            for k in range(4): ins.append(valu(f"v_accvgpr_read_b32 v{vWD+k}, a{PARK+k}", wr=V(vWD+k)))
            for k in range(8): ins.append(valu(f"v_accvgpr_read_b32 v{vQA+k}, a{PARK+4+k}", wr=V(vQA+k)))
            if cfg.spare:
                for k in range(4): ins.append(valu(f"v_accvgpr_read_b32 v{vXD+k}, a{PARK+12+k}", wr=V(vXD+k)))
            b.valu.append((ins, cfg.parkg0, cfg.parkg1))
    for b in B:
        if b.name == cfg.otouch and "o" in cfg.touch:
            b.dma = b.dma + [[I(f"buffer_load_dword a252, v{vQW}, s[{sWO}:{sWO+3}], s77 offen{cfg.o_flags}", "dma", rd=V(vQW), tag=("T", 1))]]
    for b in B:
        if b.name == cfg.otouch and "p" in cfg.touch:
            b.dma = b.dma + [[I(f"buffer_load_dwordx4 a[{240+4*(j%2)}:{243+4*(j%2)}], v{vWD}, s[{sWO}:{sWO+3}], s77 offen offset:{128*j}{cfg.o_flags}", "dma", rd=V(vWD), tag=("T", 1))
                              for j in range(cfg.PJ0, 7)]]
    for b in B:
        if "l" in cfg.touch and b.name[0] == "a" and 2 <= int(b.name[1:]) <= 57 and int(b.name[1:]) % 4 == 0:
            x = I(f"buffer_load_dwordx4 a[240:243], v{vQW}, s[{sWO}:{sWO+3}], s77 offen{cfg.o_flags}", "dma", rd=V(vQW), tag=("T", 1))
            x.pre = [salu("s_add_u32 s77, s77, 1024")]
            b.dma = b.dma + [[x]]
    raw = lambda lines: [I(t, "raw") for t in lines]
    tc = [touch_code(cfg)]
    init = []
    def expand(spec):
        out = []
        for tok in spec.split(","):
            if not tok: continue
            if tok == "S": out += tc + [raw(kd_code(cfg))] + [raw(setup_code2(cfg))]
            elif tok == "T": out += [raw(stouch_setup())]
            elif tok[0] == "D": out += g_stage(int(tok[1]), cfg)
            elif tok[0] == "P": out += [stouch(int(tok[1]), cfg)]
            elif tok == "K0": out += [g_k(0, cfg)]
        return out
    parts = cfg.order.split("|")
    pre = expand(parts[0]); first = expand(parts[1])
    for k in range(4): B[k].dma = expand(parts[2 + k]) + [g for g in B[k].dma if g[0].tag[0] == "T"]
    segs = schedule(B, cfg, pre, first)
    segs, nn = hazard_pass(segs)
    txt = {name: [x.t for x in lst] for name, lst in segs}
    names = [n for n, _ in segs]
    lo = None
    for n in range(0, 30):
        if all(txt[f"a{k}"] == txt[f"a{k+4}"] for k in range(n, n + 8)):
            lo = n; break
    assert lo is not None, "no periodic steady state"
    last = lo
    while last + 4 <= 63 and txt[f"a{last+4}"] == txt[f"a{last}"]: last += 1
    last += 3
    nit = (last - lo + 1) // 4
    lo = last + 1 - 4 * nit
    sys.stderr.write(f"loop bodies {lo}..{last} ({nit} iterations), nops inserted {nn}\n")
    L = []; A = L.append
    KN = "attn_kernel"
    if cfg.fuse == 2:
        KN = NAME + "_kernel"
        A("; @launch grid=(256,1,1) block=(256,1,1) lds=163840")
    else:
        A("; @launch kernel=attn_kernel grid=(256,1,1) block=(256,1,1) lds=163840")
    if not cfg.fuse: A("; @launch kernel=reduce_kernel grid=(448,1,1) block=(256,1,1) lds=0")
    A('.amdgcn_target "amdgcn-amd-amdhsa--gfx950"')
    A(".text"); A(f".globl {KN}"); A(".p2align 12" if cfg.hop else ".p2align 8"); A(f".type {KN},@function"); A(f"{KN}:")
    L += setup_code(cfg)
    tramps = []; syncs = []; bs = [0]
    def emit_seg(name):
        A(f"; ---- {name}")
        for t in txt[name]:
            if t.startswith("RARE"):
                _, par, nx = t.split()
                lab = f"L_t_{name.replace('-','m')}"
                A(f"s_cbranch_vccnz {lab}"); A(f"{lab}_back:")
                tramps.append((lab, par, nx))
            elif t == "HOP":
                A("s_mov_b64 exec, 0")
                for w in range(3):
                    A(f"s_cmp_eq_u32 s{sWave}, {w}"); A(f"s_cbranch_scc1 L_pad{w}")
                A("s_branch L_pad3")
                A("L_hopback:")
                A("s_mov_b64 exec, -1")
            elif t == "SYNC":
                lab = f"L_s_{name.replace('-','m')}"
                A(f"s_cmp_gt_i32 s{sDif}, 0"); A(f"s_cbranch_scc1 {lab}"); A(f"{lab}_back:")
                syncs.append(lab)
            else: A(t)
    for name in names:
        if name.startswith("a"):
            n = int(name[1:])
            if lo <= n <= last:
                if n == lo:
                    if cfg.lstamp:
                        A("v_mbcnt_lo_u32_b32 v66, -1, 0"); A("v_mbcnt_hi_u32_b32 v66, -1, v66"); A("v_mov_b32 v67, 0")
                        A("s_memrealtime s[98:99]"); A("s_waitcnt lgkmcnt(0)")
                    if cfg.linear:
                        A("v_mbcnt_lo_u32_b32 v69, -1, 0"); A("v_mbcnt_hi_u32_b32 v69, -1, v69")
                        for r in range(vKD, vKD + 8): A(f"v_lshlrev_b32 v{r}, 4, v69")
                    if "h" in cfg.strip:
                        A("s_and_b32 s74, s73, 1"); A("s_lshl_b32 s74, s74, 11"); A(f"s_add_u32 s{sKoff}, s{sKoff}, s74"); A(f"s_add_u32 s{sVoff}, s{sVoff}, s74")
                    A(f"s_mov_b32 s{sCnt}, {nit}"); A(f".p2align {cfg.lalign}"); [A("s_nop 0") for _ in range(cfg.lshift)]; A("L_loop:")
                    if cfg.lstamp:
                        A("v_mov_b32 v68, s98"); A(f"v_cmp_eq_u32 vcc, s{sCnt}, v66"); A("s_memrealtime s[98:99]"); A("s_nop 0")
                        A("v_cndmask_b32 v67, v67, v68, vcc"); A("v_accvgpr_write_b32 a250, v67")
                if n < lo + 4:
                    def keep(t):
                        if "d" in cfg.strip and t.startswith("buffer_load"): return False
                        if "h" in cfg.strip and t.startswith("buffer_load") and ("offset:2048" in t or "offset:3072" in t): return False
                        if "r" in cfg.strip and t.startswith("ds_read"): return False
                        if "s" in cfg.strip and t.split()[0] in ("v_exp_f32", "v_add_f32", "v_cvt_pk_bf16_f32"): return False
                        return True
                    txt[name] = [t for t in txt[name] if keep(t)]
                    if "h" in cfg.strip: txt[name] = [t.replace("vmcnt(16)", "vmcnt(8)") for t in txt[name]]
                    if cfg.pace:
                        nt = []
                        for t in txt[name]:
                            nt.append(t)
                            if t == "s_barrier": nt += ["s_nop 15"] * cfg.pace
                        txt[name] = nt
                    if n == lo + 3:
                        txt[name].insert(1, f"s_sub_u32 s{sCnt}, s{sCnt}, 1")
                    emit_seg(name)
                    if n == lo + 3:
                        A(f"s_cmp_lg_u32 s{sCnt}, 0"); A("s_cbranch_scc1 L_loop")
                continue
        if cfg.bstamp and name != "pre":
            head = name.startswith("qp") or (name.startswith("a") and int(name[1:]) < 30)
            if head == (cfg.bstamp == 1):
                r = 71 if head else 47
                if bs[0] > 0:
                    A(f"v_writelane_b32 v{r}, s98, {bs[0]-1}"); A(f"v_writelane_b32 v{r}, s26, {bs[0]-1+32}") if not head and False else None
                    A(f"v_accvgpr_write_b32 a250, v{r}")
                A("s_memtime s[98:99]")
                bs[0] += 1; bs.append(name)
        if cfg.hstamp == 1 and name == "qp0": A("s_memtime s[86:87]")
        if cfg.stamp and not cfg.hstamp and name in ("qp0", "a-2", "op0"):
            i = ["qp0", "a-2", "op0"].index(name)
            A(f"s_memtime s[{82+2*i}:{83+2*i}]")
            if name == "a-2": A("s_memrealtime s[100:101]")
            if name == "op0": A("s_memrealtime s[42:43]")
        emit_seg(name)
    if cfg.fuse:
        if cfg.stamp: A("s_memrealtime s[98:99]")
        L += tail_code(cfg)
    if cfg.stamp:
        A("s_waitcnt vmcnt(0)")
        A("s_memtime s[88:89]"); A("s_memrealtime s[90:91]")
        A("s_getreg_b32 s92, hwreg(HW_REG_XCC_ID)"); A("s_getreg_b32 s93, hwreg(HW_REG_HW_ID)")
        A("s_waitcnt lgkmcnt(0)")
        A("s_add_u32 s76, s64, 0x4000000"); A("s_addc_u32 s77, s65, 0"); A("s_and_b32 s77, s77, 0xffff")
        A("s_mov_b32 s78, 0x100000"); A("s_mov_b32 s79, 0x20000")
        A("s_lshl_b32 s74, s2, 2"); A(f"s_add_u32 s74, s74, s{sWave}"); A("s_lshl_b32 s74, s74, 6")
        A("v_mov_b32 v40, 0")
        if cfg.lstamp or cfg.bstamp:
            sys.stderr.write(" ".join(bs[1:]) + "\n")
            A("v_mbcnt_lo_u32_b32 v66, -1, 0"); A("v_mbcnt_hi_u32_b32 v66, -1, v66"); A("v_lshlrev_b32 v66, 2, v66")
            A("s_lshl_b32 s75, s74, 2"); A("s_add_u32 s75, s75, 0x10000")
            A("buffer_store_dword a250, v66, s[76:79], s75 offen")
        for i, r in enumerate([80, 82, 84, 86, 88, 90, 92, 93, 94, 100, 42, 3, 98, 96, 38, 37]):
            A(f"v_mov_b32 v41, s{r}")
            A(f"buffer_store_dword v41, v40, s[76:79], s74 offen offset:{4*i}")
    A("L_exit:"); A("s_endpgm")
    if cfg.fuse: L += red_code(cfg)
    A("L_code_end:")
    A(f".set CODE_BYTES, L_code_end - {KN} - 1024")
    for lab, par, nx in tramps:
        A(f"{lab}:"); A(f"s_call_b64 s[{sRet}:{sRet+1}], L_rare_{par}_{nx}"); A(f"s_branch {lab}_back")
    for lab in syncs:
        A(f"{lab}:"); A(f"s_call_b64 s[{sRet}:{sRet+1}], L_spin"); A(f"s_branch {lab}_back")
    if syncs:
        A("L_spin:")
        if cfg.stamp: A("s_add_u32 s3, s3, 0x10000")
        A("s_mov_b32 s74, 32")
        A("L_spin1:")
        if cfg.stamp: A("s_add_u32 s3, s3, 1")
        A(f"s_load_dword s{sDif}, s[{sSy}:{sSy+1}], 0x0 glc")
        A("s_waitcnt lgkmcnt(0)")
        A(f"s_mul_i32 s{sDif}, s{sDif}, s{sSign}")
        A(f"s_cmp_le_i32 s{sDif}, 0")
        A("s_cbranch_scc1 L_spin2")
        A("s_sub_u32 s74, s74, 1")
        A("s_cmp_lg_u32 s74, 0")
        A("s_cbranch_scc1 L_spin1")
        A(f"s_mov_b32 s{sSign}, 0")
        A("L_spin2:")
        A(f"s_mov_b32 s{sOld}, 0"); A(f"s_mov_b32 s{sOld+1}, 0")
        A(f"s_setpc_b64 s[{sRet}:{sRet+1}]")
    for par, nx in sorted({(p, n) for _, p, n in tramps}):
        A(f"L_rare_{par}_{nx}:")
        L += rare_code(int(par), int(nx))
    if not cfg.fuse: L += reduce_kernel(cfg)
    A('.section .rodata,"a"')
    for kn, nv, acc in ((KN, 512, 256), ("reduce_kernel", 80, 80))[:1 if cfg.fuse else 2]:
        A(".p2align 6"); A(f".amdhsa_kernel {kn}")
        A(f"  .amdhsa_next_free_vgpr {nv}"); A("  .amdhsa_next_free_sgpr 102"); A(f"  .amdhsa_accum_offset {acc}")
        A("  .amdhsa_group_segment_fixed_size 0"); A("  .amdhsa_kernarg_size 104"); A("  .amdhsa_user_sgpr_count 2")
        A("  .amdhsa_user_sgpr_kernarg_segment_ptr 1"); A("  .amdhsa_system_sgpr_workgroup_id_x 1")
        A(".end_amdhsa_kernel")
    if cfg.al8: L = align8(L, cfg.al8)
    if cfg.hop: L = insert_pads(L, KN)
    return "\n".join(L) + "\n"

if __name__ == "__main__":
    ap = argparse.ArgumentParser()
    ap.add_argument("-o", default=f"cdna_kernels/{NAME}.s")
    ap.add_argument("opts", nargs="*")
    a = ap.parse_args()
    cfg = Cfg()
    for o in a.opts:
        k, v = o.split("=", 1)
        old = getattr(cfg, k)
        if isinstance(old, bool): v = v not in ("0", "false", "False")
        elif isinstance(old, int): v = int(v)
        elif isinstance(old, float): v = float(v)
        elif k.endswith("_flags"): v = " " + v.replace("+", " ") if v else ""
        setattr(cfg, k, v)
    open(a.o, "w").write(generate(cfg))
```

```python
import sys, math, argparse, struct

NAME = "concat_heads__gqa_block_cached__gqa_block_cached__near_ridge"
def f32bits(x): return struct.unpack("<I", struct.pack("<f", x))[0]

class Cfg:
    LEAD = 20
    DEAD = 8
    NB = 32
    SAFE = 6
    DMASPAN = 40
    H = 3.0
    TTPEN = 3.0
    dma_flags = " nt"
    w_flags = ""
    v_flags = "same"
    o_flags = ""
    otouch = "a59"
    st_flags = ""
    rd_flags = ""
    stamp = False
    strip = ""
    touch = "cl"
    tpos = 1
    t_flags = ""
    hstamp = 0
    npre = 3
    psync = 1
    nospin = 0
    lstamp = 0
    QCW = 16
    VCAP = 4.0
    al8 = 0
    lalign = 6
    lshift = 0
    chain = 4
    pchain = 2
    qord = 0
    pord = 0
    pf = ""
    hop = 1
    parkb = "a-2"
    parkg0 = 24
    parkg1 = 34
    rot = 2
    rotmask = 3
    linear = 0
    PJ0 = 4
    LOFF = 0
    LSKIP = 0
    kvlate = 1
    FLA = 5
    wbl2 = 0
    WST = 28672
    SST = 114688
    spare = 0
    QSPAN = 40
    order = "D0,S,D1|D2|D3|D4|D5|D6,K0"
    spos = 1
    bstamp = 0
    fuse = 1
    ptime = 4000
    force_abandon = 0
    pace = 0
    sync0 = "qp4"
    sync1 = "a2"
    early = 1
    wsoff = 0

def V(lo, n=1): return [("v", lo + i) for i in range(n)]
def Areg(lo, n=1): return [("a", lo + i) for i in range(n)]
def vr(lo, n=1): return f"v{lo}" if n == 1 else f"v[{lo}:{lo+n-1}]"
def ar(lo, n=1): return f"a{lo}" if n == 1 else f"a[{lo}:{lo+n-1}]"

O0 = 128
def oreg(db16, qb): return O0 + (db16 * 2 + qb) * 4
S_ = [96, 112]
def sreg(par, kb, qb): return S_[par] + (kb * 2 + qb) * 4
NEGM = 88
P_ = [72, 80]
QF = 0
FR = 64
XF = 192
PARK = 224
vKB = 0; vVB = 4; vKD = 12; vVD = 16; vWD = 20; vXD = 24; vQA = 28; vXA = 36
vL = 38; vPS = 40; vINV = 42; vST = 44; vD = 45; vF = 46; vQW = 47
vT = 48
vE = 56
vQR = 64
STG = 192
sX, sWQ, sK, sV, sWO, sPT = 4, 8, 12, 16, 20, 24
sW4K, sKoff, sVoff, sCnt, sTmp, sW28K, sW64K, sWave, sScale = 28, 29, 30, 31, 32, 33, 34, 35, 36
sRet = 40
sTmp2 = 76
sSign, sOld, sDif = 37, 38, 75
sSy = 78

KRING = 98304
VRING = 32768
def kslot(m): return ((m + 3) % 4) * 16384
def vslot(m): return ((m + 1) % 4) * 16384
def qregion(s): return [0, 98304, 49152][s % 3]
QSTAGE = VRING + vslot(2)
MF = "v_mfma_f32_16x16x32_bf16"

class I:
    __slots__ = ("t", "k", "rd", "wr", "tag", "c", "ideal", "early", "dead", "pre", "post")
    def __init__(s, t, k, rd=(), wr=(), tag=None, c=()):
        s.t, s.k, s.rd, s.wr, s.tag, s.c = t, k, list(rd), list(wr), tag, list(c)
        s.ideal = s.early = s.dead = None
        s.pre = []; s.post = []
def valu(t, rd=(), wr=()): return I(t, "valu", rd, wr)
def trans(t, rd=(), wr=()): return I(t, "trans", rd, wr)
def perm(t, rd=(), wr=()): return I(t, "perm", rd, wr)
def salu(t, wr=()): return I(t, "salu", (), wr)
def slots(x): return 2 if x.k in ("trans", "dma", "store", "perm") else 1

class Body:
    def __init__(s, name):
        s.name = name
        s.mf = []; s.reads = []; s.need = []; s.dma = []; s.valu = []; s.after_reads = []; s.tail = []; s.fronts = []; s.post_bar = []

def dma_group(srd, voffs, pre, post, soff, m0val, tag, flags=""):
    g = []
    for k in range(4):
        off = f" offset:{k*1024}" if k else ""
        g.append(I(f"buffer_load_dwordx4 v{voffs[k]}, s[{srd}:{srd+3}], s{soff} offen{off}{flags} lds",
                   "dma", rd=[("v", voffs[k]), ("m0", 0)], tag=tag))
    g[0].pre = [salu(f"s_add_u32 m0, s{m0val[0]}, {m0val[1]}", wr=[("m0", 0)])] + list(pre)
    return g
def g_k(m, cfg):
    return dma_group(sK, [vKD + k for k in range(4)], [salu(f"s_add_u32 s{sKoff}, s{sKoff}, 16384")], [],
                     sKoff, (sW4K, KRING + kslot(m)), ("K", m), cfg.dma_flags)
def g_v(m, cfg):
    return dma_group(sV, [vVD + k for k in range(4)], [salu(f"s_add_u32 s{sVoff}, s{sVoff}, 16384")], [],
                     sVoff, (sW4K, VRING + vslot(m)), ("V", m), cfg.dma_flags if cfg.v_flags == "same" else cfg.v_flags)
def wo_place(j, half, cfg):
    if cfg.spare:
        if j == 4: return half * 16384, vXD, half * 16384
        m = 64 + (j if j < 4 else j - 5)
    else:
        m = 64 + j
    if half == 0: return KRING + kslot(m), vQA, kslot(m)
    return VRING + vslot(m), vQA + 4, vslot(m)
def g_wo(j, half, cfg):
    so = sTmp2
    return dma_group(sWO, [vWD + k for k in range(4)], [salu(f"s_add_u32 s{so}, s{sW28K}, {half*128*896 + 128*j}")], [],
                     so, (sW4K, wo_place(j, half, cfg)[0]), ("W", j, half), cfg.o_flags)
def g_stage(s, cfg):
    rb = qregion(s)
    if cfg.rot:
        gs = [dma_group(sX, [vXD + k for k in range(4)], [salu(f"s_add_u32 s{sTmp}, s{sW28K}, s90"), salu("s_lshl_b32 s91, s90, 12")], [],
                        sTmp, (sW4K, rb + 32768), ("Q", s), cfg.w_flags)]
        gs.append(dma_group(sWQ, [vWD + k for k in range(4)], [salu(f"s_add_u32 s{sTmp}, s{sW64K}, s91"), salu("s_add_u32 s90, s90, 128")], [],
                            sTmp, (sW4K, rb), ("Q", s), cfg.w_flags))
        gs.append(dma_group(sWQ, [vWD + k for k in range(4)], [salu(f"s_add_u32 s{sTmp}, s{sTmp}, {32*8192}"), salu("s_cmp_eq_u32 s90, 896"), salu("s_cselect_b32 s90, 0, s90")], [],
                            sTmp, (sW4K, rb + 16384), ("Q", s), cfg.w_flags))
        return gs
    gs = [dma_group(sX, [vXD + k for k in range(4)], [salu(f"s_add_u32 s{sTmp}, s{sW28K}, {128*s}")], [],
                    sTmp, (sW4K, rb + 32768), ("Q", s), cfg.w_flags)]
    for kk in range(2):
        gs.append(dma_group(sWQ, [vWD + k for k in range(4)], [salu(f"s_add_u32 s{sTmp}, s{sW64K}, {(64*s + 32*kk)*8192}")], [],
                            sTmp, (sW4K, rb + kk * 16384), ("Q", s), cfg.w_flags))
    return gs

def sm_instrs(n, fix=False):
    par = n % 2
    out = []; pend = []
    k = 0
    for qb in range(2):
        for kb in range(2):
            for hp in range(2):
                s0 = sreg(par, kb, qb) + 2 * hp
                t0 = vT + (2 * k) % 8; t1 = t0 + 1
                ps = vPS + qb
                if fix:
                    out.append(valu(f"v_add_f32 v{s0}, v{NEGM+4*qb}, v{s0}", rd=V(s0)+V(NEGM+4*qb), wr=V(s0)))
                    out.append(valu(f"v_add_f32 v{s0+1}, v{NEGM+4*qb}, v{s0+1}", rd=V(s0+1)+V(NEGM+4*qb), wr=V(s0+1)))
                out.append(trans(f"v_exp_f32 v{t0}, v{s0}", rd=V(s0), wr=V(t0)))
                if pend: out.append(pend.pop(0))
                out.append(trans(f"v_exp_f32 v{t1}, v{s0+1}", rd=V(s0+1), wr=V(t1)))
                out += pend; pend = []
                if kb == 0 and hp == 0:
                    pend.append(valu(f"v_add_f32 v{ps}, v{t0}, v{t1}", rd=V(t0, 2), wr=V(ps)))
                else:
                    pend.append(valu(f"v_add_f32 v{ps}, v{ps}, v{t0}", rd=V(t0)+V(ps), wr=V(ps)))
                    pend.append(valu(f"v_add_f32 v{ps}, v{ps}, v{t1}", rd=V(t1)+V(ps), wr=V(ps)))
                p = P_[par] + 4 * qb + 2 * kb + hp
                pend.append(valu(f"v_cvt_pk_bf16_f32 v{p}, v{t0}, v{t1}", rd=V(t0, 2), wr=V(p)))
                k += 1
    out += pend
    return out

def xlane(op, r, tmp):
    o = []
    for sw in ("v_permlane32_swap_b32", "v_permlane16_swap_b32"):
        o.append(valu(f"v_mov_b32 v{tmp}, v{r}", rd=V(r), wr=V(tmp)))
        o.append(perm(f"{sw} v{r}, v{tmp}", rd=V(r)+V(tmp), wr=V(r)+V(tmp)))
        o.append(valu(f"{op} v{r}, v{r}, v{tmp}", rd=V(r)+V(tmp), wr=V(r)))
    return o

def rowmax_instrs(par, qb, d, tmp):
    a = sreg(par, 0, qb); b = sreg(par, 1, qb)
    o = [valu(f"v_max3_f32 v{d}, v{a}, v{a+1}, v{a+2}", rd=V(a, 3), wr=V(d)),
         valu(f"v_max3_f32 v{d}, v{d}, v{a+3}, v{b}", rd=V(a+3)+V(b)+V(d), wr=V(d)),
         valu(f"v_max3_f32 v{d}, v{d}, v{b+1}, v{b+2}", rd=V(b+1, 2)+V(d), wr=V(d)),
         valu(f"v_max_f32 v{d}, v{d}, v{b+3}", rd=V(b+3)+V(d), wr=V(d))]
    return o + xlane("v_max_f32", d, tmp)

def zipl(a, b):
    o = []
    for i in range(max(len(a), len(b))):
        if i < len(a): o.append(a[i])
        if i < len(b): o.append(b[i])
    return o

def ob_reg(t, qb):
    base = [S_[0], S_[0] + 8, S_[1], S_[1] + 8, NEGM, 64, P_[0], P_[1]][t]
    return base + 4 * qb

def build_bodies(cfg):
    B = []
    for s in range(7):
        b = Body(f"qp{s}")
        order = [(kt, be) for kt in range(2) for be in range(16)] if (s < 6 and not cfg.pchain) else [(kt, be) for be in range(16) for kt in range(2)]
        xdone = set()
        def xf(kt, qb): return XF + ((s % 2) * 4 + kt * 2 + qb) * 4
        xpend = []
        def xread(kt):
            for qb in range(2):
                xpend.append((("X", s, kt, qb), [("ds_read_b128", vXA + kt, qb * 2048, 0, 4)], xf(kt, qb)))
        if s == 6 or cfg.pchain:
            xread(0); xread(1); xdone = {0, 1}
            b.reads += xpend; xpend = []
        for idx, (kt, be) in enumerate(order):
            if kt not in xdone:
                xread(kt); xdone.add(kt)
                b.reads += xpend; xpend = []
            key = ("WQ", s, kt, be)
            b.reads.append((key, [("ds_read_b64_tr_b16", vQA + be % 8, (32*kt + 4*jj) * 512 + (be // 8) * 256, 2*jj, 2) for jj in range(2)], None))
            for qb in range(2):
                d = oreg(be, qb)
                first = (s == 0 and kt == 0)
                b.mf.append((d, key, ar(xf(kt, qb), 4), Areg(xf(kt, qb), 4), "0" if first else vr(d, 4), [] if first else V(d, 4), [("X", s, kt, qb)]))
        if cfg.pchain:
            for k in range(0, 64, 4): b.mf[k + 1], b.mf[k + 2] = b.mf[k + 2], b.mf[k + 1]
        b.need = [("Q", s)]
        if s < 6:
            delta = qregion(s + 1) - qregion(s)
            for r in list(range(vQA, vQA + 8)) + list(range(vXA, vXA + 2)):
                b.after_reads.append(valu(f"v_add_u32 v{r}, {delta & 0xffffffff}, v{r}", rd=V(r), wr=V(r)))
        if s <= 3: b.dma = g_stage(s + 3, cfg)
        elif cfg.kvlate == 1:
            if s == 4: b.dma = [g_k(1, cfg), g_k(2, cfg)]
            elif s == 5: b.dma = [g_v(0, cfg), g_k(3, cfg)]
            else: b.dma = [g_v(1, cfg)]
        elif s == 4: b.dma = [g_k(1, cfg), g_k(2, cfg), g_k(3, cfg)]
        elif s == 5: b.dma = [g_v(0, cfg), g_v(1, cfg), g_v(2, cfg)]
        else: b.dma = [g_v(3, cfg)]
        B.append(b)
    b = B[6]
    for t in range(8):
        per = []
        for qb in range(2):
            ins = []
            e = (vE if t % 2 == 0 else vT) + 4 * qb
            for the in range(2):
                d = oreg(2 * t + the, qb)
                for k in range(4):
                    ins.append(valu(f"v_mul_f32 v{d+k}, s{sScale}, v{d+k}", rd=V(d+k), wr=V(d+k)))
                for hp in range(2):
                    ins.append(valu(f"v_cvt_pk_bf16_f32 v{e+2*the+hp}, v{d+2*hp}, v{d+2*hp+1}", rd=V(d+2*hp, 2), wr=V(e+2*the+hp)))
            for sw in ("v_permlane32_swap_b32", "v_permlane16_swap_b32"):
                for hp in range(2):
                    ins.append(perm(f"{sw} v{e+hp}, v{e+2+hp}", rd=V(e+hp)+V(e+2+hp), wr=V(e+hp)+V(e+2+hp)))
            q = QF + (t * 2 + qb) * 4
            for k in range(4):
                ins.append(valu(f"v_accvgpr_write_b32 a{q+k}, v{e+k}", rd=V(e+k), wr=Areg(q+k)))
            per.append(ins)
        g0 = 8 * t + 7 + 4
        g1 = max(g0, min(g0 + cfg.QCW, 64 + 4 * t - 2))
        b.valu.append((zipl(per[0], per[1]), g0, g1))
    for n in range(-2, 64):
        b = Body(f"a{n}")
        qk = []; pv = []
        if n + 2 <= 63:
            m = n + 2
            order = [(kb, t) for kb in range(2) for t in range(8)] if m > 0 else [(kb, t) for t in range(8) for kb in range(2)]
            for kb, t in order:
                key = ("K", m, kb, t)
                rd = (key, [("ds_read_b128", vKB + t % 4, kslot(m) + kb * 8192 + (t // 4) * 256, 0, 4)], None)
                mfs = []
                for qb in range(2):
                    S = sreg(m % 2, kb, qb)
                    if t == 0: c = ("0", []) if m < 2 else (vr(NEGM + 4*qb, 4), V(NEGM + 4*qb, 4))
                    else: c = (vr(S, 4), V(S, 4))
                    q = QF + (t * 2 + qb) * 4
                    mfs.append((S, key, ar(q, 4), Areg(q, 4), c[0], c[1], []))
                qk.append((rd, mfs))
            b.need.append(("K", m))
        if n >= 0:
            for db in range(16):
                key = ("V", n, db)
                rd = (key, [("ds_read_b64_tr_b16", vVB + db % 8, vslot(n) + jj * 8192 + (db // 8) * 256, 2*jj, 2) for jj in range(2)], None)
                mfs = []
                for qb in range(2):
                    d = oreg(db, qb); P = P_[n % 2] + 4 * qb
                    mfs.append((d, key, vr(P, 4), V(P, 4), "0" if n == 0 else vr(d, 4), [] if n == 0 else V(d, 4), []))
                pv.append((rd, mfs))
            b.need.append(("V", n))
        if cfg.chain and qk and pv:
            C = cfg.chain
            for rd, mfs in zipl(qk, pv): b.reads.append(rd)
            for k in range(0, 16, C):
                if cfg.qord == 0:
                    for qb in range(2):
                        for z in range(C): b.mf.append(qk[k + z][1][qb])
                elif cfg.qord == 1:
                    for z in range(C): b.mf += qk[k + z][1]
                else:
                    for z in range(C): b.mf.append(qk[k + z][1][z % 2]); b.mf.append(qk[k + z][1][1 - z % 2])
                if cfg.pord == 0:
                    for z in range(C): b.mf += pv[k + z][1]
                elif cfg.pord == 1:
                    for qb in range(2):
                        for z in range(C): b.mf.append(pv[k + z][1][qb])
                else:
                    for z in range(C): b.mf.append(pv[k + z][1][z % 2]); b.mf.append(pv[k + z][1][1 - z % 2])
        else:
            for rd, mfs in zipl(qk, pv):
                b.reads.append(rd); b.mf += mfs
        G = len(b.mf)
        if n == -1:
            ins = zipl(rowmax_instrs(0, 0, vD, vF), rowmax_instrs(0, 1, vINV, vINV + 1))
            for qb, d in ((0, vD), (1, vINV)):
                for k in range(4):
                    ins.append(valu(f"v_sub_f32 v{NEGM+4*qb+k}, 0, v{d}", rd=V(d), wr=V(NEGM+4*qb+k)))
            ins += sm_instrs(0, fix=True)
            b.valu.append((ins, 3, G - 1))
        elif 0 <= n <= 62:
            ins = []
            for qb in range(2):
                if n == 0: ins.append(valu(f"v_mov_b32 v{vL+qb}, v{vPS+qb}", rd=V(vPS+qb), wr=V(vL+qb)))
                else: ins.append(valu(f"v_add_f32 v{vL+qb}, v{vL+qb}, v{vPS+qb}", rd=V(vPS+qb)+V(vL+qb), wr=V(vL+qb)))
            ins += sm_instrs(n + 1, fix=(n == 0))
            ins.append(valu(f"v_max_f32 v{vD}, v{vPS}, v{vPS+1}", rd=V(vPS, 2), wr=V(vD)))
            ins.append(valu(f"v_cmp_nge_f32 vcc, 0x46800000, v{vD}", rd=V(vD), wr=[("vcc", 0)]))
            b.valu.append((ins, 3 if n == 0 else 0, G - 2))
            b.tail.append(I(f"RARE {(n+1)%2} {1 if n + 2 <= 63 else 0}", "rare"))
        elif n == 63:
            ins = []
            for qb in range(2):
                ins.append(valu(f"v_add_f32 v{vL+qb}, v{vL+qb}, v{vPS+qb}", rd=V(vPS+qb)+V(vL+qb), wr=V(vL+qb)))
            ins += zipl(xlane("v_add_f32", vL, vD), xlane("v_add_f32", vL + 1, vF))
            for qb in range(2):
                ins.append(trans(f"v_rcp_f32 v{vINV+qb}, v{vL+qb}", rd=V(vL+qb), wr=V(vINV+qb)))
            b.valu.append((ins, 40, 63))
            for t in range(8):
                ins = []
                for qb in range(2):
                    o = ob_reg(t, qb)
                    for the in range(2):
                        d = oreg(2 * t + the, qb)
                        for hp in range(2):
                            ins.append(valu(f"v_cvt_pk_bf16_f32 v{o+2*the+hp}, v{d+2*hp}, v{d+2*hp+1}", rd=V(d+2*hp, 2), wr=V(o+2*the+hp)))
                g0 = 4 * t + 3 + 4
                b.valu.append((ins, g0, g0 + 5))
        if n + 2 <= 63:
            m = n + 6
            b.dma.append(g_k(m, cfg) if m <= 63 else g_wo(m - 64, 0, cfg))
        if cfg.kvlate == 1 and n < 0: b.dma.append(g_v(n + 4, cfg))
        if n >= 0:
            m = n + 4
            b.dma.append(g_v(m, cfg) if m <= 63 else g_wo(m - 64, 1, cfg))
        if cfg.spare and n in (62, 63): b.dma.append(g_wo(4, n - 62, cfg))
        B.append(b)
    def accreg(j, nb, qb): return O0 + 32 * (j % 2) + (nb * 2 + qb) * 4
    def drain(j, t2):
        ins = []
        for qb in range(2):
            q = qb * 2 + t2
            st = STG + 4 * q
            for the in range(2):
                a = accreg(j, 2 * t2 + the, qb)
                for k in range(4):
                    ins.append(valu(f"v_mul_f32 v{a+k}, v{vINV+qb}, v{a+k}", rd=V(a+k)+V(vINV+qb), wr=V(a+k)))
                for hp in range(2):
                    ins.append(valu(f"v_cvt_pk_bf16_f32 v{st+2*the+hp}, v{a+2*hp}, v{a+2*hp+1}", rd=V(a+2*hp, 2), wr=V(st+2*the+hp)))
            off = f" offset:{q*1024}" if q else ""
            x = I(f"buffer_store_dwordx4 v[{st}:{st+3}], v{vST}, s[{sPT}:{sPT+3}], s{sTmp} offen{off}{cfg.st_flags}", "store",
                  rd=V(st, 4)+V(vST), tag=("ST", j))
            if q == 0: x.pre = [salu(f"s_mov_b32 s{sTmp}, {4096*j}")]
            ins.append(x)
        return ins
    for j in range(7):
        b = Body(f"op{j}")
        C = max(1, cfg.pchain)
        for t2 in range(2):
            for tg in range(0, 8, C):
                for nb in (2 * t2, 2 * t2 + 1):
                    keys = []
                    for t in range(tg, tg + C):
                        key = ("WO", j, t, nb); keys.append((t, key))
                        _, base, slot = wo_place(j, t // 4, cfg)
                        base += nb
                        b.reads.append((key, [("ds_read_b64_tr_b16", base, slot + (32*(t % 4) + 16*jj) * 128, 2*jj, 2) for jj in range(2)], None))
                    for qb in range(2):
                        for t, key in keys:
                            d = accreg(j, nb, qb); o = ob_reg(t, qb)
                            b.mf.append((d, key, vr(o, 4), V(o, 4), "0" if t == 0 else vr(d, 4), [] if t == 0 else V(d, 4), []))
        b.need = [("W", j, 0), ("W", j, 1)]
        if j >= 1: b.valu.append((drain(j - 1, 1), 3, 33))
        b.valu.append((drain(j, 0), 35, 65 if j < 6 else 62))
        nx = j + (5 if cfg.spare else 4)
        if nx <= 6: b.dma = [g_wo(nx, 0, cfg), g_wo(nx, 1, cfg)]
        if j == 6: b.tail += drain(6, 1)
        if cfg.fuse:
            if j == 0: b.fronts = tail_prep_salu(cfg)
            if j == 1: b.valu.append((tail_prep_valu(cfg), 36, 60))
            if j == cfg.FLA + 1: b.need = b.need + [("ST", 3)]
            if j == cfg.FLA: b.post_bar = [I("buffer_store_dwordx2 v[2:3], v12, s[12:15], 0 offen sc1", "store", rd=V(2, 2)+V(12), tag=("FL", 0))]
        B.append(b)
    return B

def schedule(B, cfg, pre_dma, first):
    starts = []; M = 0
    for b in B:
        starts.append(M); M += len(b.mf)
    front = {g: [] for g in range(-1, M)}
    fill = {g: [] for g in range(-1, M)}
    bp = [starts[i] + len(B[i].mf) - (cfg.LEAD if (len(B[i].mf) == 64 and B[i].name[0] == "a") else 16) - 1 for i in range(len(B))]
    fragreg = {}; first_use = {}; last_use = {}
    idx = 0
    for i, b in enumerate(B):
        for key, parts, fixed in b.reads:
            if fixed is None:
                fragreg[key] = FR + 4 * (idx % cfg.NB); idx += 1
        for g, mf in enumerate(b.mf):
            for k in [mf[1]] + mf[6]:
                first_use.setdefault(k, starts[i] + g); last_use[k] = starts[i] + g
    front[-1].append(I("BAR", "bar", tag=B[0].need))
    for i, b in enumerate(B[:-1]):
        front[bp[i]].append(I("BAR", "bar", tag=B[i + 1].need))
    reserved = {}
    lazy = set(); nodrain = set()
    if cfg.hop == 1: front[bp[0] - 1].append(I("HOP", "hop"))
    if cfg.hop == 2: front[-1].insert(0, I("HOP", "hop"))
    for i, b in enumerate(B):
        if b.fronts:
            flat = [x for chunk in b.fronts for x in chunk]
            g = starts[i] + 2; k = 0
            while k < len(flat):
                n = 2
                if k + n < len(flat) and flat[k + n].t.startswith("s_addc"): n += 1
                front[g] += flat[k:k + n]; k += n; g += 1
        if b.post_bar: reserved[bp[i] + 1] = b.post_bar
    if cfg.psync:
        names = [b.name for b in B]
        i0, i1 = names.index(cfg.sync0), names.index(cfg.sync1)
        lag = 1 if cfg.psync == 1 else 2
        for i in range(i0, i1 + 1):
            r = sOld + (i % lag)
            if i >= i0 + lag and not cfg.nospin:
                front[bp[i] + 1] += [salu(f"s_mul_i32 s{sDif}, s{r}, s{sSign}"), I("SYNC", "sync")]
            if i <= i1 - lag:
                front[bp[i] + 2] += [salu(f"s_mov_b32 s{r}, s{sSign}"), salu(f"s_atomic_add s{r}, s[{sSy}:{sSy+1}], 0x0 glc")]
                if lag == 2:
                    lazy.add(bp[i + 1])
                    reserved[bp[i + 1] - 3] = [I(f"ds_read_b32 a251, v{vKB}", "dsv", rd=V(vKB), tag=("DUMMY", i))]
    R = []; Mq = []; Vq = []
    holder = {}
    nd = sum(len(grp) for grp in first); k = 0
    for grp in first:
        for x in grp:
            x.early = 0; x.ideal = 1 + cfg.H + k * min(36, cfg.QSPAN) / nd; x.dead = bp[0] - 1 - (nd - 1 - k)
            Mq.append(x); k += 1
    for i, b in enumerate(B):
        w0 = bp[i - 1] if i > 0 else -17
        w1 = bp[i] - (cfg.DEAD if (b.dma or b.after_reads or not b.name.startswith("op")) else 1) if i < len(B) - 1 else starts[i] + len(b.mf) - 12
        if b.name.startswith("op") and not b.dma and i < len(B) - 1: nodrain.add(bp[i])
        flat = []
        for key, parts, fixed in b.reads:
            reg = fixed if fixed is not None else fragreg[key]
            for (op, addr, off, sub, n) in parts:
                x = I(f"{op} {ar(reg+sub, n)}, v{addr} offset:{off}", "d" if n == 4 else "t", rd=V(addr), wr=Areg(reg+sub, n), tag=key)
                x.early = w0
                h = holder.get(reg)
                if h is not None and h != key: x.early = max(x.early, last_use[h])
                x.dead = min(w1, first_use[key] - 7)
                flat.append(x)
            holder[reg] = key
        n = len(flat)
        for k, x in enumerate(flat):
            x.ideal = w0 + k * (w1 - 2 - w0) / n
        flat[-1].post = b.after_reads
        R += flat
        nd = sum(len(grp) for grp in b.dma)
        if nd:
            nxt = bp[i + 1] if i + 1 < len(B) else M - 1
            span = min(cfg.QSPAN if b.name.startswith('qp') else cfg.DMASPAN, nxt - bp[i] - 4)
            k = 0
            for grp in b.dma:
                for x in grp:
                    x.early = bp[i] + 1; x.ideal = bp[i] + 1 + cfg.H + k * span / nd; x.dead = nxt - 1 - (nd - 1 - k)
                    Mq.append(x); k += 1
        for ins, g0, g1 in b.valu:
            g0 += starts[i]; g1 = min(g1 + starts[i], M - 1)
            tot = sum(slots(x) for x in ins); acc = 0
            for x in ins:
                x.early = g0; x.ideal = g0 + acc * max(0, (g1 - 1 - g0)) / tot; x.dead = g1
                acc += slots(x)
            Vq.append(ins)
    allv = []
    for li, ins in enumerate(Vq):
        for k, x in enumerate(ins): allv.append((x.ideal, li, k, x))
    allv.sort(key=lambda z: (z[0], z[1], z[2]))
    Vs = [z[3] for z in allv]
    for q in (R, Mq, Vs):
        for k in range(len(q) - 2, -1, -1): q[k].dead = min(q[k].dead, q[k + 1].dead)
    ri = mi = vi = 0
    while ri < len(R) and R[ri].ideal < 0:
        fill[-1].append(R[ri]); ri += 1
    last_dma = -10
    over = 0
    extra_v = []
    for g in range(M):
        def u(x):
            if x is None or x.early > g: return None
            v = g - x.ideal + cfg.H
            return v if v > 0 else None
        def at(q, i): return q[i] if i < len(q) else None
        vq = extra_v + Vs[vi:vi + 2]
        R0, R1, M0 = at(R, ri), at(R, ri + 1), at(Mq, mi)
        V0, V1 = at(vq, 0), at(vq, 1)
        if extra_v and R0 is not None and any(r in y.wr for y in extra_v for r in R0.rd): R0 = R1 = None
        if R0 is not None and R0.post: R1 = None
        if R1 is not None and extra_v and any(r in y.wr for y in extra_v for r in R1.rd): R1 = None
        ur0, ur1, um, uv0, uv1 = u(R0), u(R1), u(M0), u(V0), u(V1)
        if uv0 is not None: uv0 = min(uv0, cfg.VCAP)
        if uv1 is not None: uv1 = min(uv1, cfg.VCAP)
        plain = lambda x: x.k == "valu"
        opts = [(0.0, [])]
        if um is not None: opts.append((2 * um, [M0]))
        if uv0 is not None:
            if slots(V0) == 2: opts.append((2 * uv0, [V0]))
            else:
                opts.append((uv0, [V0]))
                if uv1 is not None and plain(V1): opts.append((uv0 + uv1, [V0, V1]))
                if ur0 is not None and plain(V0): opts.append((ur0 + uv0, [R0, V0]))
        if ur0 is not None:
            opts.append((ur0, [R0]))
            if ur1 is not None:
                opts.append((ur0 + ur1 - (cfg.TTPEN if R0.k == "t" else 0), [R0, R1]))
        sc, ch = max(opts, key=lambda z: z[0])
        ch = list(ch)
        if g in reserved:
            ch = []; fill[g] += reserved[g]
        def take(x):
            nonlocal ri, mi, vi, last_dma
            if x.k in ("d", "t"):
                ri += 1
                for y in x.post:
                    y.early = g + 1; y.ideal = g - 2; y.dead = g + cfg.DEAD - 1
                extra_v.extend(x.post)
            elif x.k == "dma": mi += 1
            elif extra_v and x is extra_v[0]: extra_v.pop(0)
            else: vi += 1
            if x.pre:
                if last_dma < g - 1 and not any(y.k == "bar" for y in front[g]) and g > 0: front[g - 1] += x.pre
                elif last_dma < g: front[g] += x.pre
                else: fill[g] += x.pre
            if x.k in ("dma", "store"): last_dma = g
            fill[g].append(x)
        for x in ch: take(x)
        while True:
            cand = None
            if extra_v and extra_v[0].dead <= g and extra_v[0].early <= g: cand = extra_v[0]
            elif ri < len(R) and R[ri].dead <= g and not extra_v: cand = R[ri]
            elif mi < len(Mq) and Mq[mi].dead <= g: cand = Mq[mi]
            elif vi < len(Vs) and Vs[vi].dead <= g: cand = Vs[vi]
            if cand is None: break
            assert cand.early <= g, (cand.t, cand.early, cand.dead, g)
            take(cand); over += slots(cand)
    assert ri == len(R) and mi == len(Mq) and vi == len(Vs), (ri, len(R), mi, len(Mq), vi, len(Vs))
    for i, b in enumerate(B):
        for x in b.tail:
            fill[starts[i] + len(b.mf) - 1] += x.pre + [x]
    sys.stderr.write(f"forced slots {over}\n")
    out = []
    lg = []; lg_done = 0; vm = []; lastread = {}; issued = {}
    cur = []
    def emit(lst, g):
        nonlocal lg_done
        for x in lst:
            if x.k == "bar":
                need = max(i2 for i2, tg in enumerate(vm) if tg in x.tag)
                for tg in x.tag: assert tg in vm, (tg, g)
                n = min(len(vm) - 1 - need, 63)
                if g in lazy: assert lg[-1][0][0] == "DUMMY", (lg[-1], g)
                if g in nodrain:
                    cur.append(I(f"s_waitcnt vmcnt({n})", "wait"))
                else:
                    cur.append(I(f"s_waitcnt vmcnt({n}) lgkmcnt({1 if g in lazy else 0})", "wait"))
                    lg_done = len(lg)
                cur.append(I("s_barrier", "salu"))
            elif x.k in ("d", "t", "dsv"):
                lg.append((x.tag, g)); lastread[x.tag] = len(lg) - 1; cur.append(x)
                issued[x.tag] = issued.get(x.tag, 0) + 1
            elif x.k in ("dma", "store"):
                vm.append(x.tag); cur.append(x)
            else: cur.append(x)
    nparts = {}
    for x in R: nparts[x.tag] = nparts.get(x.tag, 0) + 1
    def lwait(mf, g, strict):
        nonlocal lg_done
        keys = [mf[1]] + mf[6]
        for k in keys:
            if issued.get(k, 0) < nparts.get(k, 1):
                assert not strict, ("operand not read", k, g)
                return
        needi = max(lastread[k] for k in keys)
        if needi >= lg_done:
            n_need = len(lg) - 1 - needi
            n_safe = sum(1 for (_, gg) in lg[lg_done:] if gg > g - cfg.SAFE)
            n = min(n_need, max(n_safe, 2), 15)
            cur.append(I(f"s_waitcnt lgkmcnt({n})", "wait"))
            lg_done = len(lg) - n
    for grp in pre_dma:
        for x in grp:
            emit(x.pre, -1); emit([x], -1)
    emit(front[-1], -1); emit(fill[-1], -1)
    out.append(("pre", cur))
    allmf = [mf for b in B for mf in b.mf]
    for i, b in enumerate(B):
        cur = []
        for gi, mf in enumerate(b.mf):
            g = starts[i] + gi
            d, key, bt, brs, ct, crs, extra = mf
            lwait(mf, g, True)
            fr = fragreg[key]
            cur.append(I(f"{MF} {vr(d,4)}, {ar(fr,4)}, {bt}, {ct}", "mfma", rd=Areg(fr, 4) + brs, wr=V(d, 4), c=crs))
            emit(front[g], g)
            if g + 1 < M: lwait(allmf[g + 1], g, False)
            emit(fill[g], g)
        out.append((b.name, cur))
    return out

def hazard_pass(segs):
    pos = 0; res = []; lastw = {}; lastc = {}; lasts = {}; pend = {}; nn = 0
    for name, lst in segs:
        o = []
        for x in lst:
            need = 0
            def req(p, d):
                nonlocal need
                need = max(need, d - (pos - p - 1))
            isv = x.k in ("valu", "trans", "perm")
            for r in x.rd + x.c:
                if r in lastw:
                    p, k, full = lastw[r]
                    if k == "mfma":
                        if x.k == "mfma":
                            if r in x.rd: req(p, 8)
                            elif tuple(x.c) != full: req(p, 6)
                        else: req(p, 8)
                    elif k in ("valu", "trans", "perm"):
                        if x.k in ("mfma", "perm"): req(p, 2)
                        if k == "trans" and x.k != "trans": req(p, 1)
                    elif k == "salu" and r == ("m0", 0): req(p, 1)
            for r in x.wr:
                if r in lastw and lastw[r][1] == "mfma" and (x.k != "mfma" or tuple(x.c) != lastw[r][2]): req(lastw[r][0], 8)
                if isv and r in lastc: req(lastc[r], 3)
                if r in lasts: req(lasts[r], 2)
            if x.k in ("d", "t"):
                for r in x.wr:
                    assert r not in pend, ("fragment overwritten before use", name, x.t)
                    pend[r] = 1
            if x.k == "mfma":
                for r in x.rd: pend.pop(r, None)
            while need > 0:
                k = min(need, 16)
                o.append(I(f"s_nop {k-1}", "nop")); pos += k; need -= k; nn += 1
            o.append(x)
            for r in x.wr: lastw[r] = (pos, x.k, tuple(x.wr))
            if x.k == "mfma":
                for r in x.c: lastc[r] = pos
            if x.k == "store":
                for r in x.rd: lasts[r] = pos
            pos += 1
        res.append((name, o))
    return res, nn

def srd(A, d, p, offreg, size):
    A(f"s_add_u32 s{d}, s{p}, s{offreg}")
    A(f"s_addc_u32 s{d+1}, s{p+1}, 0")
    A(f"s_and_b32 s{d+1}, s{d+1}, 0xffff")
    A(f"s_mov_b32 s{d+2}, {size}")
    A(f"s_mov_b32 s{d+3}, 0x20000")

def setup_code(cfg):
    L = []; A = L.append
    A("s_load_dwordx16 s[44:59], s[0:1], 0")
    A("s_load_dwordx4 s[60:63], s[0:1], 64")
    A("s_load_dwordx2 s[64:65], s[0:1], 96")
    A("s_cmp_ge_u32 s2, 256")
    A("s_cbranch_scc1 L_exit")
    if cfg.stamp:
        A("s_memtime s[80:81]"); A("s_memrealtime s[94:95]")
    A("v_lshrrev_b32 v1, 6, v0")
    A("v_and_b32 v64, 63, v0")
    A(f"v_readfirstlane_b32 s{sWave}, v1")
    A("s_and_b32 s66, s2, 7"); A("s_lshr_b32 s67, s2, 3")
    A("s_lshr_b32 s68, s66, 2")
    A("s_and_b32 s69, s67, 1")
    A("s_lshr_b32 s70, s67, 1")
    A("s_and_b32 s71, s70, 7")
    A("s_lshr_b32 s70, s70, 3")
    A("s_and_b32 s72, s66, 3"); A("s_lshl_b32 s72, s72, 1"); A("s_add_u32 s72, s72, s70")
    A("s_lshl_b32 s73, s72, 1"); A("s_add_u32 s73, s73, s69")
    if cfg.rot:
        A("s_add_u32 s90, s71, s73"); A(f"s_and_b32 s90, s90, {cfg.rotmask}"); A(f"s_mul_i32 s90, s90, {128*cfg.rot}")
    A(f"s_lshl_b32 s{sW4K}, s{sWave}, 12")
    A(f"s_lshl_b32 s{sW64K}, s{sWave}, 16")
    A(f"s_mul_i32 s{sW28K}, s{sWave}, 28672")
    A(f"s_sub_u32 s{sKoff}, s{sW4K}, 16384")
    A(f"s_sub_u32 s{sVoff}, s{sW4K}, 16384")
    A(f"s_mov_b32 s{sScale}, {f32bits(math.log2(math.e) / 16.0):#x}")
    A(f"s_and_b32 s76, s{sWave}, 1"); A("s_lshl_b32 s76, s76, 3")
    A("v_lshrrev_b32 v65, 5, v64"); A("v_and_b32 v66, 31, v64")
    A("v_lshrrev_b32 v71, 3, v64"); A("v_and_b32 v72, 7, v64")
    A("v_mul_u32_u24 v73, 896, v71")
    A("v_lshrrev_b32 v74, 1, v71")
    A("v_xor_b32 v74, v74, v72")
    A("v_lshl_add_u32 v75, v74, 4, v73")
    A("v_xor_b32 v74, 4, v74")
    A("v_lshl_add_u32 v76, v74, 4, v73")
    for k in range(4):
        A(f"v_add_u32 v{vXD+k}, {k*(8*896-1024)}, v{75 + (k & 1)}")
    A("v_lshlrev_b32 v73, 1, v65"); A("v_xor_b32 v73, v73, v66"); A("v_xor_b32 v73, s76, v73")
    A("v_lshlrev_b32 v74, 13, v65")
    A("v_lshl_add_u32 v75, v73, 4, v74")
    A("v_xor_b32 v73, 4, v73")
    A("v_lshl_add_u32 v76, v73, 4, v74")
    for k in range(4):
        A(f"v_add_u32 v{vWD+k}, {k*(16384-1024)}, v{75 + (k & 1)}")
    A("s_waitcnt lgkmcnt(0)")
    if cfg.hstamp: A("s_memtime s[82:83]")
    A("s_cmp_eq_u32 s68, 0")
    for a, b in ((44, 54), (50, 60), (46, 56), (48, 58), (52, 62)):
        A(f"s_cselect_b32 s{a}, s{a}, s{b}"); A(f"s_cselect_b32 s{a+1}, s{a+1}, s{b+1}")
    A("s_mul_i32 s74, s71, 114688"); srd(A, sX, 44, 74, 114688)
    A("s_lshl_b32 s74, s73, 9"); A(f"s_sub_u32 s75, {448*8192}, s74"); srd(A, sWQ, 50, 74, "s75")
    return L

def touch_code(cfg):
    L = []
    A = lambda t: L.append(I(t, "raw"))
    T = lambda t: L.append(I(t, "dma", tag=("T", 0)))
    if "w" in cfg.touch:
        A("v_lshrrev_b32 v73, 2, v64"); A("v_min_u32 v73, 13, v73"); A("v_lshlrev_b32 v73, 13, v73")
        A("v_and_b32 v74, 3, v64"); A("v_lshl_add_u32 v73, v74, 7, v73")
        A(f"s_lshl_b32 s74, s71, 2"); A(f"s_add_u32 s74, s74, s{sWave}"); A(f"s_mul_i32 s74, s74, {14*8192}")
        T(f"buffer_load_dword a255, v73, s[{sWQ}:{sWQ+3}], s74 offen{cfg.t_flags}")
    if "x" in cfg.touch:
        A("v_min_u32 v73, 55, v64"); A("v_lshlrev_b32 v73, 7, v73")
        A("s_and_b32 s74, s73, 3"); A("s_lshl_b32 s74, s74, 2"); A(f"s_add_u32 s74, s74, s{sWave}"); A(f"s_mul_i32 s74, s74, {56*128}")
        T(f"buffer_load_dword a254, v73, s[{sX}:{sX+3}], s74 offen{cfg.t_flags}")
    if "c" in cfg.touch:
        A("s_getpc_b64 s[20:21]")
        A("s_and_b32 s21, s21, 0xffff"); A("s_mov_b32 s22, CODE_BYTES"); A("s_mov_b32 s23, 0x20000")
        A("v_lshlrev_b32 v73, 7, v64")
        A(f"s_and_b32 s74, s67, 1"); A("s_lshl_b32 s74, s74, 2"); A(f"s_add_u32 s74, s74, s{sWave}"); A("s_lshl_b32 s74, s74, 13")
        T(f"buffer_load_dword a253, v73, s[20:23], s74 offen")
    return L

def stouch_setup():
    L = []; A = L.append
    A("v_lshlrev_b32 v73, 13, v65"); A("v_lshl_add_u32 v80, v66, 4, v73")
    A("v_mul_u32_u24 v73, 896, v71"); A("v_lshl_add_u32 v81, v72, 4, v73")
    A(f"s_lshl_b32 s74, s71, 2"); A(f"s_add_u32 s74, s74, s{sWave}"); A("s_lshl_b32 s90, s74, 14")
    A("s_and_b32 s74, s73, 3"); A("s_lshl_b32 s74, s74, 2"); A(f"s_add_u32 s74, s74, s{sWave}"); A(f"s_mul_i32 s91, s74, {8*896}")
    return L
def stouch(st, cfg):
    a = I(f"buffer_load_dwordx4 a[240:243], v80, s[{sWQ}:{sWQ+3}], s92 offen{cfg.t_flags}", "dma", tag=("T", 2))
    a.pre = [salu(f"s_add_u32 s92, s90, {st*64*8192}")]
    return [a, I(f"buffer_load_dwordx4 a[244:247], v81, s[{sX}:{sX+3}], s91 offen offset:{128*st}{cfg.t_flags}", "dma", tag=("T", 2))]

def kd_code(cfg):
    L = []; A = L.append
    if cfg.hstamp == 2:
        A("s_memtime s[84:85]"); A(f"s_waitcnt vmcnt({cfg.npre})"); A("s_memtime s[86:87]")
    A("s_lshl_b32 s74, s71, 3"); A("s_add_u32 s74, s74, s72"); A("s_lshl_b32 s74, s74, 20")
    srd(A, sK, 46, 74, 1 << 20); srd(A, sV, 48, 74, 1 << 20)
    if cfg.pf:
        A("s_cmp_eq_u32 s69, 0"); A(f"s_cselect_b32 s84, s{sK}, s{sV}"); A(f"s_cselect_b32 s85, s{sK+1}, s{sV+1}")
        A(f"s_mov_b32 s86, {1 << 20}"); A("s_mov_b32 s87, 0x20000")
    A("v_xor_b32 v73, v65, v66"); A("v_xor_b32 v73, s76, v73"); A("v_lshlrev_b32 v74, 9, v65")
    for k in range(4):
        A(f"v_xor_b32 v75, {2*k}, v73"); A(f"v_lshl_add_u32 v{vKD+k}, v75, 4, v74")
    return L

def setup_code2(cfg):
    L = []; A = L.append
    if cfg.hstamp == 1: A("s_memtime s[84:85]")
    A("s_mul_i32 s74, s73, 229376"); srd(A, sWO, 52, 74, 229376)
    A("s_lshl_b32 s74, s68, 3"); A("s_add_u32 s74, s74, s71"); A("s_lshl_b32 s74, s74, 4"); A("s_add_u32 s74, s74, s73")
    A(f"s_mul_i32 s74, s74, {cfg.SST}"); A(f"s_add_u32 s74, s74, {cfg.wsoff}"); srd(A, sPT, 64, 74, cfg.SST)
    if cfg.psync:
        A("s_lshl_b32 s74, s66, 4"); A("s_lshr_b32 s75, s67, 1"); A("s_add_u32 s74, s74, s75"); A("s_lshl_b32 s74, s74, 2")
        A(f"s_add_u32 s74, s74, s{sWave}"); A("s_lshl_b32 s74, s74, 7"); A("s_add_u32 s74, s74, 0x2000000")
        A(f"s_add_u32 s{sSy}, s64, s74"); A(f"s_addc_u32 s{sSy+1}, s65, 0")
        A(f"s_lshl_b32 s{sSign}, s69, 1"); A(f"s_sub_u32 s{sSign}, 1, s{sSign}")
        A(f"s_sub_u32 s{sOld}, 0, s69")
        A(f"s_atomic_and s{sOld}, s[{sSy}:{sSy+1}], 0x0")
    A("s_mov_b32 s3, 0")
    if cfg.fuse:
        A("s_load_dwordx4 s[56:59], s[0:1], 80")
        A("s_memrealtime s[60:61]")
        A("s_lshl_b32 s70, s68, 3"); A("s_add_u32 s70, s70, s71")
    A("v_lshrrev_b32 v67, 4, v64"); A("v_bfe_u32 v68, v64, 2, 2"); A("v_and_b32 v69, 3, v64"); A("v_and_b32 v70, 15, v64")
    A("v_lshlrev_b32 v73, 1, v65"); A("v_xor_b32 v73, v73, v66"); A("v_lshlrev_b32 v74, 9, v65")
    for k in range(4):
        A(f"v_xor_b32 v75, {4*k}, v73"); A(f"v_lshl_add_u32 v{vVD+k}, v75, 4, v74")
    A("v_bfe_u32 v76, v64, 2, 3")
    A("v_lshl_add_u32 v73, v67, 3, v68"); A("v_lshlrev_b32 v73, 9, v73"); A("v_lshl_add_u32 v73, v69, 3, v73")
    for j in range(8):
        A(f"v_xor_b32 v75, {j}, v76"); A(f"v_lshl_add_u32 v{vQA+j}, v75, 5, v73")
    A("v_lshlrev_b32 v73, 7, v70"); A(f"v_add_u32 v73, s{sW4K}, v73"); A("v_add_u32 v73, 32768, v73")
    A("v_lshrrev_b32 v74, 1, v70"); A("v_xor_b32 v74, v74, v67")
    for kt in range(2):
        A(f"v_xor_b32 v75, {4*kt}, v74"); A(f"v_lshl_add_u32 v{vXA+kt}, v75, 4, v73")
    A("v_lshrrev_b32 v73, 2, v64"); A("v_lshlrev_b32 v73, 9, v73"); A("v_lshl_add_u32 v73, v69, 3, v73"); A(f"v_add_u32 v73, {VRING}, v73")
    for j in range(8):
        A(f"v_xor_b32 v75, {j}, v76"); A(f"v_lshl_add_u32 v{vVB+j}, v75, 5, v73")
    A("v_lshlrev_b32 v73, 9, v70"); A(f"v_add_u32 v73, {KRING}, v73"); A("v_xor_b32 v74, v67, v70")
    for j in range(4):
        A(f"v_xor_b32 v75, {4*j}, v74"); A(f"v_lshl_add_u32 v{vKB+j}, v75, 4, v73")
    A(f"v_lshlrev_b32 v73, 4, v64"); A(f"s_mul_i32 s74, s{sWave}, {cfg.WST}"); A(f"v_add_u32 v{vST}, s74, v73")
    A("v_mul_u32_u24 v74, 896, v71"); A("v_lshlrev_b32 v75, 1, v67"); A("v_xor_b32 v75, v75, v72"); A("v_lshl_add_u32 v74, v75, 4, v74")
    for k in range(4):
        A(f"v_add_u32 v75, {k*(8*896-1024)}, v74"); A(f"v_accvgpr_write_b32 a{PARK+k}, v75")
    A("v_lshrrev_b32 v74, 2, v64"); A("v_lshlrev_b32 v74, 7, v74"); A("v_lshl_add_u32 v74, v69, 3, v74"); A("v_and_b32 v77, 3, v71")
    for nb in range(4):
        A(f"v_xor_b32 v75, {nb}, v77"); A(f"v_lshl_add_u32 v75, v75, 5, v74")
        A(f"v_add_u32 v78, {KRING}, v75"); A(f"v_accvgpr_write_b32 a{PARK+4+nb}, v78")
        A(f"v_add_u32 v78, {VRING}, v75"); A(f"v_accvgpr_write_b32 a{PARK+8+nb}, v78")
        A(f"v_accvgpr_write_b32 a{PARK+12+nb}, v75")
    A("v_min_u32 v74, 55, v64"); A("v_lshlrev_b32 v74, 7, v74"); A(f"v_mov_b32 v{vQW}, v74")
    A(f"s_lshl_b32 s77, s71, 2"); A(f"s_add_u32 s77, s77, s{sWave}"); A(f"s_mul_i32 s77, s77, {56*128}")
    if "l" in cfg.touch:
        A(f"v_lshlrev_b32 v{vQW}, 4, v64"); A(f"v_add_u32 v{vQW}, {cfg.LOFF*1024}, v{vQW}"); A(f"s_sub_u32 s77, s77, {(cfg.LOFF+1+cfg.LSKIP)*1024}")
    return L

def tail_prep_salu(cfg):
    chunks = []
    def chunk():
        L = []; chunks.append(L)
        return lambda t: L.append(salu(t))
    A = chunk(); A("s_memrealtime s[62:63]")
    A(f"s_mul_i32 s74, s70, {16*cfg.SST}"); A(f"s_add_u32 s74, s74, {cfg.wsoff}")
    A = chunk(); srd(A, 4, 64, 74, 16*cfg.SST)
    A = chunk(); A("s_mov_b32 s74, 0"); srd(A, 8, 56, 74, 1835008)
    A = chunk(); srd(A, 16, 58, 74, 256)
    A = chunk(); A("s_mov_b32 s74, 0x2400000"); srd(A, 12, 64, 74, 65536)
    A = chunk()
    A("s_lshl_b32 s67, s70, 2")
    A(f"s_lshr_b32 s66, s{sWave}, 1"); A("s_lshl_b32 s66, s66, 4"); A("s_add_u32 s66, s66, s70"); A("s_lshl_b32 s66, s66, 11")
    A = chunk()
    A(f"s_add_u32 s60, s60, {2000 if not cfg.force_abandon else 0x7fffffff}"); A("s_addc_u32 s61, s61, 0")
    A("s_mov_b32 s54, s60"); A("s_add_u32 s55, s61, 1")
    A = chunk()
    A("s_mov_b32 s52, 0x3f80"); A("s_mov_b32 s53, 0x3f800000"); A("s_mov_b32 s49, 32768")
    A("s_lshl_b32 s72, s70, 4"); A("s_add_u32 s72, s72, s73"); A("s_lshl_b32 s72, s72, 7")
    A(f"s_lshl_b32 s69, s{sWave}, 28"); A("s_add_u32 s72, s72, s69")
    return chunks

def tail_prep_valu(cfg):
    L = []
    def A(t, w, r=()): L.append(valu(t, rd=[("v", x) for x in r], wr=V(w)))
    A("v_mbcnt_lo_u32_b32 v0, -1, 0", 0); A("v_mbcnt_hi_u32_b32 v0, -1, v0", 0, [0])
    A("v_lshlrev_b32 v1, 4, v0", 1, [0])
    A("v_and_b32 v6, 15, v0", 6, [0]); A("v_lshlrev_b32 v5, 7, v6", 5, [6])
    A("v_mul_u32_u24 v8, 1792, v6", 8, [6]); A("v_lshrrev_b32 v6, 4, v0", 6, [0]); A("v_lshl_add_u32 v8, v6, 4, v8", 8, [6, 8])
    A("v_lshlrev_b32 v12, 20, v0", 12, [0]); A("v_add_u32 v12, s72, v12", 12, [12])
    A("v_mov_b32 v4, 1", 4); A("v_mov_b32 v2, s62", 2); A("v_mov_b32 v3, s63", 3)
    return L

def tail_code(cfg):
    L = []; A = L.append
    A("buffer_load_dwordx2 v[6:7], v5, s[12:15], s66 offen sc1")
    A(f"s_mov_b32 s69, {cfg.ptime}")
    A("s_waitcnt vmcnt(1)")
    if cfg.stamp: A("s_memrealtime s[96:97]")
    A("s_barrier")
    A("buffer_store_dwordx2 v[2:3], v12, s[12:15], s49 offen sc1")
    A("s_waitcnt vmcnt(1)")
    A("s_branch L_chk")
    A("L_poll:")
    A("buffer_load_dwordx2 v[6:7], v5, s[12:15], s66 offen sc1")
    A("s_waitcnt vmcnt(0)")
    A("L_chk:")
    A("v_cmp_le_u64 vcc, s[60:61], v[6:7]")
    A("v_cmp_ge_u64 s[74:75], s[54:55], v[6:7]")
    A("s_and_b64 vcc, vcc, s[74:75]")
    A("s_cmp_eq_u64 vcc, exec")
    A("s_cbranch_scc1 L_go")
    A("s_sub_u32 s69, s69, 1")
    A("s_cmp_lg_u32 s69, 0")
    A("s_cbranch_scc1 L_poll")
    A("s_add_u32 s74, s73, 8"); A("s_lshl_b32 s74, 1, s74")
    A("v_mov_b32 v9, s74")
    A("s_mov_b64 exec, 1")
    A("buffer_atomic_or v9, off, s[16:19], s67 sc0 sc1")
    A("s_waitcnt vmcnt(0)")
    A("s_mov_b64 exec, -1")
    A("v_readfirstlane_b32 s74, v9")
    A("s_and_b32 s74, s74, 0xff")
    A("s_cmp_lg_u32 s74, 16")
    A("s_cbranch_scc1 L_fin")
    A("L_go:")
    if cfg.stamp: A("s_memrealtime s[38:39]"); A("s_mov_b32 s37, s69"); A("s_waitcnt lgkmcnt(0)")
    A("s_mov_b32 s50, s73"); A(f"s_mov_b32 s51, s{sWave}")
    A(f"s_call_b64 s[{sRet}:{sRet+1}], L_red")
    A("L_fin:")
    if cfg.stamp: A("s_waitcnt lgkmcnt(0)")
    A(f"s_cmp_lg_u32 s{sWave}, 1")
    A("s_cbranch_scc1 L_done")
    A("s_mov_b64 exec, 1")
    A("buffer_atomic_add v4, off, s[16:19], s67 sc0 sc1")
    A("s_waitcnt vmcnt(0)")
    A("s_mov_b64 exec, -1")
    A("v_readfirstlane_b32 s48, v4")
    A("s_and_b32 s74, s48, 0xff")
    A("s_cmp_lg_u32 s74, 15")
    A("s_cbranch_scc1 L_done")
    A("s_bfe_u32 s48, s48, 0x100008")
    A("L_redo:")
    A("s_cmp_eq_u32 s48, 0")
    A("s_cbranch_scc1 L_done")
    A("s_ff1_i32_b32 s50, s48")
    A("s_bitset0_b32 s48, s50")
    A("s_mov_b32 s51, 0")
    A("L_redo1:")
    A(f"s_call_b64 s[{sRet}:{sRet+1}], L_red")
    A("s_add_u32 s51, s51, 1")
    A("s_cmp_lt_u32 s51, 4")
    A("s_cbranch_scc1 L_redo1")
    A("s_branch L_redo")
    A("L_done:")
    return L

def red_code(cfg):
    L = []; A = L.append
    A("L_red:")
    A("s_lshr_b32 s74, s50, 2"); A(f"s_mul_i32 s44, s74, {cfg.WST}")
    A("s_and_b32 s75, s50, 3"); A("s_lshl_b32 s75, s75, 10"); A("s_add_u32 s44, s44, s75")
    A("s_lshl_b32 s75, s51, 13"); A("s_add_u32 s44, s44, s75")
    A("s_cmp_eq_u32 s51, 3")
    A("s_cselect_b32 s46, 0x40000000, 4096"); A("s_cselect_b32 s47, 0x40000000, 128")
    A("v_add_u32 v10, s46, v1"); A("v_add_u32 v11, s47, v8")
    for st, (base, vo) in enumerate(((128, 1), (64, 10))):
        A("s_mov_b32 s45, s44")
        for h in range(16):
            A(f"buffer_load_dwordx4 v[{base+4*h}:{base+4*h+3}], v{vo}, s[4:7], s45 offen sc1")
            if h < 15: A(f"s_add_u32 s45, s45, {cfg.SST}")
    A("s_lshl_b32 s45, s71, 3"); A("s_lshr_b32 s75, s50, 1"); A("s_add_u32 s45, s45, s75"); A(f"s_mul_i32 s45, s45, {16*1792}")
    A("s_mul_i32 s75, s68, 896"); A("s_add_u32 s45, s45, s75")
    A("s_lshl_b32 s75, s51, 8"); A("s_add_u32 s45, s45, s75")
    A("s_and_b32 s75, s50, 1"); A("s_lshl_b32 s75, s75, 6"); A("s_add_u32 s45, s45, s75")
    for st, (base, vo, acc) in enumerate(((128, 8, 16), (64, 11, 32))):
        for k in range(8): A(f"v_mov_b32 v{acc+k}, 0")
        for h in range(16):
            A(f"s_waitcnt vmcnt({(31 - h) if st == 0 else (16 - h)})")
            for k in range(4):
                A(f"v_dot2c_f32_bf16 v{acc+2*k}, s52, v{base+4*h+k}")
                A(f"v_dot2c_f32_bf16 v{acc+2*k+1}, s53, v{base+4*h+k}")
        A("s_nop 2")
        for k in range(4): A(f"v_cvt_pk_bf16_f32 v{acc+8+k}, v{acc+2*k}, v{acc+2*k+1}")
        A("s_nop 1")
        A(f"v_permlane32_swap_b32 v{acc+8}, v{acc+10}"); A(f"v_permlane32_swap_b32 v{acc+9}, v{acc+11}")
        A("s_nop 1")
        A(f"v_permlane16_swap_b32 v{acc+8}, v{acc+10}"); A(f"v_permlane16_swap_b32 v{acc+9}, v{acc+11}")
        A(f"buffer_store_dwordx4 v[{acc+8}:{acc+11}], v{vo}, s[8:11], s45 offen")
    A(f"s_setpc_b64 s[{sRet}:{sRet+1}]")
    return L

def rare_code(par, has_next):
    ins = [I("s_nop 9", "nop")]
    for qb in range(2):
        ins += rowmax_instrs(par, qb, vD, vF)
        ins.append(valu(f"v_max_f32 v{vD}, 0, v{vD}", rd=V(vD), wr=V(vD)))
        ins.append(valu(f"v_sub_f32 v{vF}, 0, v{vD}", rd=V(vD), wr=V(vF)))
        ins.append(trans(f"v_exp_f32 v{vF}, v{vF}", rd=V(vF), wr=V(vF)))
        regs = [NEGM + 4*qb + k for k in range(4)] + [sreg(par, kb, qb) + k for kb in range(2) for k in range(4)]
        if has_next: regs += [sreg(1 - par, kb, qb) + k for kb in range(2) for k in range(4)]
        for r in regs: ins.append(valu(f"v_sub_f32 v{r}, v{r}, v{vD}", rd=V(r)+V(vD), wr=V(r)))
        for r in [vL + qb] + [oreg(db, qb) + k for db in range(16) for k in range(4)]:
            ins.append(valu(f"v_mul_f32 v{r}, v{r}, v{vF}", rd=V(r)+V(vF), wr=V(r)))
    ins += sm_instrs(par)
    ins.append(I("s_nop 1", "nop"))
    ins.append(I(f"s_setpc_b64 s[{sRet}:{sRet+1}]", "salu"))
    segs, _ = hazard_pass([("rare", ins)])
    return [x.t for x in segs[0][1]]

def reduce_kernel(cfg):
    L = []; A = L.append
    A(".p2align 8")
    A("reduce_kernel:")
    A("s_cmp_ge_u32 s2, 448")
    A("s_cbranch_scc1 L_rexit")
    A("s_load_dwordx2 s[4:5], s[0:1], 96")
    A("s_load_dwordx2 s[6:7], s[0:1], 80")
    A("s_mul_hi_u32 s16, s2, 0x924924a")
    A("s_mul_i32 s17, s16, 28"); A("s_sub_u32 s17, s2, s17")
    A("s_mul_hi_u32 s18, s17, 0x24924925")
    A("s_mul_i32 s19, s18, 7"); A("s_sub_u32 s19, s17, s19")
    A("v_lshlrev_b32 v1, 4, v0")
    A("s_lshl_b32 s20, s17, 12")
    A("v_add_u32 v1, s20, v1")
    A("s_mul_i32 s21, s16, 1835008"); A(f"s_add_u32 s21, s21, {cfg.wsoff}")
    A("s_waitcnt lgkmcnt(0)")
    A("s_add_u32 s8, s4, s21"); A("s_addc_u32 s9, s5, 0"); A("s_and_b32 s9, s9, 0xffff")
    A("s_mov_b32 s10, 1835008"); A("s_mov_b32 s11, 0x20000")
    A("s_mov_b32 s12, s6"); A("s_and_b32 s13, s7, 0xffff"); A("s_mov_b32 s14, 1835008"); A("s_mov_b32 s15, 0x20000")
    A("s_mov_b32 s22, 0")
    for h in range(16):
        A(f"buffer_load_dwordx4 v[{16+4*h}:{19+4*h}], v1, s[8:11], s22 offen{cfg.rd_flags}")
        if h < 15: A("s_add_u32 s22, s22, 114688")
    A("v_and_b32 v2, 15, v0")
    A("v_lshrrev_b32 v3, 7, v0"); A("v_lshl_add_u32 v2, v3, 4, v2")
    A("s_and_b32 s23, s16, 7"); A("s_lshl_b32 s23, s23, 7"); A("s_lshl_b32 s24, s18, 5"); A("s_add_u32 s23, s23, s24")
    A("v_add_u32 v2, s23, v2")
    A("v_mul_u32_u24 v2, 1792, v2")
    A("v_bfe_u32 v3, v0, 4, 3")
    A("v_lshl_add_u32 v2, v3, 4, v2")
    A("s_lshr_b32 s23, s16, 3"); A("s_mul_i32 s23, s23, 896"); A("s_lshl_b32 s24, s19, 7"); A("s_add_u32 s23, s23, s24")
    for h in range(16):
        A(f"s_waitcnt vmcnt({15-h})")
        for k in range(4):
            src = 16 + 4*h + k
            if h == 0:
                A(f"v_lshlrev_b32 v{4+2*k}, 16, v{src}"); A(f"v_and_b32 v{5+2*k}, 0xffff0000, v{src}")
            else:
                A(f"v_lshlrev_b32 v12, 16, v{src}"); A(f"v_and_b32 v13, 0xffff0000, v{src}")
                A(f"v_add_f32 v{4+2*k}, v{4+2*k}, v12"); A(f"v_add_f32 v{5+2*k}, v{5+2*k}, v13")
    for k in range(4):
        A(f"v_cvt_pk_bf16_f32 v{12+k}, v{4+2*k}, v{5+2*k}")
    A("s_nop 1")
    A("v_permlane32_swap_b32 v12, v14"); A("v_permlane32_swap_b32 v13, v15")
    A("s_nop 1")
    A("v_permlane16_swap_b32 v12, v14"); A("v_permlane16_swap_b32 v13, v15")
    A("buffer_store_dwordx4 v[12:15], v2, s[12:15], s23 offen")
    A("L_rexit:")
    A("s_endpgm")
    return L

FLEX = ("v_exp_f32", "v_add_f32", "v_max_f32", "v_mul_f32", "v_sub_f32", "v_mov_b32", "v_rcp_f32")
def isize(t):
    op = t.split()[0]
    if op.endswith(":") or op.startswith(";") or op.startswith("."): return 0
    if op.startswith(("v_mfma", "ds_", "buffer_", "v_cvt_pk", "v_accvgpr", "v_max3", "s_atomic", "s_load", "s_mem", "v_writelane")) or op.endswith("_e64"): return 8
    import re
    lits = [x for x in re.findall(r"(?<![\w\[:(])(-?0x[0-9a-f]+|-?\d+)(?![\w\]:)])", t[len(op):])]
    if op.startswith(("s_waitcnt", "s_nop", "s_barrier", "s_cbranch", "s_branch", "s_sleep", "s_call")): return 4
    for x in lits:
        v = int(x, 0)
        if not -16 <= v <= 64: return 8
    return 4
def align8(L, mode):
    out = []; off = 0; on = False
    for k, t in enumerate(L):
        if t == "L_loop:": on = True; off = 0
        if on and t.split()[0] in FLEX and isize(t) == 4:
            n4 = 0; flexnext = False
            for u in L[k + 1:]:
                sz = isize(u)
                if sz == 0: continue
                if u.split()[0] in FLEX and sz == 4: flexnext = True; break
                if sz == 8: break
                n4 += 1
            if not flexnext and (off + 4 + 4 * n4) % 8 != 0:
                t = t.replace(t.split()[0], t.split()[0] + "_e64", 1)
        out.append(t); off += isize(t)
        if t == "s_cbranch_scc1 L_loop": on = False
    return out

def insert_pads(L, KN):
    import subprocess, re, tempfile, os
    def addrs(lines):
        out = []; cand = []
        inloop = False
        for i, t in enumerate(lines):
            out.append(t)
            if t == "L_loop:": inloop = True
            if t == "s_cbranch_scc1 L_loop": inloop = False
            if (t.startswith("v_mfma") or t.startswith("v_dot2c")) and not inloop:
                out.append(f"LC_{i}:"); cand.append(i)
        txt = "\n".join(out) + "\n"
        for w in range(4):
            if f"L_pad{w}:" not in txt: txt = txt.replace("L_hopback:", f"L_pad{w}:\nL_hopback:")
        d = tempfile.mkdtemp()
        open(d + "/a.s", "w").write(txt)
        subprocess.run(["clang", "-x", "assembler", "-target", "amdgcn-amd-amdhsa", "-mcpu=gfx950", "-c", d + "/a.s", "-o", d + "/a.o"], check=True)
        o = subprocess.run(["llvm-objdump", "-t", d + "/a.o"], capture_output=True, text=True).stdout
        a = {}
        for m in re.finditer(r"^([0-9a-f]+) .* \.text\s+[0-9a-f]+ (?:\.\w+ )?(\w+)$", o, flags=re.M): a[m.group(2)] = int(m.group(1), 16)
        return {i: a[f"LC_{i}"] - a[KN] for i in cand}, a["L_hopback"] - a[KN]
    lines = list(L)
    pads = []
    page = None
    while True:
        ad, hb = addrs(lines)
        if page is None: page = hb // 4096 + 1
        c = [i for i in sorted(ad) if ad[i] >= page * 4096]
        if not c: break
        i = c[0]
        if ad[i] - page * 4096 > 256: page += 1; continue
        lines.insert(i + 1, f"PAD {len(pads)}")
        lines[i + 1] = "s_nop 0 ;PAD"
        pads.append(page); page += 1
    n = len(pads); k = 0
    res = []
    for t in lines:
        if t == "s_nop 0 ;PAD":
            res.append(f"L_pad{k}:")
            res.append(f"s_cbranch_execz {'L_pad%d' % (k + 4) if k + 4 < n else 'L_hopback'}")
            k += 1
        else: res.append(t)
    sys.stderr.write(f"pads: {n}\n")
    return res

def generate(cfg):
    if cfg.fuse and "sc1" not in cfg.st_flags and not cfg.wbl2: cfg.st_flags += " sc1"
    B = build_bodies(cfg)
    for b in B:
        if b.name == cfg.parkb:
            ins = []
            for k in range(4): ins.append(valu(f"v_accvgpr_read_b32 v{vWD+k}, a{PARK+k}", wr=V(vWD+k)))
            for k in range(8): ins.append(valu(f"v_accvgpr_read_b32 v{vQA+k}, a{PARK+4+k}", wr=V(vQA+k)))
            if cfg.spare:
                for k in range(4): ins.append(valu(f"v_accvgpr_read_b32 v{vXD+k}, a{PARK+12+k}", wr=V(vXD+k)))
            b.valu.append((ins, cfg.parkg0, cfg.parkg1))
    for b in B:
        if b.name == cfg.otouch and "o" in cfg.touch:
            b.dma = b.dma + [[I(f"buffer_load_dword a252, v{vQW}, s[{sWO}:{sWO+3}], s77 offen{cfg.o_flags}", "dma", rd=V(vQW), tag=("T", 1))]]
    for b in B:
        if b.name == cfg.otouch and "p" in cfg.touch:
            b.dma = b.dma + [[I(f"buffer_load_dwordx4 a[{240+4*(j%2)}:{243+4*(j%2)}], v{vWD}, s[{sWO}:{sWO+3}], s77 offen offset:{128*j}{cfg.o_flags}", "dma", rd=V(vWD), tag=("T", 1))
                              for j in range(cfg.PJ0, 7)]]
    for b in B:
        if "l" in cfg.touch and b.name[0] == "a" and 2 <= int(b.name[1:]) <= 57 and int(b.name[1:]) % 4 == 0:
            x = I(f"buffer_load_dwordx4 a[240:243], v{vQW}, s[{sWO}:{sWO+3}], s77 offen{cfg.o_flags}", "dma", rd=V(vQW), tag=("T", 1))
            x.pre = [salu("s_add_u32 s77, s77, 1024")]
            b.dma = b.dma + [[x]]
    raw = lambda lines: [I(t, "raw") for t in lines]
    tc = [touch_code(cfg)]
    init = []
    def expand(spec):
        out = []
        for tok in spec.split(","):
            if not tok: continue
            if tok == "S": out += tc + [raw(kd_code(cfg))] + [raw(setup_code2(cfg))]
            elif tok == "T": out += [raw(stouch_setup())]
            elif tok[0] == "D": out += g_stage(int(tok[1]), cfg)
            elif tok[0] == "P": out += [stouch(int(tok[1]), cfg)]
            elif tok == "K0": out += [g_k(0, cfg)]
        return out
    pfl = []
    for ent in [e for e in cfg.pf.split(",") if e]:
        bn, tile = ent.split(":")
        g = [I(f"buffer_load_dwordx4 a[{240+4*(k%2)}:{243+4*(k%2)}], v{vQW}, s[84:87], s{sTmp2} offen{' offset:%d' % (1024*k) if k else ''}", "dma", rd=V(vQW), tag=("T", 3)) for k in range(4)]
        if tile[0] == "h": tile = tile[1:]; g = g[:2]
        g[0].pre = [salu(f"s_add_u32 s{sTmp2}, s{sW4K}, {int(tile)*16384}")]
        pfl.append((bn, g))
    parts = cfg.order.split("|")
    pre = expand(parts[0]); first = expand(parts[1])
    for k in range(4): B[k].dma = expand(parts[2 + k]) + [g for g in B[k].dma if g[0].tag[0] == "T"]
    for bn, g in pfl:
        b = [x for x in B if x.name == bn][0]
        b.dma = b.dma + [g]
    segs = schedule(B, cfg, pre, first)
    segs, nn = hazard_pass(segs)
    txt = {name: [x.t for x in lst] for name, lst in segs}
    names = [n for n, _ in segs]
    lo = None
    for n in range(0, 30):
        if all(txt[f"a{k}"] == txt[f"a{k+4}"] for k in range(n, n + 8)):
            lo = n; break
    assert lo is not None, "no periodic steady state"
    last = lo
    while last + 4 <= 63 and txt[f"a{last+4}"] == txt[f"a{last}"]: last += 1
    last += 3
    nit = (last - lo + 1) // 4
    lo = last + 1 - 4 * nit
    sys.stderr.write(f"loop bodies {lo}..{last} ({nit} iterations), nops inserted {nn}\n")
    L = []; A = L.append
    KN = "attn_kernel"
    if cfg.fuse == 2:
        KN = NAME + "_kernel"
        A("; @launch grid=(256,1,1) block=(256,1,1) lds=163840")
    else:
        A("; @launch kernel=attn_kernel grid=(256,1,1) block=(256,1,1) lds=163840")
    if not cfg.fuse: A("; @launch kernel=reduce_kernel grid=(448,1,1) block=(256,1,1) lds=0")
    A('.amdgcn_target "amdgcn-amd-amdhsa--gfx950"')
    A(".text"); A(f".globl {KN}"); A(".p2align 12" if cfg.hop else ".p2align 8"); A(f".type {KN},@function"); A(f"{KN}:")
    L += setup_code(cfg)
    tramps = []; syncs = []; bs = [0]
    def emit_seg(name):
        A(f"; ---- {name}")
        for t in txt[name]:
            if t.startswith("RARE"):
                _, par, nx = t.split()
                lab = f"L_t_{name.replace('-','m')}"
                A(f"s_cbranch_vccnz {lab}"); A(f"{lab}_back:")
                tramps.append((lab, par, nx))
            elif t == "HOP":
                A("s_mov_b64 exec, 0")
                for w in range(3):
                    A(f"s_cmp_eq_u32 s{sWave}, {w}"); A(f"s_cbranch_scc1 L_pad{w}")
                A("s_branch L_pad3")
                A("L_hopback:")
                A("s_mov_b64 exec, -1")
            elif t == "SYNC":
                lab = f"L_s_{name.replace('-','m')}"
                A(f"s_cmp_gt_i32 s{sDif}, 0"); A(f"s_cbranch_scc1 {lab}"); A(f"{lab}_back:")
                syncs.append(lab)
            else: A(t)
    for name in names:
        if name.startswith("a"):
            n = int(name[1:])
            if lo <= n <= last:
                if n == lo:
                    if cfg.lstamp:
                        A("v_mbcnt_lo_u32_b32 v66, -1, 0"); A("v_mbcnt_hi_u32_b32 v66, -1, v66"); A("v_mov_b32 v67, 0")
                        A("s_memrealtime s[98:99]"); A("s_waitcnt lgkmcnt(0)")
                    if cfg.linear:
                        A("v_mbcnt_lo_u32_b32 v69, -1, 0"); A("v_mbcnt_hi_u32_b32 v69, -1, v69")
                        for r in range(vKD, vKD + 8): A(f"v_lshlrev_b32 v{r}, 4, v69")
                    if "h" in cfg.strip:
                        A("s_and_b32 s74, s73, 1"); A("s_lshl_b32 s74, s74, 11"); A(f"s_add_u32 s{sKoff}, s{sKoff}, s74"); A(f"s_add_u32 s{sVoff}, s{sVoff}, s74")
                    A(f"s_mov_b32 s{sCnt}, {nit}"); A(f".p2align {cfg.lalign}"); [A("s_nop 0") for _ in range(cfg.lshift)]; A("L_loop:")
                    if cfg.lstamp:
                        A("v_mov_b32 v68, s98"); A(f"v_cmp_eq_u32 vcc, s{sCnt}, v66"); A("s_memrealtime s[98:99]"); A("s_nop 0")
                        A("v_cndmask_b32 v67, v67, v68, vcc"); A("v_accvgpr_write_b32 a250, v67")
                if n < lo + 4:
                    def keep(t):
                        if "d" in cfg.strip and t.startswith("buffer_load"): return False
                        if "h" in cfg.strip and t.startswith("buffer_load") and ("offset:2048" in t or "offset:3072" in t): return False
                        if "r" in cfg.strip and t.startswith("ds_read"): return False
                        if "s" in cfg.strip and t.split()[0] in ("v_exp_f32", "v_add_f32", "v_cvt_pk_bf16_f32"): return False
                        return True
                    txt[name] = [t for t in txt[name] if keep(t)]
                    if "h" in cfg.strip: txt[name] = [t.replace("vmcnt(16)", "vmcnt(8)") for t in txt[name]]
                    if cfg.pace:
                        nt = []
                        for t in txt[name]:
                            nt.append(t)
                            if t == "s_barrier": nt += ["s_nop 15"] * cfg.pace
                        txt[name] = nt
                    if n == lo + 3:
                        txt[name].insert(1, f"s_sub_u32 s{sCnt}, s{sCnt}, 1")
                    emit_seg(name)
                    if n == lo + 3:
                        A(f"s_cmp_lg_u32 s{sCnt}, 0"); A("s_cbranch_scc1 L_loop")
                continue
        if cfg.bstamp and name != "pre":
            head = name.startswith("qp") or (name.startswith("a") and int(name[1:]) < 30)
            if head == (cfg.bstamp == 1):
                r = 71 if head else 47
                if bs[0] > 0:
                    A(f"v_writelane_b32 v{r}, s98, {bs[0]-1}"); A(f"v_writelane_b32 v{r}, s26, {bs[0]-1+32}") if not head and False else None
                    A(f"v_accvgpr_write_b32 a250, v{r}")
                A("s_memtime s[98:99]")
                bs[0] += 1; bs.append(name)
        if cfg.hstamp == 1 and name == "qp0": A("s_memtime s[86:87]")
        if cfg.stamp and not cfg.hstamp and name in ("qp0", "a-2", "op0"):
            i = ["qp0", "a-2", "op0"].index(name)
            A(f"s_memtime s[{[82, 44, 46][i]}:{[83, 45, 47][i]}]") if i < 2 else A("s_memtime s[92:93]")
            if name == "a-2": A("s_memrealtime s[100:101]")
            if name == "op0": A("s_memrealtime s[42:43]"); A("s_mov_b32 s34, s44")
        emit_seg(name)
    if cfg.fuse:
        if cfg.stamp: A("s_memrealtime s[98:99]")
        L += tail_code(cfg)
    if cfg.stamp:
        A("s_waitcnt vmcnt(0)")
        A("s_memtime s[88:89]"); A("s_memrealtime s[90:91]")
        A("s_getreg_b32 s31, hwreg(HW_REG_XCC_ID)"); A("s_getreg_b32 s93, hwreg(HW_REG_HW_ID)")
        A("s_waitcnt lgkmcnt(0)")
        A("s_add_u32 s76, s64, 0x4000000"); A("s_addc_u32 s77, s65, 0"); A("s_and_b32 s77, s77, 0xffff")
        A("s_mov_b32 s78, 0x100000"); A("s_mov_b32 s79, 0x20000")
        A("s_lshl_b32 s74, s2, 2"); A(f"s_add_u32 s74, s74, s{sWave}"); A("s_lshl_b32 s74, s74, 6")
        A("v_mov_b32 v40, 0")
        if cfg.lstamp or cfg.bstamp:
            sys.stderr.write(" ".join(bs[1:]) + "\n")
            A("v_mbcnt_lo_u32_b32 v66, -1, 0"); A("v_mbcnt_hi_u32_b32 v66, -1, v66"); A("v_lshlrev_b32 v66, 2, v66")
            A("s_lshl_b32 s75, s74, 2"); A("s_add_u32 s75, s75, 0x10000")
            A("buffer_store_dword a250, v66, s[76:79], s75 offen")
        for i, r in enumerate([80, 82, 34, 92, 88, 90, 31, 93, 94, 100, 42, 3, 98, 96, 38, 37]):
            A(f"v_mov_b32 v41, s{r}")
            A(f"buffer_store_dword v41, v40, s[76:79], s74 offen offset:{4*i}")
    A("L_exit:"); A("s_endpgm")
    if cfg.fuse: L += red_code(cfg)
    A("L_code_end:")
    A(f".set CODE_BYTES, L_code_end - {KN} - 1024")
    for lab, par, nx in tramps:
        A(f"{lab}:"); A(f"s_call_b64 s[{sRet}:{sRet+1}], L_rare_{par}_{nx}"); A(f"s_branch {lab}_back")
    for lab in syncs:
        A(f"{lab}:"); A(f"s_call_b64 s[{sRet}:{sRet+1}], L_spin"); A(f"s_branch {lab}_back")
    if syncs:
        A("L_spin:")
        if cfg.stamp: A("s_add_u32 s3, s3, 0x10000")
        A("s_mov_b32 s74, 32")
        A("L_spin1:")
        if cfg.stamp: A("s_add_u32 s3, s3, 1")
        A(f"s_load_dword s{sDif}, s[{sSy}:{sSy+1}], 0x0 glc")
        A("s_waitcnt lgkmcnt(0)")
        A(f"s_mul_i32 s{sDif}, s{sDif}, s{sSign}")
        A(f"s_cmp_le_i32 s{sDif}, 0")
        A("s_cbranch_scc1 L_spin2")
        A("s_sub_u32 s74, s74, 1")
        A("s_cmp_lg_u32 s74, 0")
        A("s_cbranch_scc1 L_spin1")
        A(f"s_mov_b32 s{sSign}, 0")
        A("L_spin2:")
        A(f"s_mov_b32 s{sOld}, 0"); A(f"s_mov_b32 s{sOld+1}, 0")
        A(f"s_setpc_b64 s[{sRet}:{sRet+1}]")
    for par, nx in sorted({(p, n) for _, p, n in tramps}):
        A(f"L_rare_{par}_{nx}:")
        L += rare_code(int(par), int(nx))
    if not cfg.fuse: L += reduce_kernel(cfg)
    A('.section .rodata,"a"')
    for kn, nv, acc in ((KN, 512, 256), ("reduce_kernel", 80, 80))[:1 if cfg.fuse else 2]:
        A(".p2align 6"); A(f".amdhsa_kernel {kn}")
        A(f"  .amdhsa_next_free_vgpr {nv}"); A("  .amdhsa_next_free_sgpr 102"); A(f"  .amdhsa_accum_offset {acc}")
        A("  .amdhsa_group_segment_fixed_size 0"); A("  .amdhsa_kernarg_size 104"); A("  .amdhsa_user_sgpr_count 2")
        A("  .amdhsa_user_sgpr_kernarg_segment_ptr 1"); A("  .amdhsa_system_sgpr_workgroup_id_x 1")
        A(".end_amdhsa_kernel")
    if cfg.al8: L = align8(L, cfg.al8)
    if cfg.hop: L = insert_pads(L, KN)
    return "\n".join(L) + "\n"

if __name__ == "__main__":
    ap = argparse.ArgumentParser()
    ap.add_argument("-o", default=f"cdna_kernels/{NAME}.s")
    ap.add_argument("opts", nargs="*")
    a = ap.parse_args()
    cfg = Cfg()
    for o in a.opts:
        k, v = o.split("=", 1)
        old = getattr(cfg, k)
        if isinstance(old, bool): v = v not in ("0", "false", "False")
        elif isinstance(old, int): v = int(v)
        elif isinstance(old, float): v = float(v)
        elif k.endswith("_flags"): v = " " + v.replace("+", " ") if v else ""
        setattr(cfg, k, v)
    open(a.o, "w").write(generate(cfg))
```

```python
import sys, math, argparse, struct

NAME = "concat_heads__gqa_block_cached__gqa_block_cached__near_ridge"
def f32bits(x): return struct.unpack("<I", struct.pack("<f", x))[0]

class Cfg:
    LEAD = 20
    DEAD = 8
    NB = 32
    SAFE = 6
    DMASPAN = 40
    H = 3.0
    TTPEN = 3.0
    dma_flags = " nt"
    w_flags = ""
    v_flags = "same"
    o_flags = ""
    otouch = "a59"
    st_flags = ""
    rd_flags = ""
    stamp = False
    strip = ""
    touch = "cl"
    tpos = 1
    t_flags = ""
    hstamp = 0
    npre = 3
    psync = 1
    nospin = 0
    lstamp = 0
    QCW = 16
    VCAP = 4.0
    al8 = 0
    lalign = 6
    lshift = 0
    chain = 4
    pchain = 4
    snake = 1
    qord = 0
    pord = 2
    lf = 0
    lf0 = 2
    lf1 = 57
    pf = ""
    nwarm = 4
    rotkey = 2
    hop = 1
    parkb = "a-2"
    parkg0 = 24
    parkg1 = 34
    rot = 2
    rotmask = 3
    linear = 0
    PJ0 = 4
    LOFF = 0
    LSKIP = 0
    kvlate = 0
    FLA = 5
    wbl2 = 0
    WST = 28672
    SST = 114688
    spare = 0
    QSPAN = 40
    order = "D0,S,D1|D2|D3|D4|D5|D6,K0"
    spos = 1
    bstamp = 0
    fuse = 1
    ptime = 4000
    force_abandon = 0
    pace = 0
    sync0 = "qp2"
    sync1 = "qp4"
    early = 1
    wsoff = 0

def V(lo, n=1): return [("v", lo + i) for i in range(n)]
def Areg(lo, n=1): return [("a", lo + i) for i in range(n)]
def vr(lo, n=1): return f"v{lo}" if n == 1 else f"v[{lo}:{lo+n-1}]"
def ar(lo, n=1): return f"a{lo}" if n == 1 else f"a[{lo}:{lo+n-1}]"

O0 = 128
def oreg(db16, qb): return O0 + (db16 * 2 + qb) * 4
S_ = [96, 112]
def sreg(par, kb, qb): return S_[par] + (kb * 2 + qb) * 4
NEGM = 88
P_ = [72, 80]
QF = 0
FR = 64
XF = 192
PARK = 224
vKB = 0; vVB = 4; vKD = 12; vVD = 16; vWD = 20; vXD = 24; vQA = 28; vXA = 36
vL = 38; vPS = 40; vINV = 42; vST = 44; vD = 45; vF = 46; vQW = 47
vT = 48
vE = 56
vQR = 64
STG = 192
sX, sWQ, sK, sV, sWO, sPT = 4, 8, 12, 16, 20, 24
sW4K, sKoff, sVoff, sCnt, sTmp, sW28K, sW64K, sWave, sScale = 28, 29, 30, 31, 32, 33, 34, 35, 36
sRet = 40
sTmp2 = 76
sKb, sVb = 84, 85
sSign, sOld, sDif = 37, 38, 75
sSy = 78

KRING = 98304
VRING = 32768
def kslot(m): return ((m + 3) % 4) * 16384
def vslot(m): return ((m + 1) % 4) * 16384
def qregion(s): return [0, 98304, 49152][s % 3]
QSTAGE = VRING + vslot(2)
MF = "v_mfma_f32_16x16x32_bf16"

class I:
    __slots__ = ("t", "k", "rd", "wr", "tag", "c", "ideal", "early", "dead", "pre", "post")
    def __init__(s, t, k, rd=(), wr=(), tag=None, c=()):
        s.t, s.k, s.rd, s.wr, s.tag, s.c = t, k, list(rd), list(wr), tag, list(c)
        s.ideal = s.early = s.dead = None
        s.pre = []; s.post = []
def valu(t, rd=(), wr=()): return I(t, "valu", rd, wr)
def trans(t, rd=(), wr=()): return I(t, "trans", rd, wr)
def perm(t, rd=(), wr=()): return I(t, "perm", rd, wr)
def salu(t, wr=()): return I(t, "salu", (), wr)
def slots(x): return 2 if x.k in ("trans", "dma", "store", "perm") else 1

class Body:
    def __init__(s, name):
        s.name = name
        s.mf = []; s.reads = []; s.need = []; s.dma = []; s.valu = []; s.after_reads = []; s.tail = []; s.fronts = []; s.post_bar = []

def dma_group(srd, voffs, pre, post, soff, m0val, tag, flags=""):
    g = []
    for k in range(4):
        off = f" offset:{k*1024}" if k else ""
        g.append(I(f"buffer_load_dwordx4 v{voffs[k]}, s[{srd}:{srd+3}], s{soff} offen{off}{flags} lds",
                   "dma", rd=[("v", voffs[k]), ("m0", 0)], tag=tag))
    g[0].pre = [salu(f"s_add_u32 m0, s{m0val[0]}, {m0val[1]}", wr=[("m0", 0)])] + list(pre)
    return g
def g_k(m, cfg):
    return dma_group(sK, [vKD + k for k in range(4)], [salu(f"s_add_u32 s{sKoff}, s{sKoff}, 16384")], [],
                     sKoff, (sKb, kslot(m)) if cfg.lf else (sW4K, KRING + kslot(m)), ("K", m), cfg.dma_flags)
def g_v(m, cfg):
    return dma_group(sV, [vVD + k for k in range(4)], [salu(f"s_add_u32 s{sVoff}, s{sVoff}, 16384")], [],
                     sVoff, (sVb, vslot(m)) if cfg.lf else (sW4K, VRING + vslot(m)), ("V", m), cfg.dma_flags if cfg.v_flags == "same" else cfg.v_flags)
def wo_place(j, half, cfg):
    if cfg.spare:
        if j == 4: return half * 16384, vXD, half * 16384
        m = 64 + (j if j < 4 else j - 5)
    else:
        m = 64 + j
    if half == 0: return KRING + kslot(m), vQA, kslot(m)
    return VRING + vslot(m), vQA + 4, vslot(m)
def g_wo(j, half, cfg):
    so = sTmp2
    return dma_group(sWO, [vWD + k for k in range(4)], [salu(f"s_add_u32 s{so}, s{sW28K}, {half*128*896 + 128*j}")], [],
                     so, (sW4K, wo_place(j, half, cfg)[0]), ("W", j, half), cfg.o_flags)
def g_stage(s, cfg):
    rb = qregion(s)
    if cfg.rot:
        gs = [dma_group(sX, [vXD + k for k in range(4)], [salu(f"s_add_u32 s{sTmp}, s{sW28K}, s90"), salu("s_lshl_b32 s91, s90, 12")], [],
                        sTmp, (sW4K, rb + 32768), ("Q", s), cfg.w_flags)]
        gs.append(dma_group(sWQ, [vWD + k for k in range(4)], [salu(f"s_add_u32 s{sTmp}, s{sW64K}, s91"), salu("s_add_u32 s90, s90, 128")], [],
                            sTmp, (sW4K, rb), ("Q", s), cfg.w_flags))
        gs.append(dma_group(sWQ, [vWD + k for k in range(4)], [salu(f"s_add_u32 s{sTmp}, s{sTmp}, {32*8192}"), salu("s_cmp_eq_u32 s90, 896"), salu("s_cselect_b32 s90, 0, s90")], [],
                            sTmp, (sW4K, rb + 16384), ("Q", s), cfg.w_flags))
        return gs
    gs = [dma_group(sX, [vXD + k for k in range(4)], [salu(f"s_add_u32 s{sTmp}, s{sW28K}, {128*s}")], [],
                    sTmp, (sW4K, rb + 32768), ("Q", s), cfg.w_flags)]
    for kk in range(2):
        gs.append(dma_group(sWQ, [vWD + k for k in range(4)], [salu(f"s_add_u32 s{sTmp}, s{sW64K}, {(64*s + 32*kk)*8192}")], [],
                            sTmp, (sW4K, rb + kk * 16384), ("Q", s), cfg.w_flags))
    return gs

def sm_instrs(n, fix=False):
    par = n % 2
    out = []; pend = []
    k = 0
    for qb in range(2):
        for kb in range(2):
            for hp in range(2):
                s0 = sreg(par, kb, qb) + 2 * hp
                t0 = vT + (2 * k) % 8; t1 = t0 + 1
                ps = vPS + qb
                if fix:
                    out.append(valu(f"v_add_f32 v{s0}, v{NEGM+4*qb}, v{s0}", rd=V(s0)+V(NEGM+4*qb), wr=V(s0)))
                    out.append(valu(f"v_add_f32 v{s0+1}, v{NEGM+4*qb}, v{s0+1}", rd=V(s0+1)+V(NEGM+4*qb), wr=V(s0+1)))
                out.append(trans(f"v_exp_f32 v{t0}, v{s0}", rd=V(s0), wr=V(t0)))
                if pend: out.append(pend.pop(0))
                out.append(trans(f"v_exp_f32 v{t1}, v{s0+1}", rd=V(s0+1), wr=V(t1)))
                out += pend; pend = []
                if kb == 0 and hp == 0:
                    pend.append(valu(f"v_add_f32 v{ps}, v{t0}, v{t1}", rd=V(t0, 2), wr=V(ps)))
                else:
                    pend.append(valu(f"v_add_f32 v{ps}, v{ps}, v{t0}", rd=V(t0)+V(ps), wr=V(ps)))
                    pend.append(valu(f"v_add_f32 v{ps}, v{ps}, v{t1}", rd=V(t1)+V(ps), wr=V(ps)))
                p = P_[par] + 4 * qb + 2 * kb + hp
                pend.append(valu(f"v_cvt_pk_bf16_f32 v{p}, v{t0}, v{t1}", rd=V(t0, 2), wr=V(p)))
                k += 1
    out += pend
    return out

def xlane(op, r, tmp):
    o = []
    for sw in ("v_permlane32_swap_b32", "v_permlane16_swap_b32"):
        o.append(valu(f"v_mov_b32 v{tmp}, v{r}", rd=V(r), wr=V(tmp)))
        o.append(perm(f"{sw} v{r}, v{tmp}", rd=V(r)+V(tmp), wr=V(r)+V(tmp)))
        o.append(valu(f"{op} v{r}, v{r}, v{tmp}", rd=V(r)+V(tmp), wr=V(r)))
    return o

def rowmax_instrs(par, qb, d, tmp):
    a = sreg(par, 0, qb); b = sreg(par, 1, qb)
    o = [valu(f"v_max3_f32 v{d}, v{a}, v{a+1}, v{a+2}", rd=V(a, 3), wr=V(d)),
         valu(f"v_max3_f32 v{d}, v{d}, v{a+3}, v{b}", rd=V(a+3)+V(b)+V(d), wr=V(d)),
         valu(f"v_max3_f32 v{d}, v{d}, v{b+1}, v{b+2}", rd=V(b+1, 2)+V(d), wr=V(d)),
         valu(f"v_max_f32 v{d}, v{d}, v{b+3}", rd=V(b+3)+V(d), wr=V(d))]
    return o + xlane("v_max_f32", d, tmp)

def zipl(a, b):
    o = []
    for i in range(max(len(a), len(b))):
        if i < len(a): o.append(a[i])
        if i < len(b): o.append(b[i])
    return o

def ob_reg(t, qb):
    base = [S_[0], S_[0] + 8, S_[1], S_[1] + 8, NEGM, 64, P_[0], P_[1]][t]
    return base + 4 * qb

def build_bodies(cfg):
    B = []
    for s in range(7):
        b = Body(f"qp{s}")
        order = [(kt, be) for kt in range(2) for be in range(16)] if (s < 6 and not cfg.pchain) else [(kt, be) for be in range(16) for kt in range(2)]
        xdone = set()
        def xf(kt, qb): return XF + ((s % 2) * 4 + kt * 2 + qb) * 4
        xpend = []
        def xread(kt):
            for qb in range(2):
                xpend.append((("X", s, kt, qb), [("ds_read_b128", vXA + kt, qb * 2048, 0, 4)], xf(kt, qb)))
        if s == 6 or cfg.pchain:
            xread(0); xread(1); xdone = {0, 1}
            b.reads += xpend; xpend = []
        for idx, (kt, be) in enumerate(order):
            if kt not in xdone:
                xread(kt); xdone.add(kt)
                b.reads += xpend; xpend = []
            key = ("WQ", s, kt, be)
            b.reads.append((key, [("ds_read_b64_tr_b16", vQA + be % 8, (32*kt + 4*jj) * 512 + (be // 8) * 256, 2*jj, 2) for jj in range(2)], None))
            for qb in range(2):
                d = oreg(be, qb)
                first = (s == 0 and kt == 0)
                b.mf.append((d, key, ar(xf(kt, qb), 4), Areg(xf(kt, qb), 4), "0" if first else vr(d, 4), [] if first else V(d, 4), [("X", s, kt, qb)]))
        if cfg.pchain:
            nm = []
            for k in range(0, 64, 4):
                g4 = b.mf[k:k + 4]
                if not cfg.snake: o4 = [0, 2, 1, 3]
                else: o4 = [0, 2, 3, 1] if (k // 4) % 2 == 0 else [1, 3, 2, 0]
                seen = set()
                for z in o4:
                    mf = g4[z]; d = mf[0]
                    c = ("0", []) if (s == 0 and d not in seen) else (vr(d, 4), V(d, 4))
                    seen.add(d)
                    nm.append((mf[0], mf[1], mf[2], mf[3], c[0], c[1], mf[6]))
            b.mf = nm
        b.need = [("Q", s)]
        if s < 6:
            delta = qregion(s + 1) - qregion(s)
            for r in list(range(vQA, vQA + 8)) + list(range(vXA, vXA + 2)):
                b.after_reads.append(valu(f"v_add_u32 v{r}, {delta & 0xffffffff}, v{r}", rd=V(r), wr=V(r)))
        if s <= 3: b.dma = g_stage(s + 3, cfg)
        elif cfg.kvlate == 1:
            if s == 4: b.dma = [g_k(1, cfg), g_k(2, cfg)]
            elif s == 5: b.dma = [g_v(0, cfg), g_k(3, cfg)]
            else: b.dma = [g_v(1, cfg)]
        elif s == 4: b.dma = [g_k(1, cfg), g_k(2, cfg), g_k(3, cfg)]
        elif s == 5: b.dma = [g_v(0, cfg), g_v(1, cfg), g_v(2, cfg)]
        else: b.dma = [g_v(3, cfg)]
        B.append(b)
    b = B[6]
    for t in range(8):
        per = []
        for qb in range(2):
            ins = []
            e = (vE if t % 2 == 0 else vT) + 4 * qb
            for the in range(2):
                d = oreg(2 * t + the, qb)
                for k in range(4):
                    ins.append(valu(f"v_mul_f32 v{d+k}, s{sScale}, v{d+k}", rd=V(d+k), wr=V(d+k)))
                for hp in range(2):
                    ins.append(valu(f"v_cvt_pk_bf16_f32 v{e+2*the+hp}, v{d+2*hp}, v{d+2*hp+1}", rd=V(d+2*hp, 2), wr=V(e+2*the+hp)))
            for sw in ("v_permlane32_swap_b32", "v_permlane16_swap_b32"):
                for hp in range(2):
                    ins.append(perm(f"{sw} v{e+hp}, v{e+2+hp}", rd=V(e+hp)+V(e+2+hp), wr=V(e+hp)+V(e+2+hp)))
            q = QF + (t * 2 + qb) * 4
            for k in range(4):
                ins.append(valu(f"v_accvgpr_write_b32 a{q+k}, v{e+k}", rd=V(e+k), wr=Areg(q+k)))
            per.append(ins)
        g0 = 8 * t + 7 + 4
        g1 = max(g0, min(g0 + cfg.QCW, 64 + 8 * (t // 2) - 2))
        b.valu.append((zipl(per[0], per[1]), g0, g1))
    for n in range(-2, 64):
        b = Body(f"a{n}")
        qk = []; pv = []
        if n + 2 <= 63:
            m = n + 2
            order = [(kb, t) for kb in range(2) for t in range(8)] if m > 0 else [(kb, t) for tg in range(4) for kb in range(2) for t in (2*tg, 2*tg+1)]
            for kb, t in order:
                key = ("K", m, kb, t)
                rd = (key, [("ds_read_b128", vKB + t % 4, kslot(m) + kb * 8192 + (t // 4) * 256, 0, 4)], None)
                mfs = []
                for qb in range(2):
                    S = sreg(m % 2, kb, qb)
                    if t == 0: c = ("0", []) if m < 2 else (vr(NEGM + 4*qb, 4), V(NEGM + 4*qb, 4))
                    else: c = (vr(S, 4), V(S, 4))
                    q = QF + (t * 2 + qb) * 4
                    mfs.append((S, key, ar(q, 4), Areg(q, 4), c[0], c[1], []))
                qk.append((rd, mfs))
            b.need.append(("K", m))
        if n >= 0:
            for db in range(16):
                key = ("V", n, db)
                rd = (key, [("ds_read_b64_tr_b16", vVB + db % 8, vslot(n) + jj * 8192 + (db // 8) * 256, 2*jj, 2) for jj in range(2)], None)
                mfs = []
                for qb in range(2):
                    d = oreg(db, qb); P = P_[n % 2] + 4 * qb
                    mfs.append((d, key, vr(P, 4), V(P, 4), "0" if n == 0 else vr(d, 4), [] if n == 0 else V(d, 4), []))
                pv.append((rd, mfs))
            b.need.append(("V", n))
        C = cfg.chain
        m = n + 2
        for rd, mfs in zipl(qk, pv): b.reads.append(rd)
        seq = []
        Cq = C if m > 0 else 2
        for k in range(0, 16, C):
            if qk:
                for k2 in range(k, k + C, Cq):
                    for qb in range(2):
                        zs = list(range(Cq))
                        if cfg.snake and qb == 1: zs.reverse()
                        for z in zs: seq.append(("q", qk[k2 + z][1][qb], qb))
            if pv:
                for z in range(C):
                    seq.append(("p", pv[k + z][1][z % 2], z % 2)); seq.append(("p", pv[k + z][1][1 - z % 2], 1 - z % 2))
        seen = set()
        for kind, mf, qb in seq:
            d = mf[0]
            first = d not in seen
            seen.add(d)
            if kind == "q" and first: c = ("0", []) if m < 2 else (vr(NEGM + 4*qb, 4), V(NEGM + 4*qb, 4))
            elif kind == "p" and n == 0: c = ("0", [])
            else: c = (vr(d, 4), V(d, 4))
            b.mf.append((mf[0], mf[1], mf[2], mf[3], c[0], c[1], mf[6]))
        G = len(b.mf)
        if n == -1:
            ins = zipl(rowmax_instrs(0, 0, vD, vF), rowmax_instrs(0, 1, vINV, vINV + 1))
            for qb, d in ((0, vD), (1, vINV)):
                for k in range(4):
                    ins.append(valu(f"v_sub_f32 v{NEGM+4*qb+k}, 0, v{d}", rd=V(d), wr=V(NEGM+4*qb+k)))
            ins += sm_instrs(0, fix=True)
            b.valu.append((ins, 3, G - 1))
        elif 0 <= n <= 62:
            ins = []
            for qb in range(2):
                if n == 0: ins.append(valu(f"v_mov_b32 v{vL+qb}, v{vPS+qb}", rd=V(vPS+qb), wr=V(vL+qb)))
                else: ins.append(valu(f"v_add_f32 v{vL+qb}, v{vL+qb}, v{vPS+qb}", rd=V(vPS+qb)+V(vL+qb), wr=V(vL+qb)))
            ins += sm_instrs(n + 1, fix=(n == 0))
            ins.append(valu(f"v_max_f32 v{vD}, v{vPS}, v{vPS+1}", rd=V(vPS, 2), wr=V(vD)))
            ins.append(valu(f"v_cmp_nge_f32 vcc, 0x46800000, v{vD}", rd=V(vD), wr=[("vcc", 0)]))
            b.valu.append((ins, 3 if n == 0 else 0, G - 2))
            b.tail.append(I(f"RARE {(n+1)%2} {1 if n + 2 <= 63 else 0}", "rare"))
        elif n == 63:
            ins = []
            for qb in range(2):
                ins.append(valu(f"v_add_f32 v{vL+qb}, v{vL+qb}, v{vPS+qb}", rd=V(vPS+qb)+V(vL+qb), wr=V(vL+qb)))
            ins += zipl(xlane("v_add_f32", vL, vD), xlane("v_add_f32", vL + 1, vF))
            for qb in range(2):
                ins.append(trans(f"v_rcp_f32 v{vINV+qb}, v{vL+qb}", rd=V(vL+qb), wr=V(vINV+qb)))
            b.valu.append((ins, 40, 63))
            for t in range(8):
                ins = []
                for qb in range(2):
                    o = ob_reg(t, qb)
                    for the in range(2):
                        d = oreg(2 * t + the, qb)
                        for hp in range(2):
                            ins.append(valu(f"v_cvt_pk_bf16_f32 v{o+2*the+hp}, v{d+2*hp}, v{d+2*hp+1}", rd=V(d+2*hp, 2), wr=V(o+2*the+hp)))
                g0 = 4 * t + 3 + 4
                b.valu.append((ins, g0, g0 + 5))
        if n + 2 <= 63:
            m = n + 6
            b.dma.append(g_k(m, cfg) if m <= 63 else g_wo(m - 64, 0, cfg))
        if cfg.kvlate == 1 and n < 0: b.dma.append(g_v(n + 4, cfg))
        if n >= 0:
            m = n + 4
            b.dma.append(g_v(m, cfg) if m <= 63 else g_wo(m - 64, 1, cfg))
        if cfg.lf and cfg.lf0 <= n <= cfg.lf1:
            def retag(g, tags):
                for x in g: x.tag = ("MULTI",) + tuple(tags)
                return g
            lead = retag(g_k(n + 6, cfg), [("K", n + 6), ("V", n + 4)])
            lag = retag(g_v(n + 3, cfg), [("K", n + 5), ("V", n + 3)])
            if n == cfg.lf0:
                lead[0].pre = [I("SWAP", "swap")] + lead[0].pre
                b.dma = [lead]
            elif n < cfg.lf1: b.dma = [lag, lead]
            else: b.dma = [lag, lead, retag(g_v(n + 4, cfg), [("K", n + 6), ("V", n + 4)])]
        if cfg.lf and n == cfg.lf1 + 1:
            b.dma[0][0].pre = [I("SWAP", "swap")] + b.dma[0][0].pre
        if cfg.spare and n in (62, 63): b.dma.append(g_wo(4, n - 62, cfg))
        B.append(b)
    def accreg(j, nb, qb): return O0 + 32 * (j % 2) + (nb * 2 + qb) * 4
    def drain(j, t2):
        ins = []
        for qb in range(2):
            q = qb * 2 + t2
            st = STG + 4 * q
            for the in range(2):
                a = accreg(j, 2 * t2 + the, qb)
                for k in range(4):
                    ins.append(valu(f"v_mul_f32 v{a+k}, v{vINV+qb}, v{a+k}", rd=V(a+k)+V(vINV+qb), wr=V(a+k)))
                for hp in range(2):
                    ins.append(valu(f"v_cvt_pk_bf16_f32 v{st+2*the+hp}, v{a+2*hp}, v{a+2*hp+1}", rd=V(a+2*hp, 2), wr=V(st+2*the+hp)))
            off = f" offset:{q*1024}" if q else ""
            x = I(f"buffer_store_dwordx4 v[{st}:{st+3}], v{vST}, s[{sPT}:{sPT+3}], s{sTmp} offen{off}{cfg.st_flags}", "store",
                  rd=V(st, 4)+V(vST), tag=("ST", j))
            if q == 0: x.pre = [salu(f"s_mov_b32 s{sTmp}, {4096*j}")]
            ins.append(x)
        return ins
    for j in range(7):
        b = Body(f"op{j}")
        C = max(1, cfg.pchain)
        for t2 in range(2):
            for tg in range(0, 8, C):
                for nb in (2 * t2, 2 * t2 + 1):
                    keys = []
                    for t in range(tg, tg + C):
                        key = ("WO", j, t, nb); keys.append((t, key))
                        _, base, slot = wo_place(j, t // 4, cfg)
                        base += nb
                        b.reads.append((key, [("ds_read_b64_tr_b16", base, slot + (32*(t % 4) + 16*jj) * 128, 2*jj, 2) for jj in range(2)], None))
                    qbs = [0, 1] if (not cfg.snake or nb % 2 == 0) else [1, 0]
                    for qi, qb in enumerate(qbs):
                        ks = keys if (not cfg.snake or qi == 0) else keys[::-1]
                        for ki, (t, key) in enumerate(ks):
                            d = accreg(j, nb, qb); o = ob_reg(t, qb)
                            z = (tg == 0 and ki == 0)
                            b.mf.append((d, key, vr(o, 4), V(o, 4), "0" if z else vr(d, 4), [] if z else V(d, 4), []))
        b.need = [("W", j, 0), ("W", j, 1)]
        if j >= 1: b.valu.append((drain(j - 1, 1), 3, 33))
        b.valu.append((drain(j, 0), 35, 65 if j < 6 else 62))
        nx = j + (5 if cfg.spare else 4)
        if nx <= 6: b.dma = [g_wo(nx, 0, cfg), g_wo(nx, 1, cfg)]
        if j == 6: b.tail += drain(6, 1)
        if cfg.fuse:
            if j == 0: b.fronts = tail_prep_salu(cfg)
            if j == 1: b.valu.append((tail_prep_valu(cfg), 36, 60))
            if j == cfg.FLA + 1: b.need = b.need + [("ST", 3)]
            if j == cfg.FLA: b.post_bar = [I("buffer_store_dwordx2 v[2:3], v12, s[12:15], 0 offen sc1", "store", rd=V(2, 2)+V(12), tag=("FL", 0))]
        B.append(b)
    return B

def schedule(B, cfg, pre_dma, first):
    starts = []; M = 0
    for b in B:
        starts.append(M); M += len(b.mf)
    front = {g: [] for g in range(-1, M)}
    fill = {g: [] for g in range(-1, M)}
    bp = [starts[i] + len(B[i].mf) - (cfg.LEAD if (len(B[i].mf) == 64 and B[i].name[0] == "a") else 16) - 1 for i in range(len(B))]
    fragreg = {}; first_use = {}; last_use = {}
    idx = 0
    for i, b in enumerate(B):
        for key, parts, fixed in b.reads:
            if fixed is None:
                fragreg[key] = FR + 4 * (idx % cfg.NB); idx += 1
        for g, mf in enumerate(b.mf):
            for k in [mf[1]] + mf[6]:
                first_use.setdefault(k, starts[i] + g); last_use[k] = starts[i] + g
    front[-1].append(I("BAR", "bar", tag=B[0].need))
    for i, b in enumerate(B[:-1]):
        front[bp[i]].append(I("BAR", "bar", tag=B[i + 1].need))
    reserved = {}
    lazy = set(); nodrain = set()
    if cfg.hop == 1: front[bp[0] - 1].append(I("HOP", "hop"))
    if cfg.hop == 2: front[-1].insert(0, I("HOP", "hop"))
    for i, b in enumerate(B):
        if b.fronts:
            flat = [x for chunk in b.fronts for x in chunk]
            g = starts[i] + 2; k = 0
            while k < len(flat):
                n = 2
                if k + n < len(flat) and flat[k + n].t.startswith("s_addc"): n += 1
                front[g] += flat[k:k + n]; k += n; g += 1
        if b.post_bar: reserved[bp[i] + 1] = b.post_bar
    if cfg.psync:
        names = [b.name for b in B]
        i0, i1 = names.index(cfg.sync0), names.index(cfg.sync1)
        lag = 1 if cfg.psync == 1 else 2
        for i in range(i0, i1 + 1):
            r = sOld + (i % lag)
            if i >= i0 + lag and not cfg.nospin:
                front[bp[i] + 1] += [salu(f"s_mul_i32 s{sDif}, s{r}, s{sSign}"), I("SYNC", "sync")]
            if i <= i1 - lag:
                front[bp[i] + 2] += [salu(f"s_mov_b32 s{r}, s{sSign}"), salu(f"s_atomic_add s{r}, s[{sSy}:{sSy+1}], 0x0 glc")]
                if lag == 2:
                    lazy.add(bp[i + 1])
                    reserved[bp[i + 1] - 3] = [I(f"ds_read_b32 a251, v{vKB}", "dsv", rd=V(vKB), tag=("DUMMY", i))]
    R = []; Mq = []; Vq = []
    holder = {}
    nd = sum(len(grp) for grp in first); k = 0
    for grp in first:
        for x in grp:
            x.early = 0; x.ideal = 1 + cfg.H + k * min(36, cfg.QSPAN) / nd; x.dead = bp[0] - 1 - (nd - 1 - k)
            Mq.append(x); k += 1
    for i, b in enumerate(B):
        w0 = bp[i - 1] if i > 0 else -17
        w1 = bp[i] - (cfg.DEAD if (b.dma or b.after_reads or not b.name.startswith("op")) else 1) if i < len(B) - 1 else starts[i] + len(b.mf) - 12
        if b.name.startswith("op") and not b.dma and i < len(B) - 1: nodrain.add(bp[i])
        flat = []
        for key, parts, fixed in b.reads:
            reg = fixed if fixed is not None else fragreg[key]
            for (op, addr, off, sub, n) in parts:
                x = I(f"{op} {ar(reg+sub, n)}, v{addr} offset:{off}", "d" if n == 4 else "t", rd=V(addr), wr=Areg(reg+sub, n), tag=key)
                x.early = w0
                h = holder.get(reg)
                if h is not None and h != key: x.early = max(x.early, last_use[h])
                x.dead = min(w1, first_use[key] - 7)
                flat.append(x)
            holder[reg] = key
        n = len(flat)
        for k, x in enumerate(flat):
            x.ideal = w0 + k * (w1 - 2 - w0) / n
        flat[-1].post = b.after_reads
        R += flat
        nd = sum(len(grp) for grp in b.dma)
        if nd:
            nxt = bp[i + 1] if i + 1 < len(B) else M - 1
            span = min(cfg.QSPAN if b.name.startswith('qp') else cfg.DMASPAN, nxt - bp[i] - 4)
            k = 0
            for grp in b.dma:
                for x in grp:
                    x.early = bp[i] + 1; x.ideal = bp[i] + 1 + cfg.H + k * span / nd; x.dead = nxt - 1 - (nd - 1 - k)
                    Mq.append(x); k += 1
        for ins, g0, g1 in b.valu:
            g0 += starts[i]; g1 = min(g1 + starts[i], M - 1)
            tot = sum(slots(x) for x in ins); acc = 0
            for x in ins:
                x.early = g0; x.ideal = g0 + acc * max(0, (g1 - 1 - g0)) / tot; x.dead = g1
                acc += slots(x)
            Vq.append(ins)
    allv = []
    for li, ins in enumerate(Vq):
        for k, x in enumerate(ins): allv.append((x.ideal, li, k, x))
    allv.sort(key=lambda z: (z[0], z[1], z[2]))
    Vs = [z[3] for z in allv]
    for q in (R, Mq, Vs):
        for k in range(len(q) - 2, -1, -1): q[k].dead = min(q[k].dead, q[k + 1].dead)
    ri = mi = vi = 0
    while ri < len(R) and R[ri].ideal < 0:
        fill[-1].append(R[ri]); ri += 1
    last_dma = -10
    over = 0
    extra_v = []
    for g in range(M):
        def u(x):
            if x is None or x.early > g: return None
            v = g - x.ideal + cfg.H
            return v if v > 0 else None
        def at(q, i): return q[i] if i < len(q) else None
        vq = extra_v + Vs[vi:vi + 2]
        R0, R1, M0 = at(R, ri), at(R, ri + 1), at(Mq, mi)
        V0, V1 = at(vq, 0), at(vq, 1)
        if extra_v and R0 is not None and any(r in y.wr for y in extra_v for r in R0.rd): R0 = R1 = None
        if R0 is not None and R0.post: R1 = None
        if R1 is not None and extra_v and any(r in y.wr for y in extra_v for r in R1.rd): R1 = None
        ur0, ur1, um, uv0, uv1 = u(R0), u(R1), u(M0), u(V0), u(V1)
        if uv0 is not None: uv0 = min(uv0, cfg.VCAP)
        if uv1 is not None: uv1 = min(uv1, cfg.VCAP)
        plain = lambda x: x.k == "valu"
        opts = [(0.0, [])]
        if um is not None: opts.append((2 * um, [M0]))
        if uv0 is not None:
            if slots(V0) == 2: opts.append((2 * uv0, [V0]))
            else:
                opts.append((uv0, [V0]))
                if uv1 is not None and plain(V1): opts.append((uv0 + uv1, [V0, V1]))
                if ur0 is not None and plain(V0): opts.append((ur0 + uv0, [R0, V0]))
        if ur0 is not None:
            opts.append((ur0, [R0]))
            if ur1 is not None:
                opts.append((ur0 + ur1 - (cfg.TTPEN if R0.k == "t" else 0), [R0, R1]))
        sc, ch = max(opts, key=lambda z: z[0])
        ch = list(ch)
        if g in reserved:
            ch = []; fill[g] += reserved[g]
        def take(x):
            nonlocal ri, mi, vi, last_dma
            if x.k in ("d", "t"):
                ri += 1
                for y in x.post:
                    y.early = g + 1; y.ideal = g - 2; y.dead = g + cfg.DEAD - 1
                extra_v.extend(x.post)
            elif x.k == "dma": mi += 1
            elif extra_v and x is extra_v[0]: extra_v.pop(0)
            else: vi += 1
            if x.pre:
                if last_dma < g - 1 and not any(y.k == "bar" for y in front[g]) and g > 0: front[g - 1] += x.pre
                elif last_dma < g: front[g] += x.pre
                else: fill[g] += x.pre
            if x.k in ("dma", "store"): last_dma = g
            fill[g].append(x)
        for x in ch: take(x)
        while True:
            cand = None
            if extra_v and extra_v[0].dead <= g and extra_v[0].early <= g: cand = extra_v[0]
            elif ri < len(R) and R[ri].dead <= g and not extra_v: cand = R[ri]
            elif mi < len(Mq) and Mq[mi].dead <= g: cand = Mq[mi]
            elif vi < len(Vs) and Vs[vi].dead <= g: cand = Vs[vi]
            if cand is None: break
            assert cand.early <= g, (cand.t, cand.early, cand.dead, g)
            take(cand); over += slots(cand)
    assert ri == len(R) and mi == len(Mq) and vi == len(Vs), (ri, len(R), mi, len(Mq), vi, len(Vs))
    for i, b in enumerate(B):
        for x in b.tail:
            fill[starts[i] + len(b.mf) - 1] += x.pre + [x]
    sys.stderr.write(f"forced slots {over}\n")
    out = []
    lg = []; lg_done = 0; vm = []; lastread = {}; issued = {}
    cur = []
    def emit(lst, g):
        nonlocal lg_done
        for x in lst:
            if x.k == "bar":
                hit = lambda tg, want: tg == want or (tg[0] == "MULTI" and want in tg[1:])
                need = max(i2 for i2, tg in enumerate(vm) if any(hit(tg, w) for w in x.tag))
                for w in x.tag: assert any(hit(tg, w) for tg in vm), (w, g)
                n = min(len(vm) - 1 - need, 63)
                if g in lazy: assert lg[-1][0][0] == "DUMMY", (lg[-1], g)
                if g in nodrain:
                    cur.append(I(f"s_waitcnt vmcnt({n})", "wait"))
                else:
                    cur.append(I(f"s_waitcnt vmcnt({n}) lgkmcnt({1 if g in lazy else 0})", "wait"))
                    lg_done = len(lg)
                cur.append(I("s_barrier", "salu"))
            elif x.k in ("d", "t", "dsv"):
                lg.append((x.tag, g)); lastread[x.tag] = len(lg) - 1; cur.append(x)
                issued[x.tag] = issued.get(x.tag, 0) + 1
            elif x.k in ("dma", "store"):
                vm.append(x.tag); cur.append(x)
            else: cur.append(x)
    nparts = {}
    for x in R: nparts[x.tag] = nparts.get(x.tag, 0) + 1
    def lwait(mf, g, strict):
        nonlocal lg_done
        keys = [mf[1]] + mf[6]
        for k in keys:
            if issued.get(k, 0) < nparts.get(k, 1):
                assert not strict, ("operand not read", k, g)
                return
        needi = max(lastread[k] for k in keys)
        if needi >= lg_done:
            n_need = len(lg) - 1 - needi
            n_safe = sum(1 for (_, gg) in lg[lg_done:] if gg > g - cfg.SAFE)
            n = min(n_need, max(n_safe, 2), 15)
            cur.append(I(f"s_waitcnt lgkmcnt({n})", "wait"))
            lg_done = len(lg) - n
    for grp in pre_dma:
        for x in grp:
            emit(x.pre, -1); emit([x], -1)
    emit(front[-1], -1); emit(fill[-1], -1)
    out.append(("pre", cur))
    allmf = [mf for b in B for mf in b.mf]
    for i, b in enumerate(B):
        cur = []
        for gi, mf in enumerate(b.mf):
            g = starts[i] + gi
            d, key, bt, brs, ct, crs, extra = mf
            lwait(mf, g, True)
            fr = fragreg[key]
            cur.append(I(f"{MF} {vr(d,4)}, {ar(fr,4)}, {bt}, {ct}", "mfma", rd=Areg(fr, 4) + brs, wr=V(d, 4), c=crs))
            emit(front[g], g)
            if g + 1 < M: lwait(allmf[g + 1], g, False)
            emit(fill[g], g)
        out.append((b.name, cur))
    return out

def hazard_pass(segs):
    pos = 0; res = []; lastw = {}; lastc = {}; lasts = {}; pend = {}; nn = 0
    for name, lst in segs:
        o = []
        for x in lst:
            need = 0
            def req(p, d):
                nonlocal need
                need = max(need, d - (pos - p - 1))
            isv = x.k in ("valu", "trans", "perm")
            for r in x.rd + x.c:
                if r in lastw:
                    p, k, full = lastw[r]
                    if k == "mfma":
                        if x.k == "mfma":
                            if r in x.rd: req(p, 8)
                            elif tuple(x.c) != full: req(p, 6)
                        else: req(p, 8)
                    elif k in ("valu", "trans", "perm"):
                        if x.k in ("mfma", "perm"): req(p, 2)
                        if k == "trans" and x.k != "trans": req(p, 1)
                    elif k == "salu" and r == ("m0", 0): req(p, 1)
            for r in x.wr:
                if r in lastw and lastw[r][1] == "mfma" and (x.k != "mfma" or tuple(x.c) != lastw[r][2]): req(lastw[r][0], 8)
                if isv and r in lastc: req(lastc[r], 3)
                if r in lasts: req(lasts[r], 2)
            if x.k in ("d", "t"):
                for r in x.wr:
                    assert r not in pend, ("fragment overwritten before use", name, x.t)
                    pend[r] = 1
            if x.k == "mfma":
                for r in x.rd: pend.pop(r, None)
            while need > 0:
                k = min(need, 16)
                o.append(I(f"s_nop {k-1}", "nop")); pos += k; need -= k; nn += 1
            o.append(x)
            for r in x.wr: lastw[r] = (pos, x.k, tuple(x.wr))
            if x.k == "mfma":
                for r in x.c: lastc[r] = pos
            if x.k == "store":
                for r in x.rd: lasts[r] = pos
            pos += 1
        res.append((name, o))
    return res, nn

def srd(A, d, p, offreg, size):
    A(f"s_add_u32 s{d}, s{p}, s{offreg}")
    A(f"s_addc_u32 s{d+1}, s{p+1}, 0")
    A(f"s_and_b32 s{d+1}, s{d+1}, 0xffff")
    A(f"s_mov_b32 s{d+2}, {size}")
    A(f"s_mov_b32 s{d+3}, 0x20000")

def setup_code(cfg):
    L = []; A = L.append
    A("s_load_dwordx16 s[44:59], s[0:1], 0")
    A("s_load_dwordx4 s[60:63], s[0:1], 64")
    A("s_load_dwordx2 s[64:65], s[0:1], 96")
    A("s_cmp_ge_u32 s2, 256")
    A("s_cbranch_scc1 L_exit")
    if cfg.stamp:
        A("s_memtime s[80:81]"); A("s_memrealtime s[94:95]")
    A("v_lshrrev_b32 v1, 6, v0")
    A("v_and_b32 v64, 63, v0")
    A(f"v_readfirstlane_b32 s{sWave}, v1")
    A("s_and_b32 s66, s2, 7"); A("s_lshr_b32 s67, s2, 3")
    A("s_lshr_b32 s68, s66, 2")
    A("s_and_b32 s69, s67, 1")
    A("s_lshr_b32 s70, s67, 1")
    A("s_and_b32 s71, s70, 7")
    A("s_lshr_b32 s70, s70, 3")
    A("s_and_b32 s72, s66, 3"); A("s_lshl_b32 s72, s72, 1"); A("s_add_u32 s72, s72, s70")
    A("s_lshl_b32 s73, s72, 1"); A("s_add_u32 s73, s73, s69")
    if cfg.rot:
        if cfg.rotkey == 2: A("s_lshl_b32 s90, s72, 1"); A("s_add_u32 s90, s71, s90")
        else: A(f"s_add_u32 s90, s71, s{73 if cfg.rotkey == 0 else 72}")
        A(f"s_and_b32 s90, s90, {cfg.rotmask}"); A(f"s_mul_i32 s90, s90, {128*cfg.rot}")
    A(f"s_lshl_b32 s{sW4K}, s{sWave}, 12")
    A(f"s_lshl_b32 s{sW64K}, s{sWave}, 16")
    if cfg.lf: A(f"s_add_u32 s{sKb}, s{sW4K}, {KRING}"); A(f"s_add_u32 s{sVb}, s{sW4K}, {VRING}")
    A(f"s_mul_i32 s{sW28K}, s{sWave}, 28672")
    A(f"s_sub_u32 s{sKoff}, s{sW4K}, 16384")
    A(f"s_sub_u32 s{sVoff}, s{sW4K}, 16384")
    A(f"s_mov_b32 s{sScale}, {f32bits(math.log2(math.e) / 16.0):#x}")
    A(f"s_and_b32 s76, s{sWave}, 1"); A("s_lshl_b32 s76, s76, 3")
    A("v_lshrrev_b32 v65, 5, v64"); A("v_and_b32 v66, 31, v64")
    A("v_lshrrev_b32 v71, 3, v64"); A("v_and_b32 v72, 7, v64")
    A("v_mul_u32_u24 v73, 896, v71")
    A("v_lshrrev_b32 v74, 1, v71")
    A("v_xor_b32 v74, v74, v72")
    A("v_lshl_add_u32 v75, v74, 4, v73")
    A("v_xor_b32 v74, 4, v74")
    A("v_lshl_add_u32 v76, v74, 4, v73")
    for k in range(4):
        A(f"v_add_u32 v{vXD+k}, {k*(8*896-1024)}, v{75 + (k & 1)}")
    A("v_lshlrev_b32 v73, 1, v65"); A("v_xor_b32 v73, v73, v66"); A("v_xor_b32 v73, s76, v73")
    A("v_lshlrev_b32 v74, 13, v65")
    A("v_lshl_add_u32 v75, v73, 4, v74")
    A("v_xor_b32 v73, 4, v73")
    A("v_lshl_add_u32 v76, v73, 4, v74")
    for k in range(4):
        A(f"v_add_u32 v{vWD+k}, {k*(16384-1024)}, v{75 + (k & 1)}")
    A("s_waitcnt lgkmcnt(0)")
    if cfg.hstamp: A("s_memtime s[82:83]")
    A("s_cmp_eq_u32 s68, 0")
    for a, b in ((44, 54), (50, 60), (46, 56), (48, 58), (52, 62)):
        A(f"s_cselect_b32 s{a}, s{a}, s{b}"); A(f"s_cselect_b32 s{a+1}, s{a+1}, s{b+1}")
    A("s_mul_i32 s74, s71, 114688"); srd(A, sX, 44, 74, 114688)
    A("s_lshl_b32 s74, s73, 9"); A(f"s_sub_u32 s75, {448*8192}, s74"); srd(A, sWQ, 50, 74, "s75")
    return L

def touch_code(cfg):
    L = []
    A = lambda t: L.append(I(t, "raw"))
    T = lambda t: L.append(I(t, "dma", tag=("T", 0)))
    if "w" in cfg.touch:
        A("v_lshrrev_b32 v73, 2, v64"); A("v_min_u32 v73, 13, v73"); A("v_lshlrev_b32 v73, 13, v73")
        A("v_and_b32 v74, 3, v64"); A("v_lshl_add_u32 v73, v74, 7, v73")
        A(f"s_lshl_b32 s74, s71, 2"); A(f"s_add_u32 s74, s74, s{sWave}"); A(f"s_mul_i32 s74, s74, {14*8192}")
        T(f"buffer_load_dword a255, v73, s[{sWQ}:{sWQ+3}], s74 offen{cfg.t_flags}")
    if "x" in cfg.touch:
        A("v_min_u32 v73, 55, v64"); A("v_lshlrev_b32 v73, 7, v73")
        A("s_and_b32 s74, s73, 3"); A("s_lshl_b32 s74, s74, 2"); A(f"s_add_u32 s74, s74, s{sWave}"); A(f"s_mul_i32 s74, s74, {56*128}")
        T(f"buffer_load_dword a254, v73, s[{sX}:{sX+3}], s74 offen{cfg.t_flags}")
    if "c" in cfg.touch:
        A("s_getpc_b64 s[20:21]")
        A("s_and_b32 s21, s21, 0xffff"); A("s_mov_b32 s22, CODE_BYTES"); A("s_mov_b32 s23, 0x20000")
        A("v_lshlrev_b32 v73, 7, v64")
        A(f"s_and_b32 s74, s67, 1"); A("s_lshl_b32 s74, s74, 2"); A(f"s_add_u32 s74, s74, s{sWave}"); A("s_lshl_b32 s74, s74, 13")
        T(f"buffer_load_dword a253, v73, s[20:23], s74 offen")
    return L

def stouch_setup():
    L = []; A = L.append
    A("v_lshlrev_b32 v73, 13, v65"); A("v_lshl_add_u32 v80, v66, 4, v73")
    A("v_mul_u32_u24 v73, 896, v71"); A("v_lshl_add_u32 v81, v72, 4, v73")
    A(f"s_lshl_b32 s74, s71, 2"); A(f"s_add_u32 s74, s74, s{sWave}"); A("s_lshl_b32 s90, s74, 14")
    A("s_and_b32 s74, s73, 3"); A("s_lshl_b32 s74, s74, 2"); A(f"s_add_u32 s74, s74, s{sWave}"); A(f"s_mul_i32 s91, s74, {8*896}")
    return L
def stouch(st, cfg):
    a = I(f"buffer_load_dwordx4 a[240:243], v80, s[{sWQ}:{sWQ+3}], s92 offen{cfg.t_flags}", "dma", tag=("T", 2))
    a.pre = [salu(f"s_add_u32 s92, s90, {st*64*8192}")]
    return [a, I(f"buffer_load_dwordx4 a[244:247], v81, s[{sX}:{sX+3}], s91 offen offset:{128*st}{cfg.t_flags}", "dma", tag=("T", 2))]

def kd_code(cfg):
    L = []; A = L.append
    if cfg.hstamp == 2:
        A("s_memtime s[84:85]"); A(f"s_waitcnt vmcnt({cfg.npre})"); A("s_memtime s[86:87]")
    A("s_lshl_b32 s74, s71, 3"); A("s_add_u32 s74, s74, s72"); A("s_lshl_b32 s74, s74, 20")
    srd(A, sK, 46, 74, 1 << 20); srd(A, sV, 48, 74, 1 << 20)
    if cfg.pf:
        A("s_cmp_eq_u32 s69, 0"); A(f"s_cselect_b32 s84, s{sK}, s{sV}"); A(f"s_cselect_b32 s85, s{sK+1}, s{sV+1}")
        A(f"s_mov_b32 s86, {1 << 20}"); A("s_mov_b32 s87, 0x20000")
    A("v_xor_b32 v73, v65, v66"); A("v_xor_b32 v73, s76, v73"); A("v_lshlrev_b32 v74, 9, v65")
    for k in range(4):
        A(f"v_xor_b32 v75, {2*k}, v73"); A(f"v_lshl_add_u32 v{vKD+k}, v75, 4, v74")
    return L

def setup_code2(cfg):
    L = []; A = L.append
    if cfg.hstamp == 1: A("s_memtime s[84:85]")
    A("s_mul_i32 s74, s73, 229376"); srd(A, sWO, 52, 74, 229376)
    A("s_lshl_b32 s74, s68, 3"); A("s_add_u32 s74, s74, s71"); A("s_lshl_b32 s74, s74, 4"); A("s_add_u32 s74, s74, s73")
    A(f"s_mul_i32 s74, s74, {cfg.SST}"); A(f"s_add_u32 s74, s74, {cfg.wsoff}"); srd(A, sPT, 64, 74, cfg.SST)
    if cfg.psync:
        A("s_lshl_b32 s74, s66, 4"); A("s_lshr_b32 s75, s67, 1"); A("s_add_u32 s74, s74, s75"); A("s_lshl_b32 s74, s74, 2")
        A(f"s_add_u32 s74, s74, s{sWave}"); A("s_lshl_b32 s74, s74, 7"); A("s_add_u32 s74, s74, 0x2000000")
        A(f"s_add_u32 s{sSy}, s64, s74"); A(f"s_addc_u32 s{sSy+1}, s65, 0")
        A(f"s_lshl_b32 s{sSign}, s69, 1"); A(f"s_sub_u32 s{sSign}, 1, s{sSign}")
        A(f"s_sub_u32 s{sOld}, 0, s69")
        A(f"s_atomic_and s{sOld}, s[{sSy}:{sSy+1}], 0x0")
    A("s_mov_b32 s3, 0")
    if cfg.fuse:
        A("s_load_dwordx4 s[56:59], s[0:1], 80")
        A("s_memrealtime s[60:61]")
        A("s_lshl_b32 s70, s68, 3"); A("s_add_u32 s70, s70, s71")
    A("v_lshrrev_b32 v67, 4, v64"); A("v_bfe_u32 v68, v64, 2, 2"); A("v_and_b32 v69, 3, v64"); A("v_and_b32 v70, 15, v64")
    A("v_lshlrev_b32 v73, 1, v65"); A("v_xor_b32 v73, v73, v66"); A("v_lshlrev_b32 v74, 9, v65")
    for k in range(4):
        A(f"v_xor_b32 v75, {4*k}, v73"); A(f"v_lshl_add_u32 v{vVD+k}, v75, 4, v74")
    A("v_bfe_u32 v76, v64, 2, 3")
    A("v_lshl_add_u32 v73, v67, 3, v68"); A("v_lshlrev_b32 v73, 9, v73"); A("v_lshl_add_u32 v73, v69, 3, v73")
    for j in range(8):
        A(f"v_xor_b32 v75, {j}, v76"); A(f"v_lshl_add_u32 v{vQA+j}, v75, 5, v73")
    A("v_lshlrev_b32 v73, 7, v70"); A(f"v_add_u32 v73, s{sW4K}, v73"); A("v_add_u32 v73, 32768, v73")
    A("v_lshrrev_b32 v74, 1, v70"); A("v_xor_b32 v74, v74, v67")
    for kt in range(2):
        A(f"v_xor_b32 v75, {4*kt}, v74"); A(f"v_lshl_add_u32 v{vXA+kt}, v75, 4, v73")
    A("v_lshrrev_b32 v73, 2, v64"); A("v_lshlrev_b32 v73, 9, v73"); A("v_lshl_add_u32 v73, v69, 3, v73"); A(f"v_add_u32 v73, {VRING}, v73")
    for j in range(8):
        A(f"v_xor_b32 v75, {j}, v76"); A(f"v_lshl_add_u32 v{vVB+j}, v75, 5, v73")
    A("v_lshlrev_b32 v73, 9, v70"); A(f"v_add_u32 v73, {KRING}, v73"); A("v_xor_b32 v74, v67, v70")
    for j in range(4):
        A(f"v_xor_b32 v75, {4*j}, v74"); A(f"v_lshl_add_u32 v{vKB+j}, v75, 4, v73")
    A(f"v_lshlrev_b32 v73, 4, v64"); A(f"s_mul_i32 s74, s{sWave}, {cfg.WST}"); A(f"v_add_u32 v{vST}, s74, v73")
    A("v_mul_u32_u24 v74, 896, v71"); A("v_lshlrev_b32 v75, 1, v67"); A("v_xor_b32 v75, v75, v72"); A("v_lshl_add_u32 v74, v75, 4, v74")
    for k in range(4):
        A(f"v_add_u32 v75, {k*(8*896-1024)}, v74"); A(f"v_accvgpr_write_b32 a{PARK+k}, v75")
    A("v_lshrrev_b32 v74, 2, v64"); A("v_lshlrev_b32 v74, 7, v74"); A("v_lshl_add_u32 v74, v69, 3, v74"); A("v_and_b32 v77, 3, v71")
    for nb in range(4):
        A(f"v_xor_b32 v75, {nb}, v77"); A(f"v_lshl_add_u32 v75, v75, 5, v74")
        A(f"v_add_u32 v78, {KRING}, v75"); A(f"v_accvgpr_write_b32 a{PARK+4+nb}, v78")
        A(f"v_add_u32 v78, {VRING}, v75"); A(f"v_accvgpr_write_b32 a{PARK+8+nb}, v78")
        A(f"v_accvgpr_write_b32 a{PARK+12+nb}, v75")
    A("v_min_u32 v74, 55, v64"); A("v_lshlrev_b32 v74, 7, v74"); A(f"v_mov_b32 v{vQW}, v74")
    A(f"s_lshl_b32 s77, s71, 2"); A(f"s_add_u32 s77, s77, s{sWave}"); A(f"s_mul_i32 s77, s77, {56*128}")
    if "l" in cfg.touch:
        A(f"v_lshlrev_b32 v{vQW}, 4, v64"); A(f"v_add_u32 v{vQW}, {cfg.LOFF*1024}, v{vQW}"); A(f"s_sub_u32 s77, s77, {(cfg.LOFF+1+cfg.LSKIP)*1024}")
    return L

def tail_prep_salu(cfg):
    chunks = []
    def chunk():
        L = []; chunks.append(L)
        return lambda t: L.append(salu(t))
    A = chunk(); A("s_memrealtime s[62:63]")
    A(f"s_mul_i32 s74, s70, {16*cfg.SST}"); A(f"s_add_u32 s74, s74, {cfg.wsoff}")
    A = chunk(); srd(A, 4, 64, 74, 16*cfg.SST)
    A = chunk(); A("s_mov_b32 s74, 0"); srd(A, 8, 56, 74, 1835008)
    A = chunk(); srd(A, 16, 58, 74, 256)
    A = chunk(); A("s_mov_b32 s74, 0x2400000"); srd(A, 12, 64, 74, 65536)
    A = chunk()
    A("s_lshl_b32 s67, s70, 2")
    A(f"s_lshr_b32 s66, s{sWave}, 1"); A("s_lshl_b32 s66, s66, 4"); A("s_add_u32 s66, s66, s70"); A("s_lshl_b32 s66, s66, 11")
    A = chunk()
    A(f"s_add_u32 s60, s60, {2000 if not cfg.force_abandon else 0x7fffffff}"); A("s_addc_u32 s61, s61, 0")
    A("s_mov_b32 s54, s60"); A("s_add_u32 s55, s61, 1")
    A = chunk()
    A("s_mov_b32 s52, 0x3f80"); A("s_mov_b32 s53, 0x3f800000"); A("s_mov_b32 s49, 32768")
    A("s_lshl_b32 s72, s70, 4"); A("s_add_u32 s72, s72, s73"); A("s_lshl_b32 s72, s72, 7")
    A(f"s_lshl_b32 s69, s{sWave}, 28"); A("s_add_u32 s72, s72, s69")
    return chunks

def tail_prep_valu(cfg):
    L = []
    def A(t, w, r=()): L.append(valu(t, rd=[("v", x) for x in r], wr=V(w)))
    A("v_mbcnt_lo_u32_b32 v0, -1, 0", 0); A("v_mbcnt_hi_u32_b32 v0, -1, v0", 0, [0])
    A("v_lshlrev_b32 v1, 4, v0", 1, [0])
    A("v_and_b32 v6, 15, v0", 6, [0]); A("v_lshlrev_b32 v5, 7, v6", 5, [6])
    A("v_mul_u32_u24 v8, 1792, v6", 8, [6]); A("v_lshrrev_b32 v6, 4, v0", 6, [0]); A("v_lshl_add_u32 v8, v6, 4, v8", 8, [6, 8])
    A("v_lshlrev_b32 v12, 20, v0", 12, [0]); A("v_add_u32 v12, s72, v12", 12, [12])
    A("v_mov_b32 v4, 1", 4); A("v_mov_b32 v2, s62", 2); A("v_mov_b32 v3, s63", 3)
    return L

def tail_code(cfg):
    L = []; A = L.append
    A("buffer_load_dwordx2 v[6:7], v5, s[12:15], s66 offen sc1")
    A(f"s_mov_b32 s69, {cfg.ptime}")
    A("s_waitcnt vmcnt(1)")
    if cfg.stamp: A("s_memrealtime s[96:97]")
    A("s_barrier")
    A("buffer_store_dwordx2 v[2:3], v12, s[12:15], s49 offen sc1")
    A("s_waitcnt vmcnt(1)")
    A("s_branch L_chk")
    A("L_poll:")
    A("buffer_load_dwordx2 v[6:7], v5, s[12:15], s66 offen sc1")
    A("s_waitcnt vmcnt(0)")
    A("L_chk:")
    A("v_cmp_le_u64 vcc, s[60:61], v[6:7]")
    A("v_cmp_ge_u64 s[74:75], s[54:55], v[6:7]")
    A("s_and_b64 vcc, vcc, s[74:75]")
    A("s_cmp_eq_u64 vcc, exec")
    A("s_cbranch_scc1 L_go")
    A("s_sub_u32 s69, s69, 1")
    A("s_cmp_lg_u32 s69, 0")
    A("s_cbranch_scc1 L_poll")
    A("s_add_u32 s74, s73, 8"); A("s_lshl_b32 s74, 1, s74")
    A("v_mov_b32 v9, s74")
    A("s_mov_b64 exec, 1")
    A("buffer_atomic_or v9, off, s[16:19], s67 sc0 sc1")
    A("s_waitcnt vmcnt(0)")
    A("s_mov_b64 exec, -1")
    A("v_readfirstlane_b32 s74, v9")
    A("s_and_b32 s74, s74, 0xff")
    A("s_cmp_lg_u32 s74, 16")
    A("s_cbranch_scc1 L_fin")
    A("L_go:")
    if cfg.stamp: A("s_memrealtime s[38:39]"); A("s_mov_b32 s37, s69"); A("s_waitcnt lgkmcnt(0)")
    A("s_mov_b32 s50, s73"); A(f"s_mov_b32 s51, s{sWave}")
    A(f"s_call_b64 s[{sRet}:{sRet+1}], L_red")
    A("L_fin:")
    if cfg.stamp: A("s_waitcnt lgkmcnt(0)")
    A(f"s_cmp_lg_u32 s{sWave}, 1")
    A("s_cbranch_scc1 L_done")
    A("s_mov_b64 exec, 1")
    A("buffer_atomic_add v4, off, s[16:19], s67 sc0 sc1")
    A("s_waitcnt vmcnt(0)")
    A("s_mov_b64 exec, -1")
    A("v_readfirstlane_b32 s48, v4")
    A("s_and_b32 s74, s48, 0xff")
    A("s_cmp_lg_u32 s74, 15")
    A("s_cbranch_scc1 L_done")
    A("s_bfe_u32 s48, s48, 0x100008")
    A("L_redo:")
    A("s_cmp_eq_u32 s48, 0")
    A("s_cbranch_scc1 L_done")
    A("s_ff1_i32_b32 s50, s48")
    A("s_bitset0_b32 s48, s50")
    A("s_mov_b32 s51, 0")
    A("L_redo1:")
    A(f"s_call_b64 s[{sRet}:{sRet+1}], L_red")
    A("s_add_u32 s51, s51, 1")
    A("s_cmp_lt_u32 s51, 4")
    A("s_cbranch_scc1 L_redo1")
    A("s_branch L_redo")
    A("L_done:")
    return L

def red_code(cfg):
    L = []; A = L.append
    A("L_red:")
    A("s_lshr_b32 s74, s50, 2"); A(f"s_mul_i32 s44, s74, {cfg.WST}")
    A("s_and_b32 s75, s50, 3"); A("s_lshl_b32 s75, s75, 10"); A("s_add_u32 s44, s44, s75")
    A("s_lshl_b32 s75, s51, 13"); A("s_add_u32 s44, s44, s75")
    A("s_cmp_eq_u32 s51, 3")
    A("s_cselect_b32 s46, 0x40000000, 4096"); A("s_cselect_b32 s47, 0x40000000, 128")
    A("v_add_u32 v10, s46, v1"); A("v_add_u32 v11, s47, v8")
    for st, (base, vo) in enumerate(((128, 1), (64, 10))):
        A("s_mov_b32 s45, s44")
        for h in range(16):
            A(f"buffer_load_dwordx4 v[{base+4*h}:{base+4*h+3}], v{vo}, s[4:7], s45 offen sc1")
            if h < 15: A(f"s_add_u32 s45, s45, {cfg.SST}")
    A("s_lshl_b32 s45, s71, 3"); A("s_lshr_b32 s75, s50, 1"); A("s_add_u32 s45, s45, s75"); A(f"s_mul_i32 s45, s45, {16*1792}")
    A("s_mul_i32 s75, s68, 896"); A("s_add_u32 s45, s45, s75")
    A("s_lshl_b32 s75, s51, 8"); A("s_add_u32 s45, s45, s75")
    A("s_and_b32 s75, s50, 1"); A("s_lshl_b32 s75, s75, 6"); A("s_add_u32 s45, s45, s75")
    for st, (base, vo, acc) in enumerate(((128, 8, 16), (64, 11, 32))):
        for k in range(8): A(f"v_mov_b32 v{acc+k}, 0")
        for h in range(16):
            A(f"s_waitcnt vmcnt({(31 - h) if st == 0 else (16 - h)})")
            for k in range(4):
                A(f"v_dot2c_f32_bf16 v{acc+2*k}, s52, v{base+4*h+k}")
                A(f"v_dot2c_f32_bf16 v{acc+2*k+1}, s53, v{base+4*h+k}")
        A("s_nop 2")
        for k in range(4): A(f"v_cvt_pk_bf16_f32 v{acc+8+k}, v{acc+2*k}, v{acc+2*k+1}")
        A("s_nop 1")
        A(f"v_permlane32_swap_b32 v{acc+8}, v{acc+10}"); A(f"v_permlane32_swap_b32 v{acc+9}, v{acc+11}")
        A("s_nop 1")
        A(f"v_permlane16_swap_b32 v{acc+8}, v{acc+10}"); A(f"v_permlane16_swap_b32 v{acc+9}, v{acc+11}")
        A(f"buffer_store_dwordx4 v[{acc+8}:{acc+11}], v{vo}, s[8:11], s45 offen")
    A(f"s_setpc_b64 s[{sRet}:{sRet+1}]")
    return L

def rare_code(par, has_next):
    ins = [I("s_nop 9", "nop")]
    for qb in range(2):
        ins += rowmax_instrs(par, qb, vD, vF)
        ins.append(valu(f"v_max_f32 v{vD}, 0, v{vD}", rd=V(vD), wr=V(vD)))
        ins.append(valu(f"v_sub_f32 v{vF}, 0, v{vD}", rd=V(vD), wr=V(vF)))
        ins.append(trans(f"v_exp_f32 v{vF}, v{vF}", rd=V(vF), wr=V(vF)))
        regs = [NEGM + 4*qb + k for k in range(4)] + [sreg(par, kb, qb) + k for kb in range(2) for k in range(4)]
        if has_next: regs += [sreg(1 - par, kb, qb) + k for kb in range(2) for k in range(4)]
        for r in regs: ins.append(valu(f"v_sub_f32 v{r}, v{r}, v{vD}", rd=V(r)+V(vD), wr=V(r)))
        for r in [vL + qb] + [oreg(db, qb) + k for db in range(16) for k in range(4)]:
            ins.append(valu(f"v_mul_f32 v{r}, v{r}, v{vF}", rd=V(r)+V(vF), wr=V(r)))
    ins += sm_instrs(par)
    ins.append(I("s_nop 1", "nop"))
    ins.append(I(f"s_setpc_b64 s[{sRet}:{sRet+1}]", "salu"))
    segs, _ = hazard_pass([("rare", ins)])
    return [x.t for x in segs[0][1]]

def reduce_kernel(cfg):
    L = []; A = L.append
    A(".p2align 8")
    A("reduce_kernel:")
    A("s_cmp_ge_u32 s2, 448")
    A("s_cbranch_scc1 L_rexit")
    A("s_load_dwordx2 s[4:5], s[0:1], 96")
    A("s_load_dwordx2 s[6:7], s[0:1], 80")
    A("s_mul_hi_u32 s16, s2, 0x924924a")
    A("s_mul_i32 s17, s16, 28"); A("s_sub_u32 s17, s2, s17")
    A("s_mul_hi_u32 s18, s17, 0x24924925")
    A("s_mul_i32 s19, s18, 7"); A("s_sub_u32 s19, s17, s19")
    A("v_lshlrev_b32 v1, 4, v0")
    A("s_lshl_b32 s20, s17, 12")
    A("v_add_u32 v1, s20, v1")
    A("s_mul_i32 s21, s16, 1835008"); A(f"s_add_u32 s21, s21, {cfg.wsoff}")
    A("s_waitcnt lgkmcnt(0)")
    A("s_add_u32 s8, s4, s21"); A("s_addc_u32 s9, s5, 0"); A("s_and_b32 s9, s9, 0xffff")
    A("s_mov_b32 s10, 1835008"); A("s_mov_b32 s11, 0x20000")
    A("s_mov_b32 s12, s6"); A("s_and_b32 s13, s7, 0xffff"); A("s_mov_b32 s14, 1835008"); A("s_mov_b32 s15, 0x20000")
    A("s_mov_b32 s22, 0")
    for h in range(16):
        A(f"buffer_load_dwordx4 v[{16+4*h}:{19+4*h}], v1, s[8:11], s22 offen{cfg.rd_flags}")
        if h < 15: A("s_add_u32 s22, s22, 114688")
    A("v_and_b32 v2, 15, v0")
    A("v_lshrrev_b32 v3, 7, v0"); A("v_lshl_add_u32 v2, v3, 4, v2")
    A("s_and_b32 s23, s16, 7"); A("s_lshl_b32 s23, s23, 7"); A("s_lshl_b32 s24, s18, 5"); A("s_add_u32 s23, s23, s24")
    A("v_add_u32 v2, s23, v2")
    A("v_mul_u32_u24 v2, 1792, v2")
    A("v_bfe_u32 v3, v0, 4, 3")
    A("v_lshl_add_u32 v2, v3, 4, v2")
    A("s_lshr_b32 s23, s16, 3"); A("s_mul_i32 s23, s23, 896"); A("s_lshl_b32 s24, s19, 7"); A("s_add_u32 s23, s23, s24")
    for h in range(16):
        A(f"s_waitcnt vmcnt({15-h})")
        for k in range(4):
            src = 16 + 4*h + k
            if h == 0:
                A(f"v_lshlrev_b32 v{4+2*k}, 16, v{src}"); A(f"v_and_b32 v{5+2*k}, 0xffff0000, v{src}")
            else:
                A(f"v_lshlrev_b32 v12, 16, v{src}"); A(f"v_and_b32 v13, 0xffff0000, v{src}")
                A(f"v_add_f32 v{4+2*k}, v{4+2*k}, v12"); A(f"v_add_f32 v{5+2*k}, v{5+2*k}, v13")
    for k in range(4):
        A(f"v_cvt_pk_bf16_f32 v{12+k}, v{4+2*k}, v{5+2*k}")
    A("s_nop 1")
    A("v_permlane32_swap_b32 v12, v14"); A("v_permlane32_swap_b32 v13, v15")
    A("s_nop 1")
    A("v_permlane16_swap_b32 v12, v14"); A("v_permlane16_swap_b32 v13, v15")
    A("buffer_store_dwordx4 v[12:15], v2, s[12:15], s23 offen")
    A("L_rexit:")
    A("s_endpgm")
    return L

FLEX = ("v_exp_f32", "v_add_f32", "v_max_f32", "v_mul_f32", "v_sub_f32", "v_mov_b32", "v_rcp_f32")
def isize(t):
    op = t.split()[0]
    if op.endswith(":") or op.startswith(";") or op.startswith("."): return 0
    if op.startswith(("v_mfma", "ds_", "buffer_", "v_cvt_pk", "v_accvgpr", "v_max3", "s_atomic", "s_load", "s_mem", "v_writelane")) or op.endswith("_e64"): return 8
    import re
    lits = [x for x in re.findall(r"(?<![\w\[:(])(-?0x[0-9a-f]+|-?\d+)(?![\w\]:)])", t[len(op):])]
    if op.startswith(("s_waitcnt", "s_nop", "s_barrier", "s_cbranch", "s_branch", "s_sleep", "s_call")): return 4
    for x in lits:
        v = int(x, 0)
        if not -16 <= v <= 64: return 8
    return 4
def align8(L, mode):
    out = []; off = 0; on = False
    for k, t in enumerate(L):
        if t == "L_loop:": on = True; off = 0
        if on and t.split()[0] in FLEX and isize(t) == 4:
            n4 = 0; flexnext = False
            for u in L[k + 1:]:
                sz = isize(u)
                if sz == 0: continue
                if u.split()[0] in FLEX and sz == 4: flexnext = True; break
                if sz == 8: break
                n4 += 1
            if not flexnext and (off + 4 + 4 * n4) % 8 != 0:
                t = t.replace(t.split()[0], t.split()[0] + "_e64", 1)
        out.append(t); off += isize(t)
        if t == "s_cbranch_scc1 L_loop": on = False
    return out

def insert_pads(L, KN):
    import subprocess, re, tempfile, os
    def addrs(lines):
        out = []; cand = []
        inloop = False
        for i, t in enumerate(lines):
            out.append(t)
            if t == "L_loop:": inloop = True
            if t == "s_cbranch_scc1 L_loop": inloop = False
            if (t.startswith("v_mfma") or t.startswith("v_dot2c")) and not inloop:
                out.append(f"LC_{i}:"); cand.append(i)
        txt = "\n".join(out) + "\n"
        for w in range(4):
            if f"L_pad{w}:" not in txt: txt = txt.replace("L_hopback:", f"L_pad{w}:\nL_hopback:")
        d = tempfile.mkdtemp()
        open(d + "/a.s", "w").write(txt)
        subprocess.run(["clang", "-x", "assembler", "-target", "amdgcn-amd-amdhsa", "-mcpu=gfx950", "-c", d + "/a.s", "-o", d + "/a.o"], check=True)
        o = subprocess.run(["llvm-objdump", "-t", d + "/a.o"], capture_output=True, text=True).stdout
        a = {}
        for m in re.finditer(r"^([0-9a-f]+) .* \.text\s+[0-9a-f]+ (?:\.\w+ )?(\w+)$", o, flags=re.M): a[m.group(2)] = int(m.group(1), 16)
        return {i: a[f"LC_{i}"] - a[KN] for i in cand}, a["L_hopback"] - a[KN]
    lines = list(L)
    pads = []
    page = None
    while True:
        ad, hb = addrs(lines)
        if page is None: page = hb // 4096 + 1
        c = [i for i in sorted(ad) if ad[i] >= page * 4096]
        if not c: break
        i = c[0]
        if ad[i] - page * 4096 > 256: page += 1; continue
        lines.insert(i + 1, f"PAD {len(pads)}")
        lines[i + 1] = "s_nop 0 ;PAD"
        pads.append(page); page += 1
    n = len(pads); k = 0
    res = []
    for t in lines:
        if t == "s_nop 0 ;PAD":
            res.append(f"L_pad{k}:")
            res.append(f"s_cbranch_execz {'L_pad%d' % (k + 4) if k + 4 < n else 'L_hopback'}")
            k += 1
        else: res.append(t)
    sys.stderr.write(f"pads: {n}\n")
    return res

def generate(cfg):
    if cfg.fuse and "sc1" not in cfg.st_flags and not cfg.wbl2: cfg.st_flags += " sc1"
    B = build_bodies(cfg)
    for b in B:
        if b.name == cfg.parkb:
            ins = []
            for k in range(4): ins.append(valu(f"v_accvgpr_read_b32 v{vWD+k}, a{PARK+k}", wr=V(vWD+k)))
            for k in range(8): ins.append(valu(f"v_accvgpr_read_b32 v{vQA+k}, a{PARK+4+k}", wr=V(vQA+k)))
            if cfg.spare:
                for k in range(4): ins.append(valu(f"v_accvgpr_read_b32 v{vXD+k}, a{PARK+12+k}", wr=V(vXD+k)))
            b.valu.append((ins, cfg.parkg0, cfg.parkg1))
    for b in B:
        if b.name == cfg.otouch and "o" in cfg.touch:
            b.dma = b.dma + [[I(f"buffer_load_dword a252, v{vQW}, s[{sWO}:{sWO+3}], s77 offen{cfg.o_flags}", "dma", rd=V(vQW), tag=("T", 1))]]
    for b in B:
        if b.name == cfg.otouch and "p" in cfg.touch:
            b.dma = b.dma + [[I(f"buffer_load_dwordx4 a[{240+4*(j%2)}:{243+4*(j%2)}], v{vWD}, s[{sWO}:{sWO+3}], s77 offen offset:{128*j}{cfg.o_flags}", "dma", rd=V(vWD), tag=("T", 1))
                              for j in range(cfg.PJ0, 7)]]
    for b in B:
        if "l" in cfg.touch and b.name[0] == "a" and 2 <= int(b.name[1:]) <= 57 and int(b.name[1:]) % 4 == 0:
            x = I(f"buffer_load_dwordx4 a[240:243], v{vQW}, s[{sWO}:{sWO+3}], s77 offen{cfg.o_flags}", "dma", rd=V(vQW), tag=("T", 1))
            x.pre = [salu("s_add_u32 s77, s77, 1024")]
            b.dma = b.dma + [[x]]
    raw = lambda lines: [I(t, "raw") for t in lines]
    tc = [touch_code(cfg)]
    init = []
    def expand(spec):
        out = []
        for tok in spec.split(","):
            if not tok: continue
            if tok == "S": out += tc + [raw(kd_code(cfg))] + [raw(setup_code2(cfg))]
            elif tok == "T": out += [raw(stouch_setup())]
            elif tok[0] == "D": out += g_stage(int(tok[1]), cfg)
            elif tok[0] == "P": out += [stouch(int(tok[1]), cfg)]
            elif tok == "K0": out += [g_k(0, cfg)]
            elif tok == "W":
                out += [[I(f"buffer_load_dword a{248+i}, off, s[{r}:{r+3}], s{sW4K} nt", "dma", tag=("T", 4)) for i, r in enumerate((sK, sV, sWO, sPT)[:cfg.nwarm])]]
        return out
    pfl = []
    for ent in [e for e in cfg.pf.split(",") if e]:
        bn, tile = ent.split(":")
        g = [I(f"buffer_load_dwordx4 a[{240+4*(k%2)}:{243+4*(k%2)}], v{vQW}, s[84:87], s{sTmp2} offen{' offset:%d' % (1024*k) if k else ''}", "dma", rd=V(vQW), tag=("T", 3)) for k in range(4)]
        if tile[0] == "h": tile = tile[1:]; g = g[:2]
        g[0].pre = [salu(f"s_add_u32 s{sTmp2}, s{sW4K}, {int(tile)*16384}")]
        pfl.append((bn, g))
    parts = cfg.order.split("|")
    pre = expand(parts[0]); first = expand(parts[1])
    for k in range(4): B[k].dma = expand(parts[2 + k]) + [g for g in B[k].dma if g[0].tag[0] == "T"]
    for bn, g in pfl:
        b = [x for x in B if x.name == bn][0]
        b.dma = b.dma + [g]
    segs = schedule(B, cfg, pre, first)
    segs, nn = hazard_pass(segs)
    txt = {name: [x.t for x in lst] for name, lst in segs}
    names = [n for n, _ in segs]
    lo = None
    for n in range(0, 30):
        if all(txt[f"a{k}"] == txt[f"a{k+4}"] for k in range(n, n + 8)):
            lo = n; break
    assert lo is not None, "no periodic steady state"
    last = lo
    while last + 4 <= 63 and txt[f"a{last+4}"] == txt[f"a{last}"]: last += 1
    last += 3
    nit = (last - lo + 1) // 4
    lo = last + 1 - 4 * nit
    sys.stderr.write(f"loop bodies {lo}..{last} ({nit} iterations), nops inserted {nn}\n")
    L = []; A = L.append
    KN = "attn_kernel"
    if cfg.fuse == 2:
        KN = NAME + "_kernel"
        A("; @launch grid=(256,1,1) block=(256,1,1) lds=163840")
    else:
        A("; @launch kernel=attn_kernel grid=(256,1,1) block=(256,1,1) lds=163840")
    if not cfg.fuse: A("; @launch kernel=reduce_kernel grid=(448,1,1) block=(256,1,1) lds=0")
    A('.amdgcn_target "amdgcn-amd-amdhsa--gfx950"')
    A(".text"); A(f".globl {KN}"); A(".p2align 12" if cfg.hop else ".p2align 8"); A(f".type {KN},@function"); A(f"{KN}:")
    L += setup_code(cfg)
    tramps = []; syncs = []; bs = [0]
    def emit_seg(name):
        A(f"; ---- {name}")
        for t in txt[name]:
            if t.startswith("RARE"):
                _, par, nx = t.split()
                lab = f"L_t_{name.replace('-','m')}"
                A(f"s_cbranch_vccnz {lab}"); A(f"{lab}_back:")
                tramps.append((lab, par, nx))
            elif t == "SWAP":
                lab = f"L_sw_{name}"
                A("s_bitcmp0_b32 s73, 0"); A(f"s_cbranch_scc1 {lab}")
                for k in range(4): A(f"v_swap_b32 v{vKD+k}, v{vVD+k}")
                for a, b2 in ((sK, sV), (sK + 1, sV + 1), (sKoff, sVoff), (sKb, sVb)):
                    A(f"s_mov_b32 s74, s{a}"); A(f"s_mov_b32 s{a}, s{b2}"); A(f"s_mov_b32 s{b2}, s74")
                A(f"{lab}:")
            elif t == "HOP":
                A("s_mov_b64 exec, 0")
                for w in range(3):
                    A(f"s_cmp_eq_u32 s{sWave}, {w}"); A(f"s_cbranch_scc1 L_pad{w}")
                A("s_branch L_pad3")
                A("L_hopback:")
                A("s_mov_b64 exec, -1")
            elif t == "SYNC":
                lab = f"L_s_{name.replace('-','m')}"
                A(f"s_cmp_gt_i32 s{sDif}, 0"); A(f"s_cbranch_scc1 {lab}"); A(f"{lab}_back:")
                syncs.append(lab)
            else: A(t)
    for name in names:
        if name.startswith("a"):
            n = int(name[1:])
            if lo <= n <= last:
                if n == lo:
                    if cfg.lstamp:
                        A("v_mbcnt_lo_u32_b32 v66, -1, 0"); A("v_mbcnt_hi_u32_b32 v66, -1, v66"); A("v_mov_b32 v67, 0")
                        A("s_memrealtime s[98:99]"); A("s_waitcnt lgkmcnt(0)")
                    if cfg.linear:
                        A("v_mbcnt_lo_u32_b32 v69, -1, 0"); A("v_mbcnt_hi_u32_b32 v69, -1, v69")
                        for r in range(vKD, vKD + 8): A(f"v_lshlrev_b32 v{r}, 4, v69")
                    if "h" in cfg.strip:
                        A("s_and_b32 s74, s73, 1"); A("s_lshl_b32 s74, s74, 11"); A(f"s_add_u32 s{sKoff}, s{sKoff}, s74"); A(f"s_add_u32 s{sVoff}, s{sVoff}, s74")
                    A(f"s_mov_b32 s{sCnt}, {nit}"); A(f".p2align {cfg.lalign}"); [A("s_nop 0") for _ in range(cfg.lshift)]; A("L_loop:")
                    if cfg.lstamp:
                        A("v_mov_b32 v68, s98"); A(f"v_cmp_eq_u32 vcc, s{sCnt}, v66"); A("s_memrealtime s[98:99]"); A("s_nop 0")
                        A("v_cndmask_b32 v67, v67, v68, vcc"); A("v_accvgpr_write_b32 a250, v67")
                if n < lo + 4:
                    def keep(t):
                        if "d" in cfg.strip and t.startswith("buffer_load"): return False
                        if "h" in cfg.strip and t.startswith("buffer_load") and ("offset:2048" in t or "offset:3072" in t): return False
                        if "r" in cfg.strip and t.startswith("ds_read"): return False
                        if "s" in cfg.strip and t.split()[0] in ("v_exp_f32", "v_add_f32", "v_cvt_pk_bf16_f32"): return False
                        return True
                    txt[name] = [t for t in txt[name] if keep(t)]
                    if "h" in cfg.strip: txt[name] = [t.replace("vmcnt(16)", "vmcnt(8)") for t in txt[name]]
                    if cfg.pace:
                        nt = []
                        for t in txt[name]:
                            nt.append(t)
                            if t == "s_barrier": nt += ["s_nop 15"] * cfg.pace
                        txt[name] = nt
                    if n == lo + 3:
                        txt[name].insert(1, f"s_sub_u32 s{sCnt}, s{sCnt}, 1")
                    emit_seg(name)
                    if n == lo + 3:
                        A(f"s_cmp_lg_u32 s{sCnt}, 0"); A("s_cbranch_scc1 L_loop")
                continue
        if cfg.bstamp and name != "pre":
            head = name.startswith("qp") or (name.startswith("a") and int(name[1:]) < 30)
            if head == (cfg.bstamp == 1):
                r = 71 if head else 47
                if bs[0] > 0:
                    A(f"v_writelane_b32 v{r}, s98, {bs[0]-1}"); A(f"v_writelane_b32 v{r}, s26, {bs[0]-1+32}") if not head and False else None
                    A(f"v_accvgpr_write_b32 a250, v{r}")
                A("s_memtime s[98:99]")
                bs[0] += 1; bs.append(name)
        if cfg.hstamp == 1 and name == "qp0": A("s_memtime s[86:87]")
        if cfg.stamp and not cfg.hstamp and name in ("qp0", "a-2", "op0"):
            i = ["qp0", "a-2", "op0"].index(name)
            A(f"s_memtime s[{[82, 44, 46][i]}:{[83, 45, 47][i]}]") if i < 2 else A("s_memtime s[92:93]")
            if name == "a-2": A("s_memrealtime s[100:101]")
            if name == "op0": A("s_memrealtime s[42:43]"); A("s_mov_b32 s34, s44")
        emit_seg(name)
    if cfg.fuse:
        if cfg.stamp: A("s_memrealtime s[98:99]")
        L += tail_code(cfg)
    if cfg.stamp:
        A("s_waitcnt vmcnt(0)")
        A("s_memtime s[88:89]"); A("s_memrealtime s[90:91]")
        A("s_getreg_b32 s31, hwreg(HW_REG_XCC_ID)"); A("s_getreg_b32 s93, hwreg(HW_REG_HW_ID)")
        A("s_waitcnt lgkmcnt(0)")
        A("s_add_u32 s76, s64, 0x4000000"); A("s_addc_u32 s77, s65, 0"); A("s_and_b32 s77, s77, 0xffff")
        A("s_mov_b32 s78, 0x100000"); A("s_mov_b32 s79, 0x20000")
        A("s_lshl_b32 s74, s2, 2"); A(f"s_add_u32 s74, s74, s{sWave}"); A("s_lshl_b32 s74, s74, 6")
        A("v_mov_b32 v40, 0")
        if cfg.lstamp or cfg.bstamp:
            sys.stderr.write(" ".join(bs[1:]) + "\n")
            A("v_mbcnt_lo_u32_b32 v66, -1, 0"); A("v_mbcnt_hi_u32_b32 v66, -1, v66"); A("v_lshlrev_b32 v66, 2, v66")
            A("s_lshl_b32 s75, s74, 2"); A("s_add_u32 s75, s75, 0x10000")
            A("buffer_store_dword a250, v66, s[76:79], s75 offen")
        for i, r in enumerate([80, 82, 34, 92, 88, 90, 31, 93, 94, 100, 42, 3, 98, 96, 38, 37]):
            A(f"v_mov_b32 v41, s{r}")
            A(f"buffer_store_dword v41, v40, s[76:79], s74 offen offset:{4*i}")
    A("L_exit:"); A("s_endpgm")
    if cfg.fuse: L += red_code(cfg)
    A("L_code_end:")
    A(f".set CODE_BYTES, L_code_end - {KN} - 1024")
    for lab, par, nx in tramps:
        A(f"{lab}:"); A(f"s_call_b64 s[{sRet}:{sRet+1}], L_rare_{par}_{nx}"); A(f"s_branch {lab}_back")
    for lab in syncs:
        A(f"{lab}:"); A(f"s_call_b64 s[{sRet}:{sRet+1}], L_spin"); A(f"s_branch {lab}_back")
    if syncs:
        A("L_spin:")
        if cfg.stamp: A("s_add_u32 s3, s3, 0x10000")
        A("s_mov_b32 s74, 32")
        A("L_spin1:")
        if cfg.stamp: A("s_add_u32 s3, s3, 1")
        A(f"s_load_dword s{sDif}, s[{sSy}:{sSy+1}], 0x0 glc")
        A("s_waitcnt lgkmcnt(0)")
        A(f"s_mul_i32 s{sDif}, s{sDif}, s{sSign}")
        A(f"s_cmp_le_i32 s{sDif}, 0")
        A("s_cbranch_scc1 L_spin2")
        A("s_sub_u32 s74, s74, 1")
        A("s_cmp_lg_u32 s74, 0")
        A("s_cbranch_scc1 L_spin1")
        A(f"s_mov_b32 s{sSign}, 0")
        A("L_spin2:")
        A(f"s_mov_b32 s{sOld}, 0"); A(f"s_mov_b32 s{sOld+1}, 0")
        A(f"s_setpc_b64 s[{sRet}:{sRet+1}]")
    for par, nx in sorted({(p, n) for _, p, n in tramps}):
        A(f"L_rare_{par}_{nx}:")
        L += rare_code(int(par), int(nx))
    if not cfg.fuse: L += reduce_kernel(cfg)
    A('.section .rodata,"a"')
    for kn, nv, acc in ((KN, 512, 256), ("reduce_kernel", 80, 80))[:1 if cfg.fuse else 2]:
        A(".p2align 6"); A(f".amdhsa_kernel {kn}")
        A(f"  .amdhsa_next_free_vgpr {nv}"); A("  .amdhsa_next_free_sgpr 102"); A(f"  .amdhsa_accum_offset {acc}")
        A("  .amdhsa_group_segment_fixed_size 0"); A("  .amdhsa_kernarg_size 104"); A("  .amdhsa_user_sgpr_count 2")
        A("  .amdhsa_user_sgpr_kernarg_segment_ptr 1"); A("  .amdhsa_system_sgpr_workgroup_id_x 1")
        A(".end_amdhsa_kernel")
    if cfg.al8: L = align8(L, cfg.al8)
    if cfg.hop: L = insert_pads(L, KN)
    return "\n".join(L) + "\n"

if __name__ == "__main__":
    ap = argparse.ArgumentParser()
    ap.add_argument("-o", default=f"cdna_kernels/{NAME}.s")
    ap.add_argument("opts", nargs="*")
    a = ap.parse_args()
    cfg = Cfg()
    for o in a.opts:
        k, v = o.split("=", 1)
        old = getattr(cfg, k)
        if isinstance(old, bool): v = v not in ("0", "false", "False")
        elif isinstance(old, int): v = int(v)
        elif isinstance(old, float): v = float(v)
        elif k.endswith("_flags"): v = " " + v.replace("+", " ") if v else ""
        setattr(cfg, k, v)
    open(a.o, "w").write(generate(cfg))
```

```python
import sys, math, argparse, struct

NAME = "concat_heads__gqa_block_cached__gqa_block_cached__near_ridge"
def f32bits(x): return struct.unpack("<I", struct.pack("<f", x))[0]

class Cfg:
    LEAD = 20
    DEAD = 8
    NB = 32
    SAFE = 6
    DMASPAN = 40
    H = 3.0
    TTPEN = 3.0
    dma_flags = " nt"
    w_flags = ""
    v_flags = "same"
    o_flags = ""
    otouch = "a59"
    st_flags = ""
    rd_flags = ""
    stamp = False
    strip = ""
    touch = "Cl"
    tpos = 1
    t_flags = ""
    hstamp = 0
    npre = 3
    psync = 1
    nospin = 0
    lstamp = 0
    QCW = 16
    VCAP = 4.0
    al8 = 0
    lalign = 6
    lshift = 0
    chain = 4
    pchain = 4
    snake = 1
    qord = 0
    pord = 2
    lf = 0
    lf0 = 2
    lf1 = 57
    pf = ""
    nwarm = 4
    rotkey = 2
    emu = ""
    hops = "12,44,90"
    hop = 16
    parkb = "a-2"
    parkg0 = 24
    parkg1 = 34
    rot = 2
    rotmask = 3
    linear = 0
    PJ0 = 4
    LOFF = 0
    LSKIP = 0
    kvlate = 0
    FLA = 5
    wbl2 = 0
    WST = 28672
    SST = 114688
    spare = 0
    QSPAN = 40
    order = "D0,S,D1|D2|D3|D4|D5|D6,K0"
    spos = 1
    bstamp = 0
    fuse = 1
    ptime = 4000
    force_abandon = 0
    pace = 0
    sync0 = "qp2"
    sync1 = "qp4"
    early = 1
    wsoff = 0

def V(lo, n=1): return [("v", lo + i) for i in range(n)]
def Areg(lo, n=1): return [("a", lo + i) for i in range(n)]
def vr(lo, n=1): return f"v{lo}" if n == 1 else f"v[{lo}:{lo+n-1}]"
def ar(lo, n=1): return f"a{lo}" if n == 1 else f"a[{lo}:{lo+n-1}]"

O0 = 128
def oreg(db16, qb): return O0 + (db16 * 2 + qb) * 4
S_ = [96, 112]
def sreg(par, kb, qb): return S_[par] + (kb * 2 + qb) * 4
NEGM = 88
P_ = [72, 80]
QF = 0
FR = 64
XF = 192
PARK = 224
vKB = 0; vVB = 4; vKD = 12; vVD = 16; vWD = 20; vXD = 24; vQA = 28; vXA = 36
vL = 38; vPS = 40; vINV = 42; vST = 44; vD = 45; vF = 46; vQW = 47
vT = 48
vE = 56
vQR = 64
STG = 192
sX, sWQ, sK, sV, sWO, sPT = 4, 8, 12, 16, 20, 24
sW4K, sKoff, sVoff, sCnt, sTmp, sW28K, sW64K, sWave, sScale = 28, 29, 30, 31, 32, 33, 34, 35, 36
sRet = 40
sTmp2 = 76
sKb, sVb = 84, 85
sSign, sOld, sDif = 37, 38, 75
sSy = 78

KRING = 98304
VRING = 32768
def kslot(m): return ((m + 3) % 4) * 16384
def vslot(m): return ((m + 1) % 4) * 16384
def qregion(s): return [0, 98304, 49152][s % 3]
QSTAGE = VRING + vslot(2)
MF = "v_mfma_f32_16x16x32_bf16"

class I:
    __slots__ = ("t", "k", "rd", "wr", "tag", "c", "ideal", "early", "dead", "pre", "post")
    def __init__(s, t, k, rd=(), wr=(), tag=None, c=()):
        s.t, s.k, s.rd, s.wr, s.tag, s.c = t, k, list(rd), list(wr), tag, list(c)
        s.ideal = s.early = s.dead = None
        s.pre = []; s.post = []
def valu(t, rd=(), wr=()): return I(t, "valu", rd, wr)
def trans(t, rd=(), wr=()): return I(t, "trans", rd, wr)
def perm(t, rd=(), wr=()): return I(t, "perm", rd, wr)
def salu(t, wr=()): return I(t, "salu", (), wr)
def slots(x): return 2 if x.k in ("trans", "dma", "store", "perm") else 1

class Body:
    def __init__(s, name):
        s.name = name
        s.mf = []; s.reads = []; s.need = []; s.dma = []; s.valu = []; s.after_reads = []; s.tail = []; s.fronts = []; s.post_bar = []

def dma_group(srd, voffs, pre, post, soff, m0val, tag, flags=""):
    g = []
    for k in range(4):
        off = f" offset:{k*1024}" if k else ""
        g.append(I(f"buffer_load_dwordx4 v{voffs[k]}, s[{srd}:{srd+3}], s{soff} offen{off}{flags} lds",
                   "dma", rd=[("v", voffs[k]), ("m0", 0)], tag=tag))
    g[0].pre = [salu(f"s_add_u32 m0, s{m0val[0]}, {m0val[1]}", wr=[("m0", 0)])] + list(pre)
    return g
def g_k(m, cfg):
    return dma_group(sK, [vKD + k for k in range(4)], [salu(f"s_add_u32 s{sKoff}, s{sKoff}, 16384")], [],
                     sKoff, (sKb, kslot(m)) if cfg.lf else (sW4K, KRING + kslot(m)), ("K", m), cfg.dma_flags)
def g_v(m, cfg):
    return dma_group(sV, [vVD + k for k in range(4)], [salu(f"s_add_u32 s{sVoff}, s{sVoff}, 16384")], [],
                     sVoff, (sVb, vslot(m)) if cfg.lf else (sW4K, VRING + vslot(m)), ("V", m), cfg.dma_flags if cfg.v_flags == "same" else cfg.v_flags)
def wo_place(j, half, cfg):
    if cfg.spare:
        if j == 4: return half * 16384, vXD, half * 16384
        m = 64 + (j if j < 4 else j - 5)
    else:
        m = 64 + j
    if half == 0: return KRING + kslot(m), vQA, kslot(m)
    return VRING + vslot(m), vQA + 4, vslot(m)
def g_wo(j, half, cfg):
    if "o" in cfg.emu: return g_wo1(j, half, cfg) + g_wo1(j, half, cfg)
    return g_wo1(j, half, cfg)
def g_wo1(j, half, cfg):
    so = sTmp2
    return dma_group(sWO, [vWD + k for k in range(4)], [salu(f"s_add_u32 s{so}, s{sW28K}, {half*128*896 + 128*j}")], [],
                     so, (sW4K, wo_place(j, half, cfg)[0]), ("W", j, half), cfg.o_flags)
def g_stage(s, cfg):
    rb = qregion(s)
    if cfg.rot:
        gs = [dma_group(sX, [vXD + k for k in range(4)], [salu(f"s_add_u32 s{sTmp}, s{sW28K}, s90"), salu("s_lshl_b32 s91, s90, 12")], [],
                        sTmp, (sW4K, rb + 32768), ("Q", s), cfg.w_flags)]
        gs.append(dma_group(sWQ, [vWD + k for k in range(4)], [salu(f"s_add_u32 s{sTmp}, s{sW64K}, s91"), salu("s_add_u32 s90, s90, 128")], [],
                            sTmp, (sW4K, rb), ("Q", s), cfg.w_flags))
        gs.append(dma_group(sWQ, [vWD + k for k in range(4)], [salu(f"s_add_u32 s{sTmp}, s{sTmp}, {32*8192}"), salu("s_cmp_eq_u32 s90, 896"), salu("s_cselect_b32 s90, 0, s90")], [],
                            sTmp, (sW4K, rb + 16384), ("Q", s), cfg.w_flags))
        if "q" in cfg.emu:
            gs[0] = gs[0][:2]
            gs.append(dma_group(sWQ, [vWD + k for k in range(4)], [salu(f"s_add_u32 s{sTmp}, s{sTmp}, s92")], [], sTmp, (sW4K, rb + 16384), ("Q", s), cfg.w_flags))
            gs.append(dma_group(sWQ, [vWD + k for k in range(4)], [salu(f"s_sub_u32 s{sTmp}, s{sTmp}, {32*8192}")], [], sTmp, (sW4K, rb), ("Q", s), cfg.w_flags))
        return gs
    gs = [dma_group(sX, [vXD + k for k in range(4)], [salu(f"s_add_u32 s{sTmp}, s{sW28K}, {128*s}")], [],
                    sTmp, (sW4K, rb + 32768), ("Q", s), cfg.w_flags)]
    for kk in range(2):
        gs.append(dma_group(sWQ, [vWD + k for k in range(4)], [salu(f"s_add_u32 s{sTmp}, s{sW64K}, {(64*s + 32*kk)*8192}")], [],
                            sTmp, (sW4K, rb + kk * 16384), ("Q", s), cfg.w_flags))
    return gs

def sm_instrs(n, fix=False):
    par = n % 2
    out = []; pend = []
    k = 0
    for qb in range(2):
        for kb in range(2):
            for hp in range(2):
                s0 = sreg(par, kb, qb) + 2 * hp
                t0 = vT + (2 * k) % 8; t1 = t0 + 1
                ps = vPS + qb
                if fix:
                    out.append(valu(f"v_add_f32 v{s0}, v{NEGM+4*qb}, v{s0}", rd=V(s0)+V(NEGM+4*qb), wr=V(s0)))
                    out.append(valu(f"v_add_f32 v{s0+1}, v{NEGM+4*qb}, v{s0+1}", rd=V(s0+1)+V(NEGM+4*qb), wr=V(s0+1)))
                out.append(trans(f"v_exp_f32 v{t0}, v{s0}", rd=V(s0), wr=V(t0)))
                if pend: out.append(pend.pop(0))
                out.append(trans(f"v_exp_f32 v{t1}, v{s0+1}", rd=V(s0+1), wr=V(t1)))
                out += pend; pend = []
                if kb == 0 and hp == 0:
                    pend.append(valu(f"v_add_f32 v{ps}, v{t0}, v{t1}", rd=V(t0, 2), wr=V(ps)))
                else:
                    pend.append(valu(f"v_add_f32 v{ps}, v{ps}, v{t0}", rd=V(t0)+V(ps), wr=V(ps)))
                    pend.append(valu(f"v_add_f32 v{ps}, v{ps}, v{t1}", rd=V(t1)+V(ps), wr=V(ps)))
                p = P_[par] + 4 * qb + 2 * kb + hp
                pend.append(valu(f"v_cvt_pk_bf16_f32 v{p}, v{t0}, v{t1}", rd=V(t0, 2), wr=V(p)))
                k += 1
    out += pend
    return out

def xlane(op, r, tmp):
    o = []
    for sw in ("v_permlane32_swap_b32", "v_permlane16_swap_b32"):
        o.append(valu(f"v_mov_b32 v{tmp}, v{r}", rd=V(r), wr=V(tmp)))
        o.append(perm(f"{sw} v{r}, v{tmp}", rd=V(r)+V(tmp), wr=V(r)+V(tmp)))
        o.append(valu(f"{op} v{r}, v{r}, v{tmp}", rd=V(r)+V(tmp), wr=V(r)))
    return o

def rowmax_instrs(par, qb, d, tmp):
    a = sreg(par, 0, qb); b = sreg(par, 1, qb)
    o = [valu(f"v_max3_f32 v{d}, v{a}, v{a+1}, v{a+2}", rd=V(a, 3), wr=V(d)),
         valu(f"v_max3_f32 v{d}, v{d}, v{a+3}, v{b}", rd=V(a+3)+V(b)+V(d), wr=V(d)),
         valu(f"v_max3_f32 v{d}, v{d}, v{b+1}, v{b+2}", rd=V(b+1, 2)+V(d), wr=V(d)),
         valu(f"v_max_f32 v{d}, v{d}, v{b+3}", rd=V(b+3)+V(d), wr=V(d))]
    return o + xlane("v_max_f32", d, tmp)

def zipl(a, b):
    o = []
    for i in range(max(len(a), len(b))):
        if i < len(a): o.append(a[i])
        if i < len(b): o.append(b[i])
    return o

def ob_reg(t, qb):
    base = [S_[0], S_[0] + 8, S_[1], S_[1] + 8, NEGM, 64, P_[0], P_[1]][t]
    return base + 4 * qb

def build_bodies(cfg):
    B = []
    for s in range(7):
        b = Body(f"qp{s}")
        order = [(kt, be) for kt in range(2) for be in range(16)] if (s < 6 and not cfg.pchain) else [(kt, be) for be in range(16) for kt in range(2)]
        xdone = set()
        def xf(kt, qb): return XF + ((s % 2) * 4 + kt * 2 + qb) * 4
        xpend = []
        def xread(kt):
            for qb in range(2):
                xpend.append((("X", s, kt, qb), [("ds_read_b128", vXA + kt, qb * 2048, 0, 4)], xf(kt, qb)))
        if s == 6 or cfg.pchain:
            xread(0); xread(1); xdone = {0, 1}
            b.reads += xpend; xpend = []
        for idx, (kt, be) in enumerate(order):
            if kt not in xdone:
                xread(kt); xdone.add(kt)
                b.reads += xpend; xpend = []
            key = ("WQ", s, kt, be)
            b.reads.append((key, [("ds_read_b64_tr_b16", vQA + be % 8, (32*kt + 4*jj) * 512 + (be // 8) * 256, 2*jj, 2) for jj in range(2)], None))
            for qb in range(2):
                d = oreg(be, qb)
                first = (s == 0 and kt == 0)
                b.mf.append((d, key, ar(xf(kt, qb), 4), Areg(xf(kt, qb), 4), "0" if first else vr(d, 4), [] if first else V(d, 4), [("X", s, kt, qb)]))
        if cfg.pchain:
            nm = []
            for k in range(0, 64, 4):
                g4 = b.mf[k:k + 4]
                if not cfg.snake: o4 = [0, 2, 1, 3]
                else: o4 = [0, 2, 3, 1] if (k // 4) % 2 == 0 else [1, 3, 2, 0]
                seen = set()
                for z in o4:
                    mf = g4[z]; d = mf[0]
                    c = ("0", []) if (s == 0 and d not in seen) else (vr(d, 4), V(d, 4))
                    seen.add(d)
                    nm.append((mf[0], mf[1], mf[2], mf[3], c[0], c[1], mf[6]))
            b.mf = nm
        b.need = [("Q", s)]
        if s < 6:
            delta = qregion(s + 1) - qregion(s)
            for r in list(range(vQA, vQA + 8)) + list(range(vXA, vXA + 2)):
                b.after_reads.append(valu(f"v_add_u32 v{r}, {delta & 0xffffffff}, v{r}", rd=V(r), wr=V(r)))
        if s <= 3: b.dma = g_stage(s + 3, cfg)
        elif cfg.kvlate == 1:
            if s == 4: b.dma = [g_k(1, cfg), g_k(2, cfg)]
            elif s == 5: b.dma = [g_v(0, cfg), g_k(3, cfg)]
            else: b.dma = [g_v(1, cfg)]
        elif s == 4: b.dma = [g_k(1, cfg), g_k(2, cfg), g_k(3, cfg)]
        elif s == 5: b.dma = [g_v(0, cfg), g_v(1, cfg), g_v(2, cfg)]
        else: b.dma = [g_v(3, cfg)]
        B.append(b)
    b = B[6]
    for t in range(8):
        per = []
        for qb in range(2):
            ins = []
            e = (vE if t % 2 == 0 else vT) + 4 * qb
            for the in range(2):
                d = oreg(2 * t + the, qb)
                for k in range(4):
                    ins.append(valu(f"v_mul_f32 v{d+k}, s{sScale}, v{d+k}", rd=V(d+k), wr=V(d+k)))
                for hp in range(2):
                    ins.append(valu(f"v_cvt_pk_bf16_f32 v{e+2*the+hp}, v{d+2*hp}, v{d+2*hp+1}", rd=V(d+2*hp, 2), wr=V(e+2*the+hp)))
            for sw in ("v_permlane32_swap_b32", "v_permlane16_swap_b32"):
                for hp in range(2):
                    ins.append(perm(f"{sw} v{e+hp}, v{e+2+hp}", rd=V(e+hp)+V(e+2+hp), wr=V(e+hp)+V(e+2+hp)))
            q = QF + (t * 2 + qb) * 4
            for k in range(4):
                ins.append(valu(f"v_accvgpr_write_b32 a{q+k}, v{e+k}", rd=V(e+k), wr=Areg(q+k)))
            per.append(ins)
        g0 = 8 * t + 7 + 4
        g1 = max(g0, min(g0 + cfg.QCW, 64 + 8 * (t // 2) - 2))
        b.valu.append((zipl(per[0], per[1]), g0, g1))
    for n in range(-2, 64):
        b = Body(f"a{n}")
        qk = []; pv = []
        if n + 2 <= 63:
            m = n + 2
            order = [(kb, t) for kb in range(2) for t in range(8)] if m > 0 else [(kb, t) for tg in range(4) for kb in range(2) for t in (2*tg, 2*tg+1)]
            for kb, t in order:
                key = ("K", m, kb, t)
                rd = (key, [("ds_read_b128", vKB + t % 4, kslot(m) + kb * 8192 + (t // 4) * 256, 0, 4)], None)
                mfs = []
                for qb in range(2):
                    S = sreg(m % 2, kb, qb)
                    if t == 0: c = ("0", []) if m < 2 else (vr(NEGM + 4*qb, 4), V(NEGM + 4*qb, 4))
                    else: c = (vr(S, 4), V(S, 4))
                    q = QF + (t * 2 + qb) * 4
                    mfs.append((S, key, ar(q, 4), Areg(q, 4), c[0], c[1], []))
                qk.append((rd, mfs))
            b.need.append(("K", m))
        if n >= 0:
            for db in range(16):
                key = ("V", n, db)
                rd = (key, [("ds_read_b64_tr_b16", vVB + db % 8, vslot(n) + jj * 8192 + (db // 8) * 256, 2*jj, 2) for jj in range(2)], None)
                mfs = []
                for qb in range(2):
                    d = oreg(db, qb); P = P_[n % 2] + 4 * qb
                    mfs.append((d, key, vr(P, 4), V(P, 4), "0" if n == 0 else vr(d, 4), [] if n == 0 else V(d, 4), []))
                pv.append((rd, mfs))
            b.need.append(("V", n))
        C = cfg.chain
        m = n + 2
        for rd, mfs in zipl(qk, pv): b.reads.append(rd)
        seq = []
        Cq = C if m > 0 else 2
        for k in range(0, 16, C):
            if qk:
                for k2 in range(k, k + C, Cq):
                    for qb in range(2):
                        zs = list(range(Cq))
                        if cfg.snake and qb == 1: zs.reverse()
                        for z in zs: seq.append(("q", qk[k2 + z][1][qb], qb))
            if pv:
                for z in range(C):
                    seq.append(("p", pv[k + z][1][z % 2], z % 2)); seq.append(("p", pv[k + z][1][1 - z % 2], 1 - z % 2))
        seen = set()
        for kind, mf, qb in seq:
            d = mf[0]
            first = d not in seen
            seen.add(d)
            if kind == "q" and first: c = ("0", []) if m < 2 else (vr(NEGM + 4*qb, 4), V(NEGM + 4*qb, 4))
            elif kind == "p" and n == 0: c = ("0", [])
            else: c = (vr(d, 4), V(d, 4))
            b.mf.append((mf[0], mf[1], mf[2], mf[3], c[0], c[1], mf[6]))
        G = len(b.mf)
        if n == -1:
            ins = zipl(rowmax_instrs(0, 0, vD, vF), rowmax_instrs(0, 1, vINV, vINV + 1))
            for qb, d in ((0, vD), (1, vINV)):
                for k in range(4):
                    ins.append(valu(f"v_sub_f32 v{NEGM+4*qb+k}, 0, v{d}", rd=V(d), wr=V(NEGM+4*qb+k)))
            ins += sm_instrs(0, fix=True)
            b.valu.append((ins, 3, G - 1))
        elif 0 <= n <= 62:
            ins = []
            for qb in range(2):
                if n == 0: ins.append(valu(f"v_mov_b32 v{vL+qb}, v{vPS+qb}", rd=V(vPS+qb), wr=V(vL+qb)))
                else: ins.append(valu(f"v_add_f32 v{vL+qb}, v{vL+qb}, v{vPS+qb}", rd=V(vPS+qb)+V(vL+qb), wr=V(vL+qb)))
            ins += sm_instrs(n + 1, fix=(n == 0))
            ins.append(valu(f"v_max_f32 v{vD}, v{vPS}, v{vPS+1}", rd=V(vPS, 2), wr=V(vD)))
            ins.append(valu(f"v_cmp_nge_f32 vcc, 0x46800000, v{vD}", rd=V(vD), wr=[("vcc", 0)]))
            b.valu.append((ins, 3 if n == 0 else 0, G - 2))
            b.tail.append(I(f"RARE {(n+1)%2} {1 if n + 2 <= 63 else 0}", "rare"))
        elif n == 63:
            ins = []
            for qb in range(2):
                ins.append(valu(f"v_add_f32 v{vL+qb}, v{vL+qb}, v{vPS+qb}", rd=V(vPS+qb)+V(vL+qb), wr=V(vL+qb)))
            ins += zipl(xlane("v_add_f32", vL, vD), xlane("v_add_f32", vL + 1, vF))
            for qb in range(2):
                ins.append(trans(f"v_rcp_f32 v{vINV+qb}, v{vL+qb}", rd=V(vL+qb), wr=V(vINV+qb)))
            b.valu.append((ins, 40, 63))
            for t in range(8):
                ins = []
                for qb in range(2):
                    o = ob_reg(t, qb)
                    for the in range(2):
                        d = oreg(2 * t + the, qb)
                        for hp in range(2):
                            ins.append(valu(f"v_cvt_pk_bf16_f32 v{o+2*the+hp}, v{d+2*hp}, v{d+2*hp+1}", rd=V(d+2*hp, 2), wr=V(o+2*the+hp)))
                g0 = 4 * t + 3 + 4
                b.valu.append((ins, g0, g0 + 5))
        if n + 2 <= 63:
            m = n + 6
            b.dma.append(g_k(m, cfg) if m <= 63 else g_wo(m - 64, 0, cfg))
        if cfg.kvlate == 1 and n < 0: b.dma.append(g_v(n + 4, cfg))
        if n >= 0:
            m = n + 4
            b.dma.append(g_v(m, cfg) if m <= 63 else g_wo(m - 64, 1, cfg))
        if cfg.lf and cfg.lf0 <= n <= cfg.lf1:
            def retag(g, tags):
                for x in g: x.tag = ("MULTI",) + tuple(tags)
                return g
            lead = retag(g_k(n + 6, cfg), [("K", n + 6), ("V", n + 4)])
            lag = retag(g_v(n + 3, cfg), [("K", n + 5), ("V", n + 3)])
            if n == cfg.lf0:
                lead[0].pre = [I("SWAP", "swap")] + lead[0].pre
                b.dma = [lead]
            elif n < cfg.lf1: b.dma = [lag, lead]
            else: b.dma = [lag, lead, retag(g_v(n + 4, cfg), [("K", n + 6), ("V", n + 4)])]
        if cfg.lf and n == cfg.lf1 + 1:
            b.dma[0][0].pre = [I("SWAP", "swap")] + b.dma[0][0].pre
        if cfg.spare and n in (62, 63): b.dma.append(g_wo(4, n - 62, cfg))
        B.append(b)
    def accreg(j, nb, qb): return O0 + 32 * (j % 2) + (nb * 2 + qb) * 4
    def drain(j, t2):
        ins = []
        for qb in range(2):
            q = qb * 2 + t2
            st = STG + 4 * q
            for the in range(2):
                a = accreg(j, 2 * t2 + the, qb)
                for k in range(4):
                    ins.append(valu(f"v_mul_f32 v{a+k}, v{vINV+qb}, v{a+k}", rd=V(a+k)+V(vINV+qb), wr=V(a+k)))
                for hp in range(2):
                    ins.append(valu(f"v_cvt_pk_bf16_f32 v{st+2*the+hp}, v{a+2*hp}, v{a+2*hp+1}", rd=V(a+2*hp, 2), wr=V(st+2*the+hp)))
            off = f" offset:{q*1024}" if q else ""
            x = I(f"buffer_store_dwordx4 v[{st}:{st+3}], v{vST}, s[{sPT}:{sPT+3}], s{sTmp} offen{off}{cfg.st_flags}", "store",
                  rd=V(st, 4)+V(vST), tag=("ST", j))
            if q == 0: x.pre = [salu(f"s_mov_b32 s{sTmp}, {4096*j}")]
            if not ("t" in cfg.emu and qb == 1): ins.append(x)
        return ins
    for j in range(7):
        b = Body(f"op{j}")
        C = max(1, cfg.pchain)
        for t2 in range(2):
            for tg in range(0, 8, C):
                for nb in (2 * t2, 2 * t2 + 1):
                    keys = []
                    for t in range(tg, tg + C):
                        key = ("WO", j, t, nb); keys.append((t, key))
                        _, base, slot = wo_place(j, t // 4, cfg)
                        base += nb
                        b.reads.append((key, [("ds_read_b64_tr_b16", base, slot + (32*(t % 4) + 16*jj) * 128, 2*jj, 2) for jj in range(2)], None))
                    qbs = [0, 1] if (not cfg.snake or nb % 2 == 0) else [1, 0]
                    for qi, qb in enumerate(qbs):
                        ks = keys if (not cfg.snake or qi == 0) else keys[::-1]
                        for ki, (t, key) in enumerate(ks):
                            d = accreg(j, nb, qb); o = ob_reg(t, qb)
                            z = (tg == 0 and ki == 0)
                            b.mf.append((d, key, vr(o, 4), V(o, 4), "0" if z else vr(d, 4), [] if z else V(d, 4), []))
        b.need = [("W", j, 0), ("W", j, 1)]
        if j >= 1: b.valu.append((drain(j - 1, 1), 3, 33))
        b.valu.append((drain(j, 0), 35, 65 if j < 6 else 62))
        nx = j + (5 if cfg.spare else 4)
        if nx <= 6: b.dma = [g_wo(nx, 0, cfg), g_wo(nx, 1, cfg)]
        if j == 6: b.tail += drain(6, 1)
        if cfg.fuse:
            if j == 0: b.fronts = tail_prep_salu(cfg)
            if j == 1: b.valu.append((tail_prep_valu(cfg), 36, 60))
            if j == cfg.FLA + 1: b.need = b.need + [("ST", 3)]
            if j == cfg.FLA: b.post_bar = [I("buffer_store_dwordx2 v[2:3], v12, s[12:15], 0 offen sc1", "store", rd=V(2, 2)+V(12), tag=("FL", 0))]
        B.append(b)
    return B

def schedule(B, cfg, pre_dma, first):
    starts = []; M = 0
    for b in B:
        starts.append(M); M += len(b.mf)
    front = {g: [] for g in range(-1, M)}
    fill = {g: [] for g in range(-1, M)}
    bp = [starts[i] + len(B[i].mf) - (cfg.LEAD if (len(B[i].mf) == 64 and B[i].name[0] == "a") else 16) - 1 for i in range(len(B))]
    fragreg = {}; first_use = {}; last_use = {}
    idx = 0
    for i, b in enumerate(B):
        for key, parts, fixed in b.reads:
            if fixed is None:
                fragreg[key] = FR + 4 * (idx % cfg.NB); idx += 1
        for g, mf in enumerate(b.mf):
            for k in [mf[1]] + mf[6]:
                first_use.setdefault(k, starts[i] + g); last_use[k] = starts[i] + g
    front[-1].append(I("BAR", "bar", tag=B[0].need))
    for i, b in enumerate(B[:-1]):
        front[bp[i]].append(I("BAR", "bar", tag=B[i + 1].need))
    reserved = {}
    lazy = set(); nodrain = set()
    if cfg.hops:
        for r, g in enumerate(cfg.hops.split(",")): front[int(g)].append(I(f"HOPR {r}", "hop"))
    elif cfg.hop == 1: front[bp[0] - 1].append(I("HOP", "hop"))
    elif cfg.hop >= 3: front[cfg.hop].append(I("HOP", "hop"))
    if cfg.hop == 2: front[-1].insert(0, I("HOP", "hop"))
    for i, b in enumerate(B):
        if b.fronts:
            flat = [x for chunk in b.fronts for x in chunk]
            g = starts[i] + 2; k = 0
            while k < len(flat):
                n = 2
                if k + n < len(flat) and flat[k + n].t.startswith("s_addc"): n += 1
                front[g] += flat[k:k + n]; k += n; g += 1
        if b.post_bar: reserved[bp[i] + 1] = b.post_bar
    if cfg.psync:
        names = [b.name for b in B]
        i0, i1 = names.index(cfg.sync0), names.index(cfg.sync1)
        lag = 1 if cfg.psync == 1 else 2
        for i in range(i0, i1 + 1):
            r = sOld + (i % lag)
            if i >= i0 + lag and not cfg.nospin:
                front[bp[i] + 1] += [salu(f"s_mul_i32 s{sDif}, s{r}, s{sSign}"), I("SYNC", "sync")]
            if i <= i1 - lag:
                front[bp[i] + 2] += [salu(f"s_mov_b32 s{r}, s{sSign}"), salu(f"s_atomic_add s{r}, s[{sSy}:{sSy+1}], 0x0 glc")]
                if lag == 2:
                    lazy.add(bp[i + 1])
                    reserved[bp[i + 1] - 3] = [I(f"ds_read_b32 a251, v{vKB}", "dsv", rd=V(vKB), tag=("DUMMY", i))]
    R = []; Mq = []; Vq = []
    holder = {}
    nd = sum(len(grp) for grp in first); k = 0
    for grp in first:
        for x in grp:
            x.early = 0; x.ideal = 1 + cfg.H + k * min(36, cfg.QSPAN) / nd; x.dead = bp[0] - 1 - (nd - 1 - k)
            Mq.append(x); k += 1
    for i, b in enumerate(B):
        w0 = bp[i - 1] if i > 0 else -17
        w1 = bp[i] - (cfg.DEAD if (b.dma or b.after_reads or not b.name.startswith("op")) else 1) if i < len(B) - 1 else starts[i] + len(b.mf) - 12
        if b.name.startswith("op") and not b.dma and i < len(B) - 1: nodrain.add(bp[i])
        flat = []
        for key, parts, fixed in b.reads:
            reg = fixed if fixed is not None else fragreg[key]
            for (op, addr, off, sub, n) in parts:
                x = I(f"{op} {ar(reg+sub, n)}, v{addr} offset:{off}", "d" if n == 4 else "t", rd=V(addr), wr=Areg(reg+sub, n), tag=key)
                x.early = w0
                h = holder.get(reg)
                if h is not None and h != key: x.early = max(x.early, last_use[h])
                x.dead = min(w1, first_use[key] - 7)
                flat.append(x)
            holder[reg] = key
        n = len(flat)
        for k, x in enumerate(flat):
            x.ideal = w0 + k * (w1 - 2 - w0) / n
        flat[-1].post = b.after_reads
        R += flat
        nd = sum(len(grp) for grp in b.dma)
        if nd:
            nxt = bp[i + 1] if i + 1 < len(B) else M - 1
            span = min(cfg.QSPAN if b.name.startswith('qp') else cfg.DMASPAN, nxt - bp[i] - 4)
            k = 0
            for grp in b.dma:
                for x in grp:
                    x.early = bp[i] + 1; x.ideal = bp[i] + 1 + cfg.H + k * span / nd; x.dead = nxt - 1 - (nd - 1 - k)
                    Mq.append(x); k += 1
        for ins, g0, g1 in b.valu:
            g0 += starts[i]; g1 = min(g1 + starts[i], M - 1)
            tot = sum(slots(x) for x in ins); acc = 0
            for x in ins:
                x.early = g0; x.ideal = g0 + acc * max(0, (g1 - 1 - g0)) / tot; x.dead = g1
                acc += slots(x)
            Vq.append(ins)
    allv = []
    for li, ins in enumerate(Vq):
        for k, x in enumerate(ins): allv.append((x.ideal, li, k, x))
    allv.sort(key=lambda z: (z[0], z[1], z[2]))
    Vs = [z[3] for z in allv]
    for q in (R, Mq, Vs):
        for k in range(len(q) - 2, -1, -1): q[k].dead = min(q[k].dead, q[k + 1].dead)
    ri = mi = vi = 0
    while ri < len(R) and R[ri].ideal < 0:
        fill[-1].append(R[ri]); ri += 1
    last_dma = -10
    over = 0
    extra_v = []
    for g in range(M):
        def u(x):
            if x is None or x.early > g: return None
            v = g - x.ideal + cfg.H
            return v if v > 0 else None
        def at(q, i): return q[i] if i < len(q) else None
        vq = extra_v + Vs[vi:vi + 2]
        R0, R1, M0 = at(R, ri), at(R, ri + 1), at(Mq, mi)
        V0, V1 = at(vq, 0), at(vq, 1)
        if extra_v and R0 is not None and any(r in y.wr for y in extra_v for r in R0.rd): R0 = R1 = None
        if R0 is not None and R0.post: R1 = None
        if R1 is not None and extra_v and any(r in y.wr for y in extra_v for r in R1.rd): R1 = None
        ur0, ur1, um, uv0, uv1 = u(R0), u(R1), u(M0), u(V0), u(V1)
        if uv0 is not None: uv0 = min(uv0, cfg.VCAP)
        if uv1 is not None: uv1 = min(uv1, cfg.VCAP)
        plain = lambda x: x.k == "valu"
        opts = [(0.0, [])]
        if um is not None: opts.append((2 * um, [M0]))
        if uv0 is not None:
            if slots(V0) == 2: opts.append((2 * uv0, [V0]))
            else:
                opts.append((uv0, [V0]))
                if uv1 is not None and plain(V1): opts.append((uv0 + uv1, [V0, V1]))
                if ur0 is not None and plain(V0): opts.append((ur0 + uv0, [R0, V0]))
        if ur0 is not None:
            opts.append((ur0, [R0]))
            if ur1 is not None:
                opts.append((ur0 + ur1 - (cfg.TTPEN if R0.k == "t" else 0), [R0, R1]))
        sc, ch = max(opts, key=lambda z: z[0])
        ch = list(ch)
        if g in reserved:
            ch = []; fill[g] += reserved[g]
        def take(x):
            nonlocal ri, mi, vi, last_dma
            if x.k in ("d", "t"):
                ri += 1
                for y in x.post:
                    y.early = g + 1; y.ideal = g - 2; y.dead = g + cfg.DEAD - 1
                extra_v.extend(x.post)
            elif x.k == "dma": mi += 1
            elif extra_v and x is extra_v[0]: extra_v.pop(0)
            else: vi += 1
            if x.pre:
                if last_dma < g - 1 and not any(y.k == "bar" for y in front[g]) and g > 0: front[g - 1] += x.pre
                elif last_dma < g: front[g] += x.pre
                else: fill[g] += x.pre
            if x.k in ("dma", "store"): last_dma = g
            fill[g].append(x)
        for x in ch: take(x)
        while True:
            cand = None
            if extra_v and extra_v[0].dead <= g and extra_v[0].early <= g: cand = extra_v[0]
            elif ri < len(R) and R[ri].dead <= g and not extra_v: cand = R[ri]
            elif mi < len(Mq) and Mq[mi].dead <= g: cand = Mq[mi]
            elif vi < len(Vs) and Vs[vi].dead <= g: cand = Vs[vi]
            if cand is None: break
            assert cand.early <= g, (cand.t, cand.early, cand.dead, g)
            take(cand); over += slots(cand)
    assert ri == len(R) and mi == len(Mq) and vi == len(Vs), (ri, len(R), mi, len(Mq), vi, len(Vs))
    for i, b in enumerate(B):
        for x in b.tail:
            fill[starts[i] + len(b.mf) - 1] += x.pre + [x]
    sys.stderr.write(f"forced slots {over}\n")
    out = []
    lg = []; lg_done = 0; vm = []; lastread = {}; issued = {}
    cur = []
    def emit(lst, g):
        nonlocal lg_done
        for x in lst:
            if x.k == "bar":
                hit = lambda tg, want: tg == want or (tg[0] == "MULTI" and want in tg[1:])
                need = max(i2 for i2, tg in enumerate(vm) if any(hit(tg, w) for w in x.tag))
                for w in x.tag: assert any(hit(tg, w) for tg in vm), (w, g)
                n = min(len(vm) - 1 - need, 63)
                if g in lazy: assert lg[-1][0][0] == "DUMMY", (lg[-1], g)
                if g in nodrain:
                    cur.append(I(f"s_waitcnt vmcnt({n})", "wait"))
                else:
                    cur.append(I(f"s_waitcnt vmcnt({n}) lgkmcnt({1 if g in lazy else 0})", "wait"))
                    lg_done = len(lg)
                cur.append(I("s_barrier", "salu"))
            elif x.k in ("d", "t", "dsv"):
                lg.append((x.tag, g)); lastread[x.tag] = len(lg) - 1; cur.append(x)
                issued[x.tag] = issued.get(x.tag, 0) + 1
            elif x.k in ("dma", "store"):
                vm.append(x.tag); cur.append(x)
            else: cur.append(x)
    nparts = {}
    for x in R: nparts[x.tag] = nparts.get(x.tag, 0) + 1
    def lwait(mf, g, strict):
        nonlocal lg_done
        keys = [mf[1]] + mf[6]
        for k in keys:
            if issued.get(k, 0) < nparts.get(k, 1):
                assert not strict, ("operand not read", k, g)
                return
        needi = max(lastread[k] for k in keys)
        if needi >= lg_done:
            n_need = len(lg) - 1 - needi
            n_safe = sum(1 for (_, gg) in lg[lg_done:] if gg > g - cfg.SAFE)
            n = min(n_need, max(n_safe, 2), 15)
            cur.append(I(f"s_waitcnt lgkmcnt({n})", "wait"))
            lg_done = len(lg) - n
    for grp in pre_dma:
        for x in grp:
            emit(x.pre, -1); emit([x], -1)
    emit(front[-1], -1); emit(fill[-1], -1)
    out.append(("pre", cur))
    allmf = [mf for b in B for mf in b.mf]
    for i, b in enumerate(B):
        cur = []
        for gi, mf in enumerate(b.mf):
            g = starts[i] + gi
            d, key, bt, brs, ct, crs, extra = mf
            lwait(mf, g, True)
            fr = fragreg[key]
            cur.append(I(f"{MF} {vr(d,4)}, {ar(fr,4)}, {bt}, {ct}", "mfma", rd=Areg(fr, 4) + brs, wr=V(d, 4), c=crs))
            emit(front[g], g)
            if g + 1 < M: lwait(allmf[g + 1], g, False)
            emit(fill[g], g)
        out.append((b.name, cur))
    return out

def hazard_pass(segs):
    pos = 0; res = []; lastw = {}; lastc = {}; lasts = {}; pend = {}; nn = 0
    for name, lst in segs:
        o = []
        for x in lst:
            need = 0
            def req(p, d):
                nonlocal need
                need = max(need, d - (pos - p - 1))
            isv = x.k in ("valu", "trans", "perm")
            for r in x.rd + x.c:
                if r in lastw:
                    p, k, full = lastw[r]
                    if k == "mfma":
                        if x.k == "mfma":
                            if r in x.rd: req(p, 8)
                            elif tuple(x.c) != full: req(p, 6)
                        else: req(p, 8)
                    elif k in ("valu", "trans", "perm"):
                        if x.k in ("mfma", "perm"): req(p, 2)
                        if k == "trans" and x.k != "trans": req(p, 1)
                    elif k == "salu" and r == ("m0", 0): req(p, 1)
            for r in x.wr:
                if r in lastw and lastw[r][1] == "mfma" and (x.k != "mfma" or tuple(x.c) != lastw[r][2]): req(lastw[r][0], 8)
                if isv and r in lastc: req(lastc[r], 3)
                if r in lasts: req(lasts[r], 2)
            if x.k in ("d", "t"):
                for r in x.wr:
                    assert r not in pend, ("fragment overwritten before use", name, x.t)
                    pend[r] = 1
            if x.k == "mfma":
                for r in x.rd: pend.pop(r, None)
            while need > 0:
                k = min(need, 16)
                o.append(I(f"s_nop {k-1}", "nop")); pos += k; need -= k; nn += 1
            o.append(x)
            for r in x.wr: lastw[r] = (pos, x.k, tuple(x.wr))
            if x.k == "mfma":
                for r in x.c: lastc[r] = pos
            if x.k == "store":
                for r in x.rd: lasts[r] = pos
            pos += 1
        res.append((name, o))
    return res, nn

def srd(A, d, p, offreg, size):
    A(f"s_add_u32 s{d}, s{p}, s{offreg}")
    A(f"s_addc_u32 s{d+1}, s{p+1}, 0")
    A(f"s_and_b32 s{d+1}, s{d+1}, 0xffff")
    A(f"s_mov_b32 s{d+2}, {size}")
    A(f"s_mov_b32 s{d+3}, 0x20000")

def setup_code(cfg):
    L = []; A = L.append
    A("s_load_dwordx16 s[44:59], s[0:1], 0")
    A("s_load_dwordx4 s[60:63], s[0:1], 64")
    A("s_load_dwordx2 s[64:65], s[0:1], 96")
    A("s_cmp_ge_u32 s2, 256")
    A("s_cbranch_scc1 L_exit")
    if cfg.stamp:
        A("s_memtime s[80:81]"); A("s_memrealtime s[94:95]")
    A("v_lshrrev_b32 v1, 6, v0")
    A("v_and_b32 v64, 63, v0")
    A(f"v_readfirstlane_b32 s{sWave}, v1")
    A("s_and_b32 s66, s2, 7"); A("s_lshr_b32 s67, s2, 3")
    A("s_lshr_b32 s68, s66, 2")
    A("s_and_b32 s69, s67, 1")
    A("s_lshr_b32 s70, s67, 1")
    A("s_and_b32 s71, s70, 7")
    A("s_lshr_b32 s70, s70, 3")
    A("s_and_b32 s72, s66, 3"); A("s_lshl_b32 s72, s72, 1"); A("s_add_u32 s72, s72, s70")
    A("s_lshl_b32 s73, s72, 1"); A("s_add_u32 s73, s73, s69")
    if cfg.rot:
        if cfg.rotkey == 2: A("s_lshl_b32 s90, s72, 1"); A("s_add_u32 s90, s71, s90")
        else: A(f"s_add_u32 s90, s71, s{73 if cfg.rotkey == 0 else 72}")
        A(f"s_and_b32 s90, s90, {cfg.rotmask}"); A(f"s_mul_i32 s90, s90, {128*cfg.rot}")
    if "q" in cfg.emu: A("s_mul_i32 s92, s69, 7168"); A("s_add_u32 s92, s92, 512")
    A(f"s_lshl_b32 s{sW4K}, s{sWave}, 12")
    A(f"s_lshl_b32 s{sW64K}, s{sWave}, 16")
    if cfg.lf: A(f"s_add_u32 s{sKb}, s{sW4K}, {KRING}"); A(f"s_add_u32 s{sVb}, s{sW4K}, {VRING}")
    A(f"s_mul_i32 s{sW28K}, s{sWave}, 28672")
    A(f"s_sub_u32 s{sKoff}, s{sW4K}, 16384")
    A(f"s_sub_u32 s{sVoff}, s{sW4K}, 16384")
    A(f"s_mov_b32 s{sScale}, {f32bits(math.log2(math.e) / 16.0):#x}")
    A(f"s_and_b32 s76, s{sWave}, 1"); A("s_lshl_b32 s76, s76, 3")
    if "C" in cfg.touch:
        A("s_getpc_b64 s[20:21]")
        A("s_and_b32 s21, s21, 0xffff"); A("s_mov_b32 s22, CODE_BYTES"); A("s_mov_b32 s23, 0x20000")
        A("v_lshlrev_b32 v73, 7, v64")
        A(f"s_and_b32 s74, s67, 1"); A("s_lshl_b32 s74, s74, 2"); A(f"s_add_u32 s74, s74, s{sWave}"); A("s_lshl_b32 s74, s74, 13")
        A(f"buffer_load_dword a253, v73, s[20:23], s74 offen")
    A("v_lshrrev_b32 v65, 5, v64"); A("v_and_b32 v66, 31, v64")
    A("v_lshrrev_b32 v71, 3, v64"); A("v_and_b32 v72, 7, v64")
    A("v_mul_u32_u24 v73, 896, v71")
    A("v_lshrrev_b32 v74, 1, v71")
    A("v_xor_b32 v74, v74, v72")
    A("v_lshl_add_u32 v75, v74, 4, v73")
    A("v_xor_b32 v74, 4, v74")
    A("v_lshl_add_u32 v76, v74, 4, v73")
    for k in range(4):
        A(f"v_add_u32 v{vXD+k}, {k*(8*896-1024)}, v{75 + (k & 1)}")
    A("v_lshlrev_b32 v73, 1, v65"); A("v_xor_b32 v73, v73, v66"); A("v_xor_b32 v73, s76, v73")
    A("v_lshlrev_b32 v74, 13, v65")
    A("v_lshl_add_u32 v75, v73, 4, v74")
    A("v_xor_b32 v73, 4, v73")
    A("v_lshl_add_u32 v76, v73, 4, v74")
    for k in range(4):
        A(f"v_add_u32 v{vWD+k}, {k*(16384-1024)}, v{75 + (k & 1)}")
    A("s_waitcnt lgkmcnt(0)")
    if cfg.hstamp: A("s_memtime s[82:83]")
    A("s_cmp_eq_u32 s68, 0")
    for a, b in ((44, 54), (50, 60), (46, 56), (48, 58), (52, 62)):
        A(f"s_cselect_b32 s{a}, s{a}, s{b}"); A(f"s_cselect_b32 s{a+1}, s{a+1}, s{b+1}")
    A("s_mul_i32 s74, s71, 114688"); srd(A, sX, 44, 74, 114688)
    A("s_lshl_b32 s74, s73, 9"); A(f"s_sub_u32 s75, {448*8192}, s74"); srd(A, sWQ, 50, 74, "s75")
    return L

def touch_code(cfg):
    L = []
    A = lambda t: L.append(I(t, "raw"))
    T = lambda t: L.append(I(t, "dma", tag=("T", 0)))
    if "w" in cfg.touch:
        A("v_lshrrev_b32 v73, 2, v64"); A("v_min_u32 v73, 13, v73"); A("v_lshlrev_b32 v73, 13, v73")
        A("v_and_b32 v74, 3, v64"); A("v_lshl_add_u32 v73, v74, 7, v73")
        A(f"s_lshl_b32 s74, s71, 2"); A(f"s_add_u32 s74, s74, s{sWave}"); A(f"s_mul_i32 s74, s74, {14*8192}")
        T(f"buffer_load_dword a255, v73, s[{sWQ}:{sWQ+3}], s74 offen{cfg.t_flags}")
    if "x" in cfg.touch:
        A("v_min_u32 v73, 55, v64"); A("v_lshlrev_b32 v73, 7, v73")
        A("s_and_b32 s74, s73, 3"); A("s_lshl_b32 s74, s74, 2"); A(f"s_add_u32 s74, s74, s{sWave}"); A(f"s_mul_i32 s74, s74, {56*128}")
        T(f"buffer_load_dword a254, v73, s[{sX}:{sX+3}], s74 offen{cfg.t_flags}")
    if "c" in cfg.touch:
        A("s_getpc_b64 s[20:21]")
        A("s_and_b32 s21, s21, 0xffff"); A("s_mov_b32 s22, CODE_BYTES"); A("s_mov_b32 s23, 0x20000")
        A("v_lshlrev_b32 v73, 7, v64")
        A(f"s_and_b32 s74, s67, 1"); A("s_lshl_b32 s74, s74, 2"); A(f"s_add_u32 s74, s74, s{sWave}"); A("s_lshl_b32 s74, s74, 13")
        T(f"buffer_load_dword a253, v73, s[20:23], s74 offen")
    return L

def stouch_setup():
    L = []; A = L.append
    A("v_lshlrev_b32 v73, 13, v65"); A("v_lshl_add_u32 v80, v66, 4, v73")
    A("v_mul_u32_u24 v73, 896, v71"); A("v_lshl_add_u32 v81, v72, 4, v73")
    A(f"s_lshl_b32 s74, s71, 2"); A(f"s_add_u32 s74, s74, s{sWave}"); A("s_lshl_b32 s90, s74, 14")
    A("s_and_b32 s74, s73, 3"); A("s_lshl_b32 s74, s74, 2"); A(f"s_add_u32 s74, s74, s{sWave}"); A(f"s_mul_i32 s91, s74, {8*896}")
    return L
def stouch(st, cfg):
    a = I(f"buffer_load_dwordx4 a[240:243], v80, s[{sWQ}:{sWQ+3}], s92 offen{cfg.t_flags}", "dma", tag=("T", 2))
    a.pre = [salu(f"s_add_u32 s92, s90, {st*64*8192}")]
    return [a, I(f"buffer_load_dwordx4 a[244:247], v81, s[{sX}:{sX+3}], s91 offen offset:{128*st}{cfg.t_flags}", "dma", tag=("T", 2))]

def kd_code(cfg):
    L = []; A = L.append
    if cfg.hstamp == 2:
        A("s_memtime s[84:85]"); A(f"s_waitcnt vmcnt({cfg.npre})"); A("s_memtime s[86:87]")
    A("s_lshl_b32 s74, s71, 3"); A("s_add_u32 s74, s74, s72"); A("s_lshl_b32 s74, s74, 20")
    srd(A, sK, 46, 74, 1 << 20); srd(A, sV, 48, 74, 1 << 20)
    if cfg.pf:
        A("s_cmp_eq_u32 s69, 0"); A(f"s_cselect_b32 s84, s{sK}, s{sV}"); A(f"s_cselect_b32 s85, s{sK+1}, s{sV+1}")
        A(f"s_mov_b32 s86, {1 << 20}"); A("s_mov_b32 s87, 0x20000")
    A("v_xor_b32 v73, v65, v66"); A("v_xor_b32 v73, s76, v73"); A("v_lshlrev_b32 v74, 9, v65")
    for k in range(4):
        A(f"v_xor_b32 v75, {2*k}, v73"); A(f"v_lshl_add_u32 v{vKD+k}, v75, 4, v74")
    return L

def setup_code2(cfg):
    L = []; A = L.append
    if cfg.hstamp == 1: A("s_memtime s[84:85]")
    A("s_mul_i32 s74, s73, 229376"); srd(A, sWO, 52, 74, 229376)
    A("s_lshl_b32 s74, s68, 3"); A("s_add_u32 s74, s74, s71"); A("s_lshl_b32 s74, s74, 4"); A("s_add_u32 s74, s74, s73")
    A(f"s_mul_i32 s74, s74, {cfg.SST}"); A(f"s_add_u32 s74, s74, {cfg.wsoff}"); srd(A, sPT, 64, 74, cfg.SST)
    if cfg.psync:
        A("s_lshl_b32 s74, s66, 4"); A("s_lshr_b32 s75, s67, 1"); A("s_add_u32 s74, s74, s75"); A("s_lshl_b32 s74, s74, 2")
        A(f"s_add_u32 s74, s74, s{sWave}"); A("s_lshl_b32 s74, s74, 7"); A("s_add_u32 s74, s74, 0x2000000")
        A(f"s_add_u32 s{sSy}, s64, s74"); A(f"s_addc_u32 s{sSy+1}, s65, 0")
        A(f"s_lshl_b32 s{sSign}, s69, 1"); A(f"s_sub_u32 s{sSign}, 1, s{sSign}")
        A(f"s_sub_u32 s{sOld}, 0, s69")
        A(f"s_atomic_and s{sOld}, s[{sSy}:{sSy+1}], 0x0")
    A("s_mov_b32 s3, 0")
    if cfg.fuse:
        A("s_load_dwordx4 s[56:59], s[0:1], 80")
        A("s_memrealtime s[60:61]")
        A("s_lshl_b32 s70, s68, 3"); A("s_add_u32 s70, s70, s71")
    A("v_lshrrev_b32 v67, 4, v64"); A("v_bfe_u32 v68, v64, 2, 2"); A("v_and_b32 v69, 3, v64"); A("v_and_b32 v70, 15, v64")
    A("v_lshlrev_b32 v73, 1, v65"); A("v_xor_b32 v73, v73, v66"); A("v_lshlrev_b32 v74, 9, v65")
    for k in range(4):
        A(f"v_xor_b32 v75, {4*k}, v73"); A(f"v_lshl_add_u32 v{vVD+k}, v75, 4, v74")
    A("v_bfe_u32 v76, v64, 2, 3")
    A("v_lshl_add_u32 v73, v67, 3, v68"); A("v_lshlrev_b32 v73, 9, v73"); A("v_lshl_add_u32 v73, v69, 3, v73")
    for j in range(8):
        A(f"v_xor_b32 v75, {j}, v76"); A(f"v_lshl_add_u32 v{vQA+j}, v75, 5, v73")
    A("v_lshlrev_b32 v73, 7, v70"); A(f"v_add_u32 v73, s{sW4K}, v73"); A("v_add_u32 v73, 32768, v73")
    A("v_lshrrev_b32 v74, 1, v70"); A("v_xor_b32 v74, v74, v67")
    for kt in range(2):
        A(f"v_xor_b32 v75, {4*kt}, v74"); A(f"v_lshl_add_u32 v{vXA+kt}, v75, 4, v73")
    A("v_lshrrev_b32 v73, 2, v64"); A("v_lshlrev_b32 v73, 9, v73"); A("v_lshl_add_u32 v73, v69, 3, v73"); A(f"v_add_u32 v73, {VRING}, v73")
    for j in range(8):
        A(f"v_xor_b32 v75, {j}, v76"); A(f"v_lshl_add_u32 v{vVB+j}, v75, 5, v73")
    A("v_lshlrev_b32 v73, 9, v70"); A(f"v_add_u32 v73, {KRING}, v73"); A("v_xor_b32 v74, v67, v70")
    for j in range(4):
        A(f"v_xor_b32 v75, {4*j}, v74"); A(f"v_lshl_add_u32 v{vKB+j}, v75, 4, v73")
    A(f"v_lshlrev_b32 v73, 4, v64"); A(f"s_mul_i32 s74, s{sWave}, {cfg.WST}"); A(f"v_add_u32 v{vST}, s74, v73")
    A("v_mul_u32_u24 v74, 896, v71"); A("v_lshlrev_b32 v75, 1, v67"); A("v_xor_b32 v75, v75, v72"); A("v_lshl_add_u32 v74, v75, 4, v74")
    for k in range(4):
        A(f"v_add_u32 v75, {k*(8*896-1024)}, v74"); A(f"v_accvgpr_write_b32 a{PARK+k}, v75")
    A("v_lshrrev_b32 v74, 2, v64"); A("v_lshlrev_b32 v74, 7, v74"); A("v_lshl_add_u32 v74, v69, 3, v74"); A("v_and_b32 v77, 3, v71")
    for nb in range(4):
        A(f"v_xor_b32 v75, {nb}, v77"); A(f"v_lshl_add_u32 v75, v75, 5, v74")
        A(f"v_add_u32 v78, {KRING}, v75"); A(f"v_accvgpr_write_b32 a{PARK+4+nb}, v78")
        A(f"v_add_u32 v78, {VRING}, v75"); A(f"v_accvgpr_write_b32 a{PARK+8+nb}, v78")
        A(f"v_accvgpr_write_b32 a{PARK+12+nb}, v75")
    A("v_min_u32 v74, 55, v64"); A("v_lshlrev_b32 v74, 7, v74"); A(f"v_mov_b32 v{vQW}, v74")
    A(f"s_lshl_b32 s77, s71, 2"); A(f"s_add_u32 s77, s77, s{sWave}"); A(f"s_mul_i32 s77, s77, {56*128}")
    if "l" in cfg.touch:
        A(f"v_lshlrev_b32 v{vQW}, 4, v64"); A(f"v_add_u32 v{vQW}, {cfg.LOFF*1024}, v{vQW}"); A(f"s_sub_u32 s77, s77, {(cfg.LOFF+1+cfg.LSKIP)*1024}")
    return L

def tail_prep_salu(cfg):
    chunks = []
    def chunk():
        L = []; chunks.append(L)
        return lambda t: L.append(salu(t))
    A = chunk(); A("s_memrealtime s[62:63]")
    A(f"s_mul_i32 s74, s70, {16*cfg.SST}"); A(f"s_add_u32 s74, s74, {cfg.wsoff}")
    A = chunk(); srd(A, 4, 64, 74, 16*cfg.SST)
    A = chunk(); A("s_mov_b32 s74, 0"); srd(A, 8, 56, 74, 1835008)
    A = chunk(); srd(A, 16, 58, 74, 256)
    A = chunk(); A("s_mov_b32 s74, 0x2400000"); srd(A, 12, 64, 74, 65536)
    A = chunk()
    A("s_lshl_b32 s67, s70, 2")
    A(f"s_lshr_b32 s66, s{sWave}, 1"); A("s_lshl_b32 s66, s66, 4"); A("s_add_u32 s66, s66, s70"); A("s_lshl_b32 s66, s66, 11")
    A = chunk()
    A(f"s_add_u32 s60, s60, {2000 if not cfg.force_abandon else 0x7fffffff}"); A("s_addc_u32 s61, s61, 0")
    A("s_mov_b32 s54, s60"); A("s_add_u32 s55, s61, 1")
    A = chunk()
    A("s_mov_b32 s52, 0x3f80"); A("s_mov_b32 s53, 0x3f800000"); A("s_mov_b32 s49, 32768")
    A("s_lshl_b32 s72, s70, 4"); A("s_add_u32 s72, s72, s73"); A("s_lshl_b32 s72, s72, 7")
    A(f"s_lshl_b32 s69, s{sWave}, 28"); A("s_add_u32 s72, s72, s69")
    return chunks

def tail_prep_valu(cfg):
    L = []
    def A(t, w, r=()): L.append(valu(t, rd=[("v", x) for x in r], wr=V(w)))
    A("v_mbcnt_lo_u32_b32 v0, -1, 0", 0); A("v_mbcnt_hi_u32_b32 v0, -1, v0", 0, [0])
    A("v_lshlrev_b32 v1, 4, v0", 1, [0])
    A("v_and_b32 v6, 15, v0", 6, [0]); A("v_lshlrev_b32 v5, 7, v6", 5, [6])
    A("v_mul_u32_u24 v8, 1792, v6", 8, [6]); A("v_lshrrev_b32 v6, 4, v0", 6, [0]); A("v_lshl_add_u32 v8, v6, 4, v8", 8, [6, 8])
    A("v_lshlrev_b32 v12, 20, v0", 12, [0]); A("v_add_u32 v12, s72, v12", 12, [12])
    A("v_mov_b32 v4, 1", 4); A("v_mov_b32 v2, s62", 2); A("v_mov_b32 v3, s63", 3)
    return L

def tail_code(cfg):
    L = []; A = L.append
    A("buffer_load_dwordx2 v[6:7], v5, s[12:15], s66 offen sc1")
    A(f"s_mov_b32 s69, {cfg.ptime}")
    A("s_waitcnt vmcnt(1)")
    if cfg.stamp: A("s_memrealtime s[96:97]")
    A("s_barrier")
    A("buffer_store_dwordx2 v[2:3], v12, s[12:15], s49 offen sc1")
    A("s_waitcnt vmcnt(1)")
    A("s_branch L_chk")
    A("L_poll:")
    A("buffer_load_dwordx2 v[6:7], v5, s[12:15], s66 offen sc1")
    A("s_waitcnt vmcnt(0)")
    A("L_chk:")
    A("v_cmp_le_u64 vcc, s[60:61], v[6:7]")
    A("v_cmp_ge_u64 s[74:75], s[54:55], v[6:7]")
    A("s_and_b64 vcc, vcc, s[74:75]")
    A("s_cmp_eq_u64 vcc, exec")
    A("s_cbranch_scc1 L_go")
    A("s_sub_u32 s69, s69, 1")
    A("s_cmp_lg_u32 s69, 0")
    A("s_cbranch_scc1 L_poll")
    A("s_add_u32 s74, s73, 8"); A("s_lshl_b32 s74, 1, s74")
    A("v_mov_b32 v9, s74")
    A("s_mov_b64 exec, 1")
    A("buffer_atomic_or v9, off, s[16:19], s67 sc0 sc1")
    A("s_waitcnt vmcnt(0)")
    A("s_mov_b64 exec, -1")
    A("v_readfirstlane_b32 s74, v9")
    A("s_and_b32 s74, s74, 0xff")
    A("s_cmp_lg_u32 s74, 16")
    A("s_cbranch_scc1 L_fin")
    A("L_go:")
    if cfg.stamp: A("s_memrealtime s[38:39]"); A("s_mov_b32 s37, s69"); A("s_waitcnt lgkmcnt(0)")
    A("s_mov_b32 s50, s73"); A(f"s_mov_b32 s51, s{sWave}")
    A(f"s_call_b64 s[{sRet}:{sRet+1}], L_red")
    A("L_fin:")
    if cfg.stamp: A("s_waitcnt lgkmcnt(0)")
    A(f"s_cmp_lg_u32 s{sWave}, 1")
    A("s_cbranch_scc1 L_done")
    A("s_mov_b64 exec, 1")
    A("buffer_atomic_add v4, off, s[16:19], s67 sc0 sc1")
    A("s_waitcnt vmcnt(0)")
    A("s_mov_b64 exec, -1")
    A("v_readfirstlane_b32 s48, v4")
    A("s_and_b32 s74, s48, 0xff")
    A("s_cmp_lg_u32 s74, 15")
    A("s_cbranch_scc1 L_done")
    A("s_bfe_u32 s48, s48, 0x100008")
    A("L_redo:")
    A("s_cmp_eq_u32 s48, 0")
    A("s_cbranch_scc1 L_done")
    A("s_ff1_i32_b32 s50, s48")
    A("s_bitset0_b32 s48, s50")
    A("s_mov_b32 s51, 0")
    A("L_redo1:")
    A(f"s_call_b64 s[{sRet}:{sRet+1}], L_red")
    A("s_add_u32 s51, s51, 1")
    A("s_cmp_lt_u32 s51, 4")
    A("s_cbranch_scc1 L_redo1")
    A("s_branch L_redo")
    A("L_done:")
    return L

def red_code(cfg):
    L = []; A = L.append
    A("L_red:")
    A("s_lshr_b32 s74, s50, 2"); A(f"s_mul_i32 s44, s74, {cfg.WST}")
    A("s_and_b32 s75, s50, 3"); A("s_lshl_b32 s75, s75, 10"); A("s_add_u32 s44, s44, s75")
    A("s_lshl_b32 s75, s51, 13"); A("s_add_u32 s44, s44, s75")
    A("s_cmp_eq_u32 s51, 3")
    A("s_cselect_b32 s46, 0x40000000, 4096"); A("s_cselect_b32 s47, 0x40000000, 128")
    A("v_add_u32 v10, s46, v1"); A("v_add_u32 v11, s47, v8")
    if "t" in cfg.emu: A("v_mov_b32 v13, 0x40000000")
    for st, (base, vo) in enumerate(((128, 1), (64, 10))):
        A("s_mov_b32 s45, s44")
        for h in range(16):
            A(f"buffer_load_dwordx4 v[{base+4*h}:{base+4*h+3}], v{vo if not ('t' in cfg.emu and h % 2) else 13}, s[4:7], s45 offen sc1")
            if h < 15: A(f"s_add_u32 s45, s45, {cfg.SST}")
    A("s_lshl_b32 s45, s71, 3"); A("s_lshr_b32 s75, s50, 1"); A("s_add_u32 s45, s45, s75"); A(f"s_mul_i32 s45, s45, {16*1792}")
    A("s_mul_i32 s75, s68, 896"); A("s_add_u32 s45, s45, s75")
    A("s_lshl_b32 s75, s51, 8"); A("s_add_u32 s45, s45, s75")
    A("s_and_b32 s75, s50, 1"); A("s_lshl_b32 s75, s75, 6"); A("s_add_u32 s45, s45, s75")
    for st, (base, vo, acc) in enumerate(((128, 8, 16), (64, 11, 32))):
        for k in range(8): A(f"v_mov_b32 v{acc+k}, 0")
        for h in range(16):
            A(f"s_waitcnt vmcnt({(31 - h) if st == 0 else (16 - h)})")
            for k in range(4):
                A(f"v_dot2c_f32_bf16 v{acc+2*k}, s52, v{base+4*h+k}")
                A(f"v_dot2c_f32_bf16 v{acc+2*k+1}, s53, v{base+4*h+k}")
        A("s_nop 2")
        for k in range(4): A(f"v_cvt_pk_bf16_f32 v{acc+8+k}, v{acc+2*k}, v{acc+2*k+1}")
        A("s_nop 1")
        A(f"v_permlane32_swap_b32 v{acc+8}, v{acc+10}"); A(f"v_permlane32_swap_b32 v{acc+9}, v{acc+11}")
        A("s_nop 1")
        A(f"v_permlane16_swap_b32 v{acc+8}, v{acc+10}"); A(f"v_permlane16_swap_b32 v{acc+9}, v{acc+11}")
        A(f"buffer_store_dwordx4 v[{acc+8}:{acc+11}], v{vo}, s[8:11], s45 offen")
    A(f"s_setpc_b64 s[{sRet}:{sRet+1}]")
    return L

def rare_code(par, has_next):
    ins = [I("s_nop 9", "nop")]
    for qb in range(2):
        ins += rowmax_instrs(par, qb, vD, vF)
        ins.append(valu(f"v_max_f32 v{vD}, 0, v{vD}", rd=V(vD), wr=V(vD)))
        ins.append(valu(f"v_sub_f32 v{vF}, 0, v{vD}", rd=V(vD), wr=V(vF)))
        ins.append(trans(f"v_exp_f32 v{vF}, v{vF}", rd=V(vF), wr=V(vF)))
        regs = [NEGM + 4*qb + k for k in range(4)] + [sreg(par, kb, qb) + k for kb in range(2) for k in range(4)]
        if has_next: regs += [sreg(1 - par, kb, qb) + k for kb in range(2) for k in range(4)]
        for r in regs: ins.append(valu(f"v_sub_f32 v{r}, v{r}, v{vD}", rd=V(r)+V(vD), wr=V(r)))
        for r in [vL + qb] + [oreg(db, qb) + k for db in range(16) for k in range(4)]:
            ins.append(valu(f"v_mul_f32 v{r}, v{r}, v{vF}", rd=V(r)+V(vF), wr=V(r)))
    ins += sm_instrs(par)
    ins.append(I("s_nop 1", "nop"))
    ins.append(I(f"s_setpc_b64 s[{sRet}:{sRet+1}]", "salu"))
    segs, _ = hazard_pass([("rare", ins)])
    return [x.t for x in segs[0][1]]

def reduce_kernel(cfg):
    L = []; A = L.append
    A(".p2align 8")
    A("reduce_kernel:")
    A("s_cmp_ge_u32 s2, 448")
    A("s_cbranch_scc1 L_rexit")
    A("s_load_dwordx2 s[4:5], s[0:1], 96")
    A("s_load_dwordx2 s[6:7], s[0:1], 80")
    A("s_mul_hi_u32 s16, s2, 0x924924a")
    A("s_mul_i32 s17, s16, 28"); A("s_sub_u32 s17, s2, s17")
    A("s_mul_hi_u32 s18, s17, 0x24924925")
    A("s_mul_i32 s19, s18, 7"); A("s_sub_u32 s19, s17, s19")
    A("v_lshlrev_b32 v1, 4, v0")
    A("s_lshl_b32 s20, s17, 12")
    A("v_add_u32 v1, s20, v1")
    A("s_mul_i32 s21, s16, 1835008"); A(f"s_add_u32 s21, s21, {cfg.wsoff}")
    A("s_waitcnt lgkmcnt(0)")
    A("s_add_u32 s8, s4, s21"); A("s_addc_u32 s9, s5, 0"); A("s_and_b32 s9, s9, 0xffff")
    A("s_mov_b32 s10, 1835008"); A("s_mov_b32 s11, 0x20000")
    A("s_mov_b32 s12, s6"); A("s_and_b32 s13, s7, 0xffff"); A("s_mov_b32 s14, 1835008"); A("s_mov_b32 s15, 0x20000")
    A("s_mov_b32 s22, 0")
    for h in range(16):
        A(f"buffer_load_dwordx4 v[{16+4*h}:{19+4*h}], v1, s[8:11], s22 offen{cfg.rd_flags}")
        if h < 15: A("s_add_u32 s22, s22, 114688")
    A("v_and_b32 v2, 15, v0")
    A("v_lshrrev_b32 v3, 7, v0"); A("v_lshl_add_u32 v2, v3, 4, v2")
    A("s_and_b32 s23, s16, 7"); A("s_lshl_b32 s23, s23, 7"); A("s_lshl_b32 s24, s18, 5"); A("s_add_u32 s23, s23, s24")
    A("v_add_u32 v2, s23, v2")
    A("v_mul_u32_u24 v2, 1792, v2")
    A("v_bfe_u32 v3, v0, 4, 3")
    A("v_lshl_add_u32 v2, v3, 4, v2")
    A("s_lshr_b32 s23, s16, 3"); A("s_mul_i32 s23, s23, 896"); A("s_lshl_b32 s24, s19, 7"); A("s_add_u32 s23, s23, s24")
    for h in range(16):
        A(f"s_waitcnt vmcnt({15-h})")
        for k in range(4):
            src = 16 + 4*h + k
            if h == 0:
                A(f"v_lshlrev_b32 v{4+2*k}, 16, v{src}"); A(f"v_and_b32 v{5+2*k}, 0xffff0000, v{src}")
            else:
                A(f"v_lshlrev_b32 v12, 16, v{src}"); A(f"v_and_b32 v13, 0xffff0000, v{src}")
                A(f"v_add_f32 v{4+2*k}, v{4+2*k}, v12"); A(f"v_add_f32 v{5+2*k}, v{5+2*k}, v13")
    for k in range(4):
        A(f"v_cvt_pk_bf16_f32 v{12+k}, v{4+2*k}, v{5+2*k}")
    A("s_nop 1")
    A("v_permlane32_swap_b32 v12, v14"); A("v_permlane32_swap_b32 v13, v15")
    A("s_nop 1")
    A("v_permlane16_swap_b32 v12, v14"); A("v_permlane16_swap_b32 v13, v15")
    A("buffer_store_dwordx4 v[12:15], v2, s[12:15], s23 offen")
    A("L_rexit:")
    A("s_endpgm")
    return L

FLEX = ("v_exp_f32", "v_add_f32", "v_max_f32", "v_mul_f32", "v_sub_f32", "v_mov_b32", "v_rcp_f32")
def isize(t):
    op = t.split()[0]
    if op.endswith(":") or op.startswith(";") or op.startswith("."): return 0
    if op.startswith(("v_mfma", "ds_", "buffer_", "v_cvt_pk", "v_accvgpr", "v_max3", "s_atomic", "s_load", "s_mem", "v_writelane")) or op.endswith("_e64"): return 8
    import re
    lits = [x for x in re.findall(r"(?<![\w\[:(])(-?0x[0-9a-f]+|-?\d+)(?![\w\]:)])", t[len(op):])]
    if op.startswith(("s_waitcnt", "s_nop", "s_barrier", "s_cbranch", "s_branch", "s_sleep", "s_call")): return 4
    for x in lits:
        v = int(x, 0)
        if not -16 <= v <= 64: return 8
    return 4
def align8(L, mode):
    out = []; off = 0; on = False
    for k, t in enumerate(L):
        if t == "L_loop:": on = True; off = 0
        if on and t.split()[0] in FLEX and isize(t) == 4:
            n4 = 0; flexnext = False
            for u in L[k + 1:]:
                sz = isize(u)
                if sz == 0: continue
                if u.split()[0] in FLEX and sz == 4: flexnext = True; break
                if sz == 8: break
                n4 += 1
            if not flexnext and (off + 4 + 4 * n4) % 8 != 0:
                t = t.replace(t.split()[0], t.split()[0] + "_e64", 1)
        out.append(t); off += isize(t)
        if t == "s_cbranch_scc1 L_loop": on = False
    return out

def insert_pads(L, KN, rounds=False):
    import subprocess, re, tempfile, os
    def addrs(lines):
        out = []; cand = []
        inloop = False
        for i, t in enumerate(lines):
            out.append(t)
            if t == "L_loop:": inloop = True
            if t == "s_cbranch_scc1 L_loop": inloop = False
            if (t.startswith("v_mfma") or t.startswith("v_dot2c")) and not inloop:
                out.append(f"LC_{i}:"); cand.append(i)
        txt = "\n".join(out) + "\n"
        for w in range(12):
            if f"L_pad{w}:" not in txt: txt = txt.replace("L_hopback:", f"L_pad{w}:\nL_hopback:")
        d = tempfile.mkdtemp()
        open(d + "/a.s", "w").write(txt)
        subprocess.run(["clang", "-x", "assembler", "-target", "amdgcn-amd-amdhsa", "-mcpu=gfx950", "-c", d + "/a.s", "-o", d + "/a.o"], check=True)
        o = subprocess.run(["llvm-objdump", "-t", d + "/a.o"], capture_output=True, text=True).stdout
        a = {}
        for m in re.finditer(r"^([0-9a-f]+) .* \.text\s+[0-9a-f]+ (?:\.\w+ )?(\w+)$", o, flags=re.M): a[m.group(2)] = int(m.group(1), 16)
        return {i: a[f"LC_{i}"] - a[KN] for i in cand}, a["L_hopback"] - a[KN]
    lines = list(L)
    pads = []
    page = None
    while True:
        ad, hb = addrs(lines)
        if page is None: page = hb // 4096 + 1
        c = [i for i in sorted(ad) if ad[i] >= page * 4096]
        if not c: break
        i = c[0]
        if ad[i] - page * 4096 > 256: page += 1; continue
        lines.insert(i + 1, f"PAD {len(pads)}")
        lines[i + 1] = "s_nop 0 ;PAD"
        pads.append(page); page += 1
    n = len(pads); k = 0
    res = []
    for t in lines:
        if t == "s_nop 0 ;PAD":
            res.append(f"L_pad{k}:")
            if rounds: res.append(f"s_cbranch_execz L_hopback{k // 4 if k >= 4 else ''}")
            else: res.append(f"s_cbranch_execz {'L_pad%d' % (k + 4) if k + 4 < n else 'L_hopback'}")
            k += 1
        elif rounds and t == "L_hopback2:":
            assert n <= 12
            for z in range(n, 12): res.append(f"L_pad{z}:")
            res.append(t)
        else: res.append(t)
    sys.stderr.write(f"pads: {n}\n")
    return res

def generate(cfg):
    if cfg.fuse and "sc1" not in cfg.st_flags and not cfg.wbl2: cfg.st_flags += " sc1"
    B = build_bodies(cfg)
    for b in B:
        if b.name == cfg.parkb:
            ins = []
            for k in range(4): ins.append(valu(f"v_accvgpr_read_b32 v{vWD+k}, a{PARK+k}", wr=V(vWD+k)))
            for k in range(8): ins.append(valu(f"v_accvgpr_read_b32 v{vQA+k}, a{PARK+4+k}", wr=V(vQA+k)))
            if cfg.spare:
                for k in range(4): ins.append(valu(f"v_accvgpr_read_b32 v{vXD+k}, a{PARK+12+k}", wr=V(vXD+k)))
            b.valu.append((ins, cfg.parkg0, cfg.parkg1))
    for b in B:
        if b.name == cfg.otouch and "o" in cfg.touch:
            b.dma = b.dma + [[I(f"buffer_load_dword a252, v{vQW}, s[{sWO}:{sWO+3}], s77 offen{cfg.o_flags}", "dma", rd=V(vQW), tag=("T", 1))]]
    for b in B:
        if b.name == cfg.otouch and "p" in cfg.touch:
            b.dma = b.dma + [[I(f"buffer_load_dwordx4 a[{240+4*(j%2)}:{243+4*(j%2)}], v{vWD}, s[{sWO}:{sWO+3}], s77 offen offset:{128*j}{cfg.o_flags}", "dma", rd=V(vWD), tag=("T", 1))
                              for j in range(cfg.PJ0, 7)]]
    for b in B:
        if "l" in cfg.touch and b.name[0] == "a" and 2 <= int(b.name[1:]) <= 57 and int(b.name[1:]) % 4 == 0:
            x = I(f"buffer_load_dwordx4 a[240:243], v{vQW}, s[{sWO}:{sWO+3}], s77 offen{cfg.o_flags}", "dma", rd=V(vQW), tag=("T", 1))
            x.pre = [salu("s_add_u32 s77, s77, 1024")]
            b.dma = b.dma + [[x]]
    raw = lambda lines: [I(t, "raw") for t in lines]
    tc = [touch_code(cfg)]
    init = []
    def expand(spec):
        out = []
        for tok in spec.split(","):
            if not tok: continue
            if tok == "S": out += tc + [raw(kd_code(cfg))] + [raw(setup_code2(cfg))]
            elif tok == "T": out += [raw(stouch_setup())]
            elif tok[0] == "D": out += g_stage(int(tok[1]), cfg)
            elif tok[0] == "P": out += [stouch(int(tok[1]), cfg)]
            elif tok == "K0": out += [g_k(0, cfg)]
            elif tok == "W":
                out += [[I(f"buffer_load_dword a{248+i}, off, s[{r}:{r+3}], s{sW4K} nt", "dma", tag=("T", 4)) for i, r in enumerate((sK, sV, sWO, sPT)[:cfg.nwarm])]]
        return out
    pfl = []
    for ent in [e for e in cfg.pf.split(",") if e]:
        bn, tile = ent.split(":")
        g = [I(f"buffer_load_dwordx4 a[{240+4*(k%2)}:{243+4*(k%2)}], v{vQW}, s[84:87], s{sTmp2} offen{' offset:%d' % (1024*k) if k else ''}", "dma", rd=V(vQW), tag=("T", 3)) for k in range(4)]
        if tile[0] == "h": tile = tile[1:]; g = g[:2]
        g[0].pre = [salu(f"s_add_u32 s{sTmp2}, s{sW4K}, {int(tile)*16384}")]
        pfl.append((bn, g))
    parts = cfg.order.split("|")
    pre = expand(parts[0]); first = expand(parts[1])
    for k in range(4): B[k].dma = expand(parts[2 + k]) + [g for g in B[k].dma if g[0].tag[0] == "T"]
    for bn, g in pfl:
        b = [x for x in B if x.name == bn][0]
        b.dma = b.dma + [g]
    segs = schedule(B, cfg, pre, first)
    segs, nn = hazard_pass(segs)
    txt = {name: [x.t for x in lst] for name, lst in segs}
    names = [n for n, _ in segs]
    lo = None
    for n in range(0, 30):
        if all(txt[f"a{k}"] == txt[f"a{k+4}"] for k in range(n, n + 8)):
            lo = n; break
    assert lo is not None, "no periodic steady state"
    last = lo
    while last + 4 <= 63 and txt[f"a{last+4}"] == txt[f"a{last}"]: last += 1
    last += 3
    nit = (last - lo + 1) // 4
    lo = last + 1 - 4 * nit
    sys.stderr.write(f"loop bodies {lo}..{last} ({nit} iterations), nops inserted {nn}\n")
    L = []; A = L.append
    KN = "attn_kernel"
    if cfg.fuse == 2:
        KN = NAME + "_kernel"
        A("; @launch grid=(256,1,1) block=(256,1,1) lds=163840")
    else:
        A("; @launch kernel=attn_kernel grid=(256,1,1) block=(256,1,1) lds=163840")
    if not cfg.fuse: A("; @launch kernel=reduce_kernel grid=(448,1,1) block=(256,1,1) lds=0")
    A('.amdgcn_target "amdgcn-amd-amdhsa--gfx950"')
    A(".text"); A(f".globl {KN}"); A(".p2align 12" if cfg.hop else ".p2align 8"); A(f".type {KN},@function"); A(f"{KN}:")
    L += setup_code(cfg)
    tramps = []; syncs = []; bs = [0]
    def emit_seg(name):
        A(f"; ---- {name}")
        for t in txt[name]:
            if t.startswith("RARE"):
                _, par, nx = t.split()
                lab = f"L_t_{name.replace('-','m')}"
                A(f"s_cbranch_vccnz {lab}"); A(f"{lab}_back:")
                tramps.append((lab, par, nx))
            elif t == "SWAP":
                lab = f"L_sw_{name}"
                A("s_bitcmp0_b32 s73, 0"); A(f"s_cbranch_scc1 {lab}")
                for k in range(4): A(f"v_swap_b32 v{vKD+k}, v{vVD+k}")
                for a, b2 in ((sK, sV), (sK + 1, sV + 1), (sKoff, sVoff), (sKb, sVb)):
                    A(f"s_mov_b32 s74, s{a}"); A(f"s_mov_b32 s{a}, s{b2}"); A(f"s_mov_b32 s{b2}, s74")
                A(f"{lab}:")
            elif t.startswith("HOPR"):
                r = int(t.split()[1])
                A("s_mov_b64 exec, 0")
                for w in range(3):
                    A(f"s_cmp_eq_u32 s{sWave}, {w}"); A(f"s_cbranch_scc1 L_pad{4*r+w}")
                A(f"s_branch L_pad{4*r+3}")
                A("L_hopback:" if r == 0 else f"L_hopback{r}:")
                A("s_mov_b64 exec, -1")
            elif t == "HOP":
                A("s_mov_b64 exec, 0")
                for w in range(3):
                    A(f"s_cmp_eq_u32 s{sWave}, {w}"); A(f"s_cbranch_scc1 L_pad{w}")
                A("s_branch L_pad3")
                A("L_hopback:")
                A("s_mov_b64 exec, -1")
            elif t == "SYNC":
                lab = f"L_s_{name.replace('-','m')}"
                A(f"s_cmp_gt_i32 s{sDif}, 0"); A(f"s_cbranch_scc1 {lab}"); A(f"{lab}_back:")
                syncs.append(lab)
            else: A(t)
    for name in names:
        if name.startswith("a"):
            n = int(name[1:])
            if lo <= n <= last:
                if n == lo:
                    if cfg.lstamp:
                        A("v_mbcnt_lo_u32_b32 v66, -1, 0"); A("v_mbcnt_hi_u32_b32 v66, -1, v66"); A("v_mov_b32 v67, 0")
                        A("s_memrealtime s[98:99]"); A("s_waitcnt lgkmcnt(0)")
                    if cfg.linear:
                        A("v_mbcnt_lo_u32_b32 v69, -1, 0"); A("v_mbcnt_hi_u32_b32 v69, -1, v69")
                        for r in range(vKD, vKD + 8): A(f"v_lshlrev_b32 v{r}, 4, v69")
                    if "h" in cfg.strip:
                        A("s_and_b32 s74, s73, 1"); A("s_lshl_b32 s74, s74, 11"); A(f"s_add_u32 s{sKoff}, s{sKoff}, s74"); A(f"s_add_u32 s{sVoff}, s{sVoff}, s74")
                    A(f"s_mov_b32 s{sCnt}, {nit}"); A(f".p2align {cfg.lalign}"); [A("s_nop 0") for _ in range(cfg.lshift)]; A("L_loop:")
                    if cfg.lstamp:
                        A("v_mov_b32 v68, s98"); A(f"v_cmp_eq_u32 vcc, s{sCnt}, v66"); A("s_memrealtime s[98:99]"); A("s_nop 0")
                        A("v_cndmask_b32 v67, v67, v68, vcc"); A("v_accvgpr_write_b32 a250, v67")
                if n < lo + 4:
                    def keep(t):
                        if "d" in cfg.strip and t.startswith("buffer_load"): return False
                        if "h" in cfg.strip and t.startswith("buffer_load") and ("offset:2048" in t or "offset:3072" in t): return False
                        if "r" in cfg.strip and t.startswith("ds_read"): return False
                        if "s" in cfg.strip and t.split()[0] in ("v_exp_f32", "v_add_f32", "v_cvt_pk_bf16_f32"): return False
                        return True
                    txt[name] = [t for t in txt[name] if keep(t)]
                    if "h" in cfg.strip: txt[name] = [t.replace("vmcnt(16)", "vmcnt(8)") for t in txt[name]]
                    if cfg.pace:
                        nt = []
                        for t in txt[name]:
                            nt.append(t)
                            if t == "s_barrier": nt += ["s_nop 15"] * cfg.pace
                        txt[name] = nt
                    if n == lo + 3:
                        txt[name].insert(1, f"s_sub_u32 s{sCnt}, s{sCnt}, 1")
                    emit_seg(name)
                    if n == lo + 3:
                        A(f"s_cmp_lg_u32 s{sCnt}, 0"); A("s_cbranch_scc1 L_loop")
                continue
        if cfg.bstamp and name != "pre":
            head = name.startswith("qp") or (name.startswith("a") and int(name[1:]) < 30)
            if head == (cfg.bstamp == 1):
                r = 71 if head else 47
                if bs[0] > 0:
                    A(f"v_writelane_b32 v{r}, s98, {bs[0]-1}"); A(f"v_writelane_b32 v{r}, s26, {bs[0]-1+32}") if not head and False else None
                    A(f"v_accvgpr_write_b32 a250, v{r}")
                A("s_memtime s[98:99]")
                bs[0] += 1; bs.append(name)
        if cfg.hstamp == 1 and name == "qp0": A("s_memtime s[86:87]")
        if cfg.stamp and not cfg.hstamp and name in ("qp0", "a-2", "op0"):
            i = ["qp0", "a-2", "op0"].index(name)
            A(f"s_memtime s[{[82, 44, 46][i]}:{[83, 45, 47][i]}]") if i < 2 else A("s_memtime s[92:93]")
            if name == "a-2": A("s_memrealtime s[100:101]")
            if name == "op0": A("s_memrealtime s[42:43]"); A("s_mov_b32 s34, s44")
        emit_seg(name)
    if cfg.fuse:
        if cfg.stamp: A("s_memrealtime s[98:99]")
        L += tail_code(cfg)
    if cfg.stamp:
        A("s_waitcnt vmcnt(0)")
        A("s_memtime s[88:89]"); A("s_memrealtime s[90:91]")
        A("s_getreg_b32 s31, hwreg(HW_REG_XCC_ID)"); A("s_getreg_b32 s93, hwreg(HW_REG_HW_ID)")
        A("s_waitcnt lgkmcnt(0)")
        A("s_add_u32 s76, s64, 0x4000000"); A("s_addc_u32 s77, s65, 0"); A("s_and_b32 s77, s77, 0xffff")
        A("s_mov_b32 s78, 0x100000"); A("s_mov_b32 s79, 0x20000")
        A("s_lshl_b32 s74, s2, 2"); A(f"s_add_u32 s74, s74, s{sWave}"); A("s_lshl_b32 s74, s74, 6")
        A("v_mov_b32 v40, 0")
        if cfg.lstamp or cfg.bstamp:
            sys.stderr.write(" ".join(bs[1:]) + "\n")
            A("v_mbcnt_lo_u32_b32 v66, -1, 0"); A("v_mbcnt_hi_u32_b32 v66, -1, v66"); A("v_lshlrev_b32 v66, 2, v66")
            A("s_lshl_b32 s75, s74, 2"); A("s_add_u32 s75, s75, 0x10000")
            A("buffer_store_dword a250, v66, s[76:79], s75 offen")
        for i, r in enumerate([80, 82, 34, 92, 88, 90, 31, 93, 94, 100, 42, 3, 98, 96, 38, 37]):
            A(f"v_mov_b32 v41, s{r}")
            A(f"buffer_store_dword v41, v40, s[76:79], s74 offen offset:{4*i}")
    A("L_exit:"); A("s_endpgm")
    if cfg.fuse: L += red_code(cfg)
    A("L_code_end:")
    A(f".set CODE_BYTES, L_code_end - {KN} - 1024")
    for lab, par, nx in tramps:
        A(f"{lab}:"); A(f"s_call_b64 s[{sRet}:{sRet+1}], L_rare_{par}_{nx}"); A(f"s_branch {lab}_back")
    for lab in syncs:
        A(f"{lab}:"); A(f"s_call_b64 s[{sRet}:{sRet+1}], L_spin"); A(f"s_branch {lab}_back")
    if syncs:
        A("L_spin:")
        if cfg.stamp: A("s_add_u32 s3, s3, 0x10000")
        A("s_mov_b32 s74, 32")
        A("L_spin1:")
        if cfg.stamp: A("s_add_u32 s3, s3, 1")
        A(f"s_load_dword s{sDif}, s[{sSy}:{sSy+1}], 0x0 glc")
        A("s_waitcnt lgkmcnt(0)")
        A(f"s_mul_i32 s{sDif}, s{sDif}, s{sSign}")
        A(f"s_cmp_le_i32 s{sDif}, 0")
        A("s_cbranch_scc1 L_spin2")
        A("s_sub_u32 s74, s74, 1")
        A("s_cmp_lg_u32 s74, 0")
        A("s_cbranch_scc1 L_spin1")
        A(f"s_mov_b32 s{sSign}, 0")
        A("L_spin2:")
        A(f"s_mov_b32 s{sOld}, 0"); A(f"s_mov_b32 s{sOld+1}, 0")
        A(f"s_setpc_b64 s[{sRet}:{sRet+1}]")
    for par, nx in sorted({(p, n) for _, p, n in tramps}):
        A(f"L_rare_{par}_{nx}:")
        L += rare_code(int(par), int(nx))
    if not cfg.fuse: L += reduce_kernel(cfg)
    A('.section .rodata,"a"')
    for kn, nv, acc in ((KN, 512, 256), ("reduce_kernel", 80, 80))[:1 if cfg.fuse else 2]:
        A(".p2align 6"); A(f".amdhsa_kernel {kn}")
        A(f"  .amdhsa_next_free_vgpr {nv}"); A("  .amdhsa_next_free_sgpr 102"); A(f"  .amdhsa_accum_offset {acc}")
        A("  .amdhsa_group_segment_fixed_size 0"); A("  .amdhsa_kernarg_size 104"); A("  .amdhsa_user_sgpr_count 2")
        A("  .amdhsa_user_sgpr_kernarg_segment_ptr 1"); A("  .amdhsa_system_sgpr_workgroup_id_x 1")
        A(".end_amdhsa_kernel")
    if cfg.al8: L = align8(L, cfg.al8)
    if cfg.hop: L = insert_pads(L, KN, bool(cfg.hops))
    return "\n".join(L) + "\n"

if __name__ == "__main__":
    ap = argparse.ArgumentParser()
    ap.add_argument("-o", default=f"cdna_kernels/{NAME}.s")
    ap.add_argument("opts", nargs="*")
    a = ap.parse_args()
    cfg = Cfg()
    for o in a.opts:
        k, v = o.split("=", 1)
        old = getattr(cfg, k)
        if isinstance(old, bool): v = v not in ("0", "false", "False")
        elif isinstance(old, int): v = int(v)
        elif isinstance(old, float): v = float(v)
        elif k.endswith("_flags"): v = " " + v.replace("+", " ") if v else ""
        setattr(cfg, k, v)
    open(a.o, "w").write(generate(cfg))
```

```python
import sys, math, argparse, struct

NAME = "concat_heads__gqa_block_cached__gqa_block_cached__near_ridge"
def f32bits(x): return struct.unpack("<I", struct.pack("<f", x))[0]

class Cfg:
    LEAD = 20
    DEAD = 8
    NB = 32
    SAFE = 6
    DMASPAN = 40
    H = 3.0
    TTPEN = 3.0
    dma_flags = " nt"
    w_flags = ""
    v_flags = "same"
    o_flags = ""
    otouch = "a58"
    st_flags = ""
    rd_flags = ""
    out_flags = ""
    psl = 5
    e63 = ""
    ilv = 0
    ppoll = 0
    stamp = False
    strip = ""
    touch = "Co"
    tpos = 1
    t_flags = ""
    hstamp = 0
    npre = 3
    psync = 0
    nospin = 0
    lstamp = 0
    QCW = 16
    VCAP = 4.0
    al8 = 0
    lalign = 6
    lshift = 0
    chain = 4
    pchain = 4
    snake = 1
    qord = 0
    pord = 2
    lf = 0
    lf0 = 2
    lf1 = 57
    pf = ""
    nwarm = 4
    rotkey = 2
    emu = ""
    hops = "12,44,90"
    hop = 16
    parkb = "a-2"
    parkg0 = 24
    parkg1 = 34
    rot = 2
    rotmask = 3
    linear = 0
    PJ0 = 4
    LOFF = 0
    LSKIP = 0
    kvlate = 0
    FLA = 5
    wbl2 = 0
    WST = 28672
    SST = 114688
    spare = 0
    QSPAN = 40
    order = "D0,S,D1|D2|D3|D4|D5|D6,K0"
    spos = 1
    bstamp = 0
    fuse = 1
    ptime = 4000
    force_abandon = 0
    pace = 0
    sync0 = "qp2"
    sync1 = "qp4"
    early = 1
    wsoff = 0

def V(lo, n=1): return [("v", lo + i) for i in range(n)]
def Areg(lo, n=1): return [("a", lo + i) for i in range(n)]
def vr(lo, n=1): return f"v{lo}" if n == 1 else f"v[{lo}:{lo+n-1}]"
def ar(lo, n=1): return f"a{lo}" if n == 1 else f"a[{lo}:{lo+n-1}]"

O0 = 128
def oreg(db16, qb): return O0 + (db16 * 2 + qb) * 4
S_ = [96, 112]
def sreg(par, kb, qb): return S_[par] + (kb * 2 + qb) * 4
NEGM = 88
P_ = [72, 80]
QF = 0
FR = 64
XF = 192
PARK = 224
vKB = 0; vVB = 4; vKD = 12; vVD = 16; vWD = 20; vXD = 24; vQA = 28; vXA = 36
vL = 38; vPS = 40; vINV = 42; vST = 44; vD = 45; vF = 46; vQW = 47
vT = 48
vE = 56
vQR = 64
STG = 192
sX, sWQ, sK, sV, sWO, sPT = 4, 8, 12, 16, 20, 24
sW4K, sKoff, sVoff, sCnt, sTmp, sW28K, sW64K, sWave, sScale = 28, 29, 30, 31, 32, 33, 34, 35, 36
sRet = 40
sTmp2 = 76
sKb, sVb = 84, 85
sSign, sOld, sDif = 37, 38, 75
sSy = 78

KRING = 98304
VRING = 32768
def kslot(m): return ((m + 3) % 4) * 16384
def vslot(m): return ((m + 1) % 4) * 16384
def qregion(s): return [0, 98304, 49152][s % 3]
QSTAGE = VRING + vslot(2)
MF = "v_mfma_f32_16x16x32_bf16"

class I:
    __slots__ = ("t", "k", "rd", "wr", "tag", "c", "ideal", "early", "dead", "pre", "post")
    def __init__(s, t, k, rd=(), wr=(), tag=None, c=()):
        s.t, s.k, s.rd, s.wr, s.tag, s.c = t, k, list(rd), list(wr), tag, list(c)
        s.ideal = s.early = s.dead = None
        s.pre = []; s.post = []
def valu(t, rd=(), wr=()): return I(t, "valu", rd, wr)
def trans(t, rd=(), wr=()): return I(t, "trans", rd, wr)
def perm(t, rd=(), wr=()): return I(t, "perm", rd, wr)
def salu(t, wr=()): return I(t, "salu", (), wr)
def slots(x): return 2 if x.k in ("trans", "dma", "store", "perm") else 1

class Body:
    def __init__(s, name):
        s.name = name
        s.mf = []; s.reads = []; s.need = []; s.dma = []; s.valu = []; s.after_reads = []; s.tail = []; s.fronts = []; s.post_bar = []

def dma_group(srd, voffs, pre, post, soff, m0val, tag, flags=""):
    g = []
    for k in range(4):
        off = f" offset:{k*1024}" if k else ""
        g.append(I(f"buffer_load_dwordx4 v{voffs[k]}, s[{srd}:{srd+3}], s{soff} offen{off}{flags} lds",
                   "dma", rd=[("v", voffs[k]), ("m0", 0)], tag=tag))
    g[0].pre = [salu(f"s_add_u32 m0, s{m0val[0]}, {m0val[1]}", wr=[("m0", 0)])] + list(pre)
    return g
def g_ilv(srd, voffs, soff, lds, tag, flags):
    g = []
    for k in range(4):
        x = I(f"buffer_load_dwordx4 v{voffs[k]}, s[{srd}:{srd+3}], s{soff} offen{flags} lds", "dma", rd=[("v", voffs[k]), ("m0", 0)], tag=tag)
        x.pre = [salu(f"s_add_u32 m0, s86, {lds + 4096*k}", wr=[("m0", 0)]), salu(f"s_add_u32 s{soff}, s{soff}, 4096")]
        g.append(x)
    return g
def g_k(m, cfg):
    if cfg.ilv: return g_ilv(sK, [vKD + (k & 1) for k in range(4)], sKoff, KRING + kslot(m), ("K", m), cfg.dma_flags)
    return dma_group(sK, [vKD + k for k in range(4)], [salu(f"s_add_u32 s{sKoff}, s{sKoff}, 16384")], [],
                     sKoff, (sKb, kslot(m)) if cfg.lf else (sW4K, KRING + kslot(m)), ("K", m), cfg.dma_flags)
def g_v(m, cfg):
    if cfg.ilv: return g_ilv(sV, [vVD] * 4, sVoff, VRING + vslot(m), ("V", m), cfg.dma_flags)
    return dma_group(sV, [vVD + k for k in range(4)], [salu(f"s_add_u32 s{sVoff}, s{sVoff}, 16384")], [],
                     sVoff, (sVb, vslot(m)) if cfg.lf else (sW4K, VRING + vslot(m)), ("V", m), cfg.dma_flags if cfg.v_flags == "same" else cfg.v_flags)
def wo_place(j, half, cfg):
    if cfg.spare:
        if j == 4: return half * 16384, vXD, half * 16384
        m = (63 if cfg.e63 else 64) + (j if j < 4 else j - 5)
    else:
        m = 64 + j
    if half == 0: return KRING + kslot(m), vQA, kslot(m)
    return VRING + vslot(m), vQA + 4, vslot(m)
def g_wo(j, half, cfg):
    if "o" in cfg.emu: return g_wo1(j, half, cfg) + g_wo1(j, half, cfg)
    return g_wo1(j, half, cfg)
def g_wo1(j, half, cfg):
    so = sTmp2
    return dma_group(sWO, [vWD + k for k in range(4)], [salu(f"s_add_u32 s{so}, s{sW28K}, {half*128*896 + 128*j}")], [],
                     so, (sW4K, wo_place(j, half, cfg)[0]), ("W", j, half), cfg.o_flags)
def g_stage(s, cfg):
    rb = qregion(s)
    if cfg.rot:
        gs = [dma_group(sX, [vXD + k for k in range(4)], [salu(f"s_add_u32 s{sTmp}, s{sW28K}, s90"), salu("s_lshl_b32 s91, s90, 12")], [],
                        sTmp, (sW4K, rb + 32768), ("Q", s), cfg.w_flags)]
        gs.append(dma_group(sWQ, [vWD + k for k in range(4)], [salu(f"s_add_u32 s{sTmp}, s{sW64K}, s91"), salu("s_add_u32 s90, s90, 128")], [],
                            sTmp, (sW4K, rb), ("Q", s), cfg.w_flags))
        gs.append(dma_group(sWQ, [vWD + k for k in range(4)], [salu(f"s_add_u32 s{sTmp}, s{sTmp}, {32*8192}"), salu("s_cmp_eq_u32 s90, 896"), salu("s_cselect_b32 s90, 0, s90")], [],
                            sTmp, (sW4K, rb + 16384), ("Q", s), cfg.w_flags))
        if "q" in cfg.emu:
            gs[0] = gs[0][:2]
            gs.append(dma_group(sWQ, [vWD + k for k in range(4)], [salu(f"s_add_u32 s{sTmp}, s{sTmp}, s92")], [], sTmp, (sW4K, rb + 16384), ("Q", s), cfg.w_flags))
            gs.append(dma_group(sWQ, [vWD + k for k in range(4)], [salu(f"s_sub_u32 s{sTmp}, s{sTmp}, {32*8192}")], [], sTmp, (sW4K, rb), ("Q", s), cfg.w_flags))
        return gs
    gs = [dma_group(sX, [vXD + k for k in range(4)], [salu(f"s_add_u32 s{sTmp}, s{sW28K}, {128*s}")], [],
                    sTmp, (sW4K, rb + 32768), ("Q", s), cfg.w_flags)]
    for kk in range(2):
        gs.append(dma_group(sWQ, [vWD + k for k in range(4)], [salu(f"s_add_u32 s{sTmp}, s{sW64K}, {(64*s + 32*kk)*8192}")], [],
                            sTmp, (sW4K, rb + kk * 16384), ("Q", s), cfg.w_flags))
    return gs

def sm_instrs(n, fix=False):
    par = n % 2
    out = []; pend = []
    k = 0
    for qb in range(2):
        for kb in range(2):
            for hp in range(2):
                s0 = sreg(par, kb, qb) + 2 * hp
                t0 = vT + (2 * k) % 8; t1 = t0 + 1
                ps = vPS + qb
                if fix:
                    out.append(valu(f"v_add_f32 v{s0}, v{NEGM+4*qb}, v{s0}", rd=V(s0)+V(NEGM+4*qb), wr=V(s0)))
                    out.append(valu(f"v_add_f32 v{s0+1}, v{NEGM+4*qb}, v{s0+1}", rd=V(s0+1)+V(NEGM+4*qb), wr=V(s0+1)))
                out.append(trans(f"v_exp_f32 v{t0}, v{s0}", rd=V(s0), wr=V(t0)))
                if pend: out.append(pend.pop(0))
                out.append(trans(f"v_exp_f32 v{t1}, v{s0+1}", rd=V(s0+1), wr=V(t1)))
                out += pend; pend = []
                if kb == 0 and hp == 0:
                    pend.append(valu(f"v_add_f32 v{ps}, v{t0}, v{t1}", rd=V(t0, 2), wr=V(ps)))
                else:
                    pend.append(valu(f"v_add_f32 v{ps}, v{ps}, v{t0}", rd=V(t0)+V(ps), wr=V(ps)))
                    pend.append(valu(f"v_add_f32 v{ps}, v{ps}, v{t1}", rd=V(t1)+V(ps), wr=V(ps)))
                p = P_[par] + 4 * qb + 2 * kb + hp
                pend.append(valu(f"v_cvt_pk_bf16_f32 v{p}, v{t0}, v{t1}", rd=V(t0, 2), wr=V(p)))
                k += 1
    out += pend
    return out

def xlane(op, r, tmp):
    o = []
    for sw in ("v_permlane32_swap_b32", "v_permlane16_swap_b32"):
        o.append(valu(f"v_mov_b32 v{tmp}, v{r}", rd=V(r), wr=V(tmp)))
        o.append(perm(f"{sw} v{r}, v{tmp}", rd=V(r)+V(tmp), wr=V(r)+V(tmp)))
        o.append(valu(f"{op} v{r}, v{r}, v{tmp}", rd=V(r)+V(tmp), wr=V(r)))
    return o

def rowmax_instrs(par, qb, d, tmp):
    a = sreg(par, 0, qb); b = sreg(par, 1, qb)
    o = [valu(f"v_max3_f32 v{d}, v{a}, v{a+1}, v{a+2}", rd=V(a, 3), wr=V(d)),
         valu(f"v_max3_f32 v{d}, v{d}, v{a+3}, v{b}", rd=V(a+3)+V(b)+V(d), wr=V(d)),
         valu(f"v_max3_f32 v{d}, v{d}, v{b+1}, v{b+2}", rd=V(b+1, 2)+V(d), wr=V(d)),
         valu(f"v_max_f32 v{d}, v{d}, v{b+3}", rd=V(b+3)+V(d), wr=V(d))]
    return o + xlane("v_max_f32", d, tmp)

def zipl(a, b):
    o = []
    for i in range(max(len(a), len(b))):
        if i < len(a): o.append(a[i])
        if i < len(b): o.append(b[i])
    return o

def ob_reg(t, qb):
    base = [S_[0], S_[0] + 8, S_[1], S_[1] + 8, NEGM, 64, P_[0], P_[1]][t]
    return base + 4 * qb

def build_bodies(cfg):
    B = []
    for s in range(7):
        b = Body(f"qp{s}")
        order = [(kt, be) for kt in range(2) for be in range(16)] if (s < 6 and not cfg.pchain) else [(kt, be) for be in range(16) for kt in range(2)]
        xdone = set()
        def xf(kt, qb): return XF + ((s % 2) * 4 + kt * 2 + qb) * 4
        xpend = []
        def xread(kt):
            for qb in range(2):
                xpend.append((("X", s, kt, qb), [("ds_read_b128", vXA + kt, qb * 2048, 0, 4)], xf(kt, qb)))
        if s == 6 or cfg.pchain:
            xread(0); xread(1); xdone = {0, 1}
            b.reads += xpend; xpend = []
        for idx, (kt, be) in enumerate(order):
            if kt not in xdone:
                xread(kt); xdone.add(kt)
                b.reads += xpend; xpend = []
            key = ("WQ", s, kt, be)
            b.reads.append((key, [("ds_read_b64_tr_b16", vQA + be % 8, (32*kt + 4*jj) * 512 + (be // 8) * 256, 2*jj, 2) for jj in range(2)], None))
            for qb in range(2):
                d = oreg(be, qb)
                first = (s == 0 and kt == 0)
                b.mf.append((d, key, ar(xf(kt, qb), 4), Areg(xf(kt, qb), 4), "0" if first else vr(d, 4), [] if first else V(d, 4), [("X", s, kt, qb)]))
        if cfg.pchain:
            nm = []
            for k in range(0, 64, 4):
                g4 = b.mf[k:k + 4]
                if not cfg.snake: o4 = [0, 2, 1, 3]
                else: o4 = [0, 2, 3, 1] if (k // 4) % 2 == 0 else [1, 3, 2, 0]
                seen = set()
                for z in o4:
                    mf = g4[z]; d = mf[0]
                    c = ("0", []) if (s == 0 and d not in seen) else (vr(d, 4), V(d, 4))
                    seen.add(d)
                    nm.append((mf[0], mf[1], mf[2], mf[3], c[0], c[1], mf[6]))
            b.mf = nm
        b.need = [("Q", s)]
        if s < 6:
            delta = qregion(s + 1) - qregion(s)
            for r in list(range(vQA, vQA + 8)) + list(range(vXA, vXA + 2)):
                b.after_reads.append(valu(f"v_add_u32 v{r}, {delta & 0xffffffff}, v{r}", rd=V(r), wr=V(r)))
        if s <= 3: b.dma = g_stage(s + 3, cfg)
        elif cfg.kvlate == 1:
            if s == 4: b.dma = [g_k(1, cfg), g_k(2, cfg)]
            elif s == 5: b.dma = [g_v(0, cfg), g_k(3, cfg)]
            else: b.dma = [g_v(1, cfg)]
        elif s == 4: b.dma = [g_k(1, cfg), g_k(2, cfg), g_k(3, cfg)]
        elif s == 5: b.dma = [g_v(0, cfg), g_v(1, cfg), g_v(2, cfg)]
        else: b.dma = [g_v(3, cfg)]
        B.append(b)
    b = B[6]
    for t in range(8):
        per = []
        for qb in range(2):
            ins = []
            e = (vE if t % 2 == 0 else vT) + 4 * qb
            for the in range(2):
                d = oreg(2 * t + the, qb)
                for k in range(4):
                    ins.append(valu(f"v_mul_f32 v{d+k}, s{sScale}, v{d+k}", rd=V(d+k), wr=V(d+k)))
                for hp in range(2):
                    ins.append(valu(f"v_cvt_pk_bf16_f32 v{e+2*the+hp}, v{d+2*hp}, v{d+2*hp+1}", rd=V(d+2*hp, 2), wr=V(e+2*the+hp)))
            for sw in ("v_permlane32_swap_b32", "v_permlane16_swap_b32"):
                for hp in range(2):
                    ins.append(perm(f"{sw} v{e+hp}, v{e+2+hp}", rd=V(e+hp)+V(e+2+hp), wr=V(e+hp)+V(e+2+hp)))
            q = QF + (t * 2 + qb) * 4
            for k in range(4):
                ins.append(valu(f"v_accvgpr_write_b32 a{q+k}, v{e+k}", rd=V(e+k), wr=Areg(q+k)))
            per.append(ins)
        g0 = 8 * t + 7 + 4
        g1 = max(g0, min(g0 + cfg.QCW, 64 + 8 * (t // 2) - 2))
        b.valu.append((zipl(per[0], per[1]), g0, g1))
    for n in range(-2, 64):
        b = Body(f"a{n}")
        qk = []; pv = []
        if n + 2 <= 63:
            m = n + 2
            order = [(kb, t) for kb in range(2) for t in range(8)] if m > 0 else [(kb, t) for tg in range(4) for kb in range(2) for t in (2*tg, 2*tg+1)]
            for kb, t in order:
                key = ("K", m, kb, t)
                rd = (key, [("ds_read_b128", vKB + t % 4, (0 if (cfg.e63 and m == 63) else kslot(m)) + kb * 8192 + (t // 4) * 256, 0, 4)], None)
                mfs = []
                for qb in range(2):
                    S = sreg(m % 2, kb, qb)
                    if t == 0: c = ("0", []) if m < 2 else (vr(NEGM + 4*qb, 4), V(NEGM + 4*qb, 4))
                    else: c = (vr(S, 4), V(S, 4))
                    q = QF + (t * 2 + qb) * 4
                    mfs.append((S, key, ar(q, 4), Areg(q, 4), c[0], c[1], []))
                qk.append((rd, mfs))
            b.need.append(("K", m))
        if n >= 0:
            for db in range(16):
                key = ("V", n, db)
                rd = (key, [("ds_read_b64_tr_b16", vVB + db % 8, (0 if (cfg.e63 and n == 63) else vslot(n)) + jj * 8192 + (db // 8) * 256, 2*jj, 2) for jj in range(2)], None)
                mfs = []
                for qb in range(2):
                    d = oreg(db, qb); P = P_[n % 2] + 4 * qb
                    mfs.append((d, key, vr(P, 4), V(P, 4), "0" if n == 0 else vr(d, 4), [] if n == 0 else V(d, 4), []))
                pv.append((rd, mfs))
            b.need.append(("V", n))
        C = cfg.chain
        m = n + 2
        for rd, mfs in zipl(qk, pv): b.reads.append(rd)
        seq = []
        Cq = C if m > 0 else 2
        for k in range(0, 16, C):
            if qk:
                for k2 in range(k, k + C, Cq):
                    for qb in range(2):
                        zs = list(range(Cq))
                        if cfg.snake and qb == 1: zs.reverse()
                        for z in zs: seq.append(("q", qk[k2 + z][1][qb], qb))
            if pv:
                for z in range(C):
                    seq.append(("p", pv[k + z][1][z % 2], z % 2)); seq.append(("p", pv[k + z][1][1 - z % 2], 1 - z % 2))
        seen = set()
        for kind, mf, qb in seq:
            d = mf[0]
            first = d not in seen
            seen.add(d)
            if kind == "q" and first: c = ("0", []) if m < 2 else (vr(NEGM + 4*qb, 4), V(NEGM + 4*qb, 4))
            elif kind == "p" and n == 0: c = ("0", [])
            else: c = (vr(d, 4), V(d, 4))
            b.mf.append((mf[0], mf[1], mf[2], mf[3], c[0], c[1], mf[6]))
        G = len(b.mf)
        if n == -1:
            ins = zipl(rowmax_instrs(0, 0, vD, vF), rowmax_instrs(0, 1, vINV, vINV + 1))
            for qb, d in ((0, vD), (1, vINV)):
                for k in range(4):
                    ins.append(valu(f"v_sub_f32 v{NEGM+4*qb+k}, 0, v{d}", rd=V(d), wr=V(NEGM+4*qb+k)))
            ins += sm_instrs(0, fix=True)
            b.valu.append((ins, 3, G - 1))
        elif 0 <= n <= 62:
            ins = []
            for qb in range(2):
                if n == 0: ins.append(valu(f"v_mov_b32 v{vL+qb}, v{vPS+qb}", rd=V(vPS+qb), wr=V(vL+qb)))
                else: ins.append(valu(f"v_add_f32 v{vL+qb}, v{vL+qb}, v{vPS+qb}", rd=V(vPS+qb)+V(vL+qb), wr=V(vL+qb)))
            ins += sm_instrs(n + 1, fix=(n == 0))
            ins.append(valu(f"v_max_f32 v{vD}, v{vPS}, v{vPS+1}", rd=V(vPS, 2), wr=V(vD)))
            ins.append(valu(f"v_cmp_nge_f32 vcc, 0x46800000, v{vD}", rd=V(vD), wr=[("vcc", 0)]))
            b.valu.append((ins, 3 if n == 0 else 0, G - 2))
            b.tail.append(I(f"RARE {(n+1)%2} {1 if n + 2 <= 63 else 0}", "rare"))
        elif n == 63:
            ins = []
            for qb in range(2):
                ins.append(valu(f"v_add_f32 v{vL+qb}, v{vL+qb}, v{vPS+qb}", rd=V(vPS+qb)+V(vL+qb), wr=V(vL+qb)))
            ins += zipl(xlane("v_add_f32", vL, vD), xlane("v_add_f32", vL + 1, vF))
            for qb in range(2):
                ins.append(trans(f"v_rcp_f32 v{vINV+qb}, v{vL+qb}", rd=V(vL+qb), wr=V(vINV+qb)))
            b.valu.append((ins, 40, 63))
            for t in range(8):
                ins = []
                for qb in range(2):
                    o = ob_reg(t, qb)
                    for the in range(2):
                        d = oreg(2 * t + the, qb)
                        for hp in range(2):
                            ins.append(valu(f"v_cvt_pk_bf16_f32 v{o+2*the+hp}, v{d+2*hp}, v{d+2*hp+1}", rd=V(d+2*hp, 2), wr=V(o+2*the+hp)))
                g0 = 4 * t + 3 + 4
                b.valu.append((ins, g0, g0 + 5))
        if n + 2 <= 63:
            m = n + 6
            b.dma.append(g_k(m, cfg) if m <= 63 else g_wo(m - 64, 0, cfg))
        if cfg.kvlate == 1 and n < 0: b.dma.append(g_v(n + 4, cfg))
        if n >= 0:
            m = n + 4
            b.dma.append(g_v(m, cfg) if m <= 63 else g_wo(m - 64, 1, cfg))
        if cfg.e63:
            b.dma = []
            if n + 2 <= 62: b.dma.append(g_k(n + 6, cfg) if n + 6 <= 62 else g_wo(n + 6 - 63, 0, cfg))
            if 0 <= n <= 62: b.dma.append(g_v(n + 4, cfg) if n + 4 <= 62 else g_wo(n + 4 - 63, 1, cfg))
            if n == 61: b.dma.append(g_wo(4, 0, cfg))
            if n == 63: b.dma.append(g_wo(4, 1, cfg))
            if b.name == cfg.e63:
                b.dma.append(dma_group(sK, [vKD + k for k in range(4)], [salu(f"s_add_u32 s{sTmp2}, s{sW4K}, {63*16384}")], [], sTmp2, (sW4K, 0), ("K", 63), cfg.dma_flags))
                b.dma.append(dma_group(sV, [vVD + k for k in range(4)], [salu(f"s_add_u32 s{sTmp2}, s{sW4K}, {63*16384}")], [], sTmp2, (sW4K, 16384), ("V", 63), cfg.dma_flags))
            if n == 60:
                for r in range(vKB, vKB + 4): b.after_reads.append(valu(f"v_add_u32 v{r}, {(-KRING) & 0xffffffff}, v{r}", rd=V(r), wr=V(r)))
            if n == 62:
                for r in range(vVB, vVB + 8): b.after_reads.append(valu(f"v_add_u32 v{r}, {(16384 - VRING) & 0xffffffff}, v{r}", rd=V(r), wr=V(r)))
        if cfg.lf and cfg.lf0 <= n <= cfg.lf1:
            def retag(g, tags):
                for x in g: x.tag = ("MULTI",) + tuple(tags)
                return g
            lead = retag(g_k(n + 6, cfg), [("K", n + 6), ("V", n + 4)])
            lag = retag(g_v(n + 3, cfg), [("K", n + 5), ("V", n + 3)])
            if n == cfg.lf0:
                lead[0].pre = [I("SWAP", "swap")] + lead[0].pre
                b.dma = [lead]
            elif n < cfg.lf1: b.dma = [lag, lead]
            else: b.dma = [lag, lead, retag(g_v(n + 4, cfg), [("K", n + 6), ("V", n + 4)])]
        if cfg.lf and n == cfg.lf1 + 1:
            b.dma[0][0].pre = [I("SWAP", "swap")] + b.dma[0][0].pre
        if cfg.spare and not cfg.e63 and n in (62, 63): b.dma.append(g_wo(4, n - 62, cfg))
        B.append(b)
    def accreg(j, nb, qb): return O0 + 32 * (j % 2) + (nb * 2 + qb) * 4
    def drain(j, t2):
        ins = []
        for qb in range(2):
            q = qb * 2 + t2
            st = STG + 4 * q
            for the in range(2):
                a = accreg(j, 2 * t2 + the, qb)
                for k in range(4):
                    ins.append(valu(f"v_mul_f32 v{a+k}, v{vINV+qb}, v{a+k}", rd=V(a+k)+V(vINV+qb), wr=V(a+k)))
                for hp in range(2):
                    ins.append(valu(f"v_cvt_pk_bf16_f32 v{st+2*the+hp}, v{a+2*hp}, v{a+2*hp+1}", rd=V(a+2*hp, 2), wr=V(st+2*the+hp)))
            off = f" offset:{q*1024}" if q else ""
            x = I(f"buffer_store_dwordx4 v[{st}:{st+3}], v{vST}, s[{sPT}:{sPT+3}], s{sTmp} offen{off}{cfg.st_flags}", "store",
                  rd=V(st, 4)+V(vST), tag=("ST", j))
            if q == 0: x.pre = [salu(f"s_mov_b32 s{sTmp}, {4096*j}")]
            if not ("t" in cfg.emu and qb == 1): ins.append(x)
        return ins
    for j in range(7):
        b = Body(f"op{j}")
        C = max(1, cfg.pchain)
        for t2 in range(2):
            for tg in range(0, 8, C):
                for nb in (2 * t2, 2 * t2 + 1):
                    keys = []
                    for t in range(tg, tg + C):
                        key = ("WO", j, t, nb); keys.append((t, key))
                        _, base, slot = wo_place(j, t // 4, cfg)
                        base += nb
                        b.reads.append((key, [("ds_read_b64_tr_b16", base, slot + (32*(t % 4) + 16*jj) * 128, 2*jj, 2) for jj in range(2)], None))
                    qbs = [0, 1] if (not cfg.snake or nb % 2 == 0) else [1, 0]
                    for qi, qb in enumerate(qbs):
                        ks = keys if (not cfg.snake or qi == 0) else keys[::-1]
                        for ki, (t, key) in enumerate(ks):
                            d = accreg(j, nb, qb); o = ob_reg(t, qb)
                            z = (tg == 0 and ki == 0)
                            b.mf.append((d, key, vr(o, 4), V(o, 4), "0" if z else vr(d, 4), [] if z else V(d, 4), []))
        b.need = [("W", j, 0), ("W", j, 1)]
        if j >= 1: b.valu.append((drain(j - 1, 1), 3, 33))
        b.valu.append((drain(j, 0), 35, 65 if j < 6 else 62))
        nx = j + (5 if cfg.spare else 4)
        if nx <= 6: b.dma = [g_wo(nx, 0, cfg), g_wo(nx, 1, cfg)]
        if j == 6: b.tail += drain(6, 1)
        if cfg.fuse:
            if j == 0: b.fronts = tail_prep_salu(cfg)
            if j == 1: b.valu.append((tail_prep_valu(cfg), 36, 60))
            if j == cfg.FLA + 1: b.need = b.need + [("ST", 3)]
            if j == cfg.FLA: b.post_bar = [I("buffer_store_dwordx2 v[2:3], v12, s[12:15], 0 offen sc1", "store", rd=V(2, 2)+V(12), tag=("FL", 0))]
        B.append(b)
    return B

def schedule(B, cfg, pre_dma, first):
    starts = []; M = 0
    for b in B:
        starts.append(M); M += len(b.mf)
    front = {g: [] for g in range(-1, M)}
    fill = {g: [] for g in range(-1, M)}
    bp = [starts[i] + len(B[i].mf) - (cfg.LEAD if (len(B[i].mf) == 64 and B[i].name[0] == "a") else 16) - 1 for i in range(len(B))]
    fragreg = {}; first_use = {}; last_use = {}
    idx = 0
    for i, b in enumerate(B):
        for key, parts, fixed in b.reads:
            if fixed is None:
                fragreg[key] = FR + 4 * (idx % cfg.NB); idx += 1
        for g, mf in enumerate(b.mf):
            for k in [mf[1]] + mf[6]:
                first_use.setdefault(k, starts[i] + g); last_use[k] = starts[i] + g
    front[-1].append(I("BAR", "bar", tag=B[0].need))
    for i, b in enumerate(B[:-1]):
        front[bp[i]].append(I("BAR", "bar", tag=B[i + 1].need))
    reserved = {}
    lazy = set(); nodrain = set()
    if cfg.hops:
        for r, g in enumerate(cfg.hops.split(",")): front[int(g)].append(I(f"HOPR {r}", "hop"))
    elif cfg.hop == 1: front[bp[0] - 1].append(I("HOP", "hop"))
    elif cfg.hop >= 3: front[cfg.hop].append(I("HOP", "hop"))
    if cfg.hop == 2: front[-1].insert(0, I("HOP", "hop"))
    for i, b in enumerate(B):
        if b.fronts:
            flat = [x for chunk in b.fronts for x in chunk]
            g = starts[i] + 2; k = 0
            while k < len(flat):
                n = 2
                if k + n < len(flat) and flat[k + n].t.startswith("s_addc"): n += 1
                front[g] += flat[k:k + n]; k += n; g += 1
        if b.post_bar: reserved[bp[i] + 1] = b.post_bar
    if cfg.psync:
        names = [b.name for b in B]
        i0, i1 = names.index(cfg.sync0), names.index(cfg.sync1)
        lag = 1 if cfg.psync == 1 else 2
        for i in range(i0, i1 + 1):
            r = sOld + (i % lag)
            if i >= i0 + lag and not cfg.nospin:
                front[bp[i] + 1] += [salu(f"s_mul_i32 s{sDif}, s{r}, s{sSign}"), I("SYNC", "sync")]
            if i <= i1 - lag:
                front[bp[i] + 2] += [salu(f"s_mov_b32 s{r}, s{sSign}"), salu(f"s_atomic_add s{r}, s[{sSy}:{sSy+1}], 0x0 glc")]
                if lag == 2:
                    lazy.add(bp[i + 1])
                    reserved[bp[i + 1] - 3] = [I(f"ds_read_b32 a251, v{vKB}", "dsv", rd=V(vKB), tag=("DUMMY", i))]
    R = []; Mq = []; Vq = []
    holder = {}
    nd = sum(len(grp) for grp in first); k = 0
    for grp in first:
        for x in grp:
            x.early = 0; x.ideal = 1 + cfg.H + k * min(36, cfg.QSPAN) / nd; x.dead = bp[0] - 1 - (nd - 1 - k)
            Mq.append(x); k += 1
    for i, b in enumerate(B):
        w0 = bp[i - 1] if i > 0 else -17
        w1 = bp[i] - (cfg.DEAD if (b.dma or b.after_reads or not b.name.startswith("op")) else 1) if i < len(B) - 1 else starts[i] + len(b.mf) - 12
        if b.name.startswith("op") and not b.dma and i < len(B) - 1: nodrain.add(bp[i])
        flat = []
        for key, parts, fixed in b.reads:
            reg = fixed if fixed is not None else fragreg[key]
            for (op, addr, off, sub, n) in parts:
                x = I(f"{op} {ar(reg+sub, n)}, v{addr} offset:{off}", "d" if n == 4 else "t", rd=V(addr), wr=Areg(reg+sub, n), tag=key)
                x.early = w0
                h = holder.get(reg)
                if h is not None and h != key: x.early = max(x.early, last_use[h])
                x.dead = min(w1, first_use[key] - 7)
                flat.append(x)
            holder[reg] = key
        n = len(flat)
        for k, x in enumerate(flat):
            x.ideal = w0 + k * (w1 - 2 - w0) / n
        flat[-1].post = b.after_reads
        R += flat
        nd = sum(len(grp) for grp in b.dma)
        if nd:
            nxt = bp[i + 1] if i + 1 < len(B) else M - 1
            span = min(cfg.QSPAN if b.name.startswith('qp') else cfg.DMASPAN, nxt - bp[i] - 4)
            k = 0
            for grp in b.dma:
                for x in grp:
                    x.early = bp[i] + 1; x.ideal = bp[i] + 1 + cfg.H + k * span / nd; x.dead = nxt - 1 - (nd - 1 - k)
                    Mq.append(x); k += 1
        for ins, g0, g1 in b.valu:
            g0 += starts[i]; g1 = min(g1 + starts[i], M - 1)
            tot = sum(slots(x) for x in ins); acc = 0
            for x in ins:
                x.early = g0; x.ideal = g0 + acc * max(0, (g1 - 1 - g0)) / tot; x.dead = g1
                acc += slots(x)
            Vq.append(ins)
    allv = []
    for li, ins in enumerate(Vq):
        for k, x in enumerate(ins): allv.append((x.ideal, li, k, x))
    allv.sort(key=lambda z: (z[0], z[1], z[2]))
    Vs = [z[3] for z in allv]
    for q in (R, Mq, Vs):
        for k in range(len(q) - 2, -1, -1): q[k].dead = min(q[k].dead, q[k + 1].dead)
    ri = mi = vi = 0
    while ri < len(R) and R[ri].ideal < 0:
        fill[-1].append(R[ri]); ri += 1
    last_dma = -10
    over = 0
    extra_v = []
    for g in range(M):
        def u(x):
            if x is None or x.early > g: return None
            v = g - x.ideal + cfg.H
            return v if v > 0 else None
        def at(q, i): return q[i] if i < len(q) else None
        vq = extra_v + Vs[vi:vi + 2]
        R0, R1, M0 = at(R, ri), at(R, ri + 1), at(Mq, mi)
        V0, V1 = at(vq, 0), at(vq, 1)
        if extra_v and R0 is not None and any(r in y.wr for y in extra_v for r in R0.rd): R0 = R1 = None
        if R0 is not None and R0.post: R1 = None
        if R1 is not None and extra_v and any(r in y.wr for y in extra_v for r in R1.rd): R1 = None
        ur0, ur1, um, uv0, uv1 = u(R0), u(R1), u(M0), u(V0), u(V1)
        if uv0 is not None: uv0 = min(uv0, cfg.VCAP)
        if uv1 is not None: uv1 = min(uv1, cfg.VCAP)
        plain = lambda x: x.k == "valu"
        opts = [(0.0, [])]
        if um is not None: opts.append((2 * um, [M0]))
        if uv0 is not None:
            if slots(V0) == 2: opts.append((2 * uv0, [V0]))
            else:
                opts.append((uv0, [V0]))
                if uv1 is not None and plain(V1): opts.append((uv0 + uv1, [V0, V1]))
                if ur0 is not None and plain(V0): opts.append((ur0 + uv0, [R0, V0]))
        if ur0 is not None:
            opts.append((ur0, [R0]))
            if ur1 is not None:
                opts.append((ur0 + ur1 - (cfg.TTPEN if R0.k == "t" else 0), [R0, R1]))
        sc, ch = max(opts, key=lambda z: z[0])
        ch = list(ch)
        if g in reserved:
            ch = []; fill[g] += reserved[g]
        def take(x):
            nonlocal ri, mi, vi, last_dma
            if x.k in ("d", "t"):
                ri += 1
                for y in x.post:
                    y.early = g + 1; y.ideal = g - 2; y.dead = g + cfg.DEAD - 1
                extra_v.extend(x.post)
            elif x.k == "dma": mi += 1
            elif extra_v and x is extra_v[0]: extra_v.pop(0)
            else: vi += 1
            if x.pre:
                if last_dma < g - 1 and not any(y.k == "bar" for y in front[g]) and g > 0: front[g - 1] += x.pre
                elif last_dma < g: front[g] += x.pre
                else: fill[g] += x.pre
            if x.k in ("dma", "store"): last_dma = g
            fill[g].append(x)
        for x in ch: take(x)
        while True:
            cand = None
            if extra_v and extra_v[0].dead <= g and extra_v[0].early <= g: cand = extra_v[0]
            elif ri < len(R) and R[ri].dead <= g and not extra_v: cand = R[ri]
            elif mi < len(Mq) and Mq[mi].dead <= g: cand = Mq[mi]
            elif vi < len(Vs) and Vs[vi].dead <= g: cand = Vs[vi]
            if cand is None: break
            assert cand.early <= g, (cand.t, cand.early, cand.dead, g)
            take(cand); over += slots(cand)
    assert ri == len(R) and mi == len(Mq) and vi == len(Vs), (ri, len(R), mi, len(Mq), vi, len(Vs))
    for i, b in enumerate(B):
        for x in b.tail:
            fill[starts[i] + len(b.mf) - 1] += x.pre + [x]
    sys.stderr.write(f"forced slots {over}\n")
    out = []
    lg = []; lg_done = 0; vm = []; lastread = {}; issued = {}
    cur = []
    def emit(lst, g):
        nonlocal lg_done
        for x in lst:
            if x.k == "bar":
                hit = lambda tg, want: tg == want or (tg[0] == "MULTI" and want in tg[1:])
                need = max(i2 for i2, tg in enumerate(vm) if any(hit(tg, w) for w in x.tag))
                for w in x.tag: assert any(hit(tg, w) for tg in vm), (w, g)
                n = min(len(vm) - 1 - need, 63)
                if g in lazy: assert lg[-1][0][0] == "DUMMY", (lg[-1], g)
                if g in nodrain:
                    cur.append(I(f"s_waitcnt vmcnt({n})", "wait"))
                else:
                    cur.append(I(f"s_waitcnt vmcnt({n}) lgkmcnt({1 if g in lazy else 0})", "wait"))
                    lg_done = len(lg)
                cur.append(I("s_barrier", "salu"))
            elif x.k in ("d", "t", "dsv"):
                lg.append((x.tag, g)); lastread[x.tag] = len(lg) - 1; cur.append(x)
                issued[x.tag] = issued.get(x.tag, 0) + 1
            elif x.k in ("dma", "store"):
                vm.append(x.tag); cur.append(x)
            else: cur.append(x)
    nparts = {}
    for x in R: nparts[x.tag] = nparts.get(x.tag, 0) + 1
    def lwait(mf, g, strict):
        nonlocal lg_done
        keys = [mf[1]] + mf[6]
        for k in keys:
            if issued.get(k, 0) < nparts.get(k, 1):
                assert not strict, ("operand not read", k, g)
                return
        needi = max(lastread[k] for k in keys)
        if needi >= lg_done:
            n_need = len(lg) - 1 - needi
            n_safe = sum(1 for (_, gg) in lg[lg_done:] if gg > g - cfg.SAFE)
            n = min(n_need, max(n_safe, 2), 15)
            cur.append(I(f"s_waitcnt lgkmcnt({n})", "wait"))
            lg_done = len(lg) - n
    for grp in pre_dma:
        for x in grp:
            emit(x.pre, -1); emit([x], -1)
    emit(front[-1], -1); emit(fill[-1], -1)
    out.append(("pre", cur))
    allmf = [mf for b in B for mf in b.mf]
    for i, b in enumerate(B):
        cur = []
        for gi, mf in enumerate(b.mf):
            g = starts[i] + gi
            d, key, bt, brs, ct, crs, extra = mf
            lwait(mf, g, True)
            fr = fragreg[key]
            cur.append(I(f"{MF} {vr(d,4)}, {ar(fr,4)}, {bt}, {ct}", "mfma", rd=Areg(fr, 4) + brs, wr=V(d, 4), c=crs))
            emit(front[g], g)
            if g + 1 < M: lwait(allmf[g + 1], g, False)
            emit(fill[g], g)
        out.append((b.name, cur))
    return out

def hazard_pass(segs):
    pos = 0; res = []; lastw = {}; lastc = {}; lasts = {}; pend = {}; nn = 0
    for name, lst in segs:
        o = []
        for x in lst:
            need = 0
            def req(p, d):
                nonlocal need
                need = max(need, d - (pos - p - 1))
            isv = x.k in ("valu", "trans", "perm")
            for r in x.rd + x.c:
                if r in lastw:
                    p, k, full = lastw[r]
                    if k == "mfma":
                        if x.k == "mfma":
                            if r in x.rd: req(p, 8)
                            elif tuple(x.c) != full: req(p, 6)
                        else: req(p, 8)
                    elif k in ("valu", "trans", "perm"):
                        if x.k in ("mfma", "perm"): req(p, 2)
                        if k == "trans" and x.k != "trans": req(p, 1)
                    elif k == "salu" and r == ("m0", 0): req(p, 1)
            for r in x.wr:
                if r in lastw and lastw[r][1] == "mfma" and (x.k != "mfma" or tuple(x.c) != lastw[r][2]): req(lastw[r][0], 8)
                if isv and r in lastc: req(lastc[r], 3)
                if r in lasts: req(lasts[r], 2)
            if x.k in ("d", "t"):
                for r in x.wr:
                    assert r not in pend, ("fragment overwritten before use", name, x.t)
                    pend[r] = 1
            if x.k == "mfma":
                for r in x.rd: pend.pop(r, None)
            while need > 0:
                k = min(need, 16)
                o.append(I(f"s_nop {k-1}", "nop")); pos += k; need -= k; nn += 1
            o.append(x)
            for r in x.wr: lastw[r] = (pos, x.k, tuple(x.wr))
            if x.k == "mfma":
                for r in x.c: lastc[r] = pos
            if x.k == "store":
                for r in x.rd: lasts[r] = pos
            pos += 1
        res.append((name, o))
    return res, nn

def srd(A, d, p, offreg, size):
    A(f"s_add_u32 s{d}, s{p}, s{offreg}")
    A(f"s_addc_u32 s{d+1}, s{p+1}, 0")
    A(f"s_and_b32 s{d+1}, s{d+1}, 0xffff")
    A(f"s_mov_b32 s{d+2}, {size}")
    A(f"s_mov_b32 s{d+3}, 0x20000")

def setup_code(cfg):
    L = []; A = L.append
    A("s_load_dwordx16 s[44:59], s[0:1], 0")
    A("s_load_dwordx4 s[60:63], s[0:1], 64")
    A("s_load_dwordx2 s[64:65], s[0:1], 96")
    A("s_cmp_ge_u32 s2, 256")
    A("s_cbranch_scc1 L_exit")
    if cfg.stamp:
        A("s_memtime s[80:81]"); A("s_memrealtime s[94:95]")
    A("v_lshrrev_b32 v1, 6, v0")
    A("v_and_b32 v64, 63, v0")
    A(f"v_readfirstlane_b32 s{sWave}, v1")
    A("s_and_b32 s66, s2, 7"); A("s_lshr_b32 s67, s2, 3")
    A("s_lshr_b32 s68, s66, 2")
    A("s_and_b32 s69, s67, 1")
    A("s_lshr_b32 s70, s67, 1")
    A("s_and_b32 s71, s70, 7")
    A("s_lshr_b32 s70, s70, 3")
    A("s_and_b32 s72, s66, 3"); A("s_lshl_b32 s72, s72, 1"); A("s_add_u32 s72, s72, s70")
    A("s_lshl_b32 s73, s72, 1"); A("s_add_u32 s73, s73, s69")
    if cfg.rot:
        if cfg.rotkey == 2: A("s_lshl_b32 s90, s72, 1"); A("s_add_u32 s90, s71, s90")
        else: A(f"s_add_u32 s90, s71, s{73 if cfg.rotkey == 0 else 72}")
        A(f"s_and_b32 s90, s90, {cfg.rotmask}"); A(f"s_mul_i32 s90, s90, {128*cfg.rot}")
    if "q" in cfg.emu: A("s_mul_i32 s92, s69, 7168"); A("s_add_u32 s92, s92, 512")
    A(f"s_lshl_b32 s{sW4K}, s{sWave}, 12")
    A(f"s_lshl_b32 s{sW64K}, s{sWave}, 16")
    if cfg.lf: A(f"s_add_u32 s{sKb}, s{sW4K}, {KRING}"); A(f"s_add_u32 s{sVb}, s{sW4K}, {VRING}")
    A(f"s_mul_i32 s{sW28K}, s{sWave}, 28672")
    A(f"s_sub_u32 s{sKoff}, s{sW4K}, 16384")
    A(f"s_sub_u32 s{sVoff}, s{sW4K}, 16384")
    if cfg.ilv:
        A(f"s_lshl_b32 s86, s{sWave}, 10"); A(f"s_sub_u32 s{sKoff}, s86, 4096"); A(f"s_sub_u32 s{sVoff}, s86, 4096")
        A(f"s_lshl_b32 s87, s{sWave}, 1")
    A(f"s_mov_b32 s{sScale}, {f32bits(math.log2(math.e) / 16.0):#x}")
    A(f"s_and_b32 s76, s{sWave}, 1"); A("s_lshl_b32 s76, s76, 3")
    if "C" in cfg.touch:
        A("s_getpc_b64 s[20:21]")
        A("s_and_b32 s21, s21, 0xffff"); A("s_mov_b32 s22, CODE_BYTES"); A("s_mov_b32 s23, 0x20000")
        A("v_lshlrev_b32 v73, 7, v64")
        A(f"s_and_b32 s74, s67, 1"); A("s_lshl_b32 s74, s74, 2"); A(f"s_add_u32 s74, s74, s{sWave}"); A("s_lshl_b32 s74, s74, 13")
        A(f"buffer_load_dword a253, v73, s[20:23], s74 offen")
    A("v_lshrrev_b32 v65, 5, v64"); A("v_and_b32 v66, 31, v64")
    A("v_lshrrev_b32 v71, 3, v64"); A("v_and_b32 v72, 7, v64")
    A("v_mul_u32_u24 v73, 896, v71")
    A("v_lshrrev_b32 v74, 1, v71")
    A("v_xor_b32 v74, v74, v72")
    A("v_lshl_add_u32 v75, v74, 4, v73")
    A("v_xor_b32 v74, 4, v74")
    A("v_lshl_add_u32 v76, v74, 4, v73")
    for k in range(4):
        A(f"v_add_u32 v{vXD+k}, {k*(8*896-1024)}, v{75 + (k & 1)}")
    A("v_lshlrev_b32 v73, 1, v65"); A("v_xor_b32 v73, v73, v66"); A("v_xor_b32 v73, s76, v73")
    A("v_lshlrev_b32 v74, 13, v65")
    A("v_lshl_add_u32 v75, v73, 4, v74")
    A("v_xor_b32 v73, 4, v73")
    A("v_lshl_add_u32 v76, v73, 4, v74")
    for k in range(4):
        A(f"v_add_u32 v{vWD+k}, {k*(16384-1024)}, v{75 + (k & 1)}")
    A("s_waitcnt lgkmcnt(0)")
    if cfg.hstamp: A("s_memtime s[82:83]")
    A("s_cmp_eq_u32 s68, 0")
    for a, b in ((44, 54), (50, 60), (46, 56), (48, 58), (52, 62)):
        A(f"s_cselect_b32 s{a}, s{a}, s{b}"); A(f"s_cselect_b32 s{a+1}, s{a+1}, s{b+1}")
    A("s_mul_i32 s74, s71, 114688"); srd(A, sX, 44, 74, 114688)
    A("s_lshl_b32 s74, s73, 9"); A(f"s_sub_u32 s75, {448*8192}, s74"); srd(A, sWQ, 50, 74, "s75")
    return L

def touch_code(cfg):
    L = []
    A = lambda t: L.append(I(t, "raw"))
    T = lambda t: L.append(I(t, "dma", tag=("T", 0)))
    if "w" in cfg.touch:
        A("v_lshrrev_b32 v73, 2, v64"); A("v_min_u32 v73, 13, v73"); A("v_lshlrev_b32 v73, 13, v73")
        A("v_and_b32 v74, 3, v64"); A("v_lshl_add_u32 v73, v74, 7, v73")
        A(f"s_lshl_b32 s74, s71, 2"); A(f"s_add_u32 s74, s74, s{sWave}"); A(f"s_mul_i32 s74, s74, {14*8192}")
        T(f"buffer_load_dword a255, v73, s[{sWQ}:{sWQ+3}], s74 offen{cfg.t_flags}")
    if "x" in cfg.touch:
        A("v_min_u32 v73, 55, v64"); A("v_lshlrev_b32 v73, 7, v73")
        A("s_and_b32 s74, s73, 3"); A("s_lshl_b32 s74, s74, 2"); A(f"s_add_u32 s74, s74, s{sWave}"); A(f"s_mul_i32 s74, s74, {56*128}")
        T(f"buffer_load_dword a254, v73, s[{sX}:{sX+3}], s74 offen{cfg.t_flags}")
    if "c" in cfg.touch:
        A("s_getpc_b64 s[20:21]")
        A("s_and_b32 s21, s21, 0xffff"); A("s_mov_b32 s22, CODE_BYTES"); A("s_mov_b32 s23, 0x20000")
        A("v_lshlrev_b32 v73, 7, v64")
        A(f"s_and_b32 s74, s67, 1"); A("s_lshl_b32 s74, s74, 2"); A(f"s_add_u32 s74, s74, s{sWave}"); A("s_lshl_b32 s74, s74, 13")
        T(f"buffer_load_dword a253, v73, s[20:23], s74 offen")
    return L

def stouch_setup():
    L = []; A = L.append
    A("v_lshlrev_b32 v73, 13, v65"); A("v_lshl_add_u32 v80, v66, 4, v73")
    A("v_mul_u32_u24 v73, 896, v71"); A("v_lshl_add_u32 v81, v72, 4, v73")
    A(f"s_lshl_b32 s74, s71, 2"); A(f"s_add_u32 s74, s74, s{sWave}"); A("s_lshl_b32 s90, s74, 14")
    A("s_and_b32 s74, s73, 3"); A("s_lshl_b32 s74, s74, 2"); A(f"s_add_u32 s74, s74, s{sWave}"); A(f"s_mul_i32 s91, s74, {8*896}")
    return L
def stouch(st, cfg):
    a = I(f"buffer_load_dwordx4 a[240:243], v80, s[{sWQ}:{sWQ+3}], s92 offen{cfg.t_flags}", "dma", tag=("T", 2))
    a.pre = [salu(f"s_add_u32 s92, s90, {st*64*8192}")]
    return [a, I(f"buffer_load_dwordx4 a[244:247], v81, s[{sX}:{sX+3}], s91 offen offset:{128*st}{cfg.t_flags}", "dma", tag=("T", 2))]

def kd_code(cfg):
    L = []; A = L.append
    if cfg.hstamp == 2:
        A("s_memtime s[84:85]"); A(f"s_waitcnt vmcnt({cfg.npre})"); A("s_memtime s[86:87]")
    A("s_lshl_b32 s74, s71, 3"); A("s_add_u32 s74, s74, s72"); A("s_lshl_b32 s74, s74, 20")
    srd(A, sK, 46, 74, 1 << 20); srd(A, sV, 48, 74, 1 << 20)
    if cfg.pf:
        A("s_cmp_eq_u32 s69, 0"); A(f"s_cselect_b32 s84, s{sK}, s{sV}"); A(f"s_cselect_b32 s85, s{sK+1}, s{sV+1}")
        A(f"s_mov_b32 s86, {1 << 20}"); A("s_mov_b32 s87, 0x20000")
    A("v_xor_b32 v73, v65, v66"); A(f"v_xor_b32 v73, s{87 if cfg.ilv else 76}, v73"); A("v_lshlrev_b32 v74, 9, v65")
    for k in range(2 if cfg.ilv else 4):
        A(f"v_xor_b32 v75, {8*k if cfg.ilv else 2*k}, v73"); A(f"v_lshl_add_u32 v{vKD+k}, v75, 4, v74")
    return L

def setup_code2(cfg):
    L = []; A = L.append
    if cfg.hstamp == 1: A("s_memtime s[84:85]")
    A("s_mul_i32 s74, s73, 229376"); srd(A, sWO, 52, 74, 229376)
    A("s_lshl_b32 s74, s68, 3"); A("s_add_u32 s74, s74, s71"); A("s_lshl_b32 s74, s74, 4"); A("s_add_u32 s74, s74, s73")
    A(f"s_mul_i32 s74, s74, {cfg.SST}"); A(f"s_add_u32 s74, s74, {cfg.wsoff}"); srd(A, sPT, 64, 74, cfg.SST)
    if cfg.psync:
        A("s_lshl_b32 s74, s66, 4"); A("s_lshr_b32 s75, s67, 1"); A("s_add_u32 s74, s74, s75"); A("s_lshl_b32 s74, s74, 2")
        A(f"s_add_u32 s74, s74, s{sWave}"); A("s_lshl_b32 s74, s74, 7"); A("s_add_u32 s74, s74, 0x2000000")
        A(f"s_add_u32 s{sSy}, s64, s74"); A(f"s_addc_u32 s{sSy+1}, s65, 0")
        A(f"s_lshl_b32 s{sSign}, s69, 1"); A(f"s_sub_u32 s{sSign}, 1, s{sSign}")
        A(f"s_sub_u32 s{sOld}, 0, s69")
        A(f"s_atomic_and s{sOld}, s[{sSy}:{sSy+1}], 0x0")
    A("s_mov_b32 s3, 0")
    if cfg.fuse:
        A("s_load_dwordx4 s[56:59], s[0:1], 80")
        A("s_memrealtime s[60:61]")
        A("s_lshl_b32 s70, s68, 3"); A("s_add_u32 s70, s70, s71")
    A("v_lshrrev_b32 v67, 4, v64"); A("v_bfe_u32 v68, v64, 2, 2"); A("v_and_b32 v69, 3, v64"); A("v_and_b32 v70, 15, v64")
    A("v_lshlrev_b32 v73, 1, v65"); A("v_xor_b32 v73, v73, v66"); A("v_lshlrev_b32 v74, 9, v65")
    if cfg.ilv:
        A("s_lshl_b32 s87, s87, 1"); A("v_xor_b32 v75, s87, v73"); A(f"v_lshl_add_u32 v{vVD}, v75, 4, v74")
    for k in range(0 if cfg.ilv else 4):
        A(f"v_xor_b32 v75, {4*k}, v73"); A(f"v_lshl_add_u32 v{vVD+k}, v75, 4, v74")
    A("v_bfe_u32 v76, v64, 2, 3")
    A("v_lshl_add_u32 v73, v67, 3, v68"); A("v_lshlrev_b32 v73, 9, v73"); A("v_lshl_add_u32 v73, v69, 3, v73")
    for j in range(8):
        A(f"v_xor_b32 v75, {j}, v76"); A(f"v_lshl_add_u32 v{vQA+j}, v75, 5, v73")
    A("v_lshlrev_b32 v73, 7, v70"); A(f"v_add_u32 v73, s{sW4K}, v73"); A("v_add_u32 v73, 32768, v73")
    A("v_lshrrev_b32 v74, 1, v70"); A("v_xor_b32 v74, v74, v67")
    for kt in range(2):
        A(f"v_xor_b32 v75, {4*kt}, v74"); A(f"v_lshl_add_u32 v{vXA+kt}, v75, 4, v73")
    A("v_lshrrev_b32 v73, 2, v64"); A("v_lshlrev_b32 v73, 9, v73"); A("v_lshl_add_u32 v73, v69, 3, v73"); A(f"v_add_u32 v73, {VRING}, v73")
    for j in range(8):
        A(f"v_xor_b32 v75, {j}, v76"); A(f"v_lshl_add_u32 v{vVB+j}, v75, 5, v73")
    A("v_lshlrev_b32 v73, 9, v70"); A(f"v_add_u32 v73, {KRING}, v73"); A("v_xor_b32 v74, v67, v70")
    for j in range(4):
        A(f"v_xor_b32 v75, {4*j}, v74"); A(f"v_lshl_add_u32 v{vKB+j}, v75, 4, v73")
    A(f"v_lshlrev_b32 v73, 4, v64"); A(f"s_mul_i32 s74, s{sWave}, {cfg.WST}"); A(f"v_add_u32 v{vST}, s74, v73")
    A("v_mul_u32_u24 v74, 896, v71"); A("v_lshlrev_b32 v75, 1, v67"); A("v_xor_b32 v75, v75, v72"); A("v_lshl_add_u32 v74, v75, 4, v74")
    for k in range(4):
        A(f"v_add_u32 v75, {k*(8*896-1024)}, v74"); A(f"v_accvgpr_write_b32 a{PARK+k}, v75")
    A("v_lshrrev_b32 v74, 2, v64"); A("v_lshlrev_b32 v74, 7, v74"); A("v_lshl_add_u32 v74, v69, 3, v74"); A("v_and_b32 v77, 3, v71")
    for nb in range(4):
        A(f"v_xor_b32 v75, {nb}, v77"); A(f"v_lshl_add_u32 v75, v75, 5, v74")
        A(f"v_add_u32 v78, {KRING}, v75"); A(f"v_accvgpr_write_b32 a{PARK+4+nb}, v78")
        A(f"v_add_u32 v78, {VRING}, v75"); A(f"v_accvgpr_write_b32 a{PARK+8+nb}, v78")
        A(f"v_accvgpr_write_b32 a{PARK+12+nb}, v75")
    A("v_min_u32 v74, 55, v64"); A("v_lshlrev_b32 v74, 7, v74"); A(f"v_mov_b32 v{vQW}, v74")
    A(f"s_lshl_b32 s77, s71, 2"); A(f"s_add_u32 s77, s77, s{sWave}"); A(f"s_mul_i32 s77, s77, {56*128}")
    if "l" in cfg.touch:
        A(f"v_lshlrev_b32 v{vQW}, 4, v64"); A(f"v_add_u32 v{vQW}, {cfg.LOFF*1024}, v{vQW}"); A(f"s_sub_u32 s77, s77, {(cfg.LOFF+1+cfg.LSKIP)*1024}")
    return L

def tail_prep_salu(cfg):
    chunks = []
    def chunk():
        L = []; chunks.append(L)
        return lambda t: L.append(salu(t))
    A = chunk(); A("s_memrealtime s[62:63]")
    A(f"s_mul_i32 s74, s70, {16*cfg.SST}"); A(f"s_add_u32 s74, s74, {cfg.wsoff}")
    A = chunk(); srd(A, 4, 64, 74, 16*cfg.SST)
    A = chunk(); A("s_mov_b32 s74, 0"); srd(A, 8, 56, 74, 1835008)
    A = chunk(); srd(A, 16, 58, 74, 256)
    A = chunk(); A("s_mov_b32 s74, 0x2400000"); srd(A, 12, 64, 74, 65536)
    A = chunk()
    A("s_lshl_b32 s67, s70, 2")
    A(f"s_lshr_b32 s66, s{sWave}, 1"); A("s_lshl_b32 s66, s66, 4"); A("s_add_u32 s66, s66, s70"); A("s_lshl_b32 s66, s66, 11")
    A = chunk()
    A(f"s_add_u32 s60, s60, {2000 if not cfg.force_abandon else 0x7fffffff}"); A("s_addc_u32 s61, s61, 0")
    A("s_mov_b32 s54, s60"); A("s_add_u32 s55, s61, 1")
    A = chunk()
    A("s_mov_b32 s52, 0x3f80"); A("s_mov_b32 s53, 0x3f800000"); A("s_mov_b32 s49, 32768")
    A("s_lshl_b32 s72, s70, 4"); A("s_add_u32 s72, s72, s73"); A("s_lshl_b32 s72, s72, 7")
    A(f"s_lshl_b32 s69, s{sWave}, 28"); A("s_add_u32 s72, s72, s69")
    return chunks

def tail_prep_valu(cfg):
    L = []
    def A(t, w, r=()): L.append(valu(t, rd=[("v", x) for x in r], wr=V(w)))
    A("v_mbcnt_lo_u32_b32 v0, -1, 0", 0); A("v_mbcnt_hi_u32_b32 v0, -1, v0", 0, [0])
    A("v_lshlrev_b32 v1, 4, v0", 1, [0])
    A("v_and_b32 v6, 15, v0", 6, [0]); A("v_lshlrev_b32 v5, 7, v6", 5, [6])
    A("v_mul_u32_u24 v8, 1792, v6", 8, [6]); A("v_lshrrev_b32 v6, 4, v0", 6, [0]); A("v_lshl_add_u32 v8, v6, 4, v8", 8, [6, 8])
    A("v_lshlrev_b32 v12, 20, v0", 12, [0]); A("v_add_u32 v12, s72, v12", 12, [12])
    A("v_mov_b32 v4, 1", 4); A("v_mov_b32 v2, s62", 2); A("v_mov_b32 v3, s63", 3)
    return L

def tail_code(cfg):
    L = []; A = L.append
    A("buffer_load_dwordx2 v[6:7], v5, s[12:15], s66 offen sc1")
    A(f"s_mov_b32 s69, {cfg.ptime}")
    A("s_waitcnt vmcnt(1)")
    if cfg.stamp: A("s_memrealtime s[96:97]")
    A("s_barrier")
    A("buffer_store_dwordx2 v[2:3], v12, s[12:15], s49 offen sc1")
    if cfg.ppoll:
        regs = [6, 14, 48, 50][:cfg.ppoll]
        n = len(regs)
        A("s_waitcnt vmcnt(1)")
        A("v_cmp_le_u64 vcc, s[60:61], v[6:7]")
        A("v_cmp_ge_u64 s[74:75], s[54:55], v[6:7]")
        A("s_and_b64 vcc, vcc, s[74:75]")
        A("s_cmp_eq_u64 vcc, exec")
        A("s_cbranch_scc1 L_go")
        for k, r in enumerate(regs):
            if k: A(f"s_sleep {cfg.psl}")
            A(f"buffer_load_dwordx2 v[{r}:{r+1}], v5, s[12:15], s66 offen sc1")
        A("L_poll:")
        for k, r in enumerate(regs):
            A(f"s_waitcnt vmcnt({n-1})")
            A(f"v_cmp_le_u64 vcc, s[60:61], v[{r}:{r+1}]")
            A(f"v_cmp_ge_u64 s[74:75], s[54:55], v[{r}:{r+1}]")
            A("s_and_b64 vcc, vcc, s[74:75]")
            A("s_cmp_eq_u64 vcc, exec")
            A("s_cbranch_scc1 L_go")
            A(f"buffer_load_dwordx2 v[{r}:{r+1}], v5, s[12:15], s66 offen sc1")
        A("s_sub_u32 s69, s69, 1")
        A("s_cmp_lg_u32 s69, 0")
        A("s_cbranch_scc1 L_poll")
    else:
        A("s_waitcnt vmcnt(1)")
        A("s_branch L_chk")
        A("L_poll:")
        A("buffer_load_dwordx2 v[6:7], v5, s[12:15], s66 offen sc1")
        A("s_waitcnt vmcnt(0)")
        A("L_chk:")
        A("v_cmp_le_u64 vcc, s[60:61], v[6:7]")
        A("v_cmp_ge_u64 s[74:75], s[54:55], v[6:7]")
        A("s_and_b64 vcc, vcc, s[74:75]")
        A("s_cmp_eq_u64 vcc, exec")
        A("s_cbranch_scc1 L_go")
        A("s_sub_u32 s69, s69, 1")
        A("s_cmp_lg_u32 s69, 0")
        A("s_cbranch_scc1 L_poll")
    A("s_add_u32 s74, s73, 8"); A("s_lshl_b32 s74, 1, s74")
    A("v_mov_b32 v9, s74")
    A("s_mov_b64 exec, 1")
    A("buffer_atomic_or v9, off, s[16:19], s67 sc0 sc1")
    A("s_waitcnt vmcnt(0)")
    A("s_mov_b64 exec, -1")
    A("v_readfirstlane_b32 s74, v9")
    A("s_and_b32 s74, s74, 0xff")
    A("s_cmp_lg_u32 s74, 16")
    A("s_cbranch_scc1 L_fin")
    A("L_go:")
    if cfg.stamp: A("s_memrealtime s[38:39]"); A("s_mov_b32 s37, s69"); A("s_waitcnt lgkmcnt(0)")
    A("s_mov_b32 s50, s73"); A(f"s_mov_b32 s51, s{sWave}")
    A(f"s_call_b64 s[{sRet}:{sRet+1}], L_red")
    A("L_fin:")
    if cfg.stamp: A("s_waitcnt lgkmcnt(0)")
    A(f"s_cmp_lg_u32 s{sWave}, 1")
    A("s_cbranch_scc1 L_done")
    A("s_mov_b64 exec, 1")
    A("buffer_atomic_add v4, off, s[16:19], s67 sc0 sc1")
    A("s_waitcnt vmcnt(0)")
    A("s_mov_b64 exec, -1")
    A("v_readfirstlane_b32 s48, v4")
    A("s_and_b32 s74, s48, 0xff")
    A("s_cmp_lg_u32 s74, 15")
    A("s_cbranch_scc1 L_done")
    A("s_bfe_u32 s48, s48, 0x100008")
    A("L_redo:")
    A("s_cmp_eq_u32 s48, 0")
    A("s_cbranch_scc1 L_done")
    A("s_ff1_i32_b32 s50, s48")
    A("s_bitset0_b32 s48, s50")
    A("s_mov_b32 s51, 0")
    A("L_redo1:")
    A(f"s_call_b64 s[{sRet}:{sRet+1}], L_red")
    A("s_add_u32 s51, s51, 1")
    A("s_cmp_lt_u32 s51, 4")
    A("s_cbranch_scc1 L_redo1")
    A("s_branch L_redo")
    A("L_done:")
    return L

def red_code(cfg):
    L = []; A = L.append
    A("L_red:")
    A("s_lshr_b32 s74, s50, 2"); A(f"s_mul_i32 s44, s74, {cfg.WST}")
    A("s_and_b32 s75, s50, 3"); A("s_lshl_b32 s75, s75, 10"); A("s_add_u32 s44, s44, s75")
    A("s_lshl_b32 s75, s51, 13"); A("s_add_u32 s44, s44, s75")
    A("s_cmp_eq_u32 s51, 3")
    A("s_cselect_b32 s46, 0x40000000, 4096"); A("s_cselect_b32 s47, 0x40000000, 128")
    A("v_add_u32 v10, s46, v1"); A("v_add_u32 v11, s47, v8")
    if "t" in cfg.emu: A("v_mov_b32 v13, 0x40000000")
    for st, (base, vo) in enumerate(((128, 1), (64, 10))):
        A("s_mov_b32 s45, s44")
        for h in range(16):
            A(f"buffer_load_dwordx4 v[{base+4*h}:{base+4*h+3}], v{vo if not ('t' in cfg.emu and h % 2) else 13}, s[4:7], s45 offen sc1")
            if h < 15: A(f"s_add_u32 s45, s45, {cfg.SST}")
    A("s_lshl_b32 s45, s71, 3"); A("s_lshr_b32 s75, s50, 1"); A("s_add_u32 s45, s45, s75"); A(f"s_mul_i32 s45, s45, {16*1792}")
    A("s_mul_i32 s75, s68, 896"); A("s_add_u32 s45, s45, s75")
    A("s_lshl_b32 s75, s51, 8"); A("s_add_u32 s45, s45, s75")
    A("s_and_b32 s75, s50, 1"); A("s_lshl_b32 s75, s75, 6"); A("s_add_u32 s45, s45, s75")
    for st, (base, vo, acc) in enumerate(((128, 8, 16), (64, 11, 32))):
        for k in range(8): A(f"v_mov_b32 v{acc+k}, 0")
        for h in range(16):
            A(f"s_waitcnt vmcnt({(31 - h) if st == 0 else (16 - h)})")
            for k in range(4):
                A(f"v_dot2c_f32_bf16 v{acc+2*k}, s52, v{base+4*h+k}")
                A(f"v_dot2c_f32_bf16 v{acc+2*k+1}, s53, v{base+4*h+k}")
        A("s_nop 2")
        for k in range(4): A(f"v_cvt_pk_bf16_f32 v{acc+8+k}, v{acc+2*k}, v{acc+2*k+1}")
        A("s_nop 1")
        A(f"v_permlane32_swap_b32 v{acc+8}, v{acc+10}"); A(f"v_permlane32_swap_b32 v{acc+9}, v{acc+11}")
        A("s_nop 1")
        A(f"v_permlane16_swap_b32 v{acc+8}, v{acc+10}"); A(f"v_permlane16_swap_b32 v{acc+9}, v{acc+11}")
        A(f"buffer_store_dwordx4 v[{acc+8}:{acc+11}], v{vo}, s[8:11], s45 offen{cfg.out_flags}")
    A(f"s_setpc_b64 s[{sRet}:{sRet+1}]")
    return L

def rare_code(par, has_next):
    ins = [I("s_nop 9", "nop")]
    for qb in range(2):
        ins += rowmax_instrs(par, qb, vD, vF)
        ins.append(valu(f"v_max_f32 v{vD}, 0, v{vD}", rd=V(vD), wr=V(vD)))
        ins.append(valu(f"v_sub_f32 v{vF}, 0, v{vD}", rd=V(vD), wr=V(vF)))
        ins.append(trans(f"v_exp_f32 v{vF}, v{vF}", rd=V(vF), wr=V(vF)))
        regs = [NEGM + 4*qb + k for k in range(4)] + [sreg(par, kb, qb) + k for kb in range(2) for k in range(4)]
        if has_next: regs += [sreg(1 - par, kb, qb) + k for kb in range(2) for k in range(4)]
        for r in regs: ins.append(valu(f"v_sub_f32 v{r}, v{r}, v{vD}", rd=V(r)+V(vD), wr=V(r)))
        for r in [vL + qb] + [oreg(db, qb) + k for db in range(16) for k in range(4)]:
            ins.append(valu(f"v_mul_f32 v{r}, v{r}, v{vF}", rd=V(r)+V(vF), wr=V(r)))
    ins += sm_instrs(par)
    ins.append(I("s_nop 1", "nop"))
    ins.append(I(f"s_setpc_b64 s[{sRet}:{sRet+1}]", "salu"))
    segs, _ = hazard_pass([("rare", ins)])
    return [x.t for x in segs[0][1]]

def reduce_kernel(cfg):
    L = []; A = L.append
    A(".p2align 8")
    A("reduce_kernel:")
    A("s_cmp_ge_u32 s2, 448")
    A("s_cbranch_scc1 L_rexit")
    A("s_load_dwordx2 s[4:5], s[0:1], 96")
    A("s_load_dwordx2 s[6:7], s[0:1], 80")
    A("s_mul_hi_u32 s16, s2, 0x924924a")
    A("s_mul_i32 s17, s16, 28"); A("s_sub_u32 s17, s2, s17")
    A("s_mul_hi_u32 s18, s17, 0x24924925")
    A("s_mul_i32 s19, s18, 7"); A("s_sub_u32 s19, s17, s19")
    A("v_lshlrev_b32 v1, 4, v0")
    A("s_lshl_b32 s20, s17, 12")
    A("v_add_u32 v1, s20, v1")
    A("s_mul_i32 s21, s16, 1835008"); A(f"s_add_u32 s21, s21, {cfg.wsoff}")
    A("s_waitcnt lgkmcnt(0)")
    A("s_add_u32 s8, s4, s21"); A("s_addc_u32 s9, s5, 0"); A("s_and_b32 s9, s9, 0xffff")
    A("s_mov_b32 s10, 1835008"); A("s_mov_b32 s11, 0x20000")
    A("s_mov_b32 s12, s6"); A("s_and_b32 s13, s7, 0xffff"); A("s_mov_b32 s14, 1835008"); A("s_mov_b32 s15, 0x20000")
    A("s_mov_b32 s22, 0")
    for h in range(16):
        A(f"buffer_load_dwordx4 v[{16+4*h}:{19+4*h}], v1, s[8:11], s22 offen{cfg.rd_flags}")
        if h < 15: A("s_add_u32 s22, s22, 114688")
    A("v_and_b32 v2, 15, v0")
    A("v_lshrrev_b32 v3, 7, v0"); A("v_lshl_add_u32 v2, v3, 4, v2")
    A("s_and_b32 s23, s16, 7"); A("s_lshl_b32 s23, s23, 7"); A("s_lshl_b32 s24, s18, 5"); A("s_add_u32 s23, s23, s24")
    A("v_add_u32 v2, s23, v2")
    A("v_mul_u32_u24 v2, 1792, v2")
    A("v_bfe_u32 v3, v0, 4, 3")
    A("v_lshl_add_u32 v2, v3, 4, v2")
    A("s_lshr_b32 s23, s16, 3"); A("s_mul_i32 s23, s23, 896"); A("s_lshl_b32 s24, s19, 7"); A("s_add_u32 s23, s23, s24")
    for h in range(16):
        A(f"s_waitcnt vmcnt({15-h})")
        for k in range(4):
            src = 16 + 4*h + k
            if h == 0:
                A(f"v_lshlrev_b32 v{4+2*k}, 16, v{src}"); A(f"v_and_b32 v{5+2*k}, 0xffff0000, v{src}")
            else:
                A(f"v_lshlrev_b32 v12, 16, v{src}"); A(f"v_and_b32 v13, 0xffff0000, v{src}")
                A(f"v_add_f32 v{4+2*k}, v{4+2*k}, v12"); A(f"v_add_f32 v{5+2*k}, v{5+2*k}, v13")
    for k in range(4):
        A(f"v_cvt_pk_bf16_f32 v{12+k}, v{4+2*k}, v{5+2*k}")
    A("s_nop 1")
    A("v_permlane32_swap_b32 v12, v14"); A("v_permlane32_swap_b32 v13, v15")
    A("s_nop 1")
    A("v_permlane16_swap_b32 v12, v14"); A("v_permlane16_swap_b32 v13, v15")
    A("buffer_store_dwordx4 v[12:15], v2, s[12:15], s23 offen")
    A("L_rexit:")
    A("s_endpgm")
    return L

FLEX = ("v_exp_f32", "v_add_f32", "v_max_f32", "v_mul_f32", "v_sub_f32", "v_mov_b32", "v_rcp_f32")
def isize(t):
    op = t.split()[0]
    if op.endswith(":") or op.startswith(";") or op.startswith("."): return 0
    if op.startswith(("v_mfma", "ds_", "buffer_", "v_cvt_pk", "v_accvgpr", "v_max3", "s_atomic", "s_load", "s_mem", "v_writelane")) or op.endswith("_e64"): return 8
    import re
    lits = [x for x in re.findall(r"(?<![\w\[:(])(-?0x[0-9a-f]+|-?\d+)(?![\w\]:)])", t[len(op):])]
    if op.startswith(("s_waitcnt", "s_nop", "s_barrier", "s_cbranch", "s_branch", "s_sleep", "s_call")): return 4
    for x in lits:
        v = int(x, 0)
        if not -16 <= v <= 64: return 8
    return 4
def align8(L, mode):
    out = []; off = 0; on = False
    for k, t in enumerate(L):
        if t == "L_loop:": on = True; off = 0
        if on and t.split()[0] in FLEX and isize(t) == 4:
            n4 = 0; flexnext = False
            for u in L[k + 1:]:
                sz = isize(u)
                if sz == 0: continue
                if u.split()[0] in FLEX and sz == 4: flexnext = True; break
                if sz == 8: break
                n4 += 1
            if not flexnext and (off + 4 + 4 * n4) % 8 != 0:
                t = t.replace(t.split()[0], t.split()[0] + "_e64", 1)
        out.append(t); off += isize(t)
        if t == "s_cbranch_scc1 L_loop": on = False
    return out

def insert_pads(L, KN, rounds=False):
    import subprocess, re, tempfile, os
    def addrs(lines):
        out = []; cand = []
        inloop = False
        for i, t in enumerate(lines):
            out.append(t)
            if t == "L_loop:": inloop = True
            if t == "s_cbranch_scc1 L_loop": inloop = False
            if (t.startswith("v_mfma") or t.startswith("v_dot2c")) and not inloop:
                out.append(f"LC_{i}:"); cand.append(i)
        txt = "\n".join(out) + "\n"
        for w in range(12):
            if f"L_pad{w}:" not in txt: txt = txt.replace("L_hopback:", f"L_pad{w}:\nL_hopback:")
        d = tempfile.mkdtemp()
        open(d + "/a.s", "w").write(txt)
        subprocess.run(["clang", "-x", "assembler", "-target", "amdgcn-amd-amdhsa", "-mcpu=gfx950", "-c", d + "/a.s", "-o", d + "/a.o"], check=True)
        o = subprocess.run(["llvm-objdump", "-t", d + "/a.o"], capture_output=True, text=True).stdout
        a = {}
        for m in re.finditer(r"^([0-9a-f]+) .* \.text\s+[0-9a-f]+ (?:\.\w+ )?(\w+)$", o, flags=re.M): a[m.group(2)] = int(m.group(1), 16)
        return {i: a[f"LC_{i}"] - a[KN] for i in cand}, a["L_hopback"] - a[KN]
    lines = list(L)
    pads = []
    page = None
    while True:
        ad, hb = addrs(lines)
        if page is None: page = hb // 4096 + 1
        c = [i for i in sorted(ad) if ad[i] >= page * 4096]
        if not c: break
        i = c[0]
        if ad[i] - page * 4096 > 256: page += 1; continue
        lines.insert(i + 1, f"PAD {len(pads)}")
        lines[i + 1] = "s_nop 0 ;PAD"
        pads.append(page); page += 1
    n = len(pads); k = 0
    res = []
    for t in lines:
        if t == "s_nop 0 ;PAD":
            res.append(f"L_pad{k}:")
            if rounds: res.append(f"s_cbranch_execz L_hopback{k // 4 if k >= 4 else ''}")
            else: res.append(f"s_cbranch_execz {'L_pad%d' % (k + 4) if k + 4 < n else 'L_hopback'}")
            k += 1
        elif rounds and t == "L_hopback2:":
            assert n <= 12
            for z in range(n, 12): res.append(f"L_pad{z}:")
            res.append(t)
        else: res.append(t)
    sys.stderr.write(f"pads: {n}\n")
    return res

def generate(cfg):
    if cfg.fuse and "sc1" not in cfg.st_flags and not cfg.wbl2: cfg.st_flags += " sc1"
    B = build_bodies(cfg)
    for b in B:
        if b.name == cfg.parkb:
            ins = []
            for k in range(4): ins.append(valu(f"v_accvgpr_read_b32 v{vWD+k}, a{PARK+k}", wr=V(vWD+k)))
            for k in range(8): ins.append(valu(f"v_accvgpr_read_b32 v{vQA+k}, a{PARK+4+k}", wr=V(vQA+k)))
            if cfg.spare:
                for k in range(4): ins.append(valu(f"v_accvgpr_read_b32 v{vXD+k}, a{PARK+12+k}", wr=V(vXD+k)))
            b.valu.append((ins, cfg.parkg0, cfg.parkg1))
    for b in B:
        if b.name == cfg.otouch and "o" in cfg.touch:
            b.dma = b.dma + [[I(f"buffer_load_dword a252, v{vQW}, s[{sWO}:{sWO+3}], s77 offen{cfg.o_flags}", "dma", rd=V(vQW), tag=("T", 1))]]
    for b in B:
        if b.name == cfg.otouch and "p" in cfg.touch:
            b.dma = b.dma + [[I(f"buffer_load_dwordx4 a[{240+4*(j%2)}:{243+4*(j%2)}], v{vWD}, s[{sWO}:{sWO+3}], s77 offen offset:{128*j}{cfg.o_flags}", "dma", rd=V(vWD), tag=("T", 1))
                              for j in range(cfg.PJ0, 7)]]
    for b in B:
        if "l" in cfg.touch and b.name[0] == "a" and 2 <= int(b.name[1:]) <= 57 and int(b.name[1:]) % 4 == 0:
            x = I(f"buffer_load_dwordx4 a[240:243], v{vQW}, s[{sWO}:{sWO+3}], s77 offen{cfg.o_flags}", "dma", rd=V(vQW), tag=("T", 1))
            x.pre = [salu("s_add_u32 s77, s77, 1024")]
            b.dma = b.dma + [[x]]
    raw = lambda lines: [I(t, "raw") for t in lines]
    tc = [touch_code(cfg)]
    init = []
    def expand(spec):
        out = []
        for tok in spec.split(","):
            if not tok: continue
            if tok == "S": out += tc + [raw(kd_code(cfg))] + [raw(setup_code2(cfg))]
            elif tok == "T": out += [raw(stouch_setup())]
            elif tok[0] == "D": out += g_stage(int(tok[1]), cfg)
            elif tok[0] == "P": out += [stouch(int(tok[1]), cfg)]
            elif tok == "K0": out += [g_k(0, cfg)]
            elif tok == "W":
                out += [[I(f"buffer_load_dword a{248+i}, off, s[{r}:{r+3}], s{sW4K} nt", "dma", tag=("T", 4)) for i, r in enumerate((sK, sV, sWO, sPT)[:cfg.nwarm])]]
        return out
    pfl = []
    for ent in [e for e in cfg.pf.split(",") if e]:
        bn, tile = ent.split(":")
        g = [I(f"buffer_load_dwordx4 a[{240+4*(k%2)}:{243+4*(k%2)}], v{vQW}, s[84:87], s{sTmp2} offen{' offset:%d' % (1024*k) if k else ''}", "dma", rd=V(vQW), tag=("T", 3)) for k in range(4)]
        if tile[0] == "h": tile = tile[1:]; g = g[:2]
        g[0].pre = [salu(f"s_add_u32 s{sTmp2}, s{sW4K}, {int(tile)*16384}")]
        pfl.append((bn, g))
    parts = cfg.order.split("|")
    pre = expand(parts[0]); first = expand(parts[1])
    for k in range(4): B[k].dma = expand(parts[2 + k]) + [g for g in B[k].dma if g[0].tag[0] == "T"]
    for bn, g in pfl:
        b = [x for x in B if x.name == bn][0]
        b.dma = b.dma + [g]
    segs = schedule(B, cfg, pre, first)
    segs, nn = hazard_pass(segs)
    txt = {name: [x.t for x in lst] for name, lst in segs}
    names = [n for n, _ in segs]
    lo = None
    for n in range(0, 30):
        if all(txt[f"a{k}"] == txt[f"a{k+4}"] for k in range(n, n + 8)):
            lo = n; break
    assert lo is not None, "no periodic steady state"
    last = lo
    while last + 4 <= 63 and txt[f"a{last+4}"] == txt[f"a{last}"]: last += 1
    last += 3
    nit = (last - lo + 1) // 4
    lo = last + 1 - 4 * nit
    sys.stderr.write(f"loop bodies {lo}..{last} ({nit} iterations), nops inserted {nn}\n")
    L = []; A = L.append
    KN = "attn_kernel"
    if cfg.fuse == 2:
        KN = NAME + "_kernel"
        A("; @launch grid=(256,1,1) block=(256,1,1) lds=163840")
    else:
        A("; @launch kernel=attn_kernel grid=(256,1,1) block=(256,1,1) lds=163840")
    if not cfg.fuse: A("; @launch kernel=reduce_kernel grid=(448,1,1) block=(256,1,1) lds=0")
    A('.amdgcn_target "amdgcn-amd-amdhsa--gfx950"')
    A(".text"); A(f".globl {KN}"); A(".p2align 12" if cfg.hop else ".p2align 8"); A(f".type {KN},@function"); A(f"{KN}:")
    L += setup_code(cfg)
    tramps = []; syncs = []; bs = [0]
    def emit_seg(name):
        A(f"; ---- {name}")
        for t in txt[name]:
            if t.startswith("RARE"):
                _, par, nx = t.split()
                lab = f"L_t_{name.replace('-','m')}"
                A(f"s_cbranch_vccnz {lab}"); A(f"{lab}_back:")
                tramps.append((lab, par, nx))
            elif t == "SWAP":
                lab = f"L_sw_{name}"
                A("s_bitcmp0_b32 s73, 0"); A(f"s_cbranch_scc1 {lab}")
                for k in range(4): A(f"v_swap_b32 v{vKD+k}, v{vVD+k}")
                for a, b2 in ((sK, sV), (sK + 1, sV + 1), (sKoff, sVoff), (sKb, sVb)):
                    A(f"s_mov_b32 s74, s{a}"); A(f"s_mov_b32 s{a}, s{b2}"); A(f"s_mov_b32 s{b2}, s74")
                A(f"{lab}:")
            elif t.startswith("HOPR"):
                r = int(t.split()[1])
                A("s_mov_b64 exec, 0")
                for w in range(3):
                    A(f"s_cmp_eq_u32 s{sWave}, {w}"); A(f"s_cbranch_scc1 L_pad{4*r+w}")
                A(f"s_branch L_pad{4*r+3}")
                A("L_hopback:" if r == 0 else f"L_hopback{r}:")
                A("s_mov_b64 exec, -1")
            elif t == "HOP":
                A("s_mov_b64 exec, 0")
                for w in range(3):
                    A(f"s_cmp_eq_u32 s{sWave}, {w}"); A(f"s_cbranch_scc1 L_pad{w}")
                A("s_branch L_pad3")
                A("L_hopback:")
                A("s_mov_b64 exec, -1")
            elif t == "SYNC":
                lab = f"L_s_{name.replace('-','m')}"
                A(f"s_cmp_gt_i32 s{sDif}, 0"); A(f"s_cbranch_scc1 {lab}"); A(f"{lab}_back:")
                syncs.append(lab)
            else: A(t)
    for name in names:
        if name.startswith("a"):
            n = int(name[1:])
            if lo <= n <= last:
                if n == lo:
                    if cfg.lstamp:
                        A("v_mbcnt_lo_u32_b32 v66, -1, 0"); A("v_mbcnt_hi_u32_b32 v66, -1, v66"); A("v_mov_b32 v67, 0")
                        A("s_memrealtime s[98:99]"); A("s_waitcnt lgkmcnt(0)")
                    if cfg.linear:
                        A("v_mbcnt_lo_u32_b32 v69, -1, 0"); A("v_mbcnt_hi_u32_b32 v69, -1, v69")
                        for r in range(vKD, vKD + 8): A(f"v_lshlrev_b32 v{r}, 4, v69")
                    if "h" in cfg.strip:
                        A("s_and_b32 s74, s73, 1"); A("s_lshl_b32 s74, s74, 11"); A(f"s_add_u32 s{sKoff}, s{sKoff}, s74"); A(f"s_add_u32 s{sVoff}, s{sVoff}, s74")
                    A(f"s_mov_b32 s{sCnt}, {nit}"); A(f".p2align {cfg.lalign}"); [A("s_nop 0") for _ in range(cfg.lshift)]; A("L_loop:")
                    if cfg.lstamp:
                        A("v_mov_b32 v68, s98"); A(f"v_cmp_eq_u32 vcc, s{sCnt}, v66"); A("s_memrealtime s[98:99]"); A("s_nop 0")
                        A("v_cndmask_b32 v67, v67, v68, vcc"); A("v_accvgpr_write_b32 a250, v67")
                if n < lo + 4:
                    def keep(t):
                        if "d" in cfg.strip and t.startswith("buffer_load"): return False
                        if "h" in cfg.strip and t.startswith("buffer_load") and ("offset:2048" in t or "offset:3072" in t): return False
                        if "b" in cfg.strip and t.startswith("s_barrier"): return False
                        if "w" in cfg.strip and t.startswith("s_waitcnt lgkm"): return False
                        if "r" in cfg.strip and t.startswith("ds_read"): return False
                        if "s" in cfg.strip and t.split()[0] in ("v_exp_f32", "v_add_f32", "v_cvt_pk_bf16_f32"): return False
                        return True
                    txt[name] = [t for t in txt[name] if keep(t)]
                    if "h" in cfg.strip: txt[name] = [t.replace("vmcnt(16)", "vmcnt(8)") for t in txt[name]]
                    if cfg.pace:
                        nt = []
                        for t in txt[name]:
                            nt.append(t)
                            if t == "s_barrier": nt += ["s_nop 15"] * cfg.pace
                        txt[name] = nt
                    if n == lo + 3:
                        txt[name].insert(1, f"s_sub_u32 s{sCnt}, s{sCnt}, 1")
                    emit_seg(name)
                    if n == lo + 3:
                        A(f"s_cmp_lg_u32 s{sCnt}, 0"); A("s_cbranch_scc1 L_loop")
                continue
        if cfg.bstamp and name != "pre":
            head = name.startswith("qp") or (name.startswith("a") and int(name[1:]) < 30)
            if head == (cfg.bstamp == 1):
                r = 71 if head else 47
                if bs[0] > 0:
                    A(f"v_writelane_b32 v{r}, s98, {bs[0]-1}"); A(f"v_writelane_b32 v{r}, s26, {bs[0]-1+32}") if not head and False else None
                    A(f"v_accvgpr_write_b32 a250, v{r}")
                A("s_memtime s[98:99]")
                bs[0] += 1; bs.append(name)
        if cfg.hstamp == 1 and name == "qp0": A("s_memtime s[86:87]")
        if cfg.stamp and not cfg.hstamp and name in ("qp0", "a-2", "op0"):
            i = ["qp0", "a-2", "op0"].index(name)
            A(f"s_memtime s[{[82, 44, 46][i]}:{[83, 45, 47][i]}]") if i < 2 else A("s_memtime s[92:93]")
            if name == "a-2": A("s_memrealtime s[100:101]")
            if name == "op0": A("s_memrealtime s[42:43]"); A("s_mov_b32 s34, s44")
        emit_seg(name)
    if cfg.fuse:
        if cfg.stamp: A("s_memrealtime s[98:99]")
        L += tail_code(cfg)
    if cfg.stamp:
        A("s_waitcnt vmcnt(0)")
        A("s_memtime s[88:89]"); A("s_memrealtime s[90:91]")
        A("s_getreg_b32 s31, hwreg(HW_REG_XCC_ID)"); A("s_getreg_b32 s93, hwreg(HW_REG_HW_ID)")
        A("s_waitcnt lgkmcnt(0)")
        A("s_add_u32 s76, s64, 0x4000000"); A("s_addc_u32 s77, s65, 0"); A("s_and_b32 s77, s77, 0xffff")
        A("s_mov_b32 s78, 0x100000"); A("s_mov_b32 s79, 0x20000")
        A("s_lshl_b32 s74, s2, 2"); A(f"s_add_u32 s74, s74, s{sWave}"); A("s_lshl_b32 s74, s74, 6")
        A("v_mov_b32 v40, 0")
        if cfg.lstamp or cfg.bstamp:
            sys.stderr.write(" ".join(bs[1:]) + "\n")
            A("v_mbcnt_lo_u32_b32 v66, -1, 0"); A("v_mbcnt_hi_u32_b32 v66, -1, v66"); A("v_lshlrev_b32 v66, 2, v66")
            A("s_lshl_b32 s75, s74, 2"); A("s_add_u32 s75, s75, 0x10000")
            A("buffer_store_dword a250, v66, s[76:79], s75 offen")
        for i, r in enumerate([80, 82, 34, 92, 88, 90, 31, 93, 94, 100, 42, 3, 98, 96, 38, 37]):
            A(f"v_mov_b32 v41, s{r}")
            A(f"buffer_store_dword v41, v40, s[76:79], s74 offen offset:{4*i}")
    A("L_exit:"); A("s_endpgm")
    if cfg.fuse: L += red_code(cfg)
    A("L_code_end:")
    A(f".set CODE_BYTES, L_code_end - {KN} - 1024")
    for lab, par, nx in tramps:
        A(f"{lab}:"); A(f"s_call_b64 s[{sRet}:{sRet+1}], L_rare_{par}_{nx}"); A(f"s_branch {lab}_back")
    for lab in syncs:
        A(f"{lab}:"); A(f"s_call_b64 s[{sRet}:{sRet+1}], L_spin"); A(f"s_branch {lab}_back")
    if syncs:
        A("L_spin:")
        if cfg.stamp: A("s_add_u32 s3, s3, 0x10000")
        A("s_mov_b32 s74, 32")
        A("L_spin1:")
        if cfg.stamp: A("s_add_u32 s3, s3, 1")
        A(f"s_load_dword s{sDif}, s[{sSy}:{sSy+1}], 0x0 glc")
        A("s_waitcnt lgkmcnt(0)")
        A(f"s_mul_i32 s{sDif}, s{sDif}, s{sSign}")
        A(f"s_cmp_le_i32 s{sDif}, 0")
        A("s_cbranch_scc1 L_spin2")
        A("s_sub_u32 s74, s74, 1")
        A("s_cmp_lg_u32 s74, 0")
        A("s_cbranch_scc1 L_spin1")
        A(f"s_mov_b32 s{sSign}, 0")
        A("L_spin2:")
        A(f"s_mov_b32 s{sOld}, 0"); A(f"s_mov_b32 s{sOld+1}, 0")
        A(f"s_setpc_b64 s[{sRet}:{sRet+1}]")
    for par, nx in sorted({(p, n) for _, p, n in tramps}):
        A(f"L_rare_{par}_{nx}:")
        L += rare_code(int(par), int(nx))
    if not cfg.fuse: L += reduce_kernel(cfg)
    A('.section .rodata,"a"')
    for kn, nv, acc in ((KN, 512, 256), ("reduce_kernel", 80, 80))[:1 if cfg.fuse else 2]:
        A(".p2align 6"); A(f".amdhsa_kernel {kn}")
        A(f"  .amdhsa_next_free_vgpr {nv}"); A("  .amdhsa_next_free_sgpr 102"); A(f"  .amdhsa_accum_offset {acc}")
        A("  .amdhsa_group_segment_fixed_size 0"); A("  .amdhsa_kernarg_size 104"); A("  .amdhsa_user_sgpr_count 2")
        A("  .amdhsa_user_sgpr_kernarg_segment_ptr 1"); A("  .amdhsa_system_sgpr_workgroup_id_x 1")
        A(".end_amdhsa_kernel")
    if cfg.al8: L = align8(L, cfg.al8)
    if cfg.hop: L = insert_pads(L, KN, bool(cfg.hops))
    return "\n".join(L) + "\n"

if __name__ == "__main__":
    ap = argparse.ArgumentParser()
    ap.add_argument("-o", default=f"cdna_kernels/{NAME}.s")
    ap.add_argument("opts", nargs="*")
    a = ap.parse_args()
    cfg = Cfg()
    for o in a.opts:
        k, v = o.split("=", 1)
        old = getattr(cfg, k)
        if isinstance(old, bool): v = v not in ("0", "false", "False")
        elif isinstance(old, int): v = int(v)
        elif isinstance(old, float): v = float(v)
        elif k.endswith("_flags"): v = " " + v.replace("+", " ") if v else ""
        setattr(cfg, k, v)
    open(a.o, "w").write(generate(cfg))
```

```python
import sys, math, argparse, struct

NAME = "concat_heads__gqa_block_cached__gqa_block_cached__near_ridge"
def f32bits(x): return struct.unpack("<I", struct.pack("<f", x))[0]

class Cfg:
    LEAD = 20
    DEAD = 8
    NB = 32
    SAFE = 6
    DMASPAN = 40
    H = 3.0
    TTPEN = 3.0
    dma_flags = " nt"
    w_flags = ""
    v_flags = "same"
    o_flags = ""
    otouch = "a58"
    st_flags = ""
    rd_flags = ""
    out_flags = ""
    psl = 5
    pk = 1
    pkq = 0
    XRD = 8
    XG0 = 9
    XPRE = 8
    DEAD2 = 6
    ef = 0
    e63 = ""
    ilv = 0
    ppoll = 0
    stamp = False
    strip = ""
    touch = "Co"
    tpos = 1
    t_flags = ""
    hstamp = 0
    npre = 3
    psync = 0
    nospin = 0
    lstamp = 0
    QCW = 16
    VCAP = 4.0
    al8 = 0
    lalign = 6
    lshift = 0
    chain = 4
    pchain = 4
    snake = 1
    qord = 0
    pord = 2
    lf = 0
    lf0 = 2
    lf1 = 57
    pf = ""
    nwarm = 4
    rotkey = 2
    emu = ""
    hops = "12,44,90"
    hop = 16
    parkb = "a-2"
    parkg0 = 24
    parkg1 = 34
    rot = 2
    rotmask = 3
    linear = 0
    PJ0 = 4
    LOFF = 0
    LSKIP = 0
    kvlate = 0
    FLA = 10
    wbl2 = 0
    WST = 28672
    SST = 114688
    spare = 0
    QSPAN = 40
    order = "D0,S,D1,D2|D3"
    spos = 1
    bstamp = 0
    fuse = 1
    ptime = 4000
    force_abandon = 0
    pace = 0
    sync0 = "qp2"
    sync1 = "qp4"
    early = 1
    wsoff = 0

def V(lo, n=1): return [("v", lo + i) for i in range(n)]
def Areg(lo, n=1): return [("a", lo + i) for i in range(n)]
def vr(lo, n=1): return f"v{lo}" if n == 1 else f"v[{lo}:{lo+n-1}]"
def ar(lo, n=1): return f"a{lo}" if n == 1 else f"a[{lo}:{lo+n-1}]"

O0 = 128
def oreg(db16, qb): return O0 + (db16 * 2 + qb) * 4
S_ = [96, 112]
def sreg(par, kb, qb): return S_[par] + (kb * 2 + qb) * 4
NEGM = 88
P_ = [72, 80]
QF = 0
FR = 64
XF = 192
PARK = 224
vKB = 0; vVB = 4; vKD = 12; vVD = 16; vWD = 20; vXD = 24; vQA = 28; vXA = 36
vL = 38; vPS = 40; vINV = 42; vST = 44; vD = 45; vF = 46; vQW = 47
vT = 48
vE = 56
vQR = 64
STG = 192
sX, sWQ, sK, sV, sWO, sPT = 4, 8, 12, 16, 20, 24
sW4K, sKoff, sVoff, sCnt, sTmp, sW28K, sW64K, sWave, sScale = 28, 29, 30, 31, 32, 33, 34, 35, 36
sRet = 40
sTmp2 = 76
sKb, sVb = 84, 85
sSign, sOld, sDif = 37, 38, 75
sSy = 78

KRING = 98304
VRING = 32768
def kslot(m): return (m % 4) * 16384
def vslot(m): return (m % 4) * 16384
sW14K, sW2K = 84, 85
vEXW, vEXR = vQA + 4, vQA + 5
SLAB = 57344
MF = "v_mfma_f32_16x16x32_bf16"

class I:
    __slots__ = ("t", "k", "rd", "wr", "tag", "c", "ideal", "early", "dead", "pre", "post")
    def __init__(s, t, k, rd=(), wr=(), tag=None, c=()):
        s.t, s.k, s.rd, s.wr, s.tag, s.c = t, k, list(rd), list(wr), tag, list(c)
        s.ideal = s.early = s.dead = None
        s.pre = []; s.post = []
def valu(t, rd=(), wr=()): return I(t, "valu", rd, wr)
def trans(t, rd=(), wr=()): return I(t, "trans", rd, wr)
def perm(t, rd=(), wr=()): return I(t, "perm", rd, wr)
def salu(t, wr=()): return I(t, "salu", (), wr)
def slots(x): return 2 if x.k in ("trans", "dma", "store", "perm") else 1

class Body:
    def __init__(s, name):
        s.name = name
        s.mf = []; s.reads = []; s.need = []; s.dma = []; s.valu = []; s.after_reads = []; s.tail = []; s.fronts = []; s.post_bar = []; s.fixed = []; s.late = False

def dma_group(srd, voffs, pre, post, soff, m0val, tag, flags=""):
    g = []
    for k in range(4):
        off = f" offset:{k*1024}" if k else ""
        g.append(I(f"buffer_load_dwordx4 v{voffs[k]}, s[{srd}:{srd+3}], s{soff} offen{off}{flags} lds",
                   "dma", rd=[("v", voffs[k]), ("m0", 0)], tag=tag))
    g[0].pre = [salu(f"s_add_u32 m0, s{m0val[0]}, {m0val[1]}", wr=[("m0", 0)])] + list(pre)
    return g
def g_k(m, cfg):
    return dma_group(sK, [vKD + k for k in range(4)], [salu(f"s_add_u32 s{sKoff}, s{sKoff}, 16384")], [],
                     sKoff, (sW4K, KRING + kslot(m)), ("K", m), cfg.dma_flags)
def g_v(m, cfg):
    return dma_group(sV, [vVD + k for k in range(4)], [salu(f"s_add_u32 s{sVoff}, s{sVoff}, 16384")], [],
                     sVoff, (sW4K, VRING + vslot(m)), ("V", m), cfg.dma_flags)
def wslot(i, half): return kslot(64 + i) if half == 0 else [0, 1, 3, 2][i % 4] * 16384
def g_wo(i, half, cfg):
    j, hd = i // 2, i % 2
    ring = (KRING if half == 0 else VRING) + wslot(i, half)
    return dma_group(sWO, [vWD + k for k in range(4)], [salu(f"s_add_u32 s{sTmp2}, s{sW28K}, {hd*229376 + half*114688 + 128*j}")], [],
                     sTmp2, (sW4K, ring), ("W", i, half), cfg.o_flags)
def g_stage(i, cfg):
    sl = kslot(i - 14)
    gs = []
    if i % 2 == 0:
        gs.append(dma_group(sX, [vXD, vXD + 1, vXD, vXD], [salu(f"s_add_u32 s{sTmp}, s{sW14K}, s90"), salu("s_lshl_b32 s91, s90, 12")], [],
                            sTmp, (sW2K, ((i // 2) % 3) * 8192), ("Q", i), cfg.w_flags)[:2])
        p0 = [salu(f"s_add_u32 s{sTmp}, s{sW64K}, s91"), salu("s_add_u32 s90, s90, 128")]
        p1 = [salu(f"s_add_u32 s{sTmp}, s{sTmp}, 512"), salu("s_cmp_eq_u32 s90, 896"), salu("s_cselect_b32 s90, 0, s90")]
    else:
        p0 = [salu(f"s_add_u32 s{sTmp}, s{sTmp}, {32*8192 - 512}")]
        p1 = [salu(f"s_add_u32 s{sTmp}, s{sTmp}, 512")]
    gs.append(dma_group(sWQ, [vWD + k for k in range(4)], p0, [], sTmp, (sW4K, KRING + sl), ("Q", i), cfg.w_flags))
    gs.append(dma_group(sWQ, [vWD + k for k in range(4)], p1, [], sTmp, (sW4K, VRING + sl), ("Q", i), cfg.w_flags))
    return gs

def sm_instrs(n, fix=False):
    par = n % 2
    out = []; pend = []
    k = 0
    for qb in range(2):
        for kb in range(2):
            for hp in range(2):
                s0 = sreg(par, kb, qb) + 2 * hp
                t0 = vT + (2 * k) % 8; t1 = t0 + 1
                ps = vPS + qb
                if fix:
                    out.append(valu(f"v_add_f32 v{s0}, v{NEGM+4*qb}, v{s0}", rd=V(s0)+V(NEGM+4*qb), wr=V(s0)))
                    out.append(valu(f"v_add_f32 v{s0+1}, v{NEGM+4*qb}, v{s0+1}", rd=V(s0+1)+V(NEGM+4*qb), wr=V(s0+1)))
                out.append(trans(f"v_exp_f32 v{t0}, v{s0}", rd=V(s0), wr=V(t0)))
                if pend: out.append(pend.pop(0))
                out.append(trans(f"v_exp_f32 v{t1}, v{s0+1}", rd=V(s0+1), wr=V(t1)))
                out += pend; pend = []
                if kb == 0 and hp == 0:
                    pend.append(valu(f"v_add_f32 v{ps}, v{t0}, v{t1}", rd=V(t0, 2), wr=V(ps)))
                else:
                    pend.append(valu(f"v_add_f32 v{ps}, v{ps}, v{t0}", rd=V(t0)+V(ps), wr=V(ps)))
                    pend.append(valu(f"v_add_f32 v{ps}, v{ps}, v{t1}", rd=V(t1)+V(ps), wr=V(ps)))
                p = P_[par] + 4 * qb + 2 * kb + hp
                pend.append(valu(f"v_cvt_pk_bf16_f32 v{p}, v{t0}, v{t1}", rd=V(t0, 2), wr=V(p)))
                k += 1
    out += pend
    return out

def xlane(op, r, tmp):
    o = []
    for sw in ("v_permlane32_swap_b32", "v_permlane16_swap_b32"):
        o.append(valu(f"v_mov_b32 v{tmp}, v{r}", rd=V(r), wr=V(tmp)))
        o.append(perm(f"{sw} v{r}, v{tmp}", rd=V(r)+V(tmp), wr=V(r)+V(tmp)))
        o.append(valu(f"{op} v{r}, v{r}, v{tmp}", rd=V(r)+V(tmp), wr=V(r)))
    return o

def rowmax_instrs(par, qb, d, tmp):
    a = sreg(par, 0, qb); b = sreg(par, 1, qb)
    o = [valu(f"v_max3_f32 v{d}, v{a}, v{a+1}, v{a+2}", rd=V(a, 3), wr=V(d)),
         valu(f"v_max3_f32 v{d}, v{d}, v{a+3}, v{b}", rd=V(a+3)+V(b)+V(d), wr=V(d)),
         valu(f"v_max3_f32 v{d}, v{d}, v{b+1}, v{b+2}", rd=V(b+1, 2)+V(d), wr=V(d)),
         valu(f"v_max_f32 v{d}, v{d}, v{b+3}", rd=V(b+3)+V(d), wr=V(d))]
    return o + xlane("v_max_f32", d, tmp)

def zipl(a, b):
    o = []
    for i in range(max(len(a), len(b))):
        if i < len(a): o.append(a[i])
        if i < len(b): o.append(b[i])
    return o

def ob_reg(t, qb):
    base = [S_[0], S_[0] + 8, S_[1], S_[1] + 8, NEGM, 64, P_[0], P_[1]][t]
    return base + 4 * qb

def obq(hd, t, qb): return (0 if hd == 0 else 192) + (t * 2 + qb) * 4

def build_bodies(cfg):
    B = []
    def xf(i, qb): return XF + ((i % 4) * 2 + qb) * 4
    for items in [[i] for i in range(12)] + [[12, 13]]:
        b = Body(f"qp{items[0]}")
        for i in items:
            for qb in range(2):
                b.reads.append((("X", i, qb), [("ds_read_b128", vXA + i % 2, ((i // 2) % 3) * 8192 + qb * 2048, 0, 4)], xf(i, qb)))
        for be in range(16):
            for i in items:
                b.reads.append((("WQ", i, be), [("ds_read_b64_tr_b16", vQA + be % 8, kslot(i - 14) + 4*jj * 512 + (be // 8) * 256, 2*jj, 2) for jj in range(2)], None))
            if len(items) == 1: o = [(items[0], be % 2), (items[0], 1 - be % 2)]
            else: o = [(12, 0), (13, 0), (13, 1), (12, 1)] if be % 2 == 0 else [(12, 1), (13, 1), (13, 0), (12, 0)]
            for i, qb in o:
                d = oreg(be, qb)
                b.mf.append((d, ("WQ", i, be), ar(xf(i, qb), 4), Areg(xf(i, qb), 4), "0" if i == 0 else vr(d, 4), [] if i == 0 else V(d, 4), [("X", i, qb)]))
        b.need = [("Q", i) for i in items]
        i = items[0]
        if i <= 9: b.dma = g_stage(i + 4, cfg)
        elif i == 10: b.dma = [g_k(0, cfg), g_v(0, cfg)]
        elif i == 11: b.dma = [g_k(1, cfg), g_v(1, cfg)]
        else: b.dma = [g_k(2, cfg), g_k(3, cfg)]
        B.append(b)
    b = B[12]
    for t in range(8):
        per = []
        for qb in range(2):
            ins = []
            e = (vE if t % 2 == 0 else vT) + 4 * qb
            for the in range(2):
                d = oreg(2 * t + the, qb)
                if cfg.pkq:
                    for k in (0, 2):
                        ins.append(valu(f"v_pk_mul_f32 v[{d+k}:{d+k+1}], v[{d+k}:{d+k+1}], s[{sScale}:{sScale+1}] op_sel_hi:[1,0]", rd=V(d+k, 2), wr=V(d+k, 2)))
                else:
                    for k in range(4):
                        ins.append(valu(f"v_mul_f32 v{d+k}, s{sScale}, v{d+k}", rd=V(d+k), wr=V(d+k)))
                for hp in range(2):
                    ins.append(valu(f"v_cvt_pk_bf16_f32 v{e+2*the+hp}, v{d+2*hp}, v{d+2*hp+1}", rd=V(d+2*hp, 2), wr=V(e+2*the+hp)))
            for sw in ("v_permlane32_swap_b32", "v_permlane16_swap_b32"):
                for hp in range(2):
                    ins.append(perm(f"{sw} v{e+hp}, v{e+2+hp}", rd=V(e+hp)+V(e+2+hp), wr=V(e+hp)+V(e+2+hp)))
            q = QF + (t * 2 + qb) * 4
            for k in range(4):
                ins.append(valu(f"v_accvgpr_write_b32 a{q+k}, v{e+k}", rd=V(e+k), wr=Areg(q+k)))
            per.append(ins)
        g0 = 8 * t + 7 + 4
        g1 = max(g0, min(g0 + cfg.QCW, 64 + 8 * (t // 2) - 2))
        b.valu.append((zipl(per[0], per[1]), g0, g1))
    rest0 = []; nrd = [0]
    for n in range(-2, 64):
        b = Body(f"a{n}")
        qk = []; pv = []
        if n + 2 <= 63:
            m = n + 2
            order = [(kb, t) for kb in range(2) for t in range(8)] if m > 0 else [(kb, t) for tg in range(4) for kb in range(2) for t in (2*tg, 2*tg+1)]
            for kb, t in order:
                key = ("K", m, kb, t)
                rd = (key, [("ds_read_b128", vKB + t % 4, kslot(m) + kb * 8192 + (t // 4) * 256, 0, 4)], None)
                mfs = []
                for qb in range(2):
                    S = sreg(m % 2, kb, qb)
                    if t == 0: c = ("0", []) if m < 2 else (vr(NEGM + 4*qb, 4), V(NEGM + 4*qb, 4))
                    else: c = (vr(S, 4), V(S, 4))
                    q = QF + (t * 2 + qb) * 4
                    mfs.append((S, key, ar(q, 4), Areg(q, 4), c[0], c[1], []))
                qk.append((rd, mfs))
            b.need.append(("K", m))
        if n >= 0:
            for db in range(16):
                key = ("V", n, db)
                rd = (key, [("ds_read_b64_tr_b16", vVB + db % 8, vslot(n) + jj * 8192 + (db // 8) * 256, 2*jj, 2) for jj in range(2)], None)
                mfs = []
                for qb in range(2):
                    d = oreg(db, qb); P = P_[n % 2] + 4 * qb
                    mfs.append((d, key, vr(P, 4), V(P, 4), "0" if n == 0 else vr(d, 4), [] if n == 0 else V(d, 4), []))
                pv.append((rd, mfs))
            b.need.append(("V", n))
        C = cfg.chain
        m = n + 2
        for rd, mfs in zipl(qk, pv): b.reads.append(rd)
        seq = []
        Cq = C if m > 0 else 2
        for k in range(0, 16, C):
            if qk:
                for k2 in range(k, k + C, Cq):
                    for qb in range(2):
                        zs = list(range(Cq))
                        if cfg.snake and qb == 1: zs.reverse()
                        for z in zs: seq.append(("q", qk[k2 + z][1][qb], qb))
            if pv:
                for z in range(C):
                    seq.append(("p", pv[k + z][1][z % 2], z % 2)); seq.append(("p", pv[k + z][1][1 - z % 2], 1 - z % 2))
        seen = set()
        for kind, mf, qb in seq:
            d = mf[0]
            first = d not in seen
            seen.add(d)
            if kind == "q" and first: c = ("0", []) if m < 2 else (vr(NEGM + 4*qb, 4), V(NEGM + 4*qb, 4))
            elif kind == "p" and n == 0: c = ("0", [])
            else: c = (vr(d, 4), V(d, 4))
            b.mf.append((mf[0], mf[1], mf[2], mf[3], c[0], c[1], mf[6]))
        G = len(b.mf)
        if n == -1:
            ins = zipl(rowmax_instrs(0, 0, vD, vF), rowmax_instrs(0, 1, vINV, vINV + 1))
            for qb, d in ((0, vD), (1, vINV)):
                for k in range(4):
                    ins.append(valu(f"v_sub_f32 v{NEGM+4*qb+k}, 0, v{d}", rd=V(d), wr=V(NEGM+4*qb+k)))
            ins += sm_instrs(0, fix=True)
            b.valu.append((ins, 3, G - 1))
        elif 0 <= n <= 62:
            ins = []
            for qb in range(2):
                if n == 0: ins.append(valu(f"v_mov_b32 v{vL+qb}, v{vPS+qb}", rd=V(vPS+qb), wr=V(vL+qb)))
                else: ins.append(valu(f"v_add_f32 v{vL+qb}, v{vL+qb}, v{vPS+qb}", rd=V(vPS+qb)+V(vL+qb), wr=V(vL+qb)))
            ins += sm_instrs(n + 1, fix=(n == 0))
            ins.append(valu(f"v_max_f32 v{vD}, v{vPS}, v{vPS+1}", rd=V(vPS, 2), wr=V(vD)))
            ins.append(valu(f"v_cmp_nge_f32 vcc, 0x46800000, v{vD}", rd=V(vD), wr=[("vcc", 0)]))
            b.valu.append((ins, 3 if n == 0 else 0, G - 2))
            b.tail.append(I(f"RARE {(n+1)%2} {1 if n + 2 <= 63 else 0}", "rare"))
        elif n == 63:
            ins = []
            for qb in range(2):
                ins.append(valu(f"v_add_f32 v{vL+qb}, v{vL+qb}, v{vPS+qb}", rd=V(vPS+qb)+V(vL+qb), wr=V(vL+qb)))
            ins += zipl(xlane("v_add_f32", vL, vD), xlane("v_add_f32", vL + 1, vF))
            for qb in range(2):
                ins.append(trans(f"v_rcp_f32 v{vINV+qb}, v{vL+qb}", rd=V(vL+qb), wr=V(vINV+qb)))
            b.valu.append((ins, 0, cfg.XG0 - 1))
            def conv(t):
                ins = []; wr = []
                for qb in range(2):
                    o = ob_reg(t, qb)
                    for the in range(2):
                        d = oreg(2 * t + the, qb)
                        if cfg.pk:
                            for k in (0, 2):
                                ins.append(valu(f"v_pk_mul_f32 v[{d+k}:{d+k+1}], v[{d+k}:{d+k+1}], v[{vINV}:{vINV+1}] op_sel:[0,{qb}] op_sel_hi:[1,{qb}]", rd=V(d+k, 2)+V(vINV, 2), wr=V(d+k, 2)))
                        else:
                            for k in range(4):
                                ins.append(valu(f"v_mul_f32 v{d+k}, v{vINV+qb}, v{d+k}", rd=V(d+k)+V(vINV+qb), wr=V(d+k)))
                        for hp in range(2):
                            ins.append(valu(f"v_cvt_pk_bf16_f32 v{o+2*the+hp}, v{d+2*hp}, v{d+2*hp+1}", rd=V(d+2*hp, 2), wr=V(o+2*the+hp)))
                    wr.append(I(f"ds_write_b128 v{vEXW}, v[{o}:{o+3}] offset:{(t*2+qb)*1024}", "dsv", rd=V(o, 4)+V(vEXW), tag=("EXW", t, qb)))
                return ins, wr
            g = cfg.XG0
            prevw = []
            for t in range(8):
                ins, wr = conv(t)
                h = len(ins) // 2
                for qb in range(2):
                    u = ins[h*qb:h*qb + h]
                    if cfg.pk:
                        mul = [x for x in u if x.t.startswith("v_pk")]; cv = [x for x in u if not x.t.startswith("v_pk")]
                        parts = [prevw + mul, cv]
                    else: parts = [prevw + u[:h//2], u[h//2:]]
                    prevw = [wr[qb]]
                    if g + 1 <= 30:
                        b.fixed += [(g, parts[0]), (g + 1, parts[1])]; g += 2
                    else: b.tail += parts[0] + parts[1]
            b.tail += prevw
            b.tail.append(I("XBAR", "xbar"))
            for t, qb in [(t, 0) for t in range(4)] + [(t, 1) for t in (3, 2, 1, 0)] + [(t, 0) for t in range(4, 8)] + [(t, 1) for t in (7, 6, 5, 4)]:
                if True:
                    r = obq(0, t, qb)
                    x = I(f"ds_read_b128 {ar(r, 4)}, v{vEXR} offset:{(t*2+qb)*1024}", "dsv", rd=V(vEXR), wr=Areg(r, 4), tag=("OB", 0, t, qb))
                    if nrd[0] < cfg.XRD: b.tail.append(x)
                    else: rest0.append(x)
                    nrd[0] += 1
        if n + 2 <= 63:
            m = n + 6
            if m <= 63: b.dma.append(g_k(m, cfg))
            elif m - 64 != 3: b.dma.append(g_wo(m - 64, 0, cfg))
        if n < 0: b.dma.append(g_v(n + 4, cfg))
        if n >= 0:
            m = n + 4
            if m <= 63: b.dma.append(g_v(m, cfg))
            elif m - 64 < 2: b.dma.append(g_wo(m - 64, 1, cfg))
            elif m - 64 == 3: b.dma.append(g_wo(2, 1, cfg))
        B.append(b)
    def accreg(j, nbl, qb): return O0 + 16 * (j % 2) + (nbl * 2 + qb) * 4
    def drain(j):
        ins = []
        for qb in range(2):
            st = STG + 8 * (j % 2) + 4 * qb
            for nbl in range(2):
                a = accreg(j, nbl, qb)
                for hp in range(2):
                    ins.append(valu(f"v_cvt_pk_bf16_f32 v{st+2*nbl+hp}, v{a+2*hp}, v{a+2*hp+1}", rd=V(a+2*hp, 2), wr=V(st+2*nbl+hp)))
            off = f" offset:{qb*1024}" if qb else ""
            x = I(f"buffer_store_dwordx4 v[{st}:{st+3}], v{vST}, s[{sPT}:{sPT+3}], s{sTmp} offen{off}{cfg.st_flags}", "store",
                  rd=V(st, 4)+V(vST), tag=("ST", j))
            if qb == 0: x.pre = [salu(f"s_mov_b32 s{sTmp}, {2048*j}")]
            ins.append(x)
        return ins
    C = max(1, cfg.pchain)
    for i in range(14):
        j, hd = i // 2, i % 2
        b = Body(f"op{i}")
        for tg in range(0, 8, C):
            for nbl in range(2):
                keys = []
                for t in range(tg, tg + C):
                    key = ("WO", i, t, nbl); keys.append((t, key))
                    b.reads.append((key, [("ds_read_b64_tr_b16", vQA + (t // 4) * 2 + nbl, wslot(i, t // 4) + (32*(t % 4) + 16*jj) * 128, 2*jj, 2) for jj in range(2)], None))
                qbs = [0, 1] if nbl == 0 else [1, 0]
                for qi, qb in enumerate(qbs):
                    ks = keys if qi == 0 else keys[::-1]
                    for ki, (t, key) in enumerate(ks):
                        d = accreg(j, nbl, qb); o = obq(hd, t, qb)
                        z = (hd == 0 and tg == 0 and ki == 0)
                        b.mf.append((d, key, ar(o, 4), Areg(o, 4), "0" if z else vr(d, 4), [] if z else V(d, 4), [("OB", hd, t, qb)] if i < 2 else []))
        b.need = [("W", i, 0), ("W", i, 1)]
        if i == 0:
            B[-1].reads += b.reads[:cfg.XPRE]; b.reads = b.reads[cfg.XPRE:]; b.late = True
            B[-1].need += b.need
            rd = []
            for t in range(8):
                for qb in range(2):
                    r = obq(1, t, qb)
                    rd.append(I(f"ds_read_b128 {ar(r, 4)}, v{vEXR+1} offset:{(t*2+qb)*1024}", "dsv", rd=V(vEXR+1), wr=Areg(r, 4), tag=("OB", 1, t, qb)))
            if rest0: b.valu.append((rest0, 0, 8))
            b.valu.append((rd, 9, 26))
            b.dma = [g_wo(3, 0, cfg), g_wo(3, 1, cfg)]
        if hd == 0 and j >= 1: b.valu.append((drain(j - 1), 3, 26))
        if i + 4 <= 13: b.dma = b.dma + [g_wo(i + 4, 0, cfg), g_wo(i + 4, 1, cfg)]
        if i == 13: b.tail += drain(6)
        if i == 1: b.fronts = tail_prep_salu(cfg)
        if i == 3: b.valu.append((tail_prep_valu(cfg), 0, 28))
        if i == cfg.FLA + 1: b.need = b.need + [("ST", 3)]
        if i == cfg.FLA: b.post_bar = [I("buffer_store_dwordx2 v[2:3], v12, s[12:15], 0 offen sc1", "store", rd=V(2, 2)+V(12), tag=("FL", 0))]
        B.append(b)
    return B

def schedule(B, cfg, pre_dma, first):
    starts = []; M = 0
    for b in B:
        starts.append(M); M += len(b.mf)
    front = {g: [] for g in range(-1, M)}
    fill = {g: [] for g in range(-1, M)}
    bp = [starts[i] + len(B[i].mf) - (cfg.LEAD if (len(B[i].mf) == 64 and B[i].name[0] == "a") else 16) - 1 for i in range(len(B))]
    fragreg = {}; first_use = {}; last_use = {}
    idx = 0
    for i, b in enumerate(B):
        for key, parts, fixed in b.reads:
            if fixed is None:
                fragreg[key] = FR + 4 * (idx % cfg.NB); idx += 1
        for g, mf in enumerate(b.mf):
            for k in [mf[1]] + mf[6]:
                first_use.setdefault(k, starts[i] + g); last_use[k] = starts[i] + g
    front[-1].append(I("BAR", "bar", tag=B[0].need))
    for i, b in enumerate(B[:-1]):
        front[bp[i]].append(I("BAR", "bar", tag=B[i + 1].need))
    reserved = {}
    lazy = set(); nodrain = set()
    if cfg.hops:
        for r, g in enumerate(cfg.hops.split(",")): front[int(g)].append(I(f"HOPR {r}", "hop"))
    elif cfg.hop == 1: front[bp[0] - 1].append(I("HOP", "hop"))
    elif cfg.hop >= 3: front[cfg.hop].append(I("HOP", "hop"))
    if cfg.hop == 2: front[-1].insert(0, I("HOP", "hop"))
    for i, b in enumerate(B):
        if b.fronts:
            flat = [x for chunk in b.fronts for x in chunk]
            g = starts[i] + 2; k = 0
            while k < len(flat):
                n = 2
                if k + n < len(flat) and flat[k + n].t.startswith("s_addc"): n += 1
                front[g] += flat[k:k + n]; k += n; g += 1
        if b.post_bar: reserved[bp[i] + 1] = b.post_bar
        for g, x in b.fixed: reserved[starts[i] + g] = x
    if cfg.psync:
        names = [b.name for b in B]
        i0, i1 = names.index(cfg.sync0), names.index(cfg.sync1)
        lag = 1 if cfg.psync == 1 else 2
        for i in range(i0, i1 + 1):
            r = sOld + (i % lag)
            if i >= i0 + lag and not cfg.nospin:
                front[bp[i] + 1] += [salu(f"s_mul_i32 s{sDif}, s{r}, s{sSign}"), I("SYNC", "sync")]
            if i <= i1 - lag:
                front[bp[i] + 2] += [salu(f"s_mov_b32 s{r}, s{sSign}"), salu(f"s_atomic_add s{r}, s[{sSy}:{sSy+1}], 0x0 glc")]
                if lag == 2:
                    lazy.add(bp[i + 1])
                    reserved[bp[i + 1] - 3] = [I(f"ds_read_b32 a251, v{vKB}", "dsv", rd=V(vKB), tag=("DUMMY", i))]
    R = []; Mq = []; Vq = []
    holder = {}
    nd = sum(len(grp) for grp in first); k = 0
    for grp in first:
        for x in grp:
            x.early = 0; x.ideal = k * 12 / nd; x.dead = bp[0] - 1 - (nd - 1 - k)
            Mq.append(x); k += 1
    for i, b in enumerate(B):
        w0 = bp[i - 1] if i > 0 else -17
        if b.late: w0 = starts[i]
        w1 = bp[i] - ((cfg.DEAD if len(b.mf) == 64 else cfg.DEAD2) if (b.dma or b.after_reads or not b.name.startswith("op")) else 1) if i < len(B) - 1 else starts[i] + len(b.mf) - 12
        if b.name == "a63": w1 = starts[i] + cfg.XG0 - 1
        if b.name.startswith("op") and not b.dma and i < len(B) - 1: nodrain.add(bp[i])
        flat = []
        for key, parts, fixed in b.reads:
            reg = fixed if fixed is not None else fragreg[key]
            for (op, addr, off, sub, n) in parts:
                x = I(f"{op} {ar(reg+sub, n)}, v{addr} offset:{off}", "d" if n == 4 else "t", rd=V(addr), wr=Areg(reg+sub, n), tag=key)
                x.early = w0
                h = holder.get(reg)
                if h is not None and h != key: x.early = max(x.early, last_use[h])
                x.dead = min(w1, first_use[key] - 7)
                flat.append(x)
            holder[reg] = key
        n = len(flat)
        for k, x in enumerate(flat):
            x.ideal = w0 + k * (w1 - 2 - w0) / n
        flat[-1].post = b.after_reads
        R += flat
        nd = sum(len(grp) for grp in b.dma)
        if nd:
            nxt = bp[i + 1] if i + 1 < len(B) else M - 1
            span = min(cfg.QSPAN if b.name.startswith('qp') else cfg.DMASPAN, nxt - bp[i] - 4)
            k = 0
            for grp in b.dma:
                for x in grp:
                    x.early = bp[i] + 1; x.ideal = bp[i] + 1 + cfg.H + k * span / nd; x.dead = nxt - 1 - (nd - 1 - k)
                    Mq.append(x); k += 1
        for ins, g0, g1 in b.valu:
            g0 += starts[i]; g1 = min(g1 + starts[i], M - 1)
            tot = sum(slots(x) for x in ins); acc = 0
            for x in ins:
                x.early = g0; x.ideal = g0 + acc * max(0, (g1 - 1 - g0)) / tot; x.dead = g1
                acc += slots(x)
            Vq.append(ins)
    allv = []
    for li, ins in enumerate(Vq):
        for k, x in enumerate(ins): allv.append((x.ideal, li, k, x))
    allv.sort(key=lambda z: (z[0], z[1], z[2]))
    Vs = [z[3] for z in allv]
    for q in (R, Mq, Vs):
        for k in range(len(q) - 2, -1, -1): q[k].dead = min(q[k].dead, q[k + 1].dead)
    ri = mi = vi = 0
    while ri < len(R) and R[ri].ideal < 0:
        fill[-1].append(R[ri]); ri += 1
    last_dma = -10
    over = 0
    extra_v = []
    for g in range(M):
        def u(x):
            if x is None or x.early > g: return None
            v = g - x.ideal + cfg.H
            return v if v > 0 else None
        def at(q, i): return q[i] if i < len(q) else None
        vq = extra_v + Vs[vi:vi + 2]
        R0, R1, M0 = at(R, ri), at(R, ri + 1), at(Mq, mi)
        V0, V1 = at(vq, 0), at(vq, 1)
        if extra_v and R0 is not None and any(r in y.wr for y in extra_v for r in R0.rd): R0 = R1 = None
        if R0 is not None and R0.post: R1 = None
        if R1 is not None and extra_v and any(r in y.wr for y in extra_v for r in R1.rd): R1 = None
        ur0, ur1, um, uv0, uv1 = u(R0), u(R1), u(M0), u(V0), u(V1)
        if uv0 is not None: uv0 = min(uv0, cfg.VCAP)
        if uv1 is not None: uv1 = min(uv1, cfg.VCAP)
        plain = lambda x: x.k == "valu"
        opts = [(0.0, [])]
        if um is not None: opts.append((2 * um, [M0]))
        if uv0 is not None:
            if slots(V0) == 2: opts.append((2 * uv0, [V0]))
            else:
                opts.append((uv0, [V0]))
                if uv1 is not None and plain(V1): opts.append((uv0 + uv1, [V0, V1]))
                if ur0 is not None and plain(V0): opts.append((ur0 + uv0, [R0, V0]))
        if ur0 is not None:
            opts.append((ur0, [R0]))
            if ur1 is not None:
                opts.append((ur0 + ur1 - (cfg.TTPEN if R0.k == "t" else 0), [R0, R1]))
        sc, ch = max(opts, key=lambda z: z[0])
        ch = list(ch)
        if g in reserved:
            ch = []; fill[g] += reserved[g]
        def take(x):
            nonlocal ri, mi, vi, last_dma
            if x.k in ("d", "t"):
                ri += 1
                for y in x.post:
                    y.early = g + 1; y.ideal = g - 2; y.dead = g + cfg.DEAD - 1
                extra_v.extend(x.post)
            elif x.k == "dma": mi += 1
            elif extra_v and x is extra_v[0]: extra_v.pop(0)
            else: vi += 1
            if x.pre:
                if last_dma < g - 1 and not any(y.k == "bar" for y in front[g]) and g > 0: front[g - 1] += x.pre
                elif last_dma < g: front[g] += x.pre
                else: fill[g] += x.pre
            if x.k in ("dma", "store"): last_dma = g
            fill[g].append(x)
        for x in ch: take(x)
        while True:
            cand = None
            if extra_v and extra_v[0].dead <= g and extra_v[0].early <= g: cand = extra_v[0]
            elif ri < len(R) and R[ri].dead <= g and not extra_v: cand = R[ri]
            elif mi < len(Mq) and Mq[mi].dead <= g: cand = Mq[mi]
            elif vi < len(Vs) and Vs[vi].dead <= g: cand = Vs[vi]
            if cand is None: break
            assert cand.early <= g, (cand.t, cand.early, cand.dead, g)
            take(cand); over += slots(cand)
    assert ri == len(R) and mi == len(Mq) and vi == len(Vs), (ri, len(R), mi, len(Mq), vi, len(Vs))
    for i, b in enumerate(B):
        for x in b.tail:
            fill[starts[i] + len(b.mf) - 1] += x.pre + [x]
    sys.stderr.write(f"forced slots {over}\n")
    out = []
    lg = []; lg_done = 0; vm = []; lastread = {}; issued = {}
    cur = []
    def emit(lst, g):
        nonlocal lg_done
        for x in lst:
            if x.k == "bar":
                hit = lambda tg, want: tg == want or (tg[0] == "MULTI" and want in tg[1:])
                need = max(i2 for i2, tg in enumerate(vm) if any(hit(tg, w) for w in x.tag))
                for w in x.tag: assert any(hit(tg, w) for tg in vm), (w, g)
                n = min(len(vm) - 1 - need, 63)
                if g in lazy: assert lg[-1][0][0] == "DUMMY", (lg[-1], g)
                if g in nodrain:
                    cur.append(I(f"s_waitcnt vmcnt({n})", "wait"))
                else:
                    cur.append(I(f"s_waitcnt vmcnt({n}) lgkmcnt({1 if g in lazy else 0})", "wait"))
                    lg_done = len(lg)
                cur.append(I("s_barrier", "salu"))
            elif x.k == "xbar":
                cur.append(I("s_waitcnt lgkmcnt(0)", "wait")); cur.append(I("s_barrier", "salu")); lg_done = len(lg)
            elif x.k in ("d", "t", "dsv"):
                lg.append((x.tag, g)); lastread[x.tag] = len(lg) - 1; cur.append(x)
                issued[x.tag] = issued.get(x.tag, 0) + 1
            elif x.k in ("dma", "store"):
                vm.append(x.tag); cur.append(x)
            else: cur.append(x)
    nparts = {}
    for x in R: nparts[x.tag] = nparts.get(x.tag, 0) + 1
    def lwait(mf, g, strict):
        nonlocal lg_done
        keys = [mf[1]] + mf[6]
        for k in keys:
            if issued.get(k, 0) < nparts.get(k, 1):
                assert not strict, ("operand not read", k, g)
                return
        needi = max(lastread[k] for k in keys)
        if needi >= lg_done:
            n_need = len(lg) - 1 - needi
            n_safe = sum(1 for (_, gg) in lg[lg_done:] if gg > g - cfg.SAFE)
            n = min(n_need, max(n_safe, 2), 15)
            cur.append(I(f"s_waitcnt lgkmcnt({n})", "wait"))
            lg_done = len(lg) - n
    for grp in pre_dma:
        for x in grp:
            emit(x.pre, -1); emit([x], -1)
    emit(front[-1], -1); emit(fill[-1], -1)
    out.append(("pre", cur))
    allmf = [mf for b in B for mf in b.mf]
    for i, b in enumerate(B):
        cur = []
        for gi, mf in enumerate(b.mf):
            g = starts[i] + gi
            d, key, bt, brs, ct, crs, extra = mf
            lwait(mf, g, True)
            fr = fragreg[key]
            cur.append(I(f"{MF} {vr(d,4)}, {ar(fr,4)}, {bt}, {ct}", "mfma", rd=Areg(fr, 4) + brs, wr=V(d, 4), c=crs))
            emit(front[g], g)
            if g + 1 < M: lwait(allmf[g + 1], g, False)
            emit(fill[g], g)
        out.append((b.name, cur))
    return out

def hazard_pass(segs):
    pos = 0; res = []; lastw = {}; lastc = {}; lasts = {}; pend = {}; nn = 0
    for name, lst in segs:
        o = []
        for x in lst:
            need = 0
            def req(p, d):
                nonlocal need
                need = max(need, d - (pos - p - 1))
            isv = x.k in ("valu", "trans", "perm")
            for r in x.rd + x.c:
                if r in lastw:
                    p, k, full = lastw[r]
                    if k == "mfma":
                        if x.k == "mfma":
                            if r in x.rd: req(p, 8)
                            elif tuple(x.c) != full: req(p, 6)
                        else: req(p, 8)
                    elif k in ("valu", "trans", "perm"):
                        if x.k in ("mfma", "perm"): req(p, 2)
                        if k == "trans" and x.k != "trans": req(p, 1)
                    elif k == "salu" and r == ("m0", 0): req(p, 1)
            for r in x.wr:
                if r in lastw and lastw[r][1] == "mfma" and (x.k != "mfma" or tuple(x.c) != lastw[r][2]): req(lastw[r][0], 8)
                if isv and r in lastc: req(lastc[r], 3)
                if r in lasts: req(lasts[r], 2)
            if x.k in ("d", "t"):
                for r in x.wr:
                    assert r not in pend, ("fragment overwritten before use", name, x.t)
                    pend[r] = 1
            if x.k == "mfma":
                for r in x.rd: pend.pop(r, None)
            while need > 0:
                k = min(need, 16)
                o.append(I(f"s_nop {k-1}", "nop")); pos += k; need -= k; nn += 1
            o.append(x)
            for r in x.wr: lastw[r] = (pos, x.k, tuple(x.wr))
            if x.k == "mfma":
                for r in x.c: lastc[r] = pos
            if x.k == "store":
                for r in x.rd: lasts[r] = pos
            pos += 1
        res.append((name, o))
    return res, nn

def srd(A, d, p, offreg, size):
    A(f"s_add_u32 s{d}, s{p}, s{offreg}")
    A(f"s_addc_u32 s{d+1}, s{p+1}, 0")
    A(f"s_and_b32 s{d+1}, s{d+1}, 0xffff")
    A(f"s_mov_b32 s{d+2}, {size}")
    A(f"s_mov_b32 s{d+3}, 0x20000")

def setup_code(cfg):
    L = []; A = L.append
    A("s_load_dwordx16 s[44:59], s[0:1], 0")
    A("s_load_dwordx4 s[60:63], s[0:1], 64")
    A("s_load_dwordx2 s[64:65], s[0:1], 96")
    A("s_cmp_ge_u32 s2, 256")
    A("s_cbranch_scc1 L_exit")
    if cfg.stamp:
        A("s_memtime s[80:81]"); A("s_memrealtime s[94:95]")
    A("v_lshrrev_b32 v1, 6, v0")
    A("v_and_b32 v64, 63, v0")
    A(f"v_readfirstlane_b32 s{sWave}, v1")
    A("s_and_b32 s66, s2, 7"); A("s_lshr_b32 s67, s2, 3")
    A("s_lshr_b32 s68, s66, 2")
    A("s_and_b32 s69, s67, 1")
    A("s_lshr_b32 s70, s67, 1")
    A("s_and_b32 s71, s70, 7")
    A("s_lshr_b32 s70, s70, 3")
    A("s_and_b32 s72, s66, 3"); A("s_lshl_b32 s72, s72, 1"); A("s_add_u32 s72, s72, s70")
    A("s_lshl_b32 s73, s72, 1"); A("s_add_u32 s73, s73, s69")
    if cfg.rot:
        if cfg.rotkey == 2: A("s_lshl_b32 s90, s72, 1"); A("s_add_u32 s90, s71, s90")
        else: A(f"s_add_u32 s90, s71, s{73 if cfg.rotkey == 0 else 72}")
        A(f"s_and_b32 s90, s90, {cfg.rotmask}"); A(f"s_mul_i32 s90, s90, {128*cfg.rot}")
    A(f"s_lshl_b32 s{sW4K}, s{sWave}, 12")
    A(f"s_lshl_b32 s{sW64K}, s{sWave}, 16")
    A(f"s_mul_i32 s{sW14K}, s{sWave}, 14336"); A(f"s_lshl_b32 s{sW2K}, s{sWave}, 11")
    A(f"s_mul_i32 s{sW28K}, s{sWave}, 28672")
    A(f"s_sub_u32 s{sKoff}, s{sW4K}, 16384")
    A(f"s_sub_u32 s{sVoff}, s{sW4K}, 16384")
    if cfg.ilv:
        A(f"s_lshl_b32 s86, s{sWave}, 10"); A(f"s_sub_u32 s{sKoff}, s86, 4096"); A(f"s_sub_u32 s{sVoff}, s86, 4096")
        A(f"s_lshl_b32 s87, s{sWave}, 1")
    A(f"s_mov_b32 s{sScale}, {f32bits(math.log2(math.e) / 16.0):#x}")
    A(f"s_and_b32 s76, s{sWave}, 1"); A("s_lshl_b32 s76, s76, 3")
    if "C" in cfg.touch:
        A("s_getpc_b64 s[20:21]")
        A("s_and_b32 s21, s21, 0xffff"); A("s_mov_b32 s22, CODE_BYTES"); A("s_mov_b32 s23, 0x20000")
        A("v_lshlrev_b32 v73, 7, v64")
        A(f"s_and_b32 s74, s67, 1"); A("s_lshl_b32 s74, s74, 2"); A(f"s_add_u32 s74, s74, s{sWave}"); A("s_lshl_b32 s74, s74, 13")
        A(f"buffer_load_dword a253, v73, s[20:23], s74 offen")
    A("v_lshrrev_b32 v65, 5, v64"); A("v_and_b32 v66, 31, v64")
    A("v_lshrrev_b32 v71, 3, v64"); A("v_and_b32 v72, 7, v64")
    A("v_mul_u32_u24 v73, 896, v71")
    A("v_lshrrev_b32 v74, 1, v71")
    A("v_xor_b32 v74, v74, v72")
    A("v_lshl_add_u32 v75, v74, 4, v73")
    A("v_xor_b32 v74, 4, v74")
    A("v_lshl_add_u32 v76, v74, 4, v73")
    for k in range(2):
        A(f"v_add_u32 v{vXD+k}, {k*(8*896-1024)}, v{75 + (k & 1)}")
    A("v_lshlrev_b32 v73, 1, v65"); A("v_xor_b32 v73, v73, v66"); A("v_xor_b32 v73, s76, v73")
    A("v_lshlrev_b32 v74, 13, v65")
    A("v_lshl_add_u32 v75, v73, 4, v74")
    A("v_xor_b32 v73, 4, v73")
    A("v_lshl_add_u32 v76, v73, 4, v74")
    for k in range(4):
        A(f"v_add_u32 v{vWD+k}, {k*(16384-1024)}, v{75 + (k & 1)}")
    A("s_waitcnt lgkmcnt(0)")
    if cfg.hstamp: A("s_memtime s[82:83]")
    A("s_cmp_eq_u32 s68, 0")
    for a, b in ((44, 54), (50, 60), (46, 56), (48, 58), (52, 62)):
        A(f"s_cselect_b32 s{a}, s{a}, s{b}"); A(f"s_cselect_b32 s{a+1}, s{a+1}, s{b+1}")
    A("s_lshl_b32 s74, s71, 1"); A("s_add_u32 s74, s74, s69"); A("s_mul_i32 s74, s74, 57344"); srd(A, sX, 44, 74, 57344)
    A("s_lshl_b32 s74, s72, 10"); A(f"s_sub_u32 s75, {448*8192}, s74"); srd(A, sWQ, 50, 74, "s75")
    return L

def touch_code(cfg):
    L = []
    A = lambda t: L.append(I(t, "raw"))
    T = lambda t: L.append(I(t, "dma", tag=("T", 0)))
    if "w" in cfg.touch:
        A("v_lshrrev_b32 v73, 2, v64"); A("v_min_u32 v73, 13, v73"); A("v_lshlrev_b32 v73, 13, v73")
        A("v_and_b32 v74, 3, v64"); A("v_lshl_add_u32 v73, v74, 7, v73")
        A(f"s_lshl_b32 s74, s71, 2"); A(f"s_add_u32 s74, s74, s{sWave}"); A(f"s_mul_i32 s74, s74, {14*8192}")
        T(f"buffer_load_dword a255, v73, s[{sWQ}:{sWQ+3}], s74 offen{cfg.t_flags}")
    if "x" in cfg.touch:
        A("v_min_u32 v73, 55, v64"); A("v_lshlrev_b32 v73, 7, v73")
        A("s_and_b32 s74, s73, 3"); A("s_lshl_b32 s74, s74, 2"); A(f"s_add_u32 s74, s74, s{sWave}"); A(f"s_mul_i32 s74, s74, {56*128}")
        T(f"buffer_load_dword a254, v73, s[{sX}:{sX+3}], s74 offen{cfg.t_flags}")
    if "c" in cfg.touch:
        A("s_getpc_b64 s[20:21]")
        A("s_and_b32 s21, s21, 0xffff"); A("s_mov_b32 s22, CODE_BYTES"); A("s_mov_b32 s23, 0x20000")
        A("v_lshlrev_b32 v73, 7, v64")
        A(f"s_and_b32 s74, s67, 1"); A("s_lshl_b32 s74, s74, 2"); A(f"s_add_u32 s74, s74, s{sWave}"); A("s_lshl_b32 s74, s74, 13")
        T(f"buffer_load_dword a253, v73, s[20:23], s74 offen")
    return L

def stouch_setup():
    L = []; A = L.append
    A("v_lshlrev_b32 v73, 13, v65"); A("v_lshl_add_u32 v80, v66, 4, v73")
    A("v_mul_u32_u24 v73, 896, v71"); A("v_lshl_add_u32 v81, v72, 4, v73")
    A(f"s_lshl_b32 s74, s71, 2"); A(f"s_add_u32 s74, s74, s{sWave}"); A("s_lshl_b32 s90, s74, 14")
    A("s_and_b32 s74, s73, 3"); A("s_lshl_b32 s74, s74, 2"); A(f"s_add_u32 s74, s74, s{sWave}"); A(f"s_mul_i32 s91, s74, {8*896}")
    return L
def stouch(st, cfg):
    a = I(f"buffer_load_dwordx4 a[240:243], v80, s[{sWQ}:{sWQ+3}], s92 offen{cfg.t_flags}", "dma", tag=("T", 2))
    a.pre = [salu(f"s_add_u32 s92, s90, {st*64*8192}")]
    return [a, I(f"buffer_load_dwordx4 a[244:247], v81, s[{sX}:{sX+3}], s91 offen offset:{128*st}{cfg.t_flags}", "dma", tag=("T", 2))]

def kd_code(cfg):
    L = []; A = L.append
    if cfg.hstamp == 2:
        A("s_memtime s[84:85]"); A(f"s_waitcnt vmcnt({cfg.npre})"); A("s_memtime s[86:87]")
    A("s_lshl_b32 s74, s71, 3"); A("s_add_u32 s74, s74, s72"); A("s_lshl_b32 s74, s74, 20")
    srd(A, sK, 46, 74, 1 << 20); srd(A, sV, 48, 74, 1 << 20)
    if cfg.pf:
        A("s_cmp_eq_u32 s69, 0"); A(f"s_cselect_b32 s84, s{sK}, s{sV}"); A(f"s_cselect_b32 s85, s{sK+1}, s{sV+1}")
        A(f"s_mov_b32 s86, {1 << 20}"); A("s_mov_b32 s87, 0x20000")
    A("v_xor_b32 v73, v65, v66"); A(f"v_xor_b32 v73, s{87 if cfg.ilv else 76}, v73"); A("v_lshlrev_b32 v74, 9, v65")
    for k in range(2 if cfg.ilv else 4):
        A(f"v_xor_b32 v75, {8*k if cfg.ilv else 2*k}, v73"); A(f"v_lshl_add_u32 v{vKD+k}, v75, 4, v74")
    return L

def setup_code2(cfg):
    L = []; A = L.append
    if cfg.hstamp == 1: A("s_memtime s[84:85]")
    A("s_mul_i32 s74, s72, 458752"); srd(A, sWO, 52, 74, 458752)
    A("s_lshl_b32 s70, s68, 3"); A("s_add_u32 s70, s70, s71"); A("s_lshl_b32 s70, s70, 1"); A("s_add_u32 s70, s70, s69")
    A("s_mov_b32 s73, s72")
    A("s_lshl_b32 s74, s70, 3"); A("s_add_u32 s74, s74, s73")
    A(f"s_mul_i32 s74, s74, {SLAB}"); srd(A, sPT, 64, 74, SLAB)
    A(f"s_lshr_b32 s86, s{sWave}, 1"); A(f"s_and_b32 s87, s{sWave}, 1")
    if cfg.psync:
        A("s_lshl_b32 s74, s66, 4"); A("s_lshr_b32 s75, s67, 1"); A("s_add_u32 s74, s74, s75"); A("s_lshl_b32 s74, s74, 2")
        A(f"s_add_u32 s74, s74, s{sWave}"); A("s_lshl_b32 s74, s74, 7"); A("s_add_u32 s74, s74, 0x2000000")
        A(f"s_add_u32 s{sSy}, s64, s74"); A(f"s_addc_u32 s{sSy+1}, s65, 0")
        A(f"s_lshl_b32 s{sSign}, s69, 1"); A(f"s_sub_u32 s{sSign}, 1, s{sSign}")
        A(f"s_sub_u32 s{sOld}, 0, s69")
        A(f"s_atomic_and s{sOld}, s[{sSy}:{sSy+1}], 0x0")
    A("s_mov_b32 s3, 0")
    if cfg.fuse:
        A("s_load_dwordx4 s[56:59], s[0:1], 80")
        A("s_memrealtime s[60:61]")
    A("v_lshrrev_b32 v67, 4, v64"); A("v_bfe_u32 v68, v64, 2, 2"); A("v_and_b32 v69, 3, v64"); A("v_and_b32 v70, 15, v64")
    A("v_lshlrev_b32 v73, 1, v65"); A("v_xor_b32 v73, v73, v66"); A("v_lshlrev_b32 v74, 9, v65")
    if cfg.ilv:
        A("s_lshl_b32 s87, s87, 1"); A("v_xor_b32 v75, s87, v73"); A(f"v_lshl_add_u32 v{vVD}, v75, 4, v74")
    for k in range(0 if cfg.ilv else 4):
        A(f"v_xor_b32 v75, {4*k}, v73"); A(f"v_lshl_add_u32 v{vVD+k}, v75, 4, v74")
    A("v_bfe_u32 v76, v64, 2, 3")
    A("v_lshl_add_u32 v73, v67, 3, v68"); A("v_lshlrev_b32 v73, 9, v73"); A("v_lshl_add_u32 v73, v69, 3, v73")
    A(f"s_mul_i32 s74, s86, {VRING - KRING}"); A(f"s_add_u32 s74, s74, {KRING}"); A("v_add_u32 v73, s74, v73")
    for j in range(8):
        A(f"v_xor_b32 v75, {j}, v76"); A(f"v_lshl_add_u32 v{vQA+j}, v75, 5, v73")
    A("v_lshlrev_b32 v73, 7, v70"); A("s_lshl_b32 s74, s87, 12"); A("v_add_u32 v73, s74, v73")
    A("v_lshrrev_b32 v74, 1, v70"); A("v_xor_b32 v74, v74, v67")
    for kt in range(2):
        A(f"v_xor_b32 v75, {4*kt}, v74"); A(f"v_lshl_add_u32 v{vXA+kt}, v75, 4, v73")
    A("v_lshrrev_b32 v73, 2, v64"); A("v_lshlrev_b32 v73, 9, v73"); A("v_lshl_add_u32 v73, v69, 3, v73"); A(f"v_add_u32 v73, {VRING}, v73")
    for j in range(8):
        A(f"v_xor_b32 v75, {j}, v76"); A(f"v_lshl_add_u32 v{vVB+j}, v75, 5, v73")
    A("v_lshlrev_b32 v73, 9, v70"); A(f"v_add_u32 v73, {KRING}, v73"); A("v_xor_b32 v74, v67, v70")
    for j in range(4):
        A(f"v_xor_b32 v75, {4*j}, v74"); A(f"v_lshl_add_u32 v{vKB+j}, v75, 4, v73")
    A(f"v_lshlrev_b32 v73, 4, v64"); A(f"v_add_u32 v{vST}, s{sW14K}, v73")
    A("v_mul_u32_u24 v74, 896, v71"); A("v_lshlrev_b32 v75, 1, v67"); A("v_xor_b32 v75, v75, v72"); A("v_lshl_add_u32 v74, v75, 4, v74")
    for k in range(4):
        A(f"v_add_u32 v75, {k*(8*896-1024)}, v74"); A(f"v_accvgpr_write_b32 a{PARK+k}, v75")
    A("v_lshrrev_b32 v74, 2, v64"); A("v_lshlrev_b32 v74, 7, v74"); A("v_lshl_add_u32 v74, v69, 3, v74"); A("v_and_b32 v77, 3, v71")
    A("s_lshl_b32 s74, s86, 1"); A("v_xor_b32 v77, s74, v77")
    for nb in range(2):
        A(f"v_xor_b32 v75, {nb}, v77"); A(f"v_lshl_add_u32 v75, v75, 5, v74")
        A(f"v_add_u32 v78, {KRING}, v75"); A(f"v_accvgpr_write_b32 a{PARK+4+nb}, v78")
        A(f"v_add_u32 v78, {VRING}, v75"); A(f"v_accvgpr_write_b32 a{PARK+6+nb}, v78")
    A(f"s_mul_i32 s74, s87, {VRING + wslot(3, 1) - KRING - wslot(3, 0)}"); A(f"s_add_u32 s74, s74, {KRING + wslot(3, 0)}")
    A("s_lshl_b32 s75, s87, 14")
    A("v_add_u32 v78, s74, v73"); A(f"v_accvgpr_write_b32 a{PARK+9}, v78")
    A("v_add_u32 v78, s75, v73"); A(f"v_accvgpr_write_b32 a{PARK+10}, v78")
    A("s_cmp_eq_u32 s86, 0"); A("s_cselect_b32 s74, s74, s75")
    A("v_add_u32 v78, s74, v73"); A(f"v_accvgpr_write_b32 a{PARK+8}, v78")
    A("v_min_u32 v74, 55, v64"); A("v_lshlrev_b32 v74, 7, v74"); A(f"v_mov_b32 v{vQW}, v74")
    A("s_and_b32 s77, s70, 15"); A("s_lshl_b32 s77, s77, 2"); A(f"s_add_u32 s77, s77, s{sWave}"); A(f"s_mul_i32 s77, s77, {56*128}")
    if "l" in cfg.touch:
        A(f"v_lshlrev_b32 v{vQW}, 4, v64"); A(f"v_add_u32 v{vQW}, {cfg.LOFF*1024}, v{vQW}"); A(f"s_sub_u32 s77, s77, {(cfg.LOFF+1+cfg.LSKIP)*1024}")
    return L

def tail_prep_salu(cfg):
    chunks = []
    def chunk():
        L = []; chunks.append(L)
        return lambda t: L.append(salu(t))
    A = chunk(); A("s_memrealtime s[62:63]")
    A(f"s_mul_i32 s74, s70, {8*SLAB}")
    A = chunk(); srd(A, 4, 64, 74, 8*SLAB)
    A = chunk(); A("s_mov_b32 s74, 0"); srd(A, 8, 56, 74, 1835008)
    A = chunk(); srd(A, 16, 58, 74, 256)
    A = chunk(); A("s_mov_b32 s74, 0x2400000"); srd(A, 12, 64, 74, 65536)
    A = chunk()
    A("s_lshl_b32 s67, s70, 2")
    A(f"s_lshr_b32 s66, s{sWave}, 1"); A("s_lshl_b32 s66, s66, 5"); A("s_add_u32 s66, s66, s70"); A("s_lshl_b32 s66, s66, 10")
    A = chunk()
    A(f"s_add_u32 s60, s60, {2000 if not cfg.force_abandon else 0x7fffffff}"); A("s_addc_u32 s61, s61, 0")
    A("s_mov_b32 s54, s60"); A("s_add_u32 s55, s61, 1")
    A = chunk()
    A("s_mov_b32 s52, 0x3f80"); A("s_mov_b32 s53, 0x3f800000"); A("s_mov_b32 s49, 32768")
    A("s_lshl_b32 s72, s70, 3"); A("s_add_u32 s72, s72, s73"); A("s_lshl_b32 s72, s72, 7")
    A(f"s_lshl_b32 s69, s{sWave}, 28"); A("s_add_u32 s72, s72, s69")
    return chunks

def tail_prep_valu(cfg):
    L = []
    def A(t, w, r=()): L.append(valu(t, rd=[("v", x) for x in r], wr=V(w)))
    A("v_mbcnt_lo_u32_b32 v0, -1, 0", 0); A("v_mbcnt_hi_u32_b32 v0, -1, v0", 0, [0])
    A("v_lshlrev_b32 v1, 4, v0", 1, [0])
    A("v_and_b32 v6, 7, v0", 6, [0]); A("v_lshlrev_b32 v5, 7, v6", 5, [6]); A("v_and_b32 v6, 15, v0", 6, [0])
    A("v_mul_u32_u24 v8, 1792, v6", 8, [6]); A("v_lshrrev_b32 v6, 4, v0", 6, [0]); A("v_lshl_add_u32 v8, v6, 4, v8", 8, [6, 8])
    A("v_lshlrev_b32 v12, 20, v0", 12, [0]); A("v_add_u32 v12, s72, v12", 12, [12])
    A("v_mov_b32 v4, 1", 4); A("v_mov_b32 v2, s62", 2); A("v_mov_b32 v3, s63", 3)
    return L

def tail_code(cfg):
    L = []; A = L.append
    A("buffer_load_dwordx2 v[6:7], v5, s[12:15], s66 offen sc1")
    A(f"s_mov_b32 s69, {cfg.ptime}")
    A("s_waitcnt vmcnt(1)")
    if cfg.stamp: A("s_memrealtime s[96:97]")
    A("s_barrier")
    A("buffer_store_dwordx2 v[2:3], v12, s[12:15], s49 offen sc1")
    if cfg.ppoll:
        regs = [6, 14, 48, 50][:cfg.ppoll]
        n = len(regs)
        A("s_waitcnt vmcnt(1)")
        A("v_cmp_le_u64 vcc, s[60:61], v[6:7]")
        A("v_cmp_ge_u64 s[74:75], s[54:55], v[6:7]")
        A("s_and_b64 vcc, vcc, s[74:75]")
        A("s_cmp_eq_u64 vcc, exec")
        A("s_cbranch_scc1 L_go")
        for k, r in enumerate(regs):
            if k: A(f"s_sleep {cfg.psl}")
            A(f"buffer_load_dwordx2 v[{r}:{r+1}], v5, s[12:15], s66 offen sc1")
        A("L_poll:")
        for k, r in enumerate(regs):
            A(f"s_waitcnt vmcnt({n-1})")
            A(f"v_cmp_le_u64 vcc, s[60:61], v[{r}:{r+1}]")
            A(f"v_cmp_ge_u64 s[74:75], s[54:55], v[{r}:{r+1}]")
            A("s_and_b64 vcc, vcc, s[74:75]")
            A("s_cmp_eq_u64 vcc, exec")
            A("s_cbranch_scc1 L_go")
            A(f"buffer_load_dwordx2 v[{r}:{r+1}], v5, s[12:15], s66 offen sc1")
        A("s_sub_u32 s69, s69, 1")
        A("s_cmp_lg_u32 s69, 0")
        A("s_cbranch_scc1 L_poll")
    else:
        A("s_waitcnt vmcnt(1)")
        A("s_branch L_chk")
        A("L_poll:")
        A("buffer_load_dwordx2 v[6:7], v5, s[12:15], s66 offen sc1")
        A("s_waitcnt vmcnt(0)")
        A("L_chk:")
        A("v_cmp_le_u64 vcc, s[60:61], v[6:7]")
        A("v_cmp_ge_u64 s[74:75], s[54:55], v[6:7]")
        A("s_and_b64 vcc, vcc, s[74:75]")
        A("s_cmp_eq_u64 vcc, exec")
        A("s_cbranch_scc1 L_go")
        A("s_sub_u32 s69, s69, 1")
        A("s_cmp_lg_u32 s69, 0")
        A("s_cbranch_scc1 L_poll")
    A("s_add_u32 s74, s73, 8"); A("s_lshl_b32 s74, 1, s74")
    A("v_mov_b32 v9, s74")
    A("s_mov_b64 exec, 1")
    A("buffer_atomic_or v9, off, s[16:19], s67 sc0 sc1")
    A("s_waitcnt vmcnt(0)")
    A("s_mov_b64 exec, -1")
    A("v_readfirstlane_b32 s74, v9")
    A("s_and_b32 s74, s74, 0xff")
    A("s_cmp_lg_u32 s74, 8")
    A("s_cbranch_scc1 L_fin")
    A("L_go:")
    if cfg.stamp: A("s_memrealtime s[38:39]"); A("s_mov_b32 s37, s69"); A("s_waitcnt lgkmcnt(0)")
    A("s_mov_b32 s50, s73"); A(f"s_mov_b32 s51, s{sWave}")
    A(f"s_call_b64 s[{sRet}:{sRet+1}], L_red")
    A("L_fin:")
    if cfg.stamp: A("s_waitcnt lgkmcnt(0)")
    A(f"s_cmp_lg_u32 s{sWave}, 1")
    A("s_cbranch_scc1 L_done")
    A("s_mov_b64 exec, 1")
    A("buffer_atomic_add v4, off, s[16:19], s67 sc0 sc1")
    A("s_waitcnt vmcnt(0)")
    A("s_mov_b64 exec, -1")
    A("v_readfirstlane_b32 s48, v4")
    A("s_and_b32 s74, s48, 0xff")
    A("s_cmp_lg_u32 s74, 7")
    A("s_cbranch_scc1 L_done")
    A("s_bfe_u32 s48, s48, 0x80008")
    A("L_redo:")
    A("s_cmp_eq_u32 s48, 0")
    A("s_cbranch_scc1 L_done")
    A("s_ff1_i32_b32 s50, s48")
    A("s_bitset0_b32 s48, s50")
    A("s_mov_b32 s51, 0")
    A("L_redo1:")
    A(f"s_call_b64 s[{sRet}:{sRet+1}], L_red")
    A("s_add_u32 s51, s51, 1")
    A("s_cmp_lt_u32 s51, 4")
    A("s_cbranch_scc1 L_redo1")
    A("s_branch L_redo")
    A("L_done:")
    return L

def red_code(cfg):
    L = []; A = L.append
    A("L_red:")
    A("s_lshr_b32 s74, s50, 1"); A("s_mul_i32 s44, s74, 14336")
    A("s_and_b32 s75, s50, 1"); A("s_lshl_b32 s75, s75, 10"); A("s_add_u32 s44, s44, s75")
    A("s_lshl_b32 s75, s51, 12"); A("s_add_u32 s44, s44, s75")
    A("s_cmp_eq_u32 s51, 3")
    A("s_cselect_b32 s46, 0x40000000, 2048"); A("s_cselect_b32 s47, 0x40000000, 128")
    A("v_add_u32 v10, s46, v1"); A("v_add_u32 v11, s47, v8")
    for st, (base, vo) in enumerate(((128, 1), (64, 10))):
        A("s_mov_b32 s45, s44")
        for h in range(8):
            A(f"buffer_load_dwordx4 v[{base+4*h}:{base+4*h+3}], v{vo}, s[4:7], s45 offen sc1")
            if h < 7: A(f"s_add_u32 s45, s45, {SLAB}")
    A("s_and_b32 s45, s70, 15"); A("s_lshl_b32 s45, s45, 2"); A("s_and_b32 s75, s50, 3"); A("s_add_u32 s45, s45, s75"); A(f"s_mul_i32 s45, s45, {16*1792}")
    A("s_mul_i32 s75, s68, 896"); A("s_add_u32 s45, s45, s75")
    A("s_lshl_b32 s75, s51, 8"); A("s_add_u32 s45, s45, s75")
    A("s_lshr_b32 s75, s50, 2"); A("s_lshl_b32 s75, s75, 6"); A("s_add_u32 s45, s45, s75")
    for st, (base, vo, acc) in enumerate(((128, 8, 16), (64, 11, 32))):
        for k in range(8): A(f"v_mov_b32 v{acc+k}, 0")
        for h in range(8):
            A(f"s_waitcnt vmcnt({(15 - h) if st == 0 else (8 - h)})")
            for k in range(4):
                A(f"v_dot2c_f32_bf16 v{acc+2*k}, s52, v{base+4*h+k}")
                A(f"v_dot2c_f32_bf16 v{acc+2*k+1}, s53, v{base+4*h+k}")
        A("s_nop 2")
        for k in range(4): A(f"v_cvt_pk_bf16_f32 v{acc+8+k}, v{acc+2*k}, v{acc+2*k+1}")
        A("s_nop 1")
        A(f"v_permlane32_swap_b32 v{acc+8}, v{acc+10}"); A(f"v_permlane32_swap_b32 v{acc+9}, v{acc+11}")
        A("s_nop 1")
        A(f"v_permlane16_swap_b32 v{acc+8}, v{acc+10}"); A(f"v_permlane16_swap_b32 v{acc+9}, v{acc+11}")
        A(f"buffer_store_dwordx4 v[{acc+8}:{acc+11}], v{vo}, s[8:11], s45 offen")
    A(f"s_setpc_b64 s[{sRet}:{sRet+1}]")
    return L

def rare_code(par, has_next):
    ins = [I("s_nop 9", "nop")]
    for qb in range(2):
        ins += rowmax_instrs(par, qb, vD, vF)
        ins.append(valu(f"v_max_f32 v{vD}, 0, v{vD}", rd=V(vD), wr=V(vD)))
        ins.append(valu(f"v_sub_f32 v{vF}, 0, v{vD}", rd=V(vD), wr=V(vF)))
        ins.append(trans(f"v_exp_f32 v{vF}, v{vF}", rd=V(vF), wr=V(vF)))
        regs = [NEGM + 4*qb + k for k in range(4)] + [sreg(par, kb, qb) + k for kb in range(2) for k in range(4)]
        if has_next: regs += [sreg(1 - par, kb, qb) + k for kb in range(2) for k in range(4)]
        for r in regs: ins.append(valu(f"v_sub_f32 v{r}, v{r}, v{vD}", rd=V(r)+V(vD), wr=V(r)))
        for r in [vL + qb] + [oreg(db, qb) + k for db in range(16) for k in range(4)]:
            ins.append(valu(f"v_mul_f32 v{r}, v{r}, v{vF}", rd=V(r)+V(vF), wr=V(r)))
    ins += sm_instrs(par)
    ins.append(I("s_nop 1", "nop"))
    ins.append(I(f"s_setpc_b64 s[{sRet}:{sRet+1}]", "salu"))
    segs, _ = hazard_pass([("rare", ins)])
    return [x.t for x in segs[0][1]]

def reduce_kernel(cfg):
    L = []; A = L.append
    A(".p2align 8")
    A("reduce_kernel:")
    A("s_cmp_ge_u32 s2, 448")
    A("s_cbranch_scc1 L_rexit")
    A("s_load_dwordx2 s[4:5], s[0:1], 96")
    A("s_load_dwordx2 s[6:7], s[0:1], 80")
    A("s_mul_hi_u32 s16, s2, 0x924924a")
    A("s_mul_i32 s17, s16, 28"); A("s_sub_u32 s17, s2, s17")
    A("s_mul_hi_u32 s18, s17, 0x24924925")
    A("s_mul_i32 s19, s18, 7"); A("s_sub_u32 s19, s17, s19")
    A("v_lshlrev_b32 v1, 4, v0")
    A("s_lshl_b32 s20, s17, 12")
    A("v_add_u32 v1, s20, v1")
    A("s_mul_i32 s21, s16, 1835008"); A(f"s_add_u32 s21, s21, {cfg.wsoff}")
    A("s_waitcnt lgkmcnt(0)")
    A("s_add_u32 s8, s4, s21"); A("s_addc_u32 s9, s5, 0"); A("s_and_b32 s9, s9, 0xffff")
    A("s_mov_b32 s10, 1835008"); A("s_mov_b32 s11, 0x20000")
    A("s_mov_b32 s12, s6"); A("s_and_b32 s13, s7, 0xffff"); A("s_mov_b32 s14, 1835008"); A("s_mov_b32 s15, 0x20000")
    A("s_mov_b32 s22, 0")
    for h in range(16):
        A(f"buffer_load_dwordx4 v[{16+4*h}:{19+4*h}], v1, s[8:11], s22 offen{cfg.rd_flags}")
        if h < 15: A("s_add_u32 s22, s22, 114688")
    A("v_and_b32 v2, 15, v0")
    A("v_lshrrev_b32 v3, 7, v0"); A("v_lshl_add_u32 v2, v3, 4, v2")
    A("s_and_b32 s23, s16, 7"); A("s_lshl_b32 s23, s23, 7"); A("s_lshl_b32 s24, s18, 5"); A("s_add_u32 s23, s23, s24")
    A("v_add_u32 v2, s23, v2")
    A("v_mul_u32_u24 v2, 1792, v2")
    A("v_bfe_u32 v3, v0, 4, 3")
    A("v_lshl_add_u32 v2, v3, 4, v2")
    A("s_lshr_b32 s23, s16, 3"); A("s_mul_i32 s23, s23, 896"); A("s_lshl_b32 s24, s19, 7"); A("s_add_u32 s23, s23, s24")
    for h in range(16):
        A(f"s_waitcnt vmcnt({15-h})")
        for k in range(4):
            src = 16 + 4*h + k
            if h == 0:
                A(f"v_lshlrev_b32 v{4+2*k}, 16, v{src}"); A(f"v_and_b32 v{5+2*k}, 0xffff0000, v{src}")
            else:
                A(f"v_lshlrev_b32 v12, 16, v{src}"); A(f"v_and_b32 v13, 0xffff0000, v{src}")
                A(f"v_add_f32 v{4+2*k}, v{4+2*k}, v12"); A(f"v_add_f32 v{5+2*k}, v{5+2*k}, v13")
    for k in range(4):
        A(f"v_cvt_pk_bf16_f32 v{12+k}, v{4+2*k}, v{5+2*k}")
    A("s_nop 1")
    A("v_permlane32_swap_b32 v12, v14"); A("v_permlane32_swap_b32 v13, v15")
    A("s_nop 1")
    A("v_permlane16_swap_b32 v12, v14"); A("v_permlane16_swap_b32 v13, v15")
    A("buffer_store_dwordx4 v[12:15], v2, s[12:15], s23 offen")
    A("L_rexit:")
    A("s_endpgm")
    return L

FLEX = ("v_exp_f32", "v_add_f32", "v_max_f32", "v_mul_f32", "v_sub_f32", "v_mov_b32", "v_rcp_f32")
def isize(t):
    op = t.split()[0]
    if op.endswith(":") or op.startswith(";") or op.startswith("."): return 0
    if op.startswith(("v_mfma", "ds_", "buffer_", "v_cvt_pk", "v_accvgpr", "v_max3", "s_atomic", "s_load", "s_mem", "v_writelane")) or op.endswith("_e64"): return 8
    import re
    lits = [x for x in re.findall(r"(?<![\w\[:(])(-?0x[0-9a-f]+|-?\d+)(?![\w\]:)])", t[len(op):])]
    if op.startswith(("s_waitcnt", "s_nop", "s_barrier", "s_cbranch", "s_branch", "s_sleep", "s_call")): return 4
    for x in lits:
        v = int(x, 0)
        if not -16 <= v <= 64: return 8
    return 4
def align8(L, mode):
    out = []; off = 0; on = False
    for k, t in enumerate(L):
        if t == "L_loop:": on = True; off = 0
        if on and t.split()[0] in FLEX and isize(t) == 4:
            n4 = 0; flexnext = False
            for u in L[k + 1:]:
                sz = isize(u)
                if sz == 0: continue
                if u.split()[0] in FLEX and sz == 4: flexnext = True; break
                if sz == 8: break
                n4 += 1
            if not flexnext and (off + 4 + 4 * n4) % 8 != 0:
                t = t.replace(t.split()[0], t.split()[0] + "_e64", 1)
        out.append(t); off += isize(t)
        if t == "s_cbranch_scc1 L_loop": on = False
    return out

def insert_pads(L, KN, rounds=False):
    import subprocess, re, tempfile, os
    def addrs(lines):
        out = []; cand = []
        inloop = False
        for i, t in enumerate(lines):
            out.append(t)
            if t == "L_loop:": inloop = True
            if t == "s_cbranch_scc1 L_loop": inloop = False
            if (t.startswith("v_mfma") or t.startswith("v_dot2c")) and not inloop:
                out.append(f"LC_{i}:"); cand.append(i)
        txt = "\n".join(out) + "\n"
        for w in range(12):
            if f"L_pad{w}:" not in txt: txt = txt.replace("L_hopback:", f"L_pad{w}:\nL_hopback:")
        d = tempfile.mkdtemp()
        open(d + "/a.s", "w").write(txt)
        subprocess.run(["clang", "-x", "assembler", "-target", "amdgcn-amd-amdhsa", "-mcpu=gfx950", "-c", d + "/a.s", "-o", d + "/a.o"], check=True)
        o = subprocess.run(["llvm-objdump", "-t", d + "/a.o"], capture_output=True, text=True).stdout
        a = {}
        for m in re.finditer(r"^([0-9a-f]+) .* \.text\s+[0-9a-f]+ (?:\.\w+ )?(\w+)$", o, flags=re.M): a[m.group(2)] = int(m.group(1), 16)
        return {i: a[f"LC_{i}"] - a[KN] for i in cand}, a["L_hopback"] - a[KN]
    lines = list(L)
    pads = []
    page = None
    while True:
        ad, hb = addrs(lines)
        if page is None: page = hb // 4096 + 1
        c = [i for i in sorted(ad) if ad[i] >= page * 4096]
        if not c: break
        i = c[0]
        if ad[i] - page * 4096 > 256: page += 1; continue
        lines.insert(i + 1, f"PAD {len(pads)}")
        lines[i + 1] = "s_nop 0 ;PAD"
        pads.append(page); page += 1
    n = len(pads); k = 0
    res = []
    for t in lines:
        if t == "s_nop 0 ;PAD":
            res.append(f"L_pad{k}:")
            if rounds: res.append(f"s_cbranch_execz L_hopback{k // 4 if k >= 4 else ''}")
            else: res.append(f"s_cbranch_execz {'L_pad%d' % (k + 4) if k + 4 < n else 'L_hopback'}")
            k += 1
        elif rounds and t == "L_hopback2:":
            assert n <= 12
            for z in range(n, 12): res.append(f"L_pad{z}:")
            res.append(t)
        else: res.append(t)
    sys.stderr.write(f"pads: {n}\n")
    return res

def generate(cfg):
    if cfg.fuse and "sc1" not in cfg.st_flags and not cfg.wbl2: cfg.st_flags += " sc1"
    B = build_bodies(cfg)
    for b in B:
        if b.name == cfg.parkb:
            ins = []
            for k in range(4): ins.append(valu(f"v_accvgpr_read_b32 v{vWD+k}, a{PARK+k}", wr=V(vWD+k)))
            for k in range(7): ins.append(valu(f"v_accvgpr_read_b32 v{vQA+k}, a{PARK+4+k}", wr=V(vQA+k)))
            if cfg.spare:
                for k in range(4): ins.append(valu(f"v_accvgpr_read_b32 v{vXD+k}, a{PARK+12+k}", wr=V(vXD+k)))
            b.valu.append((ins, cfg.parkg0, cfg.parkg1))
    for b in B:
        if b.name == cfg.otouch and "o" in cfg.touch:
            b.dma = b.dma + [[I(f"buffer_load_dword a252, v{vQW}, s[{sWO}:{sWO+3}], s77 offen{cfg.o_flags}", "dma", rd=V(vQW), tag=("T", 1))]]
    for b in B:
        if b.name == cfg.otouch and "p" in cfg.touch:
            b.dma = b.dma + [[I(f"buffer_load_dwordx4 a[{240+4*(j%2)}:{243+4*(j%2)}], v{vWD}, s[{sWO}:{sWO+3}], s77 offen offset:{128*j}{cfg.o_flags}", "dma", rd=V(vWD), tag=("T", 1))
                              for j in range(cfg.PJ0, 7)]]
    for b in B:
        if "l" in cfg.touch and b.name[0] == "a" and 2 <= int(b.name[1:]) <= 57 and int(b.name[1:]) % 4 == 0:
            x = I(f"buffer_load_dwordx4 a[240:243], v{vQW}, s[{sWO}:{sWO+3}], s77 offen{cfg.o_flags}", "dma", rd=V(vQW), tag=("T", 1))
            x.pre = [salu("s_add_u32 s77, s77, 1024")]
            b.dma = b.dma + [[x]]
    raw = lambda lines: [I(t, "raw") for t in lines]
    tc = [touch_code(cfg)]
    init = []
    def expand(spec):
        out = []
        for tok in spec.split(","):
            if not tok: continue
            if tok == "S": out += tc + [raw(kd_code(cfg))] + [raw(setup_code2(cfg))]
            elif tok == "T": out += [raw(stouch_setup())]
            elif tok[0] == "D": out += g_stage(int(tok[1]), cfg)
            elif tok[0] == "P": out += [stouch(int(tok[1]), cfg)]
            elif tok[0] == "K": out += [g_k(int(tok[1]), cfg)]
            elif tok[0] == "V": out += [g_v(int(tok[1]), cfg)]
            elif tok == "W":
                out += [[I(f"buffer_load_dword a{248+i}, off, s[{r}:{r+3}], s{sW4K} nt", "dma", tag=("T", 4)) for i, r in enumerate((sK, sV, sWO, sPT)[:cfg.nwarm])]]
        return out
    pfl = []
    for ent in [e for e in cfg.pf.split(",") if e]:
        bn, tile = ent.split(":")
        g = [I(f"buffer_load_dwordx4 a[{240+4*(k%2)}:{243+4*(k%2)}], v{vQW}, s[84:87], s{sTmp2} offen{' offset:%d' % (1024*k) if k else ''}", "dma", rd=V(vQW), tag=("T", 3)) for k in range(4)]
        if tile[0] == "h": tile = tile[1:]; g = g[:2]
        g[0].pre = [salu(f"s_add_u32 s{sTmp2}, s{sW4K}, {int(tile)*16384}")]
        pfl.append((bn, g))
    parts = cfg.order.split("|")
    pre = expand(parts[0]); first = expand(parts[1])
    for k in range(len(parts) - 2):
        keep = B[k].dma if k >= 7 else [g for g in B[k].dma if g[0].tag[0] == "T"]
        B[k].dma = expand(parts[2 + k]) + keep
    for bn, g in pfl:
        b = [x for x in B if x.name == bn][0]
        b.dma = b.dma + [g]
    segs = schedule(B, cfg, pre, first)
    segs, nn = hazard_pass(segs)
    txt = {name: [x.t for x in lst] for name, lst in segs}
    names = [n for n, _ in segs]
    lo = None
    for n in range(0, 30):
        if all(txt[f"a{k}"] == txt[f"a{k+4}"] for k in range(n, n + 8)):
            lo = n; break
    assert lo is not None, "no periodic steady state"
    last = lo
    while last + 4 <= 63 and txt[f"a{last+4}"] == txt[f"a{last}"]: last += 1
    last += 3
    nit = (last - lo + 1) // 4
    lo = last + 1 - 4 * nit
    sys.stderr.write(f"loop bodies {lo}..{last} ({nit} iterations), nops inserted {nn}\n")
    L = []; A = L.append
    KN = "attn_kernel"
    if cfg.fuse == 2:
        KN = NAME + "_kernel"
        A("; @launch grid=(256,1,1) block=(256,1,1) lds=163840")
    else:
        A("; @launch kernel=attn_kernel grid=(256,1,1) block=(256,1,1) lds=163840")
    if not cfg.fuse: A("; @launch kernel=reduce_kernel grid=(448,1,1) block=(256,1,1) lds=0")
    A('.amdgcn_target "amdgcn-amd-amdhsa--gfx950"')
    A(".text"); A(f".globl {KN}"); A(".p2align 12" if cfg.hop else ".p2align 8"); A(f".type {KN},@function"); A(f"{KN}:")
    L += setup_code(cfg)
    tramps = []; syncs = []; bs = [0]
    def emit_seg(name):
        A(f"; ---- {name}")
        for t in txt[name]:
            if t.startswith("RARE"):
                _, par, nx = t.split()
                lab = f"L_t_{name.replace('-','m')}"
                A(f"s_cbranch_vccnz {lab}"); A(f"{lab}_back:")
                tramps.append((lab, par, nx))
            elif t == "SWAP":
                lab = f"L_sw_{name}"
                A("s_bitcmp0_b32 s73, 0"); A(f"s_cbranch_scc1 {lab}")
                for k in range(4): A(f"v_swap_b32 v{vKD+k}, v{vVD+k}")
                for a, b2 in ((sK, sV), (sK + 1, sV + 1), (sKoff, sVoff), (sKb, sVb)):
                    A(f"s_mov_b32 s74, s{a}"); A(f"s_mov_b32 s{a}, s{b2}"); A(f"s_mov_b32 s{b2}, s74")
                A(f"{lab}:")
            elif t.startswith("HOPR"):
                r = int(t.split()[1])
                A("s_mov_b64 exec, 0")
                for w in range(3):
                    A(f"s_cmp_eq_u32 s{sWave}, {w}"); A(f"s_cbranch_scc1 L_pad{4*r+w}")
                A(f"s_branch L_pad{4*r+3}")
                A("L_hopback:" if r == 0 else f"L_hopback{r}:")
                A("s_mov_b64 exec, -1")
            elif t == "HOP":
                A("s_mov_b64 exec, 0")
                for w in range(3):
                    A(f"s_cmp_eq_u32 s{sWave}, {w}"); A(f"s_cbranch_scc1 L_pad{w}")
                A("s_branch L_pad3")
                A("L_hopback:")
                A("s_mov_b64 exec, -1")
            elif t == "SYNC":
                lab = f"L_s_{name.replace('-','m')}"
                A(f"s_cmp_gt_i32 s{sDif}, 0"); A(f"s_cbranch_scc1 {lab}"); A(f"{lab}_back:")
                syncs.append(lab)
            else: A(t)
    for name in names:
        if name.startswith("a"):
            n = int(name[1:])
            if lo <= n <= last:
                if n == lo:
                    if cfg.lstamp:
                        A("v_mbcnt_lo_u32_b32 v66, -1, 0"); A("v_mbcnt_hi_u32_b32 v66, -1, v66"); A("v_mov_b32 v67, 0")
                        A("s_memrealtime s[98:99]"); A("s_waitcnt lgkmcnt(0)")
                    if cfg.linear:
                        A("v_mbcnt_lo_u32_b32 v69, -1, 0"); A("v_mbcnt_hi_u32_b32 v69, -1, v69")
                        for r in range(vKD, vKD + 8): A(f"v_lshlrev_b32 v{r}, 4, v69")
                    if "h" in cfg.strip:
                        A("s_and_b32 s74, s73, 1"); A("s_lshl_b32 s74, s74, 11"); A(f"s_add_u32 s{sKoff}, s{sKoff}, s74"); A(f"s_add_u32 s{sVoff}, s{sVoff}, s74")
                    A(f"s_mov_b32 s{sCnt}, {nit}"); A(f".p2align {cfg.lalign}"); [A("s_nop 0") for _ in range(cfg.lshift)]; A("L_loop:")
                    if cfg.lstamp:
                        A("v_mov_b32 v68, s98"); A(f"v_cmp_eq_u32 vcc, s{sCnt}, v66"); A("s_memrealtime s[98:99]"); A("s_nop 0")
                        A("v_cndmask_b32 v67, v67, v68, vcc"); A("v_mov_b32 v63, v67")
                if n < lo + 4:
                    def keep(t):
                        if "d" in cfg.strip and t.startswith("buffer_load"): return False
                        if "h" in cfg.strip and t.startswith("buffer_load") and ("offset:2048" in t or "offset:3072" in t): return False
                        if "b" in cfg.strip and t.startswith("s_barrier"): return False
                        if "w" in cfg.strip and t.startswith("s_waitcnt lgkm"): return False
                        if "r" in cfg.strip and t.startswith("ds_read"): return False
                        if "s" in cfg.strip and t.split()[0] in ("v_exp_f32", "v_add_f32", "v_cvt_pk_bf16_f32"): return False
                        return True
                    txt[name] = [t for t in txt[name] if keep(t)]
                    if "h" in cfg.strip: txt[name] = [t.replace("vmcnt(16)", "vmcnt(8)") for t in txt[name]]
                    if cfg.pace:
                        nt = []
                        for t in txt[name]:
                            nt.append(t)
                            if t == "s_barrier": nt += ["s_nop 15"] * cfg.pace
                        txt[name] = nt
                    if n == lo + 3:
                        txt[name].insert(1, f"s_sub_u32 s{sCnt}, s{sCnt}, 1")
                    emit_seg(name)
                    if n == lo + 3:
                        A(f"s_cmp_lg_u32 s{sCnt}, 0"); A("s_cbranch_scc1 L_loop")
                continue
        if cfg.bstamp and name != "pre":
            head = name.startswith("qp") or (name.startswith("a") and int(name[1:]) < 30)
            if head == (cfg.bstamp == 1):
                r = 71 if head else 63
                if bs[0] > 0:
                    A(f"v_writelane_b32 v{r}, s98, {bs[0]-1}"); A(f"v_writelane_b32 v{r}, s26, {bs[0]-1+32}") if not head and False else None
                    if name == "a1": A("v_mov_b32 v63, v71")
                A("s_memtime s[98:99]")
                bs[0] += 1; bs.append(name)
        if cfg.hstamp == 1 and name == "qp0": A("s_memtime s[86:87]")
        if cfg.stamp and not cfg.hstamp and name in ("qp0", "a-2", "op0"):
            i = ["qp0", "a-2", "op0"].index(name)
            A(f"s_memtime s[{[82, 44, 46][i]}:{[83, 45, 47][i]}]") if i < 2 else A("s_memtime s[92:93]")
            if name == "a-2": A("s_memrealtime s[100:101]")
            if name == "op0": A("s_memrealtime s[42:43]"); A("s_mov_b32 s34, s44")
        emit_seg(name)
    if cfg.fuse:
        if cfg.stamp: A("s_memrealtime s[98:99]")
        L += tail_code(cfg)
    if cfg.stamp:
        A("s_waitcnt vmcnt(0)")
        A("s_memtime s[88:89]"); A("s_memrealtime s[90:91]")
        A("s_getreg_b32 s31, hwreg(HW_REG_XCC_ID)"); A("s_getreg_b32 s93, hwreg(HW_REG_HW_ID)")
        A("s_waitcnt lgkmcnt(0)")
        A("s_add_u32 s76, s64, 0x4000000"); A("s_addc_u32 s77, s65, 0"); A("s_and_b32 s77, s77, 0xffff")
        A("s_mov_b32 s78, 0x100000"); A("s_mov_b32 s79, 0x20000")
        A("s_lshl_b32 s74, s2, 2"); A(f"s_add_u32 s74, s74, s{sWave}"); A("s_lshl_b32 s74, s74, 6")
        A("v_mov_b32 v40, 0")
        if cfg.lstamp or cfg.bstamp:
            sys.stderr.write(" ".join(bs[1:]) + "\n")
            A("v_mbcnt_lo_u32_b32 v66, -1, 0"); A("v_mbcnt_hi_u32_b32 v66, -1, v66"); A("v_lshlrev_b32 v66, 2, v66")
            A("s_lshl_b32 s75, s74, 2"); A("s_add_u32 s75, s75, 0x10000")
            A("buffer_store_dword v63, v66, s[76:79], s75 offen")
        for i, r in enumerate([80, 82, 34, 92, 88, 90, 31, 93, 94, 100, 42, 3, 98, 96, 38, 37]):
            A(f"v_mov_b32 v41, s{r}")
            A(f"buffer_store_dword v41, v40, s[76:79], s74 offen offset:{4*i}")
    A("L_exit:"); A("s_endpgm")
    if cfg.fuse: L += red_code(cfg)
    A("L_code_end:")
    A(f".set CODE_BYTES, L_code_end - {KN} - 1024")
    for lab, par, nx in tramps:
        A(f"{lab}:"); A(f"s_call_b64 s[{sRet}:{sRet+1}], L_rare_{par}_{nx}"); A(f"s_branch {lab}_back")
    for lab in syncs:
        A(f"{lab}:"); A(f"s_call_b64 s[{sRet}:{sRet+1}], L_spin"); A(f"s_branch {lab}_back")
    if syncs:
        A("L_spin:")
        if cfg.stamp: A("s_add_u32 s3, s3, 0x10000")
        A("s_mov_b32 s74, 32")
        A("L_spin1:")
        if cfg.stamp: A("s_add_u32 s3, s3, 1")
        A(f"s_load_dword s{sDif}, s[{sSy}:{sSy+1}], 0x0 glc")
        A("s_waitcnt lgkmcnt(0)")
        A(f"s_mul_i32 s{sDif}, s{sDif}, s{sSign}")
        A(f"s_cmp_le_i32 s{sDif}, 0")
        A("s_cbranch_scc1 L_spin2")
        A("s_sub_u32 s74, s74, 1")
        A("s_cmp_lg_u32 s74, 0")
        A("s_cbranch_scc1 L_spin1")
        A(f"s_mov_b32 s{sSign}, 0")
        A("L_spin2:")
        A(f"s_mov_b32 s{sOld}, 0"); A(f"s_mov_b32 s{sOld+1}, 0")
        A(f"s_setpc_b64 s[{sRet}:{sRet+1}]")
    for par, nx in sorted({(p, n) for _, p, n in tramps}):
        A(f"L_rare_{par}_{nx}:")
        L += rare_code(int(par), int(nx))
    if not cfg.fuse: L += reduce_kernel(cfg)
    A('.section .rodata,"a"')
    for kn, nv, acc in ((KN, 512, 256), ("reduce_kernel", 80, 80))[:1 if cfg.fuse else 2]:
        A(".p2align 6"); A(f".amdhsa_kernel {kn}")
        A(f"  .amdhsa_next_free_vgpr {nv}"); A("  .amdhsa_next_free_sgpr 102"); A(f"  .amdhsa_accum_offset {acc}")
        A("  .amdhsa_group_segment_fixed_size 0"); A("  .amdhsa_kernarg_size 104"); A("  .amdhsa_user_sgpr_count 2")
        A("  .amdhsa_user_sgpr_kernarg_segment_ptr 1"); A("  .amdhsa_system_sgpr_workgroup_id_x 1")
        A(".end_amdhsa_kernel")
    if cfg.al8: L = align8(L, cfg.al8)
    if cfg.hop: L = insert_pads(L, KN, bool(cfg.hops))
    return "\n".join(L) + "\n"

if __name__ == "__main__":
    ap = argparse.ArgumentParser()
    ap.add_argument("-o", default=f"cdna_kernels/{NAME}.s")
    ap.add_argument("opts", nargs="*")
    a = ap.parse_args()
    cfg = Cfg()
    for o in a.opts:
        k, v = o.split("=", 1)
        old = getattr(cfg, k)
        if isinstance(old, bool): v = v not in ("0", "false", "False")
        elif isinstance(old, int): v = int(v)
        elif isinstance(old, float): v = float(v)
        elif k.endswith("_flags"): v = " " + v.replace("+", " ") if v else ""
        setattr(cfg, k, v)
    open(a.o, "w").write(generate(cfg))
```

```python
import sys, math, argparse, struct

NAME = "concat_heads__gqa_block_cached__gqa_block_cached__near_ridge"
def f32bits(x): return struct.unpack("<I", struct.pack("<f", x))[0]

class Cfg:
    LEAD = 20
    DEAD = 8
    NB = 32
    SAFE = 6
    DMASPAN = 40
    H = 3.0
    TTPEN = 3.0
    dma_flags = " nt"
    w_flags = ""
    v_flags = "same"
    o_flags = ""
    otouch = "a62"
    st_flags = ""
    rd_flags = ""
    out_flags = ""
    psl = 5
    SG0 = 17
    strict = 1
    pk = 0
    pkq = 0
    XRD = 8
    XG0 = 9
    XPRE = 8
    DEAD2 = 6
    ef = 0
    e63 = ""
    ilv = 0
    ppoll = 0
    stamp = False
    strip = ""
    touch = "Co"
    tpos = 1
    t_flags = ""
    hstamp = 0
    npre = 3
    psync = 0
    nospin = 0
    lstamp = 0
    QCW = 16
    VCAP = 4.0
    al8 = 0
    lalign = 6
    lshift = 0
    chain = 4
    pchain = 4
    snake = 1
    qord = 0
    pord = 2
    lf = 0
    lf0 = 2
    lf1 = 57
    pf = ""
    nwarm = 4
    rotkey = 2
    emu = ""
    hops = ""
    hop = 0
    parkb = "a-2"
    parkg0 = 24
    parkg1 = 34
    rot = 2
    rotmask = 3
    linear = 0
    PJ0 = 4
    LOFF = 0
    LSKIP = 0
    kvlate = 0
    FLA = 11
    wbl2 = 0
    WST = 28672
    SST = 114688
    spare = 0
    QSPAN = 40
    order = "D0,S,D1,D2|D3"
    spos = 1
    bstamp = 0
    fuse = 1
    ptime = 4000
    force_abandon = 0
    pace = 0
    sync0 = "qp2"
    sync1 = "qp4"
    early = 1
    wsoff = 0

def V(lo, n=1): return [("v", lo + i) for i in range(n)]
def Areg(lo, n=1): return [("a", lo + i) for i in range(n)]
def vr(lo, n=1): return f"v{lo}" if n == 1 else f"v[{lo}:{lo+n-1}]"
def ar(lo, n=1): return f"a{lo}" if n == 1 else f"a[{lo}:{lo+n-1}]"

O0 = 128
def oreg(db16, qb): return O0 + (db16 * 2 + qb) * 4
S_ = [96, 112]
def sreg(par, kb, qb): return S_[par] + (kb * 2 + qb) * 4
NEGM = 88
P_ = [72, 80]
QF = 0
FR = 64
XF = 192
PARK = 224
vKB = 0; vVB = 4; vKD = 12; vVD = 16; vWD = 20; vXD = 24; vQA = 28; vXA = 36
vL = 38; vPS = 40; vINV = 42; vST = 44; vD = 45; vF = 46; vQW = 47
vT = 48
vE = 56
vQR = 64
STG = 192
sX, sWQ, sK, sV, sWO, sPT = 4, 8, 12, 16, 20, 24
sW4K, sKoff, sVoff, sCnt, sTmp, sW28K, sW64K, sWave, sScale = 28, 29, 30, 31, 32, 33, 34, 35, 36
sRet = 40
sTmp2 = 76
sKb, sVb = 84, 85
sSign, sOld, sDif = 37, 38, 75
sSy = 78

KRING = 98304
VRING = 32768
def kslot(m): return (m % 4) * 16384
def vslot(m): return (m % 4) * 16384
sW14K, sW2K = 84, 85
vEXW, vEXR = vQA + 4, vQA + 5
SLAB = 57344
MF = "v_mfma_f32_16x16x32_bf16"

class I:
    __slots__ = ("t", "k", "rd", "wr", "tag", "c", "ideal", "early", "dead", "pre", "post")
    def __init__(s, t, k, rd=(), wr=(), tag=None, c=()):
        s.t, s.k, s.rd, s.wr, s.tag, s.c = t, k, list(rd), list(wr), tag, list(c)
        s.ideal = s.early = s.dead = None
        s.pre = []; s.post = []
def valu(t, rd=(), wr=()): return I(t, "valu", rd, wr)
def trans(t, rd=(), wr=()): return I(t, "trans", rd, wr)
def perm(t, rd=(), wr=()): return I(t, "perm", rd, wr)
def salu(t, wr=()): return I(t, "salu", (), wr)
def slots(x): return 2 if x.k in ("trans", "dma", "store", "perm") else 1

class Body:
    def __init__(s, name):
        s.name = name
        s.mf = []; s.reads = []; s.need = []; s.dma = []; s.valu = []; s.after_reads = []; s.tail = []; s.fronts = []; s.post_bar = []; s.fixed = []; s.late = False

def dma_group(srd, voffs, pre, post, soff, m0val, tag, flags=""):
    g = []
    for k in range(4):
        off = f" offset:{k*1024}" if k else ""
        g.append(I(f"buffer_load_dwordx4 v{voffs[k]}, s[{srd}:{srd+3}], s{soff} offen{off}{flags} lds",
                   "dma", rd=[("v", voffs[k]), ("m0", 0)], tag=tag))
    g[0].pre = [salu(f"s_add_u32 m0, s{m0val[0]}, {m0val[1]}", wr=[("m0", 0)])] + list(pre)
    return g
def g_k(m, cfg):
    return dma_group(sK, [vKD + k for k in range(4)], [salu(f"s_add_u32 s{sKoff}, s{sKoff}, 16384")], [],
                     sKoff, (sW4K, KRING + kslot(m)), ("K", m), cfg.dma_flags)
def g_v(m, cfg):
    return dma_group(sV, [vVD + k for k in range(4)], [salu(f"s_add_u32 s{sVoff}, s{sVoff}, 16384")], [],
                     sVoff, (sW4K, VRING + vslot(m)), ("V", m), cfg.dma_flags)
def wslot(i, half): return kslot(64 + i) if half == 0 else [0, 1, 3, 2][i % 4] * 16384
def g_wo(i, half, cfg):
    j, hd = i // 2, i % 2
    ring = (KRING if half == 0 else VRING) + wslot(i, half)
    return dma_group(sWO, [vWD + k for k in range(4)], [salu(f"s_add_u32 s{sTmp2}, s{sW28K}, {hd*229376 + half*114688 + 128*j}")], [],
                     sTmp2, (sW4K, ring), ("W", i, half), cfg.o_flags)
def g_stage(i, cfg):
    sl = kslot(i - 14)
    gs = []
    if i % 2 == 0:
        gs.append(dma_group(sX, [vXD, vXD + 1, vXD, vXD], [salu(f"s_add_u32 s{sTmp}, s{sW14K}, s90"), salu("s_lshl_b32 s91, s90, 12")], [],
                            sTmp, (sW2K, ((i // 2) % 3) * 8192), ("Q", i), cfg.w_flags)[:2])
        p0 = [salu(f"s_add_u32 s{sTmp}, s{sW64K}, s91"), salu("s_add_u32 s90, s90, 128")]
        p1 = [salu(f"s_add_u32 s{sTmp}, s{sTmp}, 512"), salu("s_cmp_eq_u32 s90, 896"), salu("s_cselect_b32 s90, 0, s90")]
    else:
        p0 = [salu(f"s_add_u32 s{sTmp}, s{sTmp}, {32*8192 - 512}")]
        p1 = [salu(f"s_add_u32 s{sTmp}, s{sTmp}, 512")]
    gs.append(dma_group(sWQ, [vWD + k for k in range(4)], p0, [], sTmp, (sW4K, KRING + sl), ("Q", i), cfg.w_flags))
    gs.append(dma_group(sWQ, [vWD + k for k in range(4)], p1, [], sTmp, (sW4K, VRING + sl), ("Q", i), cfg.w_flags))
    return gs

def sm_instrs(n, fix=False):
    par = n % 2
    out = []; pend = []
    k = 0
    for qb in range(2):
        for kb in range(2):
            for hp in range(2):
                s0 = sreg(par, kb, qb) + 2 * hp
                t0 = vT + (2 * k) % 8; t1 = t0 + 1
                ps = vPS + qb
                if fix:
                    out.append(valu(f"v_add_f32 v{s0}, v{NEGM+4*qb}, v{s0}", rd=V(s0)+V(NEGM+4*qb), wr=V(s0)))
                    out.append(valu(f"v_add_f32 v{s0+1}, v{NEGM+4*qb}, v{s0+1}", rd=V(s0+1)+V(NEGM+4*qb), wr=V(s0+1)))
                out.append(trans(f"v_exp_f32 v{t0}, v{s0}", rd=V(s0), wr=V(t0)))
                if pend: out.append(pend.pop(0))
                out.append(trans(f"v_exp_f32 v{t1}, v{s0+1}", rd=V(s0+1), wr=V(t1)))
                out += pend; pend = []
                if kb == 0 and hp == 0:
                    pend.append(valu(f"v_add_f32 v{ps}, v{t0}, v{t1}", rd=V(t0, 2), wr=V(ps)))
                else:
                    pend.append(valu(f"v_add_f32 v{ps}, v{ps}, v{t0}", rd=V(t0)+V(ps), wr=V(ps)))
                    pend.append(valu(f"v_add_f32 v{ps}, v{ps}, v{t1}", rd=V(t1)+V(ps), wr=V(ps)))
                p = P_[par] + 4 * qb + 2 * kb + hp
                pend.append(valu(f"v_cvt_pk_bf16_f32 v{p}, v{t0}, v{t1}", rd=V(t0, 2), wr=V(p)))
                k += 1
    out += pend
    return out

def xlane(op, r, tmp):
    o = []
    for sw in ("v_permlane32_swap_b32", "v_permlane16_swap_b32"):
        o.append(valu(f"v_mov_b32 v{tmp}, v{r}", rd=V(r), wr=V(tmp)))
        o.append(perm(f"{sw} v{r}, v{tmp}", rd=V(r)+V(tmp), wr=V(r)+V(tmp)))
        o.append(valu(f"{op} v{r}, v{r}, v{tmp}", rd=V(r)+V(tmp), wr=V(r)))
    return o

def rowmax_instrs(par, qb, d, tmp):
    a = sreg(par, 0, qb); b = sreg(par, 1, qb)
    o = [valu(f"v_max3_f32 v{d}, v{a}, v{a+1}, v{a+2}", rd=V(a, 3), wr=V(d)),
         valu(f"v_max3_f32 v{d}, v{d}, v{a+3}, v{b}", rd=V(a+3)+V(b)+V(d), wr=V(d)),
         valu(f"v_max3_f32 v{d}, v{d}, v{b+1}, v{b+2}", rd=V(b+1, 2)+V(d), wr=V(d)),
         valu(f"v_max_f32 v{d}, v{d}, v{b+3}", rd=V(b+3)+V(d), wr=V(d))]
    return o + xlane("v_max_f32", d, tmp)

def zipl(a, b):
    o = []
    for i in range(max(len(a), len(b))):
        if i < len(a): o.append(a[i])
        if i < len(b): o.append(b[i])
    return o

def ob_reg(t, qb):
    base = [S_[0], S_[0] + 8, S_[1], S_[1] + 8, NEGM, 64, P_[0], P_[1]][t]
    return base + 4 * qb

def obq(hd, t, qb): return (0 if hd == 0 else 192) + (t * 2 + qb) * 4

def build_bodies(cfg):
    B = []
    def xf(i, qb): return XF + ((i % 4) * 2 + qb) * 4
    for items in [[i] for i in range(12)] + [[12, 13]]:
        b = Body(f"qp{items[0]}")
        for i in items:
            for qb in range(2):
                b.reads.append((("X", i, qb), [("ds_read_b128", vXA + i % 2, ((i // 2) % 3) * 8192 + qb * 2048, 0, 4)], xf(i, qb)))
        for be in range(16):
            for i in items:
                b.reads.append((("WQ", i, be), [("ds_read_b64_tr_b16", vQA + be % 8, kslot(i - 14) + 4*jj * 512 + (be // 8) * 256, 2*jj, 2) for jj in range(2)], None))
            if len(items) == 1: o = [(items[0], be % 2), (items[0], 1 - be % 2)]
            else: o = [(12, 0), (13, 0), (13, 1), (12, 1)] if be % 2 == 0 else [(12, 1), (13, 1), (13, 0), (12, 0)]
            for i, qb in o:
                d = oreg(be, qb)
                b.mf.append((d, ("WQ", i, be), ar(xf(i, qb), 4), Areg(xf(i, qb), 4), "0" if i == 0 else vr(d, 4), [] if i == 0 else V(d, 4), [("X", i, qb)]))
        b.need = [("Q", i) for i in items]
        i = items[0]
        if i <= 9: b.dma = g_stage(i + 4, cfg)
        elif i == 10: b.dma = [g_k(0, cfg), g_v(0, cfg)]
        elif i == 11: b.dma = [g_k(1, cfg), g_v(1, cfg)]
        else: b.dma = [g_k(2, cfg), g_k(3, cfg)]
        B.append(b)
    b = B[12]
    for t in range(8):
        per = []
        for qb in range(2):
            ins = []
            e = (vE if t % 2 == 0 else vT) + 4 * qb
            for the in range(2):
                d = oreg(2 * t + the, qb)
                if cfg.pkq:
                    for k in (0, 2):
                        ins.append(valu(f"v_pk_mul_f32 v[{d+k}:{d+k+1}], v[{d+k}:{d+k+1}], s[{sScale}:{sScale+1}] op_sel_hi:[1,0]", rd=V(d+k, 2), wr=V(d+k, 2)))
                else:
                    for k in range(4):
                        ins.append(valu(f"v_mul_f32 v{d+k}, s{sScale}, v{d+k}", rd=V(d+k), wr=V(d+k)))
                for hp in range(2):
                    ins.append(valu(f"v_cvt_pk_bf16_f32 v{e+2*the+hp}, v{d+2*hp}, v{d+2*hp+1}", rd=V(d+2*hp, 2), wr=V(e+2*the+hp)))
            for sw in ("v_permlane32_swap_b32", "v_permlane16_swap_b32"):
                for hp in range(2):
                    ins.append(perm(f"{sw} v{e+hp}, v{e+2+hp}", rd=V(e+hp)+V(e+2+hp), wr=V(e+hp)+V(e+2+hp)))
            q = QF + (t * 2 + qb) * 4
            for k in range(4):
                ins.append(valu(f"v_accvgpr_write_b32 a{q+k}, v{e+k}", rd=V(e+k), wr=Areg(q+k)))
            per.append(ins)
        g0 = 8 * t + 7 + 4
        g1 = max(g0, min(g0 + cfg.QCW, 64 + 8 * (t // 2) - 2))
        b.valu.append((zipl(per[0], per[1]), g0, g1))
    rest0 = []; nrd = [0]
    for n in range(-2, 64):
        b = Body(f"a{n}")
        qk = []; pv = []
        if n + 2 <= 63:
            m = n + 2
            order = [(kb, t) for kb in range(2) for t in range(8)] if m > 0 else [(kb, t) for tg in range(4) for kb in range(2) for t in (2*tg, 2*tg+1)]
            for kb, t in order:
                key = ("K", m, kb, t)
                rd = (key, [("ds_read_b128", vKB + t % 4, kslot(m) + kb * 8192 + (t // 4) * 256, 0, 4)], None)
                mfs = []
                for qb in range(2):
                    S = sreg(m % 2, kb, qb)
                    if t == 0: c = ("0", []) if m < 2 else (vr(NEGM + 4*qb, 4), V(NEGM + 4*qb, 4))
                    else: c = (vr(S, 4), V(S, 4))
                    q = QF + (t * 2 + qb) * 4
                    mfs.append((S, key, ar(q, 4), Areg(q, 4), c[0], c[1], []))
                qk.append((rd, mfs))
            b.need.append(("K", m))
        if n >= 0:
            for db in range(16):
                key = ("V", n, db)
                rd = (key, [("ds_read_b64_tr_b16", vVB + db % 8, vslot(n) + jj * 8192 + (db // 8) * 256, 2*jj, 2) for jj in range(2)], None)
                mfs = []
                for qb in range(2):
                    d = oreg(db, qb); P = P_[n % 2] + 4 * qb
                    mfs.append((d, key, vr(P, 4), V(P, 4), "0" if n == 0 else vr(d, 4), [] if n == 0 else V(d, 4), []))
                pv.append((rd, mfs))
            b.need.append(("V", n))
        C = cfg.chain
        m = n + 2
        for rd, mfs in zipl(qk, pv): b.reads.append(rd)
        seq = []
        Cq = C if m > 0 else 2
        for k in range(0, 16, C):
            if qk:
                for k2 in range(k, k + C, Cq):
                    for qb in range(2):
                        zs = list(range(Cq))
                        if cfg.snake and qb == 1: zs.reverse()
                        for z in zs: seq.append(("q", qk[k2 + z][1][qb], qb))
            if pv:
                for z in range(C):
                    seq.append(("p", pv[k + z][1][z % 2], z % 2)); seq.append(("p", pv[k + z][1][1 - z % 2], 1 - z % 2))
        seen = set()
        for kind, mf, qb in seq:
            d = mf[0]
            first = d not in seen
            seen.add(d)
            if kind == "q" and first: c = ("0", []) if m < 2 else (vr(NEGM + 4*qb, 4), V(NEGM + 4*qb, 4))
            elif kind == "p" and n == 0: c = ("0", [])
            else: c = (vr(d, 4), V(d, 4))
            b.mf.append((mf[0], mf[1], mf[2], mf[3], c[0], c[1], mf[6]))
        G = len(b.mf)
        if n == -1:
            ins = zipl(rowmax_instrs(0, 0, vD, vF), rowmax_instrs(0, 1, vINV, vINV + 1))
            for qb, d in ((0, vD), (1, vINV)):
                for k in range(4):
                    ins.append(valu(f"v_sub_f32 v{NEGM+4*qb+k}, 0, v{d}", rd=V(d), wr=V(NEGM+4*qb+k)))
            ins += sm_instrs(0, fix=True)
            b.valu.append((ins, 3, G - 1))
        elif 0 <= n <= 62:
            ins = []
            for qb in range(2):
                if n == 0: ins.append(valu(f"v_mov_b32 v{vL+qb}, v{vPS+qb}", rd=V(vPS+qb), wr=V(vL+qb)))
                else: ins.append(valu(f"v_add_f32 v{vL+qb}, v{vL+qb}, v{vPS+qb}", rd=V(vPS+qb)+V(vL+qb), wr=V(vL+qb)))
            ins += sm_instrs(n + 1, fix=(n == 0))
            ins.append(valu(f"v_max_f32 v{vD}, v{vPS}, v{vPS+1}", rd=V(vPS, 2), wr=V(vD)))
            ins.append(valu(f"v_cmp_nge_f32 vcc, 0x46800000, v{vD}", rd=V(vD), wr=[("vcc", 0)]))
            b.valu.append((ins, 3 if n == 0 else 0, G - 2))
            b.tail.append(I(f"RARE {(n+1)%2} {1 if n + 2 <= 63 else 0}", "rare"))
        elif n == 63:
            ins = []
            for qb in range(2):
                ins.append(valu(f"v_add_f32 v{vL+qb}, v{vL+qb}, v{vPS+qb}", rd=V(vPS+qb)+V(vL+qb), wr=V(vL+qb)))
            ins += zipl(xlane("v_add_f32", vL, vD), xlane("v_add_f32", vL + 1, vF))
            for qb in range(2):
                ins.append(trans(f"v_rcp_f32 v{vINV+qb}, v{vL+qb}", rd=V(vL+qb), wr=V(vINV+qb)))
            b.valu.append((ins, 0, cfg.XG0 - 1))
            def conv(t):
                ins = []; wr = []
                for qb in range(2):
                    o = ob_reg(t, qb)
                    for the in range(2):
                        d = oreg(2 * t + the, qb)
                        if cfg.pk:
                            for k in (0, 2):
                                ins.append(valu(f"v_pk_mul_f32 v[{d+k}:{d+k+1}], v[{d+k}:{d+k+1}], v[{vINV}:{vINV+1}] op_sel:[0,{qb}] op_sel_hi:[1,{qb}]", rd=V(d+k, 2)+V(vINV, 2), wr=V(d+k, 2)))
                        else:
                            for k in range(4):
                                ins.append(valu(f"v_mul_f32 v{d+k}, v{vINV+qb}, v{d+k}", rd=V(d+k)+V(vINV+qb), wr=V(d+k)))
                        for hp in range(2):
                            ins.append(valu(f"v_cvt_pk_bf16_f32 v{o+2*the+hp}, v{d+2*hp}, v{d+2*hp+1}", rd=V(d+2*hp, 2), wr=V(o+2*the+hp)))
                    wr.append(I(f"ds_write_b128 v{vEXW}, v[{o}:{o+3}] offset:{(t*2+qb)*1024}", "dsv", rd=V(o, 4)+V(vEXW), tag=("EXW", t, qb)))
                return ins, wr
            g = cfg.XG0
            prevw = []
            for t in range(8):
                ins, wr = conv(t)
                h = len(ins) // 2
                for qb in range(2):
                    u = ins[h*qb:h*qb + h]
                    if cfg.pk:
                        mul = [x for x in u if x.t.startswith("v_pk")]; cv = [x for x in u if not x.t.startswith("v_pk")]
                        parts = [prevw + mul, cv]
                    else: parts = [prevw + u[:h//2], u[h//2:]]
                    prevw = [wr[qb]]
                    if g + 1 <= 30:
                        b.fixed += [(g, parts[0]), (g + 1, parts[1])]; g += 2
                    else: b.tail += parts[0] + parts[1]
            b.tail += prevw
            b.tail.append(I("XBAR", "xbar"))
            for t, qb in [(t, 0) for t in range(4)] + [(t, 1) for t in (3, 2, 1, 0)] + [(t, 0) for t in range(4, 8)] + [(t, 1) for t in (7, 6, 5, 4)]:
                if True:
                    r = obq(0, t, qb)
                    x = I(f"ds_read_b128 {ar(r, 4)}, v{vEXR} offset:{(t*2+qb)*1024}", "dsv", rd=V(vEXR), wr=Areg(r, 4), tag=("OB", 0, t, qb))
                    if nrd[0] < cfg.XRD: b.tail.append(x)
                    else: rest0.append(x)
                    nrd[0] += 1
        if n + 2 <= 63:
            m = n + 6
            if m <= 63: b.dma.append(g_k(m, cfg))
            elif m - 64 != 3: b.dma.append(g_wo(m - 64, 0, cfg))
        if n < 0: b.dma.append(g_v(n + 4, cfg))
        if n >= 0:
            m = n + 4
            if m <= 63: b.dma.append(g_v(m, cfg))
            elif m - 64 < 2: b.dma.append(g_wo(m - 64, 1, cfg))
            elif m - 64 == 3: b.dma.append(g_wo(2, 1, cfg))
        B.append(b)
    def accreg(j, nbl, qb): return O0 + 16 * (j % 2) + (nbl * 2 + qb) * 4
    def drain(j):
        ins = []
        for qb in range(2):
            st = STG + 8 * (j % 2) + 4 * qb
            for nbl in range(2):
                a = accreg(j, nbl, qb)
                for hp in range(2):
                    ins.append(valu(f"v_cvt_pk_bf16_f32 v{st+2*nbl+hp}, v{a+2*hp}, v{a+2*hp+1}", rd=V(a+2*hp, 2), wr=V(st+2*nbl+hp)))
            off = f" offset:{qb*1024}" if qb else ""
            x = I(f"buffer_store_dwordx4 v[{st}:{st+3}], v{vST}, s[{sPT}:{sPT+3}], s{sTmp} offen{off}{cfg.st_flags}", "store",
                  rd=V(st, 4)+V(vST), tag=("ST", j))
            if qb == 0: x.pre = [salu(f"s_mov_b32 s{sTmp}, {2048*j}")]
            ins.append(x)
        return ins
    C = max(1, cfg.pchain)
    for i in range(14):
        j, hd = i // 2, i % 2
        b = Body(f"op{i}")
        for tg in range(0, 8, C):
            for nbl in range(2):
                keys = []
                for t in range(tg, tg + C):
                    key = ("WO", i, t, nbl); keys.append((t, key))
                    b.reads.append((key, [("ds_read_b64_tr_b16", vQA + (t // 4) * 2 + nbl, wslot(i, t // 4) + (32*(t % 4) + 16*jj) * 128, 2*jj, 2) for jj in range(2)], None))
                qbs = [0, 1] if nbl == 0 else [1, 0]
                for qi, qb in enumerate(qbs):
                    ks = keys if qi == 0 else keys[::-1]
                    for ki, (t, key) in enumerate(ks):
                        d = accreg(j, nbl, qb); o = obq(hd, t, qb)
                        z = (hd == 0 and tg == 0 and ki == 0)
                        b.mf.append((d, key, ar(o, 4), Areg(o, 4), "0" if z else vr(d, 4), [] if z else V(d, 4), [("OB", hd, t, qb)] if i < 2 else []))
        b.need = [("W", i, 0), ("W", i, 1)]
        if i == 0:
            B[-1].reads += b.reads[:cfg.XPRE]; b.reads = b.reads[cfg.XPRE:]; b.late = True
            B[-1].need += b.need
            rd = []
            for t in range(8):
                for qb in range(2):
                    r = obq(1, t, qb)
                    rd.append(I(f"ds_read_b128 {ar(r, 4)}, v{vEXR+1} offset:{(t*2+qb)*1024}", "dsv", rd=V(vEXR+1), wr=Areg(r, 4), tag=("OB", 1, t, qb)))
            if rest0: b.valu.append((rest0, 0, 8))
            b.valu.append((rd, 9, 26))
            b.dma = [g_wo(3, 0, cfg), g_wo(3, 1, cfg)]
        if hd == 0 and j >= 1:
            dr = drain(j - 1)
            cv = [x for x in dr if x.k != "store"]; sts = [x for x in dr if x.k == "store"]
            b.valu.append((cv, 3, 15))
            g0 = cfg.SG0 if i != 10 else 32 + 18
            b.valu.append((sts, g0, g0 + 10))
        if i == 12: b.need = b.need + [("W", 13, 0), ("W", 13, 1)]
        if i == 13: b.need = []
        if i + 4 <= 13: b.dma = b.dma + [g_wo(i + 4, 0, cfg), g_wo(i + 4, 1, cfg)]
        if i == 13: b.tail += drain(6)
        if i == 1: b.fronts = tail_prep_salu(cfg)
        if i == 3: b.valu.append((tail_prep_valu(cfg), 0, 28))
        if i == cfg.FLA + 1: b.need = b.need + [("ST", 3)]
        if i == cfg.FLA: b.post_bar = [I("buffer_store_dwordx2 v[2:3], v12, s[12:15], 0 offen sc1", "store", rd=V(2, 2)+V(12), tag=("FL", 0))]
        B.append(b)
    return B

def schedule(B, cfg, pre_dma, first):
    starts = []; M = 0
    for b in B:
        starts.append(M); M += len(b.mf)
    front = {g: [] for g in range(-1, M)}
    fill = {g: [] for g in range(-1, M)}
    bp = [starts[i] + len(B[i].mf) - (cfg.LEAD if (len(B[i].mf) == 64 and B[i].name[0] == "a") else 16) - 1 for i in range(len(B))]
    fragreg = {}; first_use = {}; last_use = {}
    idx = 0
    for i, b in enumerate(B):
        for key, parts, fixed in b.reads:
            if fixed is None:
                fragreg[key] = FR + 4 * (idx % cfg.NB); idx += 1
        for g, mf in enumerate(b.mf):
            for k in [mf[1]] + mf[6]:
                first_use.setdefault(k, starts[i] + g); last_use[k] = starts[i] + g
    front[-1].append(I("BAR", "bar", tag=B[0].need))
    for i, b in enumerate(B[:-1]):
        if B[i + 1].need: front[bp[i]].append(I("BAR", "bar", tag=B[i + 1].need))
    reserved = {}
    lazy = set(); nodrain = set()
    if cfg.hops:
        for r, g in enumerate(cfg.hops.split(",")): front[int(g)].append(I(f"HOPR {r}", "hop"))
    elif cfg.hop == 1: front[bp[0] - 1].append(I("HOP", "hop"))
    elif cfg.hop >= 3: front[cfg.hop].append(I("HOP", "hop"))
    if cfg.hop == 2: front[-1].insert(0, I("HOP", "hop"))
    for i, b in enumerate(B):
        if b.fronts:
            flat = [x for chunk in b.fronts for x in chunk]
            g = starts[i] + 2; k = 0
            while k < len(flat):
                n = 2
                if k + n < len(flat) and flat[k + n].t.startswith("s_addc"): n += 1
                front[g] += flat[k:k + n]; k += n; g += 1
        if b.post_bar: reserved[bp[i] + 1] = b.post_bar
        for g, x in b.fixed: reserved[starts[i] + g] = x
    if cfg.psync:
        names = [b.name for b in B]
        i0, i1 = names.index(cfg.sync0), names.index(cfg.sync1)
        lag = 1 if cfg.psync == 1 else 2
        for i in range(i0, i1 + 1):
            r = sOld + (i % lag)
            if i >= i0 + lag and not cfg.nospin:
                front[bp[i] + 1] += [salu(f"s_mul_i32 s{sDif}, s{r}, s{sSign}"), I("SYNC", "sync")]
            if i <= i1 - lag:
                front[bp[i] + 2] += [salu(f"s_mov_b32 s{r}, s{sSign}"), salu(f"s_atomic_add s{r}, s[{sSy}:{sSy+1}], 0x0 glc")]
                if lag == 2:
                    lazy.add(bp[i + 1])
                    reserved[bp[i + 1] - 3] = [I(f"ds_read_b32 a251, v{vKB}", "dsv", rd=V(vKB), tag=("DUMMY", i))]
    R = []; Mq = []; Vq = []
    holder = {}
    nd = sum(len(grp) for grp in first); k = 0
    for grp in first:
        for x in grp:
            x.early = 0; x.ideal = k * 12 / nd; x.dead = bp[0] - 1 - (nd - 1 - k)
            Mq.append(x); k += 1
    for i, b in enumerate(B):
        w0 = bp[i - 1] if i > 0 else -17
        if b.late: w0 = starts[i]
        w1 = bp[i] - ((cfg.DEAD if len(b.mf) == 64 else cfg.DEAD2) if (b.dma or b.after_reads or not b.name.startswith("op")) else 1) if i < len(B) - 1 else starts[i] + len(b.mf) - 12
        if b.name == "a63": w1 = starts[i] + cfg.XG0 - 1
        if b.name.startswith("op") and not b.dma and i < len(B) - 1: nodrain.add(bp[i])
        flat = []
        for key, parts, fixed in b.reads:
            reg = fixed if fixed is not None else fragreg[key]
            for (op, addr, off, sub, n) in parts:
                x = I(f"{op} {ar(reg+sub, n)}, v{addr} offset:{off}", "d" if n == 4 else "t", rd=V(addr), wr=Areg(reg+sub, n), tag=key)
                x.early = w0
                h = holder.get(reg)
                if h is not None and h != key: x.early = max(x.early, last_use[h])
                x.dead = min(w1, first_use[key] - 7)
                flat.append(x)
            holder[reg] = key
        n = len(flat)
        for k, x in enumerate(flat):
            x.ideal = w0 + k * (w1 - 2 - w0) / n
        flat[-1].post = b.after_reads
        R += flat
        nd = sum(len(grp) for grp in b.dma)
        if nd:
            nxt = bp[i + 1] if i + 1 < len(B) else M - 1
            span = min(cfg.QSPAN if b.name.startswith('qp') else cfg.DMASPAN, nxt - bp[i] - 4)
            k = 0
            for grp in b.dma:
                for x in grp:
                    x.early = bp[i] + 1; x.ideal = bp[i] + 1 + cfg.H + k * span / nd; x.dead = nxt - 1 - (nd - 1 - k)
                    Mq.append(x); k += 1
        for ins, g0, g1 in b.valu:
            g0 += starts[i]; g1 = min(g1 + starts[i], M - 1)
            tot = sum(slots(x) for x in ins); acc = 0
            for x in ins:
                x.early = g0; x.ideal = g0 + acc * max(0, (g1 - 1 - g0)) / tot; x.dead = g1
                acc += slots(x)
            Vq.append(ins)
    allv = []
    for li, ins in enumerate(Vq):
        for k, x in enumerate(ins): allv.append((x.ideal, li, k, x))
    allv.sort(key=lambda z: (z[0], z[1], z[2]))
    Vs = [z[3] for z in allv]
    for q in (R, Mq, Vs):
        for k in range(len(q) - 2, -1, -1): q[k].dead = min(q[k].dead, q[k + 1].dead)
    ri = mi = vi = 0
    while ri < len(R) and R[ri].ideal < 0:
        fill[-1].append(R[ri]); ri += 1
    last_dma = -10
    over = 0
    extra_v = []
    for g in range(M):
        def u(x):
            if x is None or x.early > g: return None
            v = g - x.ideal + cfg.H
            return v if v > 0 else None
        def at(q, i): return q[i] if i < len(q) else None
        vq = extra_v + Vs[vi:vi + 2]
        R0, R1, M0 = at(R, ri), at(R, ri + 1), at(Mq, mi)
        V0, V1 = at(vq, 0), at(vq, 1)
        if extra_v and R0 is not None and any(r in y.wr for y in extra_v for r in R0.rd): R0 = R1 = None
        if R0 is not None and R0.post: R1 = None
        if R1 is not None and extra_v and any(r in y.wr for y in extra_v for r in R1.rd): R1 = None
        ur0, ur1, um, uv0, uv1 = u(R0), u(R1), u(M0), u(V0), u(V1)
        if uv0 is not None: uv0 = min(uv0, cfg.VCAP)
        if uv1 is not None: uv1 = min(uv1, cfg.VCAP)
        plain = lambda x: x.k == "valu"
        opts = [(0.0, [])]
        if um is not None: opts.append((2 * um, [M0]))
        if uv0 is not None:
            if slots(V0) == 2: opts.append((2 * uv0, [V0]))
            else:
                opts.append((uv0, [V0]))
                if uv1 is not None and plain(V1): opts.append((uv0 + uv1, [V0, V1]))
                if ur0 is not None and plain(V0): opts.append((ur0 + uv0, [R0, V0]))
        if ur0 is not None:
            opts.append((ur0, [R0]))
            if ur1 is not None:
                opts.append((ur0 + ur1 - (cfg.TTPEN if R0.k == "t" else 0), [R0, R1]))
        sc, ch = max(opts, key=lambda z: z[0])
        ch = list(ch)
        if g in reserved:
            ch = []; fill[g] += reserved[g]
        def take(x):
            nonlocal ri, mi, vi, last_dma
            if x.k in ("d", "t"):
                ri += 1
                for y in x.post:
                    y.early = g + 1; y.ideal = g - 2; y.dead = g + cfg.DEAD - 1
                extra_v.extend(x.post)
            elif x.k == "dma": mi += 1
            elif extra_v and x is extra_v[0]: extra_v.pop(0)
            else: vi += 1
            if x.pre:
                if last_dma < g - 1 and not any(y.k == "bar" for y in front[g]) and g > 0: front[g - 1] += x.pre
                elif last_dma < g: front[g] += x.pre
                else: fill[g] += x.pre
            if x.k in ("dma", "store"): last_dma = g
            fill[g].append(x)
        for x in ch: take(x)
        while True:
            cand = None
            if extra_v and extra_v[0].dead <= g and extra_v[0].early <= g: cand = extra_v[0]
            elif ri < len(R) and R[ri].dead <= g and not extra_v: cand = R[ri]
            elif mi < len(Mq) and Mq[mi].dead <= g: cand = Mq[mi]
            elif vi < len(Vs) and Vs[vi].dead <= g: cand = Vs[vi]
            if cand is None: break
            assert cand.early <= g, (cand.t, cand.early, cand.dead, g)
            take(cand); over += slots(cand)
    assert ri == len(R) and mi == len(Mq) and vi == len(Vs), (ri, len(R), mi, len(Mq), vi, len(Vs))
    for i, b in enumerate(B):
        for x in b.tail:
            fill[starts[i] + len(b.mf) - 1] += x.pre + [x]
    sys.stderr.write(f"forced slots {over}\n")
    out = []
    lg = []; lg_done = 0; vm = []; lastread = {}; issued = {}
    cur = []
    def emit(lst, g):
        nonlocal lg_done
        for x in lst:
            if x.k == "bar":
                hit = lambda tg, want: tg == want or (tg[0] == "MULTI" and want in tg[1:])
                need = max(i2 for i2, tg in enumerate(vm) if any(hit(tg, w) for w in x.tag))
                for w in x.tag: assert any(hit(tg, w) for tg in vm), (w, g)
                cls = lambda tg: "st" if tg[0] in ("ST", "FL") else "reg" if tg[0] == "T" else "lds"
                n = 63
                for c in {cls(w) for w in x.tag}:
                    nd_ = max(i2 for i2, tg in enumerate(vm) if cls(tg) == c and any(hit(tg, w) for w in x.tag))
                    if cfg.strict: n = min(n, sum(1 for tg in vm[nd_ + 1:] if cls(tg) == c and tg[0] != "FL"))
                    else: n = min(n, len(vm) - 1 - need)
                if g in lazy: assert lg[-1][0][0] == "DUMMY", (lg[-1], g)
                if g in nodrain:
                    cur.append(I(f"s_waitcnt vmcnt({n})", "wait"))
                else:
                    cur.append(I(f"s_waitcnt vmcnt({n}) lgkmcnt({1 if g in lazy else 0})", "wait"))
                    lg_done = len(lg)
                cur.append(I("s_barrier", "salu"))
            elif x.k == "xbar":
                cur.append(I("s_waitcnt lgkmcnt(0)", "wait")); cur.append(I("s_barrier", "salu")); lg_done = len(lg)
            elif x.k in ("d", "t", "dsv"):
                lg.append((x.tag, g)); lastread[x.tag] = len(lg) - 1; cur.append(x)
                issued[x.tag] = issued.get(x.tag, 0) + 1
            elif x.k in ("dma", "store"):
                vm.append(x.tag); cur.append(x)
            else: cur.append(x)
    nparts = {}
    for x in R: nparts[x.tag] = nparts.get(x.tag, 0) + 1
    def lwait(mf, g, strict):
        nonlocal lg_done
        keys = [mf[1]] + mf[6]
        for k in keys:
            if issued.get(k, 0) < nparts.get(k, 1):
                assert not strict, ("operand not read", k, g)
                return
        needi = max(lastread[k] for k in keys)
        if needi >= lg_done:
            n_need = len(lg) - 1 - needi
            n_safe = sum(1 for (_, gg) in lg[lg_done:] if gg > g - cfg.SAFE)
            n = min(n_need, max(n_safe, 2), 15)
            cur.append(I(f"s_waitcnt lgkmcnt({n})", "wait"))
            lg_done = len(lg) - n
    for grp in pre_dma:
        for x in grp:
            emit(x.pre, -1); emit([x], -1)
    emit(front[-1], -1); emit(fill[-1], -1)
    out.append(("pre", cur))
    allmf = [mf for b in B for mf in b.mf]
    for i, b in enumerate(B):
        cur = []
        for gi, mf in enumerate(b.mf):
            g = starts[i] + gi
            d, key, bt, brs, ct, crs, extra = mf
            lwait(mf, g, True)
            fr = fragreg[key]
            cur.append(I(f"{MF} {vr(d,4)}, {ar(fr,4)}, {bt}, {ct}", "mfma", rd=Areg(fr, 4) + brs, wr=V(d, 4), c=crs))
            emit(front[g], g)
            if g + 1 < M: lwait(allmf[g + 1], g, False)
            emit(fill[g], g)
        out.append((b.name, cur))
    return out

def hazard_pass(segs):
    pos = 0; res = []; lastw = {}; lastc = {}; lasts = {}; pend = {}; nn = 0
    for name, lst in segs:
        o = []
        for x in lst:
            need = 0
            def req(p, d):
                nonlocal need
                need = max(need, d - (pos - p - 1))
            isv = x.k in ("valu", "trans", "perm")
            for r in x.rd + x.c:
                if r in lastw:
                    p, k, full = lastw[r]
                    if k == "mfma":
                        if x.k == "mfma":
                            if r in x.rd: req(p, 8)
                            elif tuple(x.c) != full: req(p, 6)
                        else: req(p, 8)
                    elif k in ("valu", "trans", "perm"):
                        if x.k in ("mfma", "perm"): req(p, 2)
                        if k == "trans" and x.k != "trans": req(p, 1)
                    elif k == "salu" and r == ("m0", 0): req(p, 1)
            for r in x.wr:
                if r in lastw and lastw[r][1] == "mfma" and (x.k != "mfma" or tuple(x.c) != lastw[r][2]): req(lastw[r][0], 8)
                if isv and r in lastc: req(lastc[r], 3)
                if r in lasts: req(lasts[r], 2)
            if x.k in ("d", "t"):
                for r in x.wr:
                    assert r not in pend, ("fragment overwritten before use", name, x.t)
                    pend[r] = 1
            if x.k == "mfma":
                for r in x.rd: pend.pop(r, None)
            while need > 0:
                k = min(need, 16)
                o.append(I(f"s_nop {k-1}", "nop")); pos += k; need -= k; nn += 1
            o.append(x)
            for r in x.wr: lastw[r] = (pos, x.k, tuple(x.wr))
            if x.k == "mfma":
                for r in x.c: lastc[r] = pos
            if x.k == "store":
                for r in x.rd: lasts[r] = pos
            pos += 1
        res.append((name, o))
    return res, nn

def srd(A, d, p, offreg, size):
    A(f"s_add_u32 s{d}, s{p}, s{offreg}")
    A(f"s_addc_u32 s{d+1}, s{p+1}, 0")
    A(f"s_and_b32 s{d+1}, s{d+1}, 0xffff")
    A(f"s_mov_b32 s{d+2}, {size}")
    A(f"s_mov_b32 s{d+3}, 0x20000")

def setup_code(cfg):
    L = []; A = L.append
    A("s_load_dwordx16 s[44:59], s[0:1], 0")
    A("s_load_dwordx4 s[60:63], s[0:1], 64")
    A("s_load_dwordx2 s[64:65], s[0:1], 96")
    A("s_cmp_ge_u32 s2, 256")
    A("s_cbranch_scc1 L_exit")
    if cfg.stamp:
        A("s_memtime s[80:81]"); A("s_memrealtime s[94:95]")
    A("v_lshrrev_b32 v1, 6, v0")
    A("v_and_b32 v64, 63, v0")
    A(f"v_readfirstlane_b32 s{sWave}, v1")
    A("s_and_b32 s66, s2, 7"); A("s_lshr_b32 s67, s2, 3")
    A("s_lshr_b32 s68, s66, 2")
    A("s_and_b32 s69, s67, 1")
    A("s_lshr_b32 s70, s67, 1")
    A("s_and_b32 s71, s70, 7")
    A("s_lshr_b32 s70, s70, 3")
    A("s_and_b32 s72, s66, 3"); A("s_lshl_b32 s72, s72, 1"); A("s_add_u32 s72, s72, s70")
    A("s_lshl_b32 s73, s72, 1"); A("s_add_u32 s73, s73, s69")
    if cfg.rot:
        if cfg.rotkey == 2: A("s_lshl_b32 s90, s72, 1"); A("s_add_u32 s90, s71, s90")
        else: A(f"s_add_u32 s90, s71, s{73 if cfg.rotkey == 0 else 72}")
        A(f"s_and_b32 s90, s90, {cfg.rotmask}"); A(f"s_mul_i32 s90, s90, {128*cfg.rot}"); A("s_min_u32 s90, s90, 768")
    A(f"s_lshl_b32 s{sW4K}, s{sWave}, 12")
    A(f"s_lshl_b32 s{sW64K}, s{sWave}, 16")
    A(f"s_mul_i32 s{sW14K}, s{sWave}, 14336"); A(f"s_lshl_b32 s{sW2K}, s{sWave}, 11")
    A(f"s_mul_i32 s{sW28K}, s{sWave}, 28672")
    A(f"s_sub_u32 s{sKoff}, s{sW4K}, 16384")
    A(f"s_sub_u32 s{sVoff}, s{sW4K}, 16384")
    if cfg.ilv:
        A(f"s_lshl_b32 s86, s{sWave}, 10"); A(f"s_sub_u32 s{sKoff}, s86, 4096"); A(f"s_sub_u32 s{sVoff}, s86, 4096")
        A(f"s_lshl_b32 s87, s{sWave}, 1")
    A(f"s_mov_b32 s{sScale}, {f32bits(math.log2(math.e) / 16.0):#x}")
    A(f"s_and_b32 s76, s{sWave}, 1"); A("s_lshl_b32 s76, s76, 3")
    if "C" in cfg.touch:
        A("s_getpc_b64 s[20:21]")
        A("s_and_b32 s21, s21, 0xffff"); A("s_mov_b32 s22, CODE_BYTES"); A("s_mov_b32 s23, 0x20000")
        A("v_lshlrev_b32 v73, 7, v64")
        A(f"s_and_b32 s74, s67, 1"); A("s_lshl_b32 s74, s74, 2"); A(f"s_add_u32 s74, s74, s{sWave}"); A("s_lshl_b32 s74, s74, 13")
        A(f"buffer_load_dword a253, v73, s[20:23], s74 offen")
    A("v_lshrrev_b32 v65, 5, v64"); A("v_and_b32 v66, 31, v64")
    A("v_lshrrev_b32 v71, 3, v64"); A("v_and_b32 v72, 7, v64")
    A("v_mul_u32_u24 v73, 896, v71")
    A("v_lshrrev_b32 v74, 1, v71")
    A("v_xor_b32 v74, v74, v72")
    A("v_lshl_add_u32 v75, v74, 4, v73")
    A("v_xor_b32 v74, 4, v74")
    A("v_lshl_add_u32 v76, v74, 4, v73")
    for k in range(2):
        A(f"v_add_u32 v{vXD+k}, {k*(8*896-1024)}, v{75 + (k & 1)}")
    A("v_lshlrev_b32 v73, 1, v65"); A("v_xor_b32 v73, v73, v66"); A("v_xor_b32 v73, s76, v73")
    A("v_lshlrev_b32 v74, 13, v65")
    A("v_lshl_add_u32 v75, v73, 4, v74")
    A("v_xor_b32 v73, 4, v73")
    A("v_lshl_add_u32 v76, v73, 4, v74")
    for k in range(4):
        A(f"v_add_u32 v{vWD+k}, {k*(16384-1024)}, v{75 + (k & 1)}")
    A("s_waitcnt lgkmcnt(0)")
    if cfg.hstamp: A("s_memtime s[82:83]")
    A("s_cmp_eq_u32 s68, 0")
    for a, b in ((44, 54), (50, 60), (46, 56), (48, 58), (52, 62)):
        A(f"s_cselect_b32 s{a}, s{a}, s{b}"); A(f"s_cselect_b32 s{a+1}, s{a+1}, s{b+1}")
    A("s_lshl_b32 s74, s71, 1"); A("s_add_u32 s74, s74, s69"); A("s_mul_i32 s74, s74, 57344"); srd(A, sX, 44, 74, 57344)
    A("s_lshl_b32 s74, s72, 10"); A(f"s_sub_u32 s75, {448*8192}, s74"); srd(A, sWQ, 50, 74, "s75")
    return L

def touch_code(cfg):
    L = []
    A = lambda t: L.append(I(t, "raw"))
    T = lambda t: L.append(I(t, "dma", tag=("T", 0)))
    if "w" in cfg.touch:
        A("v_lshrrev_b32 v73, 2, v64"); A("v_min_u32 v73, 13, v73"); A("v_lshlrev_b32 v73, 13, v73")
        A("v_and_b32 v74, 3, v64"); A("v_lshl_add_u32 v73, v74, 7, v73")
        A(f"s_lshl_b32 s74, s71, 2"); A(f"s_add_u32 s74, s74, s{sWave}"); A(f"s_mul_i32 s74, s74, {14*8192}")
        T(f"buffer_load_dword a255, v73, s[{sWQ}:{sWQ+3}], s74 offen{cfg.t_flags}")
    if "x" in cfg.touch:
        A("v_min_u32 v73, 55, v64"); A("v_lshlrev_b32 v73, 7, v73")
        A("s_and_b32 s74, s73, 3"); A("s_lshl_b32 s74, s74, 2"); A(f"s_add_u32 s74, s74, s{sWave}"); A(f"s_mul_i32 s74, s74, {56*128}")
        T(f"buffer_load_dword a254, v73, s[{sX}:{sX+3}], s74 offen{cfg.t_flags}")
    if "c" in cfg.touch:
        A("s_getpc_b64 s[20:21]")
        A("s_and_b32 s21, s21, 0xffff"); A("s_mov_b32 s22, CODE_BYTES"); A("s_mov_b32 s23, 0x20000")
        A("v_lshlrev_b32 v73, 7, v64")
        A(f"s_and_b32 s74, s67, 1"); A("s_lshl_b32 s74, s74, 2"); A(f"s_add_u32 s74, s74, s{sWave}"); A("s_lshl_b32 s74, s74, 13")
        T(f"buffer_load_dword a253, v73, s[20:23], s74 offen")
    return L

def stouch_setup():
    L = []; A = L.append
    A("v_lshlrev_b32 v73, 13, v65"); A("v_lshl_add_u32 v80, v66, 4, v73")
    A("v_mul_u32_u24 v73, 896, v71"); A("v_lshl_add_u32 v81, v72, 4, v73")
    A(f"s_lshl_b32 s74, s71, 2"); A(f"s_add_u32 s74, s74, s{sWave}"); A("s_lshl_b32 s90, s74, 14")
    A("s_and_b32 s74, s73, 3"); A("s_lshl_b32 s74, s74, 2"); A(f"s_add_u32 s74, s74, s{sWave}"); A(f"s_mul_i32 s91, s74, {8*896}")
    return L
def stouch(st, cfg):
    a = I(f"buffer_load_dwordx4 a[240:243], v80, s[{sWQ}:{sWQ+3}], s92 offen{cfg.t_flags}", "dma", tag=("T", 2))
    a.pre = [salu(f"s_add_u32 s92, s90, {st*64*8192}")]
    return [a, I(f"buffer_load_dwordx4 a[244:247], v81, s[{sX}:{sX+3}], s91 offen offset:{128*st}{cfg.t_flags}", "dma", tag=("T", 2))]

def kd_code(cfg):
    L = []; A = L.append
    if cfg.hstamp == 2:
        A("s_memtime s[84:85]"); A(f"s_waitcnt vmcnt({cfg.npre})"); A("s_memtime s[86:87]")
    A("s_lshl_b32 s74, s71, 3"); A("s_add_u32 s74, s74, s72"); A("s_lshl_b32 s74, s74, 20")
    srd(A, sK, 46, 74, 1 << 20); srd(A, sV, 48, 74, 1 << 20)
    if cfg.pf:
        A("s_cmp_eq_u32 s69, 0"); A(f"s_cselect_b32 s84, s{sK}, s{sV}"); A(f"s_cselect_b32 s85, s{sK+1}, s{sV+1}")
        A(f"s_mov_b32 s86, {1 << 20}"); A("s_mov_b32 s87, 0x20000")
    A("v_xor_b32 v73, v65, v66"); A(f"v_xor_b32 v73, s{87 if cfg.ilv else 76}, v73"); A("v_lshlrev_b32 v74, 9, v65")
    for k in range(2 if cfg.ilv else 4):
        A(f"v_xor_b32 v75, {8*k if cfg.ilv else 2*k}, v73"); A(f"v_lshl_add_u32 v{vKD+k}, v75, 4, v74")
    return L

def setup_code2(cfg):
    L = []; A = L.append
    if cfg.hstamp == 1: A("s_memtime s[84:85]")
    A("s_mul_i32 s74, s72, 458752"); srd(A, sWO, 52, 74, 458752)
    A("s_lshl_b32 s70, s68, 3"); A("s_add_u32 s70, s70, s71"); A("s_lshl_b32 s70, s70, 1"); A("s_add_u32 s70, s70, s69")
    A("s_mov_b32 s73, s72")
    A("s_lshl_b32 s74, s70, 3"); A("s_add_u32 s74, s74, s73")
    A(f"s_mul_i32 s74, s74, {SLAB}"); srd(A, sPT, 64, 74, SLAB)
    A(f"s_lshr_b32 s86, s{sWave}, 1"); A(f"s_and_b32 s87, s{sWave}, 1")
    if cfg.psync:
        A("s_lshl_b32 s74, s66, 4"); A("s_lshr_b32 s75, s67, 1"); A("s_add_u32 s74, s74, s75"); A("s_lshl_b32 s74, s74, 2")
        A(f"s_add_u32 s74, s74, s{sWave}"); A("s_lshl_b32 s74, s74, 7"); A("s_add_u32 s74, s74, 0x2000000")
        A(f"s_add_u32 s{sSy}, s64, s74"); A(f"s_addc_u32 s{sSy+1}, s65, 0")
        A(f"s_lshl_b32 s{sSign}, s69, 1"); A(f"s_sub_u32 s{sSign}, 1, s{sSign}")
        A(f"s_sub_u32 s{sOld}, 0, s69")
        A(f"s_atomic_and s{sOld}, s[{sSy}:{sSy+1}], 0x0")
    A("s_mov_b32 s3, 0")
    if cfg.fuse:
        A("s_load_dwordx4 s[56:59], s[0:1], 80")
        A("s_memrealtime s[60:61]")
    A("v_lshrrev_b32 v67, 4, v64"); A("v_bfe_u32 v68, v64, 2, 2"); A("v_and_b32 v69, 3, v64"); A("v_and_b32 v70, 15, v64")
    A("v_lshlrev_b32 v73, 1, v65"); A("v_xor_b32 v73, v73, v66"); A("v_lshlrev_b32 v74, 9, v65")
    if cfg.ilv:
        A("s_lshl_b32 s87, s87, 1"); A("v_xor_b32 v75, s87, v73"); A(f"v_lshl_add_u32 v{vVD}, v75, 4, v74")
    for k in range(0 if cfg.ilv else 4):
        A(f"v_xor_b32 v75, {4*k}, v73"); A(f"v_lshl_add_u32 v{vVD+k}, v75, 4, v74")
    A("v_bfe_u32 v76, v64, 2, 3")
    A("v_lshl_add_u32 v73, v67, 3, v68"); A("v_lshlrev_b32 v73, 9, v73"); A("v_lshl_add_u32 v73, v69, 3, v73")
    A(f"s_mul_i32 s74, s86, {VRING - KRING}"); A(f"s_add_u32 s74, s74, {KRING}"); A("v_add_u32 v73, s74, v73")
    for j in range(8):
        A(f"v_xor_b32 v75, {j}, v76"); A(f"v_lshl_add_u32 v{vQA+j}, v75, 5, v73")
    A("v_lshlrev_b32 v73, 7, v70"); A("s_lshl_b32 s74, s87, 12"); A("v_add_u32 v73, s74, v73")
    A("v_lshrrev_b32 v74, 1, v70"); A("v_xor_b32 v74, v74, v67")
    for kt in range(2):
        A(f"v_xor_b32 v75, {4*kt}, v74"); A(f"v_lshl_add_u32 v{vXA+kt}, v75, 4, v73")
    A("v_lshrrev_b32 v73, 2, v64"); A("v_lshlrev_b32 v73, 9, v73"); A("v_lshl_add_u32 v73, v69, 3, v73"); A(f"v_add_u32 v73, {VRING}, v73")
    for j in range(8):
        A(f"v_xor_b32 v75, {j}, v76"); A(f"v_lshl_add_u32 v{vVB+j}, v75, 5, v73")
    A("v_lshlrev_b32 v73, 9, v70"); A(f"v_add_u32 v73, {KRING}, v73"); A("v_xor_b32 v74, v67, v70")
    for j in range(4):
        A(f"v_xor_b32 v75, {4*j}, v74"); A(f"v_lshl_add_u32 v{vKB+j}, v75, 4, v73")
    A(f"v_lshlrev_b32 v73, 4, v64"); A(f"v_add_u32 v{vST}, s{sW14K}, v73")
    A("v_mul_u32_u24 v74, 896, v71"); A("v_lshlrev_b32 v75, 1, v67"); A("v_xor_b32 v75, v75, v72"); A("v_lshl_add_u32 v74, v75, 4, v74")
    for k in range(4):
        A(f"v_add_u32 v75, {k*(8*896-1024)}, v74"); A(f"v_accvgpr_write_b32 a{PARK+k}, v75")
    A("v_lshrrev_b32 v74, 2, v64"); A("v_lshlrev_b32 v74, 7, v74"); A("v_lshl_add_u32 v74, v69, 3, v74"); A("v_and_b32 v77, 3, v71")
    A("s_lshl_b32 s74, s86, 1"); A("v_xor_b32 v77, s74, v77")
    for nb in range(2):
        A(f"v_xor_b32 v75, {nb}, v77"); A(f"v_lshl_add_u32 v75, v75, 5, v74")
        A(f"v_add_u32 v78, {KRING}, v75"); A(f"v_accvgpr_write_b32 a{PARK+4+nb}, v78")
        A(f"v_add_u32 v78, {VRING}, v75"); A(f"v_accvgpr_write_b32 a{PARK+6+nb}, v78")
    A(f"s_mul_i32 s74, s87, {VRING + wslot(3, 1) - KRING - wslot(3, 0)}"); A(f"s_add_u32 s74, s74, {KRING + wslot(3, 0)}")
    A("s_lshl_b32 s75, s87, 14")
    A("v_add_u32 v78, s74, v73"); A(f"v_accvgpr_write_b32 a{PARK+9}, v78")
    A("v_add_u32 v78, s75, v73"); A(f"v_accvgpr_write_b32 a{PARK+10}, v78")
    A("s_cmp_eq_u32 s86, 0"); A("s_cselect_b32 s74, s74, s75")
    A("v_add_u32 v78, s74, v73"); A(f"v_accvgpr_write_b32 a{PARK+8}, v78")
    A("v_min_u32 v74, 55, v64"); A("v_lshlrev_b32 v74, 7, v74"); A(f"v_mov_b32 v{vQW}, v74")
    A("s_and_b32 s77, s70, 15"); A("s_lshl_b32 s77, s77, 2"); A(f"s_add_u32 s77, s77, s{sWave}"); A(f"s_mul_i32 s77, s77, {56*128}")
    if "l" in cfg.touch:
        A(f"v_lshlrev_b32 v{vQW}, 4, v64"); A(f"v_add_u32 v{vQW}, {cfg.LOFF*1024}, v{vQW}"); A(f"s_sub_u32 s77, s77, {(cfg.LOFF+1+cfg.LSKIP)*1024}")
    return L

def tail_prep_salu(cfg):
    chunks = []
    def chunk():
        L = []; chunks.append(L)
        return lambda t: L.append(salu(t))
    A = chunk(); A("s_memrealtime s[62:63]")
    A(f"s_mul_i32 s74, s70, {8*SLAB}")
    A = chunk(); srd(A, 4, 64, 74, 8*SLAB)
    A = chunk(); A("s_mov_b32 s74, 0"); srd(A, 8, 56, 74, 1835008)
    A = chunk(); srd(A, 16, 58, 74, 256)
    A = chunk(); A("s_mov_b32 s74, 0x2400000"); srd(A, 12, 64, 74, 65536)
    A = chunk()
    A("s_lshl_b32 s67, s70, 2")
    A(f"s_lshr_b32 s66, s{sWave}, 1"); A("s_lshl_b32 s66, s66, 5"); A("s_add_u32 s66, s66, s70"); A("s_lshl_b32 s66, s66, 10")
    A = chunk()
    A(f"s_add_u32 s60, s60, {2000 if not cfg.force_abandon else 0x7fffffff}"); A("s_addc_u32 s61, s61, 0")
    A("s_mov_b32 s54, s60"); A("s_add_u32 s55, s61, 1")
    A = chunk()
    A("s_mov_b32 s52, 0x3f80"); A("s_mov_b32 s53, 0x3f800000"); A("s_mov_b32 s49, 32768")
    A("s_lshl_b32 s72, s70, 3"); A("s_add_u32 s72, s72, s73"); A("s_lshl_b32 s72, s72, 7")
    A(f"s_lshl_b32 s69, s{sWave}, 28"); A("s_add_u32 s72, s72, s69")
    return chunks

def tail_prep_valu(cfg):
    L = []
    def A(t, w, r=()): L.append(valu(t, rd=[("v", x) for x in r], wr=V(w)))
    A("v_mbcnt_lo_u32_b32 v0, -1, 0", 0); A("v_mbcnt_hi_u32_b32 v0, -1, v0", 0, [0])
    A("v_lshlrev_b32 v1, 4, v0", 1, [0])
    A("v_and_b32 v6, 7, v0", 6, [0]); A("v_lshlrev_b32 v5, 7, v6", 5, [6]); A("v_and_b32 v6, 15, v0", 6, [0])
    A("v_mul_u32_u24 v8, 1792, v6", 8, [6]); A("v_lshrrev_b32 v6, 4, v0", 6, [0]); A("v_lshl_add_u32 v8, v6, 4, v8", 8, [6, 8])
    A("v_lshlrev_b32 v12, 20, v0", 12, [0]); A("v_add_u32 v12, s72, v12", 12, [12])
    A("v_mov_b32 v4, 1", 4); A("v_mov_b32 v2, s62", 2); A("v_mov_b32 v3, s63", 3)
    return L

def tail_code(cfg):
    L = []; A = L.append
    A("buffer_load_dwordx2 v[6:7], v5, s[12:15], s66 offen sc1")
    A(f"s_mov_b32 s69, {cfg.ptime}")
    A("s_waitcnt vmcnt(0)")
    if cfg.stamp: A("s_memrealtime s[96:97]")
    A("s_barrier")
    A("buffer_store_dwordx2 v[2:3], v12, s[12:15], s49 offen sc1")
    if cfg.ppoll:
        regs = [6, 14, 48, 50][:cfg.ppoll]
        n = len(regs)
        A("s_waitcnt vmcnt(1)")
        A("v_cmp_le_u64 vcc, s[60:61], v[6:7]")
        A("v_cmp_ge_u64 s[74:75], s[54:55], v[6:7]")
        A("s_and_b64 vcc, vcc, s[74:75]")
        A("s_cmp_eq_u64 vcc, exec")
        A("s_cbranch_scc1 L_go")
        for k, r in enumerate(regs):
            if k: A(f"s_sleep {cfg.psl}")
            A(f"buffer_load_dwordx2 v[{r}:{r+1}], v5, s[12:15], s66 offen sc1")
        A("L_poll:")
        for k, r in enumerate(regs):
            A(f"s_waitcnt vmcnt({n-1})")
            A(f"v_cmp_le_u64 vcc, s[60:61], v[{r}:{r+1}]")
            A(f"v_cmp_ge_u64 s[74:75], s[54:55], v[{r}:{r+1}]")
            A("s_and_b64 vcc, vcc, s[74:75]")
            A("s_cmp_eq_u64 vcc, exec")
            A("s_cbranch_scc1 L_go")
            A(f"buffer_load_dwordx2 v[{r}:{r+1}], v5, s[12:15], s66 offen sc1")
        A("s_sub_u32 s69, s69, 1")
        A("s_cmp_lg_u32 s69, 0")
        A("s_cbranch_scc1 L_poll")
    else:
        A("s_branch L_chk")
        A("L_poll:")
        A("buffer_load_dwordx2 v[6:7], v5, s[12:15], s66 offen sc1")
        A("s_waitcnt vmcnt(0)")
        A("L_chk:")
        A("v_cmp_le_u64 vcc, s[60:61], v[6:7]")
        A("v_cmp_ge_u64 s[74:75], s[54:55], v[6:7]")
        A("s_and_b64 vcc, vcc, s[74:75]")
        A("s_cmp_eq_u64 vcc, exec")
        A("s_cbranch_scc1 L_go")
        A("s_sub_u32 s69, s69, 1")
        A("s_cmp_lg_u32 s69, 0")
        A("s_cbranch_scc1 L_poll")
    A("s_add_u32 s74, s73, 8"); A("s_lshl_b32 s74, 1, s74")
    A("v_mov_b32 v9, s74")
    A("s_mov_b64 exec, 1"); A("s_nop 1")
    A("buffer_atomic_or v9, off, s[16:19], s67 sc0 sc1")
    A("s_waitcnt vmcnt(0)")
    A("s_mov_b64 exec, -1"); A("s_nop 3")
    A("v_readfirstlane_b32 s74, v9")
    A("s_and_b32 s74, s74, 0xff")
    A("s_cmp_lg_u32 s74, 8")
    A("s_cbranch_scc1 L_fin")
    A("L_go:")
    if cfg.stamp: A("s_memrealtime s[38:39]"); A("s_mov_b32 s37, s69"); A("s_waitcnt lgkmcnt(0)")
    A("s_mov_b32 s50, s73"); A(f"s_mov_b32 s51, s{sWave}")
    A(f"s_call_b64 s[{sRet}:{sRet+1}], L_red")
    A("L_fin:")
    if cfg.stamp: A("s_waitcnt lgkmcnt(0)")
    A(f"s_cmp_lg_u32 s{sWave}, 1")
    A("s_cbranch_scc1 L_done")
    A("s_mov_b64 exec, 1"); A("s_nop 1")
    A("buffer_atomic_add v4, off, s[16:19], s67 sc0 sc1")
    A("s_waitcnt vmcnt(0)")
    A("s_mov_b64 exec, -1"); A("s_nop 3")
    A("v_readfirstlane_b32 s48, v4")
    A("s_and_b32 s74, s48, 0xff")
    A("s_cmp_lg_u32 s74, 7")
    A("s_cbranch_scc1 L_done")
    A("s_bfe_u32 s48, s48, 0x80008")
    A("L_redo:")
    A("s_cmp_eq_u32 s48, 0")
    A("s_cbranch_scc1 L_done")
    A("s_ff1_i32_b32 s50, s48")
    A("s_bitset0_b32 s48, s50")
    A("s_mov_b32 s51, 0")
    A("L_redo1:")
    A(f"s_call_b64 s[{sRet}:{sRet+1}], L_red")
    A("s_add_u32 s51, s51, 1")
    A("s_cmp_lt_u32 s51, 4")
    A("s_cbranch_scc1 L_redo1")
    A("s_branch L_redo")
    A("L_done:")
    return L

def red_code(cfg):
    L = []; A = L.append
    A("L_red:")
    A("s_lshr_b32 s74, s50, 1"); A("s_mul_i32 s44, s74, 14336")
    A("s_and_b32 s75, s50, 1"); A("s_lshl_b32 s75, s75, 10"); A("s_add_u32 s44, s44, s75")
    A("s_lshl_b32 s75, s51, 12"); A("s_add_u32 s44, s44, s75")
    A("s_cmp_eq_u32 s51, 3")
    A("s_cselect_b32 s46, 0x40000000, 2048"); A("s_cselect_b32 s47, 0x40000000, 128")
    A("v_add_u32 v10, s46, v1"); A("v_add_u32 v11, s47, v8")
    for st, (base, vo) in enumerate(((128, 1), (64, 10))):
        A("s_mov_b32 s45, s44")
        for h in range(8):
            A(f"buffer_load_dwordx4 v[{base+4*h}:{base+4*h+3}], v{vo}, s[4:7], s45 offen sc1")
            if h < 7: A(f"s_add_u32 s45, s45, {SLAB}")
    A("s_and_b32 s45, s70, 15"); A("s_lshl_b32 s45, s45, 2"); A("s_and_b32 s75, s50, 3"); A("s_add_u32 s45, s45, s75"); A(f"s_mul_i32 s45, s45, {16*1792}")
    A("s_mul_i32 s75, s68, 896"); A("s_add_u32 s45, s45, s75")
    A("s_lshl_b32 s75, s51, 8"); A("s_add_u32 s45, s45, s75")
    A("s_lshr_b32 s75, s50, 2"); A("s_lshl_b32 s75, s75, 6"); A("s_add_u32 s45, s45, s75")
    for st, (base, vo, acc) in enumerate(((128, 8, 16), (64, 11, 32))):
        for k in range(8): A(f"v_mov_b32 v{acc+k}, 0")
        for h in range(8):
            A(f"s_waitcnt vmcnt({(15 - h) if st == 0 else (7 - h)})")
            for k in range(4):
                A(f"v_dot2c_f32_bf16 v{acc+2*k}, s52, v{base+4*h+k}")
                A(f"v_dot2c_f32_bf16 v{acc+2*k+1}, s53, v{base+4*h+k}")
        A("s_nop 2")
        for k in range(4): A(f"v_cvt_pk_bf16_f32 v{acc+8+k}, v{acc+2*k}, v{acc+2*k+1}")
        A("s_nop 1")
        A(f"v_permlane32_swap_b32 v{acc+8}, v{acc+10}"); A(f"v_permlane32_swap_b32 v{acc+9}, v{acc+11}")
        A("s_nop 1")
        A(f"v_permlane16_swap_b32 v{acc+8}, v{acc+10}"); A(f"v_permlane16_swap_b32 v{acc+9}, v{acc+11}")
        A(f"buffer_store_dwordx4 v[{acc+8}:{acc+11}], v{vo}, s[8:11], s45 offen")
    A(f"s_setpc_b64 s[{sRet}:{sRet+1}]")
    return L

def rare_code(par, has_next):
    ins = [I("s_nop 9", "nop")]
    for qb in range(2):
        ins += rowmax_instrs(par, qb, vD, vF)
        ins.append(valu(f"v_max_f32 v{vD}, 0, v{vD}", rd=V(vD), wr=V(vD)))
        ins.append(valu(f"v_sub_f32 v{vF}, 0, v{vD}", rd=V(vD), wr=V(vF)))
        ins.append(trans(f"v_exp_f32 v{vF}, v{vF}", rd=V(vF), wr=V(vF)))
        regs = [NEGM + 4*qb + k for k in range(4)] + [sreg(par, kb, qb) + k for kb in range(2) for k in range(4)]
        if has_next: regs += [sreg(1 - par, kb, qb) + k for kb in range(2) for k in range(4)]
        for r in regs: ins.append(valu(f"v_sub_f32 v{r}, v{r}, v{vD}", rd=V(r)+V(vD), wr=V(r)))
        for r in [vL + qb] + [oreg(db, qb) + k for db in range(16) for k in range(4)]:
            ins.append(valu(f"v_mul_f32 v{r}, v{r}, v{vF}", rd=V(r)+V(vF), wr=V(r)))
    ins += sm_instrs(par)
    ins.append(I("s_nop 1", "nop"))
    ins.append(I(f"s_setpc_b64 s[{sRet}:{sRet+1}]", "salu"))
    segs, _ = hazard_pass([("rare", ins)])
    return [x.t for x in segs[0][1]]

def reduce_kernel(cfg):
    L = []; A = L.append
    A(".p2align 8")
    A("reduce_kernel:")
    A("s_cmp_ge_u32 s2, 448")
    A("s_cbranch_scc1 L_rexit")
    A("s_load_dwordx2 s[4:5], s[0:1], 96")
    A("s_load_dwordx2 s[6:7], s[0:1], 80")
    A("s_mul_hi_u32 s16, s2, 0x924924a")
    A("s_mul_i32 s17, s16, 28"); A("s_sub_u32 s17, s2, s17")
    A("s_mul_hi_u32 s18, s17, 0x24924925")
    A("s_mul_i32 s19, s18, 7"); A("s_sub_u32 s19, s17, s19")
    A("v_lshlrev_b32 v1, 4, v0")
    A("s_lshl_b32 s20, s17, 12")
    A("v_add_u32 v1, s20, v1")
    A("s_mul_i32 s21, s16, 1835008"); A(f"s_add_u32 s21, s21, {cfg.wsoff}")
    A("s_waitcnt lgkmcnt(0)")
    A("s_add_u32 s8, s4, s21"); A("s_addc_u32 s9, s5, 0"); A("s_and_b32 s9, s9, 0xffff")
    A("s_mov_b32 s10, 1835008"); A("s_mov_b32 s11, 0x20000")
    A("s_mov_b32 s12, s6"); A("s_and_b32 s13, s7, 0xffff"); A("s_mov_b32 s14, 1835008"); A("s_mov_b32 s15, 0x20000")
    A("s_mov_b32 s22, 0")
    for h in range(16):
        A(f"buffer_load_dwordx4 v[{16+4*h}:{19+4*h}], v1, s[8:11], s22 offen{cfg.rd_flags}")
        if h < 15: A("s_add_u32 s22, s22, 114688")
    A("v_and_b32 v2, 15, v0")
    A("v_lshrrev_b32 v3, 7, v0"); A("v_lshl_add_u32 v2, v3, 4, v2")
    A("s_and_b32 s23, s16, 7"); A("s_lshl_b32 s23, s23, 7"); A("s_lshl_b32 s24, s18, 5"); A("s_add_u32 s23, s23, s24")
    A("v_add_u32 v2, s23, v2")
    A("v_mul_u32_u24 v2, 1792, v2")
    A("v_bfe_u32 v3, v0, 4, 3")
    A("v_lshl_add_u32 v2, v3, 4, v2")
    A("s_lshr_b32 s23, s16, 3"); A("s_mul_i32 s23, s23, 896"); A("s_lshl_b32 s24, s19, 7"); A("s_add_u32 s23, s23, s24")
    for h in range(16):
        A(f"s_waitcnt vmcnt({15-h})")
        for k in range(4):
            src = 16 + 4*h + k
            if h == 0:
                A(f"v_lshlrev_b32 v{4+2*k}, 16, v{src}"); A(f"v_and_b32 v{5+2*k}, 0xffff0000, v{src}")
            else:
                A(f"v_lshlrev_b32 v12, 16, v{src}"); A(f"v_and_b32 v13, 0xffff0000, v{src}")
                A(f"v_add_f32 v{4+2*k}, v{4+2*k}, v12"); A(f"v_add_f32 v{5+2*k}, v{5+2*k}, v13")
    for k in range(4):
        A(f"v_cvt_pk_bf16_f32 v{12+k}, v{4+2*k}, v{5+2*k}")
    A("s_nop 1")
    A("v_permlane32_swap_b32 v12, v14"); A("v_permlane32_swap_b32 v13, v15")
    A("s_nop 1")
    A("v_permlane16_swap_b32 v12, v14"); A("v_permlane16_swap_b32 v13, v15")
    A("buffer_store_dwordx4 v[12:15], v2, s[12:15], s23 offen")
    A("L_rexit:")
    A("s_endpgm")
    return L

FLEX = ("v_exp_f32", "v_add_f32", "v_max_f32", "v_mul_f32", "v_sub_f32", "v_mov_b32", "v_rcp_f32")
def isize(t):
    op = t.split()[0]
    if op.endswith(":") or op.startswith(";") or op.startswith("."): return 0
    if op.startswith(("v_mfma", "ds_", "buffer_", "v_cvt_pk", "v_accvgpr", "v_max3", "s_atomic", "s_load", "s_mem", "v_writelane")) or op.endswith("_e64"): return 8
    import re
    lits = [x for x in re.findall(r"(?<![\w\[:(])(-?0x[0-9a-f]+|-?\d+)(?![\w\]:)])", t[len(op):])]
    if op.startswith(("s_waitcnt", "s_nop", "s_barrier", "s_cbranch", "s_branch", "s_sleep", "s_call")): return 4
    for x in lits:
        v = int(x, 0)
        if not -16 <= v <= 64: return 8
    return 4
def align8(L, mode):
    out = []; off = 0; on = False
    for k, t in enumerate(L):
        if t == "L_loop:": on = True; off = 0
        if on and t.split()[0] in FLEX and isize(t) == 4:
            n4 = 0; flexnext = False
            for u in L[k + 1:]:
                sz = isize(u)
                if sz == 0: continue
                if u.split()[0] in FLEX and sz == 4: flexnext = True; break
                if sz == 8: break
                n4 += 1
            if not flexnext and (off + 4 + 4 * n4) % 8 != 0:
                t = t.replace(t.split()[0], t.split()[0] + "_e64", 1)
        out.append(t); off += isize(t)
        if t == "s_cbranch_scc1 L_loop": on = False
    return out

def insert_pads(L, KN, rounds=False):
    import subprocess, re, tempfile, os
    def addrs(lines):
        out = []; cand = []
        inloop = False
        for i, t in enumerate(lines):
            out.append(t)
            if t == "L_loop:": inloop = True
            if t == "s_cbranch_scc1 L_loop": inloop = False
            if (t.startswith("v_mfma") or t.startswith("v_dot2c")) and not inloop:
                out.append(f"LC_{i}:"); cand.append(i)
        txt = "\n".join(out) + "\n"
        for w in range(12):
            if f"L_pad{w}:" not in txt: txt = txt.replace("L_hopback:", f"L_pad{w}:\nL_hopback:")
        d = tempfile.mkdtemp()
        open(d + "/a.s", "w").write(txt)
        subprocess.run(["clang", "-x", "assembler", "-target", "amdgcn-amd-amdhsa", "-mcpu=gfx950", "-c", d + "/a.s", "-o", d + "/a.o"], check=True)
        o = subprocess.run(["llvm-objdump", "-t", d + "/a.o"], capture_output=True, text=True).stdout
        a = {}
        for m in re.finditer(r"^([0-9a-f]+) .* \.text\s+[0-9a-f]+ (?:\.\w+ )?(\w+)$", o, flags=re.M): a[m.group(2)] = int(m.group(1), 16)
        return {i: a[f"LC_{i}"] - a[KN] for i in cand}, a["L_hopback"] - a[KN]
    lines = list(L)
    pads = []
    page = None
    while True:
        ad, hb = addrs(lines)
        if page is None: page = hb // 4096 + 1
        c = [i for i in sorted(ad) if ad[i] >= page * 4096]
        if not c: break
        i = c[0]
        if ad[i] - page * 4096 > 256: page += 1; continue
        lines.insert(i + 1, f"PAD {len(pads)}")
        lines[i + 1] = "s_nop 0 ;PAD"
        pads.append(page); page += 1
    n = len(pads); k = 0
    res = []
    for t in lines:
        if t == "s_nop 0 ;PAD":
            res.append(f"L_pad{k}:")
            if rounds: res.append(f"s_cbranch_execz L_hopback{k // 4 if k >= 4 else ''}")
            else: res.append(f"s_cbranch_execz {'L_pad%d' % (k + 4) if k + 4 < n else 'L_hopback'}")
            k += 1
        elif rounds and t == "L_hopback2:":
            assert n <= 12
            for z in range(n, 12): res.append(f"L_pad{z}:")
            res.append(t)
        else: res.append(t)
    sys.stderr.write(f"pads: {n}\n")
    return res

def generate(cfg):
    if cfg.fuse and "sc1" not in cfg.st_flags and not cfg.wbl2: cfg.st_flags += " sc1"
    B = build_bodies(cfg)
    for b in B:
        if b.name == cfg.parkb:
            ins = []
            for k in range(4): ins.append(valu(f"v_accvgpr_read_b32 v{vWD+k}, a{PARK+k}", wr=V(vWD+k)))
            for k in range(7): ins.append(valu(f"v_accvgpr_read_b32 v{vQA+k}, a{PARK+4+k}", wr=V(vQA+k)))
            if cfg.spare:
                for k in range(4): ins.append(valu(f"v_accvgpr_read_b32 v{vXD+k}, a{PARK+12+k}", wr=V(vXD+k)))
            b.valu.append((ins, cfg.parkg0, cfg.parkg1))
    for b in B:
        if b.name == cfg.otouch and "o" in cfg.touch:
            b.dma = b.dma + [[I(f"buffer_load_dword v62, v{vQW}, s[{sWO}:{sWO+3}], s77 offen{cfg.o_flags}", "dma", rd=V(vQW), tag=("T", 1))]]
    for b in B:
        if b.name == cfg.otouch and "p" in cfg.touch:
            b.dma = b.dma + [[I(f"buffer_load_dwordx4 a[{240+4*(j%2)}:{243+4*(j%2)}], v{vWD}, s[{sWO}:{sWO+3}], s77 offen offset:{128*j}{cfg.o_flags}", "dma", rd=V(vWD), tag=("T", 1))
                              for j in range(cfg.PJ0, 7)]]
    for b in B:
        if "l" in cfg.touch and b.name[0] == "a" and 2 <= int(b.name[1:]) <= 57 and int(b.name[1:]) % 4 == 0:
            x = I(f"buffer_load_dwordx4 a[240:243], v{vQW}, s[{sWO}:{sWO+3}], s77 offen{cfg.o_flags}", "dma", rd=V(vQW), tag=("T", 1))
            x.pre = [salu("s_add_u32 s77, s77, 1024")]
            b.dma = b.dma + [[x]]
    raw = lambda lines: [I(t, "raw") for t in lines]
    tc = [touch_code(cfg)]
    init = []
    def expand(spec):
        out = []
        for tok in spec.split(","):
            if not tok: continue
            if tok == "S": out += tc + [raw(kd_code(cfg))] + [raw(setup_code2(cfg))]
            elif tok == "T": out += [raw(stouch_setup())]
            elif tok[0] == "D": out += g_stage(int(tok[1]), cfg)
            elif tok[0] == "P": out += [stouch(int(tok[1]), cfg)]
            elif tok[0] == "K": out += [g_k(int(tok[1]), cfg)]
            elif tok[0] == "V": out += [g_v(int(tok[1]), cfg)]
            elif tok == "W":
                out += [[I(f"buffer_load_dword a{248+i}, off, s[{r}:{r+3}], s{sW4K} nt", "dma", tag=("T", 4)) for i, r in enumerate((sK, sV, sWO, sPT)[:cfg.nwarm])]]
        return out
    pfl = []
    for ent in [e for e in cfg.pf.split(",") if e]:
        bn, tile = ent.split(":")
        g = [I(f"buffer_load_dwordx4 a[{240+4*(k%2)}:{243+4*(k%2)}], v{vQW}, s[84:87], s{sTmp2} offen{' offset:%d' % (1024*k) if k else ''}", "dma", rd=V(vQW), tag=("T", 3)) for k in range(4)]
        if tile[0] == "h": tile = tile[1:]; g = g[:2]
        g[0].pre = [salu(f"s_add_u32 s{sTmp2}, s{sW4K}, {int(tile)*16384}")]
        pfl.append((bn, g))
    parts = cfg.order.split("|")
    pre = expand(parts[0]); first = expand(parts[1])
    for k in range(len(parts) - 2):
        keep = B[k].dma if k >= 7 else [g for g in B[k].dma if g[0].tag[0] == "T"]
        B[k].dma = expand(parts[2 + k]) + keep
    for bn, g in pfl:
        b = [x for x in B if x.name == bn][0]
        b.dma = b.dma + [g]
    segs = schedule(B, cfg, pre, first)
    segs, nn = hazard_pass(segs)
    txt = {name: [x.t for x in lst] for name, lst in segs}
    names = [n for n, _ in segs]
    lo = None
    for n in range(0, 30):
        if all(txt[f"a{k}"] == txt[f"a{k+4}"] for k in range(n, n + 8)):
            lo = n; break
    assert lo is not None, "no periodic steady state"
    last = lo
    while last + 4 <= 63 and txt[f"a{last+4}"] == txt[f"a{last}"]: last += 1
    last += 3
    nit = (last - lo + 1) // 4
    lo = last + 1 - 4 * nit
    sys.stderr.write(f"loop bodies {lo}..{last} ({nit} iterations), nops inserted {nn}\n")
    L = []; A = L.append
    KN = "attn_kernel"
    if cfg.fuse == 2:
        KN = NAME + "_kernel"
        A("; @launch grid=(256,1,1) block=(256,1,1) lds=163840")
    else:
        A("; @launch kernel=attn_kernel grid=(256,1,1) block=(256,1,1) lds=163840")
    if not cfg.fuse: A("; @launch kernel=reduce_kernel grid=(448,1,1) block=(256,1,1) lds=0")
    A('.amdgcn_target "amdgcn-amd-amdhsa--gfx950"')
    A(".text"); A(f".globl {KN}"); A(".p2align 12" if cfg.hop else ".p2align 8"); A(f".type {KN},@function"); A(f"{KN}:")
    L += setup_code(cfg)
    tramps = []; syncs = []; bs = [0]
    def emit_seg(name):
        A(f"; ---- {name}")
        for t in txt[name]:
            if t.startswith("RARE"):
                _, par, nx = t.split()
                lab = f"L_t_{name.replace('-','m')}"
                A(f"s_cbranch_vccnz {lab}"); A(f"{lab}_back:")
                tramps.append((lab, par, nx))
            elif t == "SWAP":
                lab = f"L_sw_{name}"
                A("s_bitcmp0_b32 s73, 0"); A(f"s_cbranch_scc1 {lab}")
                for k in range(4): A(f"v_swap_b32 v{vKD+k}, v{vVD+k}")
                for a, b2 in ((sK, sV), (sK + 1, sV + 1), (sKoff, sVoff), (sKb, sVb)):
                    A(f"s_mov_b32 s74, s{a}"); A(f"s_mov_b32 s{a}, s{b2}"); A(f"s_mov_b32 s{b2}, s74")
                A(f"{lab}:")
            elif t.startswith("HOPR"):
                r = int(t.split()[1])
                A("s_nop 4")
                A("s_mov_b64 exec, 0")
                for w in range(3):
                    A(f"s_cmp_eq_u32 s{sWave}, {w}"); A(f"s_cbranch_scc1 L_pad{4*r+w}")
                A(f"s_branch L_pad{4*r+3}")
                A("L_hopback:" if r == 0 else f"L_hopback{r}:")
                A("s_mov_b64 exec, -1")
                A("s_nop 4")
            elif t == "HOP":
                A("s_mov_b64 exec, 0")
                for w in range(3):
                    A(f"s_cmp_eq_u32 s{sWave}, {w}"); A(f"s_cbranch_scc1 L_pad{w}")
                A("s_branch L_pad3")
                A("L_hopback:")
                A("s_mov_b64 exec, -1")
            elif t == "SYNC":
                lab = f"L_s_{name.replace('-','m')}"
                A(f"s_cmp_gt_i32 s{sDif}, 0"); A(f"s_cbranch_scc1 {lab}"); A(f"{lab}_back:")
                syncs.append(lab)
            else: A(t)
    for name in names:
        if name.startswith("a"):
            n = int(name[1:])
            if lo <= n <= last:
                if n == lo:
                    if cfg.lstamp:
                        A("v_mbcnt_lo_u32_b32 v66, -1, 0"); A("v_mbcnt_hi_u32_b32 v66, -1, v66"); A("v_mov_b32 v67, 0")
                        A("s_memrealtime s[98:99]"); A("s_waitcnt lgkmcnt(0)")
                    if cfg.linear:
                        A("v_mbcnt_lo_u32_b32 v69, -1, 0"); A("v_mbcnt_hi_u32_b32 v69, -1, v69")
                        for r in range(vKD, vKD + 8): A(f"v_lshlrev_b32 v{r}, 4, v69")
                    if "h" in cfg.strip:
                        A("s_and_b32 s74, s73, 1"); A("s_lshl_b32 s74, s74, 11"); A(f"s_add_u32 s{sKoff}, s{sKoff}, s74"); A(f"s_add_u32 s{sVoff}, s{sVoff}, s74")
                    A(f"s_mov_b32 s{sCnt}, {nit}"); A(f".p2align {cfg.lalign}"); [A("s_nop 0") for _ in range(cfg.lshift)]; A("L_loop:")
                    if cfg.lstamp:
                        A("v_mov_b32 v68, s98"); A(f"v_cmp_eq_u32 vcc, s{sCnt}, v66"); A("s_memrealtime s[98:99]"); A("s_nop 0")
                        A("v_cndmask_b32 v67, v67, v68, vcc"); A("v_mov_b32 v63, v67")
                if n < lo + 4:
                    def keep(t):
                        if "d" in cfg.strip and t.startswith("buffer_load"): return False
                        if "h" in cfg.strip and t.startswith("buffer_load") and ("offset:2048" in t or "offset:3072" in t): return False
                        if "b" in cfg.strip and t.startswith("s_barrier"): return False
                        if "w" in cfg.strip and t.startswith("s_waitcnt lgkm"): return False
                        if "r" in cfg.strip and t.startswith("ds_read"): return False
                        if "s" in cfg.strip and t.split()[0] in ("v_exp_f32", "v_add_f32", "v_cvt_pk_bf16_f32"): return False
                        return True
                    txt[name] = [t for t in txt[name] if keep(t)]
                    if "h" in cfg.strip: txt[name] = [t.replace("vmcnt(16)", "vmcnt(8)") for t in txt[name]]
                    if cfg.pace:
                        nt = []
                        for t in txt[name]:
                            nt.append(t)
                            if t == "s_barrier": nt += ["s_nop 15"] * cfg.pace
                        txt[name] = nt
                    if n == lo + 3:
                        txt[name].insert(1, f"s_sub_u32 s{sCnt}, s{sCnt}, 1")
                    emit_seg(name)
                    if n == lo + 3:
                        A(f"s_cmp_lg_u32 s{sCnt}, 0"); A("s_cbranch_scc1 L_loop")
                continue
        if cfg.bstamp and name != "pre":
            head = name.startswith("qp") or (name.startswith("a") and int(name[1:]) < 30)
            if head == (cfg.bstamp == 1):
                r = 71 if head else 63
                if bs[0] > 0:
                    A(f"v_writelane_b32 v{r}, s98, {bs[0]-1}"); A(f"v_writelane_b32 v{r}, s26, {bs[0]-1+32}") if not head and False else None
                    if name == "a1": A("v_mov_b32 v63, v71")
                A("s_memtime s[98:99]")
                bs[0] += 1; bs.append(name)
        if cfg.hstamp == 1 and name == "qp0": A("s_memtime s[86:87]")
        if cfg.stamp and not cfg.hstamp and name in ("qp0", "a-2", "op0"):
            i = ["qp0", "a-2", "op0"].index(name)
            A(f"s_memtime s[{[82, 44, 46][i]}:{[83, 45, 47][i]}]") if i < 2 else A("s_memtime s[92:93]")
            if name == "a-2": A("s_memrealtime s[100:101]")
            if name == "op0": A("s_memrealtime s[42:43]"); A("s_mov_b32 s34, s44")
        emit_seg(name)
    if cfg.fuse:
        if cfg.stamp: A("s_memrealtime s[98:99]")
        L += tail_code(cfg)
    if cfg.stamp:
        A("s_waitcnt vmcnt(0)")
        A("s_memtime s[88:89]"); A("s_memrealtime s[90:91]")
        A("s_getreg_b32 s31, hwreg(HW_REG_XCC_ID)"); A("s_getreg_b32 s93, hwreg(HW_REG_HW_ID)")
        A("s_waitcnt lgkmcnt(0)")
        A("s_add_u32 s76, s64, 0x4000000"); A("s_addc_u32 s77, s65, 0"); A("s_and_b32 s77, s77, 0xffff")
        A("s_mov_b32 s78, 0x100000"); A("s_mov_b32 s79, 0x20000")
        A("s_lshl_b32 s74, s2, 2"); A(f"s_add_u32 s74, s74, s{sWave}"); A("s_lshl_b32 s74, s74, 6")
        A("v_mov_b32 v40, 0")
        if cfg.lstamp or cfg.bstamp:
            sys.stderr.write(" ".join(bs[1:]) + "\n")
            A("v_mbcnt_lo_u32_b32 v66, -1, 0"); A("v_mbcnt_hi_u32_b32 v66, -1, v66"); A("v_lshlrev_b32 v66, 2, v66")
            A("s_lshl_b32 s75, s74, 2"); A("s_add_u32 s75, s75, 0x10000")
            A("buffer_store_dword v63, v66, s[76:79], s75 offen")
        for i, r in enumerate([80, 82, 34, 92, 88, 90, 31, 93, 94, 100, 42, 3, 98, 96, 38, 37]):
            A(f"v_mov_b32 v41, s{r}")
            A(f"buffer_store_dword v41, v40, s[76:79], s74 offen offset:{4*i}")
    A("L_exit:"); A("s_endpgm")
    if cfg.fuse: L += red_code(cfg)
    A("L_code_end:")
    A(f".set CODE_BYTES, L_code_end - {KN} - 1024")
    for lab, par, nx in tramps:
        A(f"{lab}:"); A(f"s_call_b64 s[{sRet}:{sRet+1}], L_rare_{par}_{nx}"); A(f"s_branch {lab}_back")
    for lab in syncs:
        A(f"{lab}:"); A(f"s_call_b64 s[{sRet}:{sRet+1}], L_spin"); A(f"s_branch {lab}_back")
    if syncs:
        A("L_spin:")
        if cfg.stamp: A("s_add_u32 s3, s3, 0x10000")
        A("s_mov_b32 s74, 32")
        A("L_spin1:")
        if cfg.stamp: A("s_add_u32 s3, s3, 1")
        A(f"s_load_dword s{sDif}, s[{sSy}:{sSy+1}], 0x0 glc")
        A("s_waitcnt lgkmcnt(0)")
        A(f"s_mul_i32 s{sDif}, s{sDif}, s{sSign}")
        A(f"s_cmp_le_i32 s{sDif}, 0")
        A("s_cbranch_scc1 L_spin2")
        A("s_sub_u32 s74, s74, 1")
        A("s_cmp_lg_u32 s74, 0")
        A("s_cbranch_scc1 L_spin1")
        A(f"s_mov_b32 s{sSign}, 0")
        A("L_spin2:")
        A(f"s_mov_b32 s{sOld}, 0"); A(f"s_mov_b32 s{sOld+1}, 0")
        A(f"s_setpc_b64 s[{sRet}:{sRet+1}]")
    for par, nx in sorted({(p, n) for _, p, n in tramps}):
        A(f"L_rare_{par}_{nx}:")
        L += rare_code(int(par), int(nx))
    if not cfg.fuse: L += reduce_kernel(cfg)
    A('.section .rodata,"a"')
    for kn, nv, acc in ((KN, 512, 256), ("reduce_kernel", 80, 80))[:1 if cfg.fuse else 2]:
        A(".p2align 6"); A(f".amdhsa_kernel {kn}")
        A(f"  .amdhsa_next_free_vgpr {nv}"); A("  .amdhsa_next_free_sgpr 102"); A(f"  .amdhsa_accum_offset {acc}")
        A("  .amdhsa_group_segment_fixed_size 0"); A("  .amdhsa_kernarg_size 104"); A("  .amdhsa_user_sgpr_count 2")
        A("  .amdhsa_user_sgpr_kernarg_segment_ptr 1"); A("  .amdhsa_system_sgpr_workgroup_id_x 1")
        A(".end_amdhsa_kernel")
    if cfg.al8: L = align8(L, cfg.al8)
    if cfg.hop: L = insert_pads(L, KN, bool(cfg.hops))
    return "\n".join(L) + "\n"

if __name__ == "__main__":
    ap = argparse.ArgumentParser()
    ap.add_argument("-o", default=f"cdna_kernels/{NAME}.s")
    ap.add_argument("opts", nargs="*")
    a = ap.parse_args()
    cfg = Cfg()
    for o in a.opts:
        k, v = o.split("=", 1)
        old = getattr(cfg, k)
        if isinstance(old, bool): v = v not in ("0", "false", "False")
        elif isinstance(old, int): v = int(v)
        elif isinstance(old, float): v = float(v)
        elif k.endswith("_flags"): v = " " + v.replace("+", " ") if v else ""
        setattr(cfg, k, v)
    open(a.o, "w").write(generate(cfg))
```
